```python
import torch

def _softmax(x, axis=-1):
    return torch.softmax(x, dim=axis)
def _gelu(x):
    return torch.nn.functional.gelu(x, approximate="tanh")
def _silu(x):
    return torch.nn.functional.silu(x)
def _sigmoid(x):
    return torch.sigmoid(x)
def _layernorm(x, axis=-1, eps=1e-5):
    m = x.mean(dim=axis, keepdim=True)
    v = x.var(dim=axis, keepdim=True, unbiased=False)
    return (x - m) / torch.sqrt(v + eps)
def _scatter_add(tgt, idx, src, axis=0):
    return tgt.clone().index_add_(axis, idx, src)
def _segment_sum(src, seg, n):
    out = torch.zeros((n,) + src.shape[1:], dtype=src.dtype)
    return out.index_add_(0, seg, src)
def _pad(x, pw):
    flat = tuple(v for pair in reversed(pw) for v in pair)
    return torch.nn.functional.pad(x, flat)

kernel_name = 'gated_mix__grouped_kv_mqa__glu_gated_bilinear__prompt'

def setup_inputs():

    _w = (lambda a: (lambda t: t.to(torch.bfloat16) if t.is_floating_point() else t)(torch.as_tensor(a)))
    def _A_setup():
        B, S, D, H = 1, 2048, 512, 32
        Dh = D // H
        return {
            "x": _w((lambda *s: torch.randn(*s, dtype=torch.bfloat16) * 0.05)(B, S, D)),
            "wq": _w((lambda *s: torch.randn(*s, dtype=torch.bfloat16) * 0.8)(D, H * Dh)),
            "wk": _w((lambda *s: torch.randn(*s, dtype=torch.bfloat16) * 0.8)(D, Dh)),
            "wv": _w((lambda *s: torch.randn(*s, dtype=torch.bfloat16) * 0.05)(D, Dh)),
            "wo": _w((lambda *s: torch.randn(*s, dtype=torch.bfloat16) * 0.05)(H * Dh, D)),
        }
    _A_in = _A_setup()

    def _B_setup():
        B, S, D, F = 1, 2048, 512, 1792
        return {
            "x": _w((lambda *s: torch.randn(*s, dtype=torch.bfloat16) * 0.05)(B, S, D)),
            "w_gate": _w((lambda *s: torch.randn(*s, dtype=torch.bfloat16) * 0.8)(D, F) * (D ** -0.5)),
            "w_up": _w((lambda *s: torch.randn(*s, dtype=torch.bfloat16) * 0.8)(D, F) * (D ** -0.5)),
            "w_down": _w((lambda *s: torch.randn(*s, dtype=torch.bfloat16) * 0.8)(F, D) * (F ** -0.5)),
        }
    _B_in = _B_setup()

    return {
        "A_x": _A_in["x"],
        "A_wq": _A_in["wq"],
        "A_wk": _A_in["wk"],
        "A_wv": _A_in["wv"],
        "A_wo": _A_in["wo"],
        "B_x": _B_in["x"],
        "B_w_gate": _B_in["w_gate"],
        "B_w_up": _B_in["w_up"],
        "B_w_down": _B_in["w_down"],
        "gate_w": _w((lambda *s: torch.randn(*s, dtype=torch.bfloat16) * 0.05)(512) * 16.0),
    }

def reference(A_x, A_wq, A_wk, A_wv, A_wo, B_x, B_w_gate, B_w_up, B_w_down, gate_w):
    def _A_ref(x, wq, wk, wv, wo):
        B, S, D = x.shape
        H = 32
        Dh = D // H
        q = (lambda x, *d: x.permute(*d))((x @ wq).reshape(B, S, H, Dh), 0, 2, 1, 3)
        k = x @ wk
        v = x @ wv
        scores = torch.einsum("bhqd,bkd->bhqk", q, k) * (Dh ** -0.5)
        p = _softmax(scores, axis=-1)
        o = torch.einsum("bhqk,bkd->bhqd", p, v)
        return (lambda x, *d: x.permute(*d))(o, 0, 2, 1, 3).reshape(B, S, H * Dh) @ wo

    def _B_ref(x, w_gate, w_up, w_down):
        g = torch.einsum("bsd,df->bsf", x, w_gate)
        u = torch.einsum("bsd,df->bsf", x, w_up)
        h = g * u
        return torch.einsum("bsf,fd->bsd", h, w_down)

    x = A_x
    g = _sigmoid((x * gate_w).sum(-1, keepdims=True))
    a = _A_ref(x, A_wq, A_wk, A_wv, A_wo)
    b = _B_ref(x, B_w_gate, B_w_up, B_w_down)
    return g * a + (1 - g) * b
```

```python
import sys, math, struct

NAME = "gated_mix__grouped_kv_mqa__glu_gated_bilinear__prompt"

WS_QF = 0
WS_AF = 2 << 20
WS_WF = 11 << 20
WS_KV = 14 << 20
WS_G = 15 << 20
WS_NRM = (15 << 20) + 16384
WS_BP = 16 << 20
WS_SIZE = 268435456
KVBLK = 2080

QSCALE = 0.25 * math.log2(math.e)


def f32bits(x):
    return struct.unpack("<I", struct.pack("<f", x))[0]


class Asm:
    def __init__(self):
        self.lines = []

    def __call__(self, s):
        self.lines.append("    " + s)

    def label(self, l):
        self.lines.append(l + ":")

    def raw(self, s):
        self.lines.append(s)

    def nop(self, n):
        while n > 0:
            k = min(n, 16)
            self("s_nop %d" % (k - 1))
            n -= k

    def text(self):
        return "\n".join(self.lines) + "\n"


def vr(b, n=1):
    return "v%d" % b if n == 1 else "v[%d:%d]" % (b, b + n - 1)


def sr(b, n=1):
    return "s%d" % b if n == 1 else "s[%d:%d]" % (b, b + n - 1)


def kernel_begin(a, name):
    a.raw(".text")
    a.raw(".globl %s" % name)
    a.raw(".p2align 8")
    a.raw(".type %s,@function" % name)
    a.label(name)


def kernel_desc(a, name, vgpr, sgpr):
    acc = (vgpr + 3) // 4 * 4
    a.raw(".section .rodata,\"a\"")
    a.raw(".p2align 6")
    a.raw(".amdhsa_kernel %s" % name)
    a.raw("  .amdhsa_next_free_vgpr %d" % vgpr)
    a.raw("  .amdhsa_next_free_sgpr %d" % sgpr)
    a.raw("  .amdhsa_accum_offset %d" % acc)
    a.raw("  .amdhsa_group_segment_fixed_size 0")
    a.raw("  .amdhsa_kernarg_size 104")
    a.raw("  .amdhsa_user_sgpr_count 2")
    a.raw("  .amdhsa_user_sgpr_kernarg_segment_ptr 1")
    a.raw("  .amdhsa_system_sgpr_workgroup_id_x 1")
    a.raw(".end_amdhsa_kernel")


def srd(a, d, lo, hi, size, off=None):
    if off is None:
        a("s_mov_b32 s%d, s%d" % (d, lo))
        a("s_mov_b32 s%d, s%d" % (d + 1, hi))
    else:
        a("s_add_u32 s%d, s%d, %s" % (d, lo, off if isinstance(off, str) else hex(off)))
        a("s_addc_u32 s%d, s%d, 0" % (d + 1, hi))
    a("s_mov_b32 s%d, %s" % (d + 2, size if isinstance(size, str) else hex(size)))
    a("s_mov_b32 s%d, 0x20000" % (d + 3))


def wave_reduce(a, op, v):
    for sh in (1, 2, 4, 8):
        a.nop(2)
        a("%s_dpp v%d, v%d, v%d row_shr:%d row_mask:0xf bank_mask:0xf bound_ctrl:0" % (op, v, v, v, sh))
    a.nop(2)
    a("%s_dpp v%d, v%d, v%d row_bcast:15 row_mask:0xa bank_mask:0xf" % (op, v, v, v))
    a.nop(2)
    a("%s_dpp v%d, v%d, v%d row_bcast:31 row_mask:0xc bank_mask:0xf" % (op, v, v, v))


MFMA = "v_mfma_f32_32x32x16_bf16"


def gen_k1(a):
    name = "k1_kernel"
    kernel_begin(a, name)
    LX = 0
    LW0 = 49152
    LW1 = 98304
    LE = 147456
    LRED = 81920
    LTR = 0
    sW, sMT, sNT = 3, 4, 5
    sT0, sT1, sT2, sT3 = 6, 7, 8, 9
    sStride, sStr4, sStr64 = 10, 11, 12
    sKVmode = 13
    sKVe, sKVo = 14, 15
    P = dict(x=16, wq=18, wk=20, wv=22, wo=24, wg=28, wu=30, wd=32, gw=34, out=36, ws=40)
    SX, SW0, SW1, SWS, SE, SGW, SSL = 44, 48, 52, 56, 60, 64, 68
    sOffA, sOffB = 72, 73
    sSlab, sRB, sIsQ = 74, 75, 76
    sM0x, sM0w = 77, 78
    sKS = 79
    vL = 0
    vXd0, vXd1, vWd = 1, 2, 3
    vXr = [4, 5, 6, 7]
    vW0r, vW1r = 8, 9
    vKVx, vKVw = 10, 11
    vT0, vT1, vT2, vT3 = 12, 13, 14, 15
    FR = [16, 32]
    vR1, vR2 = 48, 52
    vSL = 56
    vGX, vGW = 64, 68
    vKA = 72
    vL16 = 88
    vT4, vT5 = 89, 90
    ACC = 96

    a("s_cmp_ge_u32 s2, 256")
    a("s_cbranch_scc1 K1_END")
    a("s_load_dwordx16 s[16:31], s[0:1], 0")
    a("s_load_dwordx8 s[32:39], s[0:1], 64")
    a("s_load_dwordx2 s[40:41], s[0:1], 96")
    a("v_lshrrev_b32 v1, 6, v0")
    a("v_and_b32 v0, 63, v0")
    a("v_readfirstlane_b32 s%d, v1" % sW)
    a("s_and_b32 s%d, s2, 7" % sT0)
    a("s_lshr_b32 s%d, s2, 3" % sT1)
    a("s_and_b32 s%d, s%d, 1" % (sMT, sT0))
    a("s_lshl_b32 s%d, s%d, 3" % (sMT, sMT))
    a("s_and_b32 s%d, s%d, 7" % (sT2, sT1))
    a("s_add_u32 s%d, s%d, s%d" % (sMT, sMT, sT2))
    a("s_lshr_b32 s%d, s%d, 1" % (sNT, sT0))
    a("s_lshl_b32 s%d, s%d, 2" % (sNT, sNT))
    a("s_lshr_b32 s%d, s%d, 3" % (sT2, sT1))
    a("s_add_u32 s%d, s%d, s%d" % (sNT, sNT, sT2))
    a("v_lshlrev_b32 v%d, 4, v0" % vL16)
    a("s_cmp_ge_u32 s%d, 14" % sNT)
    a("s_cselect_b32 s%d, 1, 0" % sIsQ)
    a("s_movk_i32 s%d, 3584" % sStride)
    a("s_cselect_b32 s%d, 1024, s%d" % (sStride, sStride))
    a("s_lshl_b32 s%d, s%d, 2" % (sStr4, sStride))
    a("s_lshl_b32 s%d, s%d, 6" % (sStr64, sStride))
    a("s_lshl_b32 s%d, s%d, 11" % (sM0x, sW))
    a("s_and_b32 s%d, s%d, 3" % (sRB, sNT))
    a("s_lshr_b32 s%d, s%d, 2" % (sT0, sNT))
    a("s_add_u32 s%d, s%d, 1" % (sKVmode, sT0))
    a("s_cmp_ge_u32 s%d, 8" % sNT)
    a("s_cselect_b32 s%d, 0, s%d" % (sKVmode, sKVmode))
    a("s_cmp_lt_u32 s%d, 4" % sW)
    a("s_cselect_b32 s%d, s%d, 0" % (sKVe, sKVmode))
    a("s_cselect_b32 s%d, 0, s%d" % (sKVo, sKVmode))
    a("s_lshl_b32 s%d, s%d, 7" % (sT0, sMT))
    a("s_lshl_b32 s%d, s%d, 4" % (sT1, sW))
    a("s_add_u32 s%d, s%d, s%d" % (sT0, sT0, sT1))
    a("v_lshrrev_b32 v%d, 3, v0" % vT0)
    a("v_add_u32 v%d, s%d, v%d" % (vT0, sT0, vT0))
    a("v_lshlrev_b32 v%d, 10, v%d" % (vT0, vT0))
    a("v_and_b32 v%d, 7, v0" % vT1)
    a("v_lshrrev_b32 v%d, 4, v0" % vT2)
    a("v_xor_b32 v%d, v%d, v%d" % (vT1, vT1, vT2))
    a("v_lshl_add_u32 v%d, v%d, 4, v%d" % (vXd0, vT1, vT0))
    a("v_xor_b32 v%d, 64, v%d" % (vXd1, vXd0))
    a("v_add_u32 v%d, 0x2000, v%d" % (vXd1, vXd1))
    a("s_lshl_b32 s%d, s%d, 3" % (sT1, sW))
    a("v_add_u32 v%d, s%d, v%d" % (vT0, sT1, vT2))
    a("v_mul_lo_u32 v%d, v%d, s%d" % (vT0, vT0, sStride))
    a("v_bfe_u32 v%d, v0, 2, 2" % vT1)
    a("v_xor_b32 v%d, v%d, v%d" % (vT1, vT1, vT2))
    a("v_lshl_add_u32 v%d, v%d, 6, v%d" % (vT0, vT1, vT0))
    a("v_and_b32 v%d, 3, v0" % vT1)
    a("v_lshl_add_u32 v%d, v%d, 4, v%d" % (vWd, vT1, vT0))
    a("s_lshr_b32 s%d, s%d, 2" % (sT0, sW))
    a("s_lshl_b32 s%d, s%d, 13" % (sT0, sT0))
    a("v_and_b32 v%d, 31, v0" % vT0)
    a("v_lshlrev_b32 v%d, 7, v%d" % (vT0, vT0))
    a("v_lshrrev_b32 v%d, 5, v0" % vT1)
    a("v_bfe_u32 v%d, v0, 1, 3" % vT3)
    a("v_xor_b32 v%d, v%d, v%d" % (vT3, vT3, vT1))
    a("v_lshl_add_u32 v%d, v%d, 4, v%d" % (vT0, vT3, vT0))
    a("v_add_u32 v%d, s%d, v%d" % (vXr[0], sT0, vT0))
    for ks in (1, 2, 3):
        a("v_xor_b32 v%d, %d, v%d" % (vXr[ks], ks * 32, vXr[0]))
    a("s_and_b32 s%d, s%d, 3" % (sT1, sW))
    a("s_lshl_b32 s%d, s%d, 5" % (sT2, sT1))
    a("v_xor_b32 v%d, s%d, v%d" % (vKVx, sT2, vT0))
    a("s_lshl_b32 s%d, s%d, 12" % (sT2, sRB))
    a("v_add_u32 v%d, s%d, v%d" % (vKVx, sT2, vKVx))
    a("v_bfe_u32 v%d, v0, 2, 2" % vT2)
    a("v_lshl_add_u32 v%d, v%d, 3, v%d" % (vT3, vT1, vT2))
    a("v_lshlrev_b32 v%d, 8, v%d" % (vT0, vT3))
    a("v_xor_b32 v%d, s%d, v%d" % (vT2, sT1, vT2))
    a("v_lshl_add_u32 v%d, v%d, 6, v%d" % (vT0, vT2, vT0))
    a("v_bfe_u32 v%d, v0, 4, 1" % vT2)
    a("v_lshl_add_u32 v%d, v%d, 5, v%d" % (vT0, vT2, vT0))
    a("v_and_b32 v%d, 3, v0" % vT2)
    a("v_lshl_add_u32 v%d, v%d, 3, v%d" % (vT0, vT2, vT0))
    a("v_add_u32 v%d, %d, v%d" % (vW0r, LW0, vT0))
    a("v_add_u32 v%d, %d, v%d" % (vW1r, LW1, vT0))
    a("s_lshl_b32 s%d, s%d, 9" % (sT2, sT1))
    a("s_add_u32 s%d, s%d, %d" % (sT2, sT2, LE))
    a("v_lshlrev_b32 v%d, 5, v%d" % (vT0, vT3))
    a("v_lshl_add_u32 v%d, v%d, 3, v%d" % (vT0, vT2, vT0))
    a("v_add_u32 v%d, s%d, v%d" % (vKVw, sT2, vT0))
    a("s_waitcnt lgkmcnt(0)")
    srd(a, SX, P['x'], P['x'] + 1, 2097152)
    srd(a, SWS, P['ws'], P['ws'] + 1, WS_SIZE)
    srd(a, SGW, P['gw'], P['gw'] + 1, 1024)
    a("s_cmp_eq_u32 s%d, 1" % sIsQ)
    a("s_cselect_b32 s%d, s%d, s%d" % (SW0, P['wq'], P['wg']))
    a("s_cselect_b32 s%d, s%d, s%d" % (SW0 + 1, P['wq'] + 1, P['wg'] + 1))
    a("s_cselect_b32 s%d, s%d, s%d" % (SW1, P['wq'], P['wu']))
    a("s_cselect_b32 s%d, s%d, s%d" % (SW1 + 1, P['wq'] + 1, P['wu'] + 1))
    a("s_mov_b32 s%d, 0x1c0000" % sT0)
    a("s_cselect_b32 s%d, 0x80000, s%d" % (sT0, sT0))
    a("s_lshl_b32 s%d, s%d, 8" % (sT1, sNT))
    a("s_sub_u32 s%d, s%d, 14" % (sT2, sNT))
    a("s_lshl_b32 s%d, s%d, 9" % (sT2, sT2))
    a("s_add_u32 s%d, s%d, 256" % (sT3, sT2))
    a("s_cmp_eq_u32 s%d, 1" % sIsQ)
    a("s_cselect_b32 s%d, s%d, s%d" % (sT2, sT2, sT1))
    a("s_cselect_b32 s%d, s%d, s%d" % (sT3, sT3, sT1))
    a("s_add_u32 s%d, s%d, s%d" % (SW0, SW0, sT2))
    a("s_addc_u32 s%d, s%d, 0" % (SW0 + 1, SW0 + 1))
    a("s_sub_u32 s%d, s%d, s%d" % (SW0 + 2, sT0, sT2))
    a("s_mov_b32 s%d, 0x20000" % (SW0 + 3))
    a("s_add_u32 s%d, s%d, s%d" % (SW1, SW1, sT3))
    a("s_addc_u32 s%d, s%d, 0" % (SW1 + 1, SW1 + 1))
    a("s_sub_u32 s%d, s%d, s%d" % (SW1 + 2, sT0, sT3))
    a("s_mov_b32 s%d, 0x20000" % (SW1 + 3))

    def dma_stage(s):
        b = s % 3
        a("s_add_u32 m0, s%d, %d" % (sM0x, LX + b * 16384))
        a("s_movk_i32 s%d, %d" % (sOffA, s * 128))
        a("buffer_load_dwordx4 v%d, s[%d:%d], s%d offen lds" % (vXd0, SX, SX + 3, sOffA))
        a("s_add_u32 m0, s%d, %d" % (sM0x, LX + b * 16384 + 1024))
        a("s_mul_i32 s%d, s%d, %d" % (sOffB, sStr64, s))
        a("buffer_load_dwordx4 v%d, s[%d:%d], s%d offen lds" % (vXd1, SX, SX + 3, sOffA))
        a("s_add_u32 m0, s%d, %d" % (sM0x, LW0 + b * 16384))
        a("s_add_u32 s%d, s%d, s%d" % (sOffA, sOffB, sStr4))
        a("buffer_load_dwordx4 v%d, s[%d:%d], s%d offen lds" % (vWd, SW0, SW0 + 3, sOffB))
        a("s_add_u32 m0, s%d, %d" % (sM0x, LW0 + b * 16384 + 1024))
        a("s_nop 0")
        a("buffer_load_dwordx4 v%d, s[%d:%d], s%d offen lds" % (vWd, SW0, SW0 + 3, sOffA))
        a("s_add_u32 m0, s%d, %d" % (sM0x, LW1 + b * 16384))
        a("s_nop 0")
        a("buffer_load_dwordx4 v%d, s[%d:%d], s%d offen lds" % (vWd, SW1, SW1 + 3, sOffB))
        a("s_add_u32 m0, s%d, %d" % (sM0x, LW1 + b * 16384 + 1024))
        a("s_nop 0")
        a("buffer_load_dwordx4 v%d, s[%d:%d], s%d offen lds" % (vWd, SW1, SW1 + 3, sOffA))

    dma_stage(0)
    a("s_lshl_b32 s%d, s%d, 7" % (sT0, sMT))
    a("s_lshl_b32 s%d, s%d, 3" % (sT1, sNT))
    a("s_add_u32 s%d, s%d, s%d" % (sT0, sT0, sT1))
    a("s_add_u32 s%d, s%d, s%d" % (sKS, sT0, sW))
    a("s_lshl_b32 s%d, s%d, 10" % (sT0, sKS))
    a("buffer_load_dwordx4 v[%d:%d], v%d, s[%d:%d], s%d offen" % (vGX, vGX + 3, vL16, SX, SX + 3, sT0))
    a("buffer_load_dwordx4 v[%d:%d], v%d, s[%d:%d], 0 offen" % (vGW, vGW + 3, vL16, SGW, SGW + 3))
    a("s_cmp_eq_u32 s%d, 0" % sKVmode)
    a("s_cbranch_scc1 K1_NOE")
    a("s_cmp_eq_u32 s%d, 1" % sKVmode)
    a("s_cselect_b32 s%d, s%d, s%d" % (SE, P['wk'], P['wv']))
    a("s_cselect_b32 s%d, s%d, s%d" % (SE + 1, P['wk'] + 1, P['wv'] + 1))
    a("s_mov_b32 s%d, 16384" % (SE + 2))
    a("s_mov_b32 s%d, 0x20000" % (SE + 3))
    a("s_add_u32 m0, s%d, %d" % (sM0x, LE))
    a("s_nop 0")
    a("buffer_load_dwordx4 v%d, s[%d:%d], s%d offen lds" % (vL16, SE, SE + 3, sM0x))
    a("buffer_load_dwordx4 v%d, s[%d:%d], s%d offen offset:1024 lds" % (vL16, SE, SE + 3, sM0x))
    a.label("K1_NOE")
    a("s_cmp_lt_u32 s%d, 7" % sNT)
    a("s_cbranch_scc1 K1_NOSL")
    a("s_mul_i32 s%d, s%d, 9" % (sSlab, sMT))
    a("s_add_u32 s%d, s%d, s%d" % (sSlab, sSlab, sNT))
    a("s_sub_u32 s%d, s%d, 7" % (sSlab, sSlab))
    a("s_sub_u32 s%d, s%d, 32" % (sT0, sSlab))
    a("s_cmp_lt_u32 s%d, 32" % sSlab)
    a("s_cselect_b32 s%d, s%d, s%d" % (SSL, P['wo'], P['wd']))
    a("s_cselect_b32 s%d, s%d, s%d" % (SSL + 1, P['wo'] + 1, P['wd'] + 1))
    a("s_mov_b32 s%d, 0x1c0000" % (SSL + 2))
    a("s_cselect_b32 s%d, 0x80000, s%d" % (SSL + 2, SSL + 2))
    a("s_mov_b32 s%d, 0x20000" % (SSL + 3))
    a("s_cselect_b32 s%d, s%d, s%d" % (sT0, sSlab, sT0))
    a("s_lshl_b32 s%d, s%d, 14" % (sT0, sT0))
    a("s_lshl_b32 s%d, s%d, 7" % (sT1, sW))
    a("s_add_u32 s%d, s%d, s%d" % (sT0, sT0, sT1))
    a("s_add_u32 s%d, s%d, 8192" % (sT1, sT0))
    a("v_lshrrev_b32 v%d, 3, v0" % vT0)
    a("v_and_b32 v%d, 7, v0" % vT1)
    a("v_lshlrev_b32 v%d, 10, v%d" % (vT0, vT0))
    a("v_lshl_add_u32 v%d, v%d, 4, v%d" % (vT0, vT1, vT0))
    a("buffer_load_dwordx4 v[%d:%d], v%d, s[%d:%d], s%d offen" % (vSL, vSL + 3, vT0, SSL, SSL + 3, sT0))
    a("buffer_load_dwordx4 v[%d:%d], v%d, s[%d:%d], s%d offen" % (vSL + 4, vSL + 7, vT0, SSL, SSL + 3, sT1))
    a.label("K1_NOSL")
    dma_stage(1)
    dma_stage(2)
    for r in range(16):
        a("v_mov_b32 v%d, 0" % (vKA + r))

    def reads(s, ks, fs):
        b = s % 3
        f = FR[fs]
        a("ds_read_b128 v[%d:%d], v%d offset:%d" % (f, f + 3, vXr[ks], LX + b * 16384))
        a("ds_read_b64_tr_b16 v[%d:%d], v%d offset:%d" % (f + 8, f + 9, vW0r, b * 16384 + (16 * ks) * 256))
        a("ds_read_b64_tr_b16 v[%d:%d], v%d offset:%d" % (f + 10, f + 11, vW0r, b * 16384 + (16 * ks + 4) * 256))
        a("ds_read_b128 v[%d:%d], v%d offset:%d" % (f + 4, f + 7, vXr[ks], LX + b * 16384 + 4096))
        a("ds_read_b64_tr_b16 v[%d:%d], v%d offset:%d" % (f + 12, f + 13, vW1r, b * 16384 + (16 * ks) * 256))
        a("ds_read_b64_tr_b16 v[%d:%d], v%d offset:%d" % (f + 14, f + 15, vW1r, b * 16384 + (16 * ks + 4) * 256))

    def kv_reads(s):
        b = s % 3
        flag = sKVe if s % 2 == 0 else sKVo
        a("s_cmp_eq_u32 s%d, 0" % flag)
        a("s_cbranch_scc1 K1_KVR%d_E" % s)
        a("s_cmp_eq_u32 s%d, 1" % flag)
        a("s_cbranch_scc1 K1_KVR%d_K" % s)
        a("ds_read_b128 v[%d:%d], v%d offset:%d" % (vR1, vR1 + 3, vKVx, LX + b * 16384))
        a("ds_read_b64_tr_b16 v[%d:%d], v%d offset:%d" % (vR2, vR2 + 1, vKVw, s * 2048))
        a("ds_read_b64_tr_b16 v[%d:%d], v%d offset:%d" % (vR2 + 2, vR2 + 3, vKVw, s * 2048 + 128))
        a("s_branch K1_KVR%d_E" % s)
        a.label("K1_KVR%d_K" % s)
        a("ds_read_b128 v[%d:%d], v%d offset:%d" % (vR2, vR2 + 3, vKVx, LX + b * 16384))
        a("ds_read_b64_tr_b16 v[%d:%d], v%d offset:%d" % (vR1, vR1 + 1, vKVw, s * 2048))
        a("ds_read_b64_tr_b16 v[%d:%d], v%d offset:%d" % (vR1 + 2, vR1 + 3, vKVw, s * 2048 + 128))
        a.label("K1_KVR%d_E" % s)

    def kv_mfma(s):
        flag = sKVe if s % 2 == 0 else sKVo
        a("s_cmp_eq_u32 s%d, 0" % flag)
        a("s_cbranch_scc1 K1_KVM%d_E" % s)
        a("%s v[%d:%d], v[%d:%d], v[%d:%d], v[%d:%d]" % (MFMA, vKA, vKA + 15, vR1, vR1 + 3, vR2, vR2 + 3, vKA, vKA + 15))
        a.label("K1_KVM%d_E" % s)

    def mfmas(fs, first):
        f = FR[fs]
        for half in (0, 1):
            for i in (0, 1):
                acc = ACC + (half * 2 + i) * 16
                c = "0" if first else "v[%d:%d]" % (acc, acc + 15)
                a("%s v[%d:%d], v[%d:%d], v[%d:%d], %s" % (MFMA, acc, acc + 15, f + 8 + half * 4, f + 11 + half * 4,
                                                           f + i * 4, f + i * 4 + 3, c))

    a("s_waitcnt vmcnt(12)")
    a("s_barrier")
    kv_reads(0)
    reads(0, 0, 0)
    fs = 0
    for s in range(8):
        for ks in range(4):
            if ks < 3:
                reads(s, ks + 1, fs ^ 1)
                a("s_waitcnt lgkmcnt(6)")
            else:
                a("s_waitcnt lgkmcnt(0)")
                kv_mfma(s)
                if s < 7:
                    a("s_waitcnt vmcnt(%d)" % (6 if s + 2 <= 7 else 0))
                    a("s_barrier")
                    kv_reads(s + 1)
                    reads(s + 1, 0, fs ^ 1)
                    if s + 3 <= 7:
                        dma_stage(s + 3)
            mfmas(fs, s == 0 and ks == 0)
            fs ^= 1

    a("v_mov_b32 v%d, 0" % vT0)
    for j in range(4):
        a("v_dot2_f32_bf16 v%d, v%d, v%d, v%d" % (vT0, vGX + j, vGW + j, vT0))
    a.nop(3)
    a("v_mov_b32 v%d, v%d" % (vT1, vT0))
    wave_reduce(a, "v_add_f32", vT1)
    a("v_mul_f32 v%d, 0x%08x, v%d" % (vT1, f32bits(-math.log2(math.e)), vT1))
    a("v_exp_f32 v%d, v%d" % (vT1, vT1))
    a.nop(1)
    a("v_add_f32 v%d, 1.0, v%d" % (vT1, vT1))
    a("v_rcp_f32 v%d, v%d" % (vT1, vT1))
    a("s_lshl_b32 s%d, s%d, 2" % (sT0, sKS))
    a("s_add_u32 s%d, s%d, %d" % (sT0, sT0, WS_G))
    a("v_mov_b32 v%d, 0" % vT2)
    a("s_mov_b64 s[%d:%d], exec" % (80, 81))
    a("s_mov_b32 exec_lo, 0")
    a("s_mov_b32 exec_hi, 0x80000000")
    a("buffer_store_dword v%d, v%d, s[%d:%d], s%d offen" % (vT1, vT2, SWS, SWS + 3, sT0))
    a("s_mov_b64 exec, s[%d:%d]" % (80, 81))

    a("s_cmp_eq_u32 s%d, 0" % sKVmode)
    a("s_cbranch_scc1 K1_KV_DONE")
    a("s_lshl_b32 s%d, s%d, 12" % (sT0, sW))
    a("s_add_u32 s%d, s%d, %d" % (sT0, sT0, LRED))
    a("v_add_u32 v%d, s%d, v%d" % (vT0, sT0, vL16))
    for q in range(4):
        a("ds_write_b128 v%d, v[%d:%d] offset:%d" % (vT0, vKA + 4 * q, vKA + 4 * q + 3, q * 1024))
    a("s_waitcnt lgkmcnt(0)")
    a("s_barrier")
    a("s_cmp_ge_u32 s%d, s%d" % (sW, sKVmode))
    a("s_cbranch_scc1 K1_KV_DONE")
    a("s_lshl_b32 s%d, s%d, 11" % (sT0, sW))
    a("s_add_u32 s%d, s%d, %d" % (sT0, sT0, LRED))
    a("v_add_u32 v%d, s%d, v%d" % (vT0, sT0, vL16))
    a("ds_read_b128 v[%d:%d], v%d offset:0" % (vKA, vKA + 3, vT0))
    a("ds_read_b128 v[%d:%d], v%d offset:1024" % (vKA + 4, vKA + 7, vT0))
    for rnd, ws_ in enumerate(((1, 2, 3, 4), (5, 6, 7))):
        for j, w_ in enumerate(ws_):
            a("ds_read_b128 v[%d:%d], v%d offset:%d" % (16 + 8 * j, 19 + 8 * j, vT0, w_ * 4096))
            a("ds_read_b128 v[%d:%d], v%d offset:%d" % (20 + 8 * j, 23 + 8 * j, vT0, w_ * 4096 + 1024))
        a("s_waitcnt lgkmcnt(0)")
        for j, w_ in enumerate(ws_):
            for r in range(8):
                a("v_add_f32 v%d, v%d, v%d" % (vKA + r, vKA + r, 16 + 8 * j + r))
    for j in range(4):
        a("v_cvt_pk_bf16_f32 v%d, v%d, v%d" % (vR1 + j, vKA + 2 * j, vKA + 2 * j + 1))
    a("s_lshl_b32 s%d, s%d, 2" % (sT0, sMT))
    a("s_add_u32 s%d, s%d, s%d" % (sT0, sT0, sRB))
    a("s_mul_i32 s%d, s%d, %d" % (sT1, sT0, KVBLK))
    a("s_add_u32 s%d, s%d, %d" % (sT1, sT1, WS_KV))
    a("s_cmp_eq_u32 s%d, 2" % sKVmode)
    a("s_cbranch_scc1 K1_KV_V")
    a("buffer_store_dwordx4 v[%d:%d], v%d, s[%d:%d], s%d offen" % (vR1, vR1 + 3, vL16, SWS, SWS + 3, sT1))
    a("v_mov_b32 v%d, 0" % vT1)
    for j in range(4):
        a("v_dot2_f32_bf16 v%d, v%d, v%d, v%d" % (vT1, vR1 + j, vR1 + j, vT1))
    a.nop(3)
    a("v_mov_b32 v%d, v%d" % (vT2, vT1))
    a.nop(2)
    a("v_permlane32_swap_b32 v%d, v%d" % (vT1, vT2))
    a.nop(2)
    a("v_add_f32 v%d, v%d, v%d" % (vT1, vT1, vT2))
    wave_reduce(a, "v_max_f32", vT1)
    a("s_lshl_b32 s%d, s%d, 2" % (sT0, sT0))
    a("s_add_u32 s%d, s%d, %d" % (sT0, sT0, WS_NRM))
    a("v_mov_b32 v%d, 0" % vT2)
    a("s_mov_b32 exec_lo, 0")
    a("s_mov_b32 exec_hi, 0x80000000")
    a("buffer_store_dword v%d, v%d, s[%d:%d], s%d offen" % (vT1, vT2, SWS, SWS + 3, sT0))
    a("s_mov_b64 exec, s[%d:%d]" % (80, 81))
    a("s_branch K1_KV_DONE")
    a.label("K1_KV_V")
    a("v_max3_f32 v%d, |v%d|, |v%d|, |v%d|" % (vT1, vKA, vKA + 1, vKA + 2))
    a("v_max3_f32 v%d, |v%d|, |v%d|, v%d" % (vT1, vKA + 3, vKA + 4, vT1))
    a("v_max3_f32 v%d, |v%d|, |v%d|, v%d" % (vT1, vKA + 5, vKA + 6, vT1))
    a("v_max_f32 v%d, |v%d|, v%d" % (vT1, vKA + 7, vT1))
    a("s_mov_b32 s%d, 0x%08x" % (sT2, f32bits(2.0 ** 60)))
    a("v_cmp_lt_f32 vcc, s%d, v%d" % (sT2, vT1))
    a("s_cmp_lg_u64 vcc, 0")
    a("s_cselect_b32 s%d, 0x7f800000, 0" % sT2)
    a("v_mov_b32 v%d, s%d" % (vT1, sT2))
    a("s_lshl_b32 s%d, s%d, 1" % (sT0, sT0))
    a("s_add_u32 s%d, s%d, s%d" % (sT0, sT0, sW))
    a("s_lshl_b32 s%d, s%d, 2" % (sT0, sT0))
    a("s_add_u32 s%d, s%d, %d" % (sT0, sT0, WS_NRM + 256))
    a("v_mov_b32 v%d, 0" % vT2)
    a("s_mov_b32 exec_lo, 0")
    a("s_mov_b32 exec_hi, 0x80000000")
    a("buffer_store_dword v%d, v%d, s[%d:%d], s%d offen" % (vT1, vT2, SWS, SWS + 3, sT0))
    a("s_mov_b64 exec, s[%d:%d]" % (80, 81))
    a("v_and_b32 v%d, 16, v0" % vT1)
    a("v_cmp_eq_u32 vcc, 0, v%d" % vT1)
    a("v_lshrrev_b32 v%d, 5, v0" % vT2)
    a("v_and_b32 v%d, 15, v0" % vT3)
    a("v_lshlrev_b32 v%d, 8, v%d" % (vT2, vT2))
    a("v_lshl_add_u32 v%d, v%d, 4, v%d" % (vT2, vT3, vT2))
    a("v_mov_b32 v%d, 0x200" % vT3)
    a("v_mov_b32 v%d, 0x3f803f80" % vT1)
    a("v_cndmask_b32 v%d, v%d, v%d, vcc" % (vT2, vT3, vT2))
    for j in range(4):
        a("v_cndmask_b32 v%d, v%d, v%d, vcc" % (vR1 + j, vT1, vR1 + j))
    a("s_mul_i32 s%d, s%d, 528" % (sT0, sW))
    a("s_add_u32 s%d, s%d, s%d" % (sT1, sT1, sT0))
    a("s_add_u32 s%d, s%d, 1024" % (sT1, sT1))
    a("buffer_store_dwordx4 v[%d:%d], v%d, s[%d:%d], s%d offen" % (vR1, vR1 + 3, vT2, SWS, SWS + 3, sT1))
    a.label("K1_KV_DONE")

    a("s_cmp_lt_u32 s%d, 7" % sNT)
    a("s_cbranch_scc1 K1_SL_DONE")
    a("v_add_u32 v%d, s%d, v%d" % (vT0, sM0x, vL16))
    a("ds_write_b128 v%d, v[%d:%d] offset:%d" % (vT0, vSL, vSL + 3, LTR))
    a("ds_write_b128 v%d, v[%d:%d] offset:%d" % (vT0, vSL + 4, vSL + 7, LTR + 1024))
    a("v_lshrrev_b32 v%d, 5, v0" % vT1)
    a("v_bfe_u32 v%d, v0, 2, 2" % vT2)
    a("v_lshl_add_u32 v%d, v%d, 2, v%d" % (vT1, vT1, vT2))
    a("v_lshlrev_b32 v%d, 7, v%d" % (vT1, vT1))
    a("v_bfe_u32 v%d, v0, 4, 1" % vT2)
    a("v_lshl_add_u32 v%d, v%d, 5, v%d" % (vT1, vT2, vT1))
    a("v_and_b32 v%d, 3, v0" % vT2)
    a("v_lshl_add_u32 v%d, v%d, 3, v%d" % (vT1, vT2, vT1))
    a("v_add_u32 v%d, s%d, v%d" % (vT1, sM0x, vT1))
    a("s_waitcnt lgkmcnt(0)")
    for f in range(2):
        for u in range(2):
            a("ds_read_b64_tr_b16 v[%d:%d], v%d offset:%d" % (16 + 4 * f + 2 * u, 17 + 4 * f + 2 * u, vT1,
                                                             LTR + u * 1024 + f * 64))
    a("s_mul_i32 s%d, s%d, 288" % (sT0, sW))
    a("s_add_u32 s%d, s%d, s%d" % (sT0, sT0, sSlab))
    a("s_lshl_b32 s%d, s%d, 10" % (sT0, sT0))
    a("s_add_u32 s%d, s%d, %d" % (sT0, sT0, WS_WF))
    a("s_add_u32 s%d, s%d, %d" % (sT1, sT0, 144 * 1024))
    a("s_waitcnt lgkmcnt(0)")
    a("buffer_store_dwordx4 v[16:19], v%d, s[%d:%d], s%d offen" % (vL16, SWS, SWS + 3, sT0))
    a("buffer_store_dwordx4 v[20:23], v%d, s[%d:%d], s%d offen" % (vL16, SWS, SWS + 3, sT1))
    a.label("K1_SL_DONE")

    a("s_lshr_b32 s%d, s%d, 2" % (sT0, sW))
    a("s_lshl_b32 s%d, s%d, 1" % (sT0, sT0))
    a("s_lshl_b32 s%d, s%d, 2" % (sT1, sMT))
    a("s_add_u32 s%d, s%d, s%d" % (sT0, sT0, sT1))
    a("s_and_b32 s%d, s%d, 3" % (sT1, sW))
    a("s_cmp_eq_u32 s%d, 1" % sIsQ)
    a("s_cbranch_scc1 K1_EPI_Q")
    a("s_mul_i32 s%d, s%d, 144" % (sT0, sT0))
    a("s_lshl_b32 s%d, s%d, 3" % (sT2, sNT))
    a("s_add_u32 s%d, s%d, s%d" % (sT0, sT0, sT2))
    a("s_lshl_b32 s%d, s%d, 1" % (sT1, sT1))
    a("s_add_u32 s%d, s%d, s%d" % (sT0, sT0, sT1))
    a("s_lshl_b32 s%d, s%d, 10" % (sT0, sT0))
    a("s_add_u32 s%d, s%d, %d" % (sT0, sT0, WS_AF + 32 * 1024))
    a("s_add_u32 s%d, s%d, %d" % (sT1, sT0, 144 * 1024))
    for i in (0, 1):
        g = ACC + i * 16
        u = ACC + (2 + i) * 16
        for r in range(16):
            a("v_mul_f32 v%d, v%d, v%d" % (g + r, g + r, u + r))
        for j in range(8):
            a("v_cvt_pk_bf16_f32 v%d, v%d, v%d" % (u + j, g + 2 * j, g + 2 * j + 1))
        so = sT0 if i == 0 else sT1
        a("buffer_store_dwordx4 v[%d:%d], v%d, s[%d:%d], s%d offen" % (u, u + 3, vL16, SWS, SWS + 3, so))
        a("buffer_store_dwordx4 v[%d:%d], v%d, s[%d:%d], s%d offen offset:1024" % (u + 4, u + 7, vL16, SWS, SWS + 3, so))
    a("s_endpgm")
    a.label("K1_EPI_Q")
    a("s_lshl_b32 s%d, s%d, 5" % (sT0, sT0))
    a("s_sub_u32 s%d, s%d, 14" % (sT2, sNT))
    a("s_lshl_b32 s%d, s%d, 4" % (sT2, sT2))
    a("s_add_u32 s%d, s%d, s%d" % (sT0, sT0, sT2))
    a("s_lshl_b32 s%d, s%d, 1" % (sT1, sT1))
    a("s_add_u32 s%d, s%d, s%d" % (sT0, sT0, sT1))
    a("s_lshl_b32 s%d, s%d, 10" % (sT0, sT0))
    a("s_mov_b32 s%d, 0x%08x" % (sT3, f32bits(QSCALE)))
    for half in (0, 1):
        for i in (0, 1):
            t = ACC + (half * 2 + i) * 16
            for r in range(16):
                a("v_mul_f32 v%d, s%d, v%d" % (t + r, sT3, t + r))
            d = 16 + (half * 2 + i) * 8
            for j in range(8):
                a("v_cvt_pk_bf16_f32 v%d, v%d, v%d" % (d + j, t + 2 * j, t + 2 * j + 1))
            a("s_add_u32 s%d, s%d, %d" % (sT1, sT0, WS_QF + (i * 32 + half * 8) * 1024))
            a("buffer_store_dwordx4 v[%d:%d], v%d, s[%d:%d], s%d offen" % (d, d + 3, vL16, SWS, SWS + 3, sT1))
            a("buffer_store_dwordx4 v[%d:%d], v%d, s[%d:%d], s%d offen offset:1024" % (d + 4, d + 7, vL16, SWS, SWS + 3, sT1))
    a.label("K1_END")
    a("s_endpgm")
    kernel_desc(a, name, 160, 96)
    return "; @launch kernel=%s grid=(256,1,1) block=(512,1,1) lds=163840" % name


def gen_k2(a):
    name = "k2_kernel"
    kernel_begin(a, name)
    sW = 3
    sT0, sT1, sT2, sT3 = 4, 5, 6, 7
    SWS = 8
    sIt, sSkipBar = 12, 13
    sID = 14
    vL16 = 1
    vKa, vVa = 2, 3
    vT0, vT1, vT2, vT3 = 4, 5, 6, 7
    vQ = 8
    vKF = [12, 16]
    vVF = [20, 28]
    vP = 36
    vS = [48, 64]
    vO = 80
    vC = 96
    NB = 4
    NIT = 64 // NB

    a("s_cmp_ge_u32 s2, 256")
    a("s_cbranch_scc1 K2_END")
    a("s_load_dwordx2 s[16:17], s[0:1], 96")
    a("v_lshrrev_b32 v1, 6, v0")
    a("v_and_b32 v0, 63, v0")
    a("v_readfirstlane_b32 s%d, v1" % sW)
    a("v_lshlrev_b32 v%d, 4, v0" % vL16)
    a("v_mov_b32 v%d, v%d" % (vKa, vL16))
    a("v_and_b32 v%d, 16, v0" % vT1)
    a("v_cmp_eq_u32 vcc, 0, v%d" % vT1)
    a("v_lshrrev_b32 v%d, 5, v0" % vT2)
    a("v_and_b32 v%d, 15, v0" % vT3)
    a("v_lshlrev_b32 v%d, 8, v%d" % (vT2, vT2))
    a("v_lshl_add_u32 v%d, v%d, 4, v%d" % (vT2, vT3, vT2))
    a("v_mov_b32 v%d, 0x200" % vT3)
    a("v_cndmask_b32 v%d, v%d, v%d, vcc" % (vVa, vT3, vT2))
    a("v_add_u32 v%d, 1024, v%d" % (vVa, vVa))
    a("s_lshl_b32 s%d, s2, 3" % sID)
    a("s_add_u32 s%d, s%d, s%d" % (sID, sID, sW))
    a("s_waitcnt lgkmcnt(0)")
    srd(a, SWS, 16, 17, WS_SIZE)
    a("s_lshl_b32 s%d, s%d, 10" % (sT0, sID))
    a("buffer_load_dwordx4 v[%d:%d], v%d, s[%d:%d], s%d offen" % (vQ, vQ + 3, vL16, SWS, SWS + 3, sT0))
    a("v_lshlrev_b32 v%d, 2, v0" % vT0)
    a("s_mov_b32 s%d, %d" % (sT1, WS_NRM))
    a("buffer_load_dword v%d, v%d, s[%d:%d], s%d offen" % (vT1, vT0, SWS, SWS + 3, sT1))
    a("buffer_load_dword v%d, v%d, s[%d:%d], s%d offen offset:256" % (vT2, vT0, SWS, SWS + 3, sT1))
    a("buffer_load_dword v%d, v%d, s[%d:%d], s%d offen offset:512" % (vT3, vT0, SWS, SWS + 3, sT1))
    a("s_lshl_b32 s%d, s%d, 10" % (sT0, sW))
    a("s_add_u32 s%d, s%d, %d" % (sT1, sT0, WS_KV))
    for j in range(17):
        if j == 16:
            a("s_cmp_ge_u32 s%d, 2" % sW)
            a("s_cbranch_scc1 K2_DMA_DONE")
        a("s_add_u32 m0, s%d, %d" % (sT0, j * 8192))
        a("s_add_u32 s%d, s%d, %d" % (sT2, sT1, j * 8192))
        a("buffer_load_dwordx4 v%d, s[%d:%d], s%d offen lds" % (vL16, SWS, SWS + 3, sT2))
    a.label("K2_DMA_DONE")
    for r in range(16):
        a("v_mov_b32 v%d, 0" % (vC + r))
    for r in range(16):
        a("v_mov_b32 v%d, 0" % (vO + r))
    a("s_waitcnt vmcnt(14)")
    a("v_max3_f32 v%d, v%d, v%d, v%d" % (vT1, vT1, vT2, vT3))
    wave_reduce(a, "v_max_f32", vT1)
    a("v_mov_b32 v%d, 0" % vT2)
    for j in range(4):
        a("v_dot2_f32_bf16 v%d, v%d, v%d, v%d" % (vT2, vQ + j, vQ + j, vT2))
    a("v_readlane_b32 s%d, v%d, 63" % (sT0, vT1))
    a.nop(3)
    a("v_mov_b32 v%d, v%d" % (vT3, vT2))
    a.nop(2)
    a("v_permlane32_swap_b32 v%d, v%d" % (vT2, vT3))
    a.nop(2)
    a("v_add_f32 v%d, v%d, v%d" % (vT2, vT2, vT3))
    a("v_mul_f32 v%d, s%d, v%d" % (vT2, sT0, vT2))
    a("s_mov_b32 s%d, 0x%08x" % (sT1, f32bits(900.0)))
    a("v_cmp_nge_f32 vcc, s%d, v%d" % (sT1, vT2))
    a("s_mov_b32 s%d, 0" % sSkipBar)
    a("s_barrier")
    a("s_cmp_lg_u64 vcc, 0")
    a("s_cbranch_scc0 K2_FAST")
    a("s_waitcnt vmcnt(0)")
    a("s_barrier")
    a("s_mov_b32 s%d, 1" % sSkipBar)
    a("v_mov_b32 v%d, 0xff800000" % vT0)
    a("v_mov_b32 v%d, v%d" % (vT1, vKa))
    a("s_mov_b32 s%d, 0" % sIt)
    a.label("K2_MAXLOOP")
    a("ds_read_b128 v[%d:%d], v%d" % (vKF[0], vKF[0] + 3, vT1))
    a("v_add_u32 v%d, %d, v%d" % (vT1, KVBLK, vT1))
    a("s_waitcnt lgkmcnt(0)")
    a("%s v[%d:%d], v[%d:%d], v[%d:%d], 0" % (MFMA, vS[0], vS[0] + 15, vKF[0], vKF[0] + 3, vQ, vQ + 3))
    a.nop(16)
    for j in range(8):
        a("v_max3_f32 v%d, v%d, v%d, v%d" % (vT0, vS[0] + 2 * j, vS[0] + 2 * j + 1, vT0))
    a("s_add_u32 s%d, s%d, 1" % (sIt, sIt))
    a("s_cmp_lt_u32 s%d, 64" % sIt)
    a("s_cbranch_scc1 K2_MAXLOOP")
    a("v_mov_b32 v%d, v%d" % (vT1, vT0))
    a.nop(2)
    a("v_permlane32_swap_b32 v%d, v%d" % (vT0, vT1))
    a.nop(2)
    a("v_max_f32 v%d, v%d, v%d" % (vT0, vT0, vT1))
    for r in range(16):
        a("v_sub_f32 v%d, 0, v%d" % (vC + r, vT0))
    a.label("K2_FAST")

    def rdK(buf, off):
        a("ds_read_b128 v[%d:%d], v%d offset:%d" % (vKF[buf], vKF[buf] + 3, vKa, off))

    def rdV(buf, off):
        a("ds_read_b128 v[%d:%d], v%d offset:%d" % (vVF[buf], vVF[buf] + 3, vVa, off))
        a("ds_read_b128 v[%d:%d], v%d offset:%d" % (vVF[buf] + 4, vVF[buf] + 7, vVa, off + 528))

    def mS(sbuf, kbuf):
        a("%s v[%d:%d], v[%d:%d], v[%d:%d], v[%d:%d]" % (MFMA, vS[sbuf], vS[sbuf] + 15, vKF[kbuf], vKF[kbuf] + 3,
                                                        vQ, vQ + 3, vC, vC + 15))

    def mPV(vbuf, t):
        a("%s v[%d:%d], v[%d:%d], v[%d:%d], v[%d:%d]" % (MFMA, vO, vO + 15, vVF[vbuf] + 4 * t, vVF[vbuf] + 4 * t + 3,
                                                        vP + 4 * t, vP + 4 * t + 3, vO, vO + 15))

    def E(sb, r):
        a("v_exp_f32 v%d, v%d" % (vS[sb] + r, vS[sb] + r))

    def C(sb, j):
        a("v_cvt_pk_bf16_f32 v%d, v%d, v%d" % (vP + j, vS[sb] + 2 * j, vS[sb] + 2 * j + 1))

    rdK(0, 0)
    rdK(1, KVBLK)
    rdV(0, 0)
    a("s_waitcnt lgkmcnt(3)")
    mS(0, 0)
    a("s_mov_b32 s%d, 0" % sIt)
    a.nop(12)
    a.label("K2_LOOP")
    for bb in range(NB):
        p = bb & 1
        off = bb * KVBLK
        for r in range(0, 6):
            E(p, r)
        C(p, 0)
        C(p, 1)
        a("s_waitcnt lgkmcnt(2)")
        mS(p ^ 1, p ^ 1)
        if bb == NB - 2:
            a("s_cmp_lg_u32 s%d, 0" % sSkipBar)
            a("s_cbranch_scc1 K2_NOBAR")
            a("s_waitcnt vmcnt(0)")
            a("s_barrier")
            a("s_mov_b32 s%d, 1" % sSkipBar)
            a.label("K2_NOBAR")
        rdK(p, off + 2 * KVBLK)
        E(p, 6)
        E(p, 7)
        C(p, 2)
        E(p, 8)
        C(p, 3)
        E(p, 9)
        E(p, 10)
        E(p, 11)
        a("s_waitcnt lgkmcnt(1)")
        mPV(p, 0)
        C(p, 4)
        C(p, 5)
        for r in range(12, 16):
            E(p, r)
        C(p, 6)
        C(p, 7)
        rdV(p ^ 1, off + KVBLK)
        mPV(p, 1)
    a("v_add_u32 v%d, %d, v%d" % (vKa, NB * KVBLK, vKa))
    a("v_add_u32 v%d, %d, v%d" % (vVa, NB * KVBLK, vVa))
    a("s_add_u32 s%d, s%d, 1" % (sIt, sIt))
    a("s_cmp_lt_u32 s%d, %d" % (sIt, NIT))
    a("s_cbranch_scc1 K2_LOOP")
    a.nop(16)
    a("v_rcp_f32 v%d, v%d" % (vT0, vO + 8))
    a("s_lshr_b32 s%d, s%d, 5" % (sT0, sID))
    a("s_and_b32 s%d, s%d, 31" % (sT1, sID))
    a("s_mul_i32 s%d, s%d, 144" % (sT0, sT0))
    a("s_add_u32 s%d, s%d, s%d" % (sT0, sT0, sT1))
    a("s_lshl_b32 s%d, s%d, 10" % (sT0, sT0))
    a("s_add_u32 s%d, s%d, %d" % (sT0, sT0, WS_AF))
    for r in range(8):
        a("v_mul_f32 v%d, v%d, v%d" % (vO + r, vO + r, vT0))
    for j in range(4):
        a("v_cvt_pk_bf16_f32 v%d, v%d, v%d" % (vP + j, vO + 2 * j, vO + 2 * j + 1))
    a("buffer_store_dwordx4 v[%d:%d], v%d, s[%d:%d], s%d offen" % (vP, vP + 3, vL16, SWS, SWS + 3, sT0))
    a.label("K2_END")
    a("s_endpgm")
    kernel_desc(a, name, 112, 32)
    return "; @launch kernel=%s grid=(256,1,1) block=(512,1,1) lds=%d" % (name, 66 * KVBLK)


def gen_k3(a):
    name = "k3_kernel"
    kernel_begin(a, name)
    sW = 3
    sT0, sT1, sT2, sT3 = 4, 5, 6, 7
    SWS, SOUT = 8, 12
    sMB, sNB = 20, 21
    sOff = 22
    vL16 = 1
    vA0, vA1, vB0, vB1 = 2, 3, 4, 5
    vT0, vT1, vT2, vT3 = 6, 7, 8, 9
    vG0, vG1 = 10, 11
    DEPTH = 4
    FB = 16
    ACA = 80
    ACB = 144
    a("s_cmp_ge_u32 s2, 256")
    a("s_cbranch_scc1 K3_END")
    a("s_load_dwordx2 s[16:17], s[0:1], 96")
    a("s_load_dwordx2 s[18:19], s[0:1], 80")
    a("v_lshrrev_b32 v1, 6, v0")
    a("v_and_b32 v0, 63, v0")
    a("v_readfirstlane_b32 s%d, v1" % sW)
    a("v_lshlrev_b32 v%d, 4, v0" % vL16)
    a("s_and_b32 s%d, s2, 7" % sT0)
    a("s_lshr_b32 s%d, s2, 3" % sT1)
    a("s_lshl_b32 s%d, s%d, 2" % (sMB, sT0))
    a("s_and_b32 s%d, s%d, 3" % (sT2, sT1))
    a("s_add_u32 s%d, s%d, s%d" % (sMB, sMB, sT2))
    a("s_lshr_b32 s%d, s%d, 2" % (sNB, sT1))
    a("s_mul_i32 s%d, s%d, 288" % (sT0, sNB))
    a("s_add_u32 s%d, s%d, s%d" % (sT0, sT0, sW))
    a("s_lshl_b32 s%d, s%d, 10" % (sT0, sT0))
    a("s_add_u32 s%d, s%d, %d" % (sT0, sT0, WS_WF))
    a("v_add_u32 v%d, s%d, v%d" % (vA0, sT0, vL16))
    a("v_add_u32 v%d, %d, v%d" % (vA1, 144 * 1024, vA0))
    a("s_mul_i32 s%d, s%d, 288" % (sT0, sMB))
    a("s_add_u32 s%d, s%d, s%d" % (sT0, sT0, sW))
    a("s_lshl_b32 s%d, s%d, 10" % (sT0, sT0))
    a("s_add_u32 s%d, s%d, %d" % (sT0, sT0, WS_AF))
    a("v_add_u32 v%d, s%d, v%d" % (vB0, sT0, vL16))
    a("v_add_u32 v%d, %d, v%d" % (vB1, 144 * 1024, vB0))
    a("s_waitcnt lgkmcnt(0)")
    srd(a, SWS, 16, 17, WS_SIZE)
    srd(a, SOUT, 18, 19, 2097152)
    a("v_and_b32 v%d, 31, v0" % vT0)
    a("v_lshlrev_b32 v%d, 2, v%d" % (vT0, vT0))
    a("s_lshl_b32 s%d, s%d, 8" % (sT0, sMB))
    a("s_add_u32 s%d, s%d, %d" % (sT0, sT0, WS_G))
    a("buffer_load_dword v%d, v%d, s[%d:%d], s%d offen" % (vG0, vT0, SWS, SWS + 3, sT0))
    a("buffer_load_dword v%d, v%d, s[%d:%d], s%d offen offset:128" % (vG1, vT0, SWS, SWS + 3, sT0))
    NS = 18

    def loads(j):
        f = FB + (j % DEPTH) * 16
        a("s_mov_b32 s%d, %d" % (sOff, j * 8192))
        for k, v in enumerate((vA0, vA1, vB0, vB1)):
            a("buffer_load_dwordx4 v[%d:%d], v%d, s[%d:%d], s%d offen" % (f + 4 * k, f + 4 * k + 3, v, SWS, SWS + 3, sOff))

    for j in range(DEPTH - 1):
        loads(j)
    for j in range(NS):
        if j + DEPTH - 1 < NS:
            loads(j + DEPTH - 1)
            a("s_waitcnt vmcnt(%d)" % (4 * (DEPTH - 1)))
        else:
            a("s_waitcnt vmcnt(%d)" % (4 * (NS - 1 - j)))
        f = FB + (j % DEPTH) * 16
        base = ACA if j < 4 else ACB
        first = j == 0 or j == 4
        for an in (0, 1):
            for i in (0, 1):
                acc = base + (an * 2 + i) * 16
                c = "0" if first else "v[%d:%d]" % (acc, acc + 15)
                a("%s v[%d:%d], v[%d:%d], v[%d:%d], %s" % (MFMA, acc, acc + 15, f + 4 * an, f + 4 * an + 3,
                                                           f + 8 + 4 * i, f + 11 + 4 * i, c))
    a("v_sub_f32 v%d, 1.0, v%d" % (vT0, vG0))
    a("v_sub_f32 v%d, 1.0, v%d" % (vT1, vG1))
    for an in (0, 1):
        for i in (0, 1):
            acc = ACA + (an * 2 + i) * 16
            for r in range(16):
                a("v_mul_f32 v%d, v%d, v%d" % (acc + r, acc + r, vG0 + i))
    a.nop(8)
    for an in (0, 1):
        for i in (0, 1):
            acc = ACA + (an * 2 + i) * 16
            accb = ACB + (an * 2 + i) * 16
            for r in range(16):
                a("v_fmac_f32 v%d, v%d, v%d" % (acc + r, accb + r, vT0 + i))
    a("v_and_b32 v%d, 31, v0" % vT0)
    a("v_lshrrev_b32 v%d, 5, v0" % vT1)
    a("v_and_b32 v%d, 15, v0" % vT2)
    a("v_xor_b32 v%d, v%d, v%d" % (vT1, vT1, vT2))
    a("v_lshlrev_b32 v%d, 8, v%d" % (vT0, vT0))
    a("v_lshl_add_u32 v%d, v%d, 4, v%d" % (vT0, vT1, vT0))
    a("s_lshl_b32 s%d, s%d, 14" % (sT0, sW))
    a("v_add_u32 v%d, s%d, v%d" % (vT0, sT0, vT0))
    for an in (0, 1):
        for q in range(4):
            c = an * 8 + q * 2
            a("v_xor_b32 v%d, %d, v%d" % (vT1, c * 16, vT0))
            for i in (0, 1):
                acc = ACA + (an * 2 + i) * 16 + 4 * q
                a("ds_write_b128 v%d, v[%d:%d] offset:%d" % (vT1, acc, acc + 3, i * 8192))
        a("s_waitcnt lgkmcnt(4)")
    a("v_lshrrev_b32 v%d, 3, v0" % vT0)
    a("s_lshl_b32 s%d, s%d, 3" % (sT0, sW))
    a("v_add_u32 v%d, s%d, v%d" % (vT0, sT0, vT0))
    a("v_and_b32 v%d, 15, v%d" % (vT1, vT0))
    a("v_and_b32 v%d, 7, v0" % vT2)
    a("v_lshlrev_b32 v%d, 1, v%d" % (vT3, vT2))
    a("v_xor_b32 v%d, v%d, v%d" % (vT1, vT1, vT3))
    a("v_lshlrev_b32 v%d, 8, v%d" % (vT3, vT0))
    a("v_lshl_add_u32 v%d, v%d, 4, v%d" % (vA0, vT1, vT3))
    a("v_xor_b32 v%d, 16, v%d" % (vA1, vA0))
    a("v_add_u32 v%d, 0x10000, v%d" % (vB0, vA0))
    a("v_add_u32 v%d, 0x10000, v%d" % (vB1, vA1))
    a("v_lshlrev_b32 v%d, 10, v%d" % (vT0, vT0))
    a("v_lshl_add_u32 v%d, v%d, 4, v%d" % (vT0, vT2, vT0))
    a("s_lshl_b32 s%d, s%d, 16" % (sT0, sMB))
    a("s_lshl_b32 s%d, s%d, 7" % (sT1, sNB))
    a("s_add_u32 s%d, s%d, s%d" % (sT0, sT0, sT1))
    a("s_waitcnt lgkmcnt(0)")
    a("s_barrier")
    for w_ in range(8):
        if w_ == 7:
            a("s_waitcnt lgkmcnt(12)")
        lo, hi = (vA0, vA1) if w_ < 4 else (vB0, vB1)
        a("ds_read_b128 v[%d:%d], v%d offset:%d" % (FB + 8 * w_, FB + 8 * w_ + 3, lo, (w_ & 3) * 16384))
        a("ds_read_b128 v[%d:%d], v%d offset:%d" % (FB + 8 * w_ + 4, FB + 8 * w_ + 7, hi, (w_ & 3) * 16384))
    for w_ in range(1, 8):
        a("s_waitcnt lgkmcnt(%d)" % (2 * (7 - w_)))
        for r in range(8):
            a("v_add_f32 v%d, v%d, v%d" % (FB + r, FB + r, FB + 8 * w_ + r))
    for j in range(4):
        a("v_cvt_pk_bf16_f32 v%d, v%d, v%d" % (FB + 8 + j, FB + 2 * j, FB + 2 * j + 1))
    a("buffer_store_dwordx4 v[%d:%d], v%d, s[%d:%d], s%d offen" % (FB + 8, FB + 11, vT0, SOUT, SOUT + 3, sT0))
    a.label("K3_END")
    a("s_endpgm")
    kernel_desc(a, name, 208, 32)
    return "; @launch kernel=%s grid=(256,1,1) block=(512,1,1) lds=131072" % name


def main():
    out = sys.argv[1] if len(sys.argv) > 1 else "cdna_kernels/%s.s" % NAME
    a = Asm()
    a.raw(".amdgcn_target \"amdgcn-amd-amdhsa--gfx950\"")
    launches = [gen_k1(a), gen_k2(a), gen_k3(a)]
    hdr = ["; generated by work/gen.py (hand-designed kernels, laid out by script)"] + launches
    open(out, "w").write("\n".join(hdr) + "\n" + a.text())


if __name__ == "__main__":
    main()
```

```python
import sys, math, struct

NAME = "gated_mix__grouped_kv_mqa__glu_gated_bilinear__prompt"

WS_QF = 0
WS_AF = 2 << 20
WS_WF = 11 << 20
WS_KV = 14 << 20
WS_G = 15 << 20
WS_NRM = (15 << 20) + 16384
WS_BP = 16 << 20
WS_SIZE = 268435456
KVBLK = 2080

QSCALE = 0.25 * math.log2(math.e)


def f32bits(x):
    return struct.unpack("<I", struct.pack("<f", x))[0]


class Asm:
    def __init__(self):
        self.lines = []

    def __call__(self, s):
        self.lines.append("    " + s)

    def label(self, l):
        self.lines.append(l + ":")

    def raw(self, s):
        self.lines.append(s)

    def nop(self, n):
        while n > 0:
            k = min(n, 16)
            self("s_nop %d" % (k - 1))
            n -= k

    def text(self):
        return "\n".join(self.lines) + "\n"


def vr(b, n=1):
    return "v%d" % b if n == 1 else "v[%d:%d]" % (b, b + n - 1)


def sr(b, n=1):
    return "s%d" % b if n == 1 else "s[%d:%d]" % (b, b + n - 1)


def kernel_begin(a, name):
    a.raw(".text")
    a.raw(".globl %s" % name)
    a.raw(".p2align 8")
    a.raw(".type %s,@function" % name)
    a.label(name)


def kernel_desc(a, name, vgpr, sgpr):
    acc = (vgpr + 3) // 4 * 4
    a.raw(".section .rodata,\"a\"")
    a.raw(".p2align 6")
    a.raw(".amdhsa_kernel %s" % name)
    a.raw("  .amdhsa_next_free_vgpr %d" % vgpr)
    a.raw("  .amdhsa_next_free_sgpr %d" % sgpr)
    a.raw("  .amdhsa_accum_offset %d" % acc)
    a.raw("  .amdhsa_group_segment_fixed_size 0")
    a.raw("  .amdhsa_kernarg_size 104")
    a.raw("  .amdhsa_user_sgpr_count 2")
    a.raw("  .amdhsa_user_sgpr_kernarg_segment_ptr 1")
    a.raw("  .amdhsa_system_sgpr_workgroup_id_x 1")
    a.raw(".end_amdhsa_kernel")


def srd(a, d, lo, hi, size, off=None):
    if off is None:
        a("s_mov_b32 s%d, s%d" % (d, lo))
        a("s_mov_b32 s%d, s%d" % (d + 1, hi))
    else:
        a("s_add_u32 s%d, s%d, %s" % (d, lo, off if isinstance(off, str) else hex(off)))
        a("s_addc_u32 s%d, s%d, 0" % (d + 1, hi))
    a("s_mov_b32 s%d, %s" % (d + 2, size if isinstance(size, str) else hex(size)))
    a("s_mov_b32 s%d, 0x20000" % (d + 3))


def wave_reduce(a, op, v):
    for sh in (1, 2, 4, 8):
        a.nop(2)
        a("%s_dpp v%d, v%d, v%d row_shr:%d row_mask:0xf bank_mask:0xf bound_ctrl:0" % (op, v, v, v, sh))
    a.nop(2)
    a("%s_dpp v%d, v%d, v%d row_bcast:15 row_mask:0xa bank_mask:0xf" % (op, v, v, v))
    a.nop(2)
    a("%s_dpp v%d, v%d, v%d row_bcast:31 row_mask:0xc bank_mask:0xf" % (op, v, v, v))


MFMA = "v_mfma_f32_32x32x16_bf16"
import os
PROF = int(os.environ.get("PROF", "0"))
WS_PROF = 32 << 20


def stamp(a, idx):
    if not PROF:
        return
    a("s_memtime s[%d:%d]" % (84 + 2 * idx, 85 + 2 * idx))
    if idx == 0:
        a("s_memrealtime s[100:101]")
    a("s_waitcnt lgkmcnt(0)")


def stamp_flush(a, kidx, nst, SWS, sW, vt):
    if not PROF:
        return
    a("s_memrealtime s[98:99]")
    a("s_waitcnt lgkmcnt(0)")
    a("s_lshl_b32 s82, s2, 3")
    a("s_add_u32 s82, s82, s%d" % sW)
    a("s_lshl_b32 s82, s82, 7")
    a("s_add_u32 s82, s82, %d" % (WS_PROF + kidx * (1 << 20)))
    a("v_mov_b32 v%d, 0" % vt)
    for i in range(18):
        a("v_mov_b32 v%d, s%d" % (vt + 1, 84 + i))
        a("buffer_store_dword v%d, v%d, s[%d:%d], s82 offen offset:%d" % (vt + 1, vt, SWS, SWS + 3, 4 * i))
        a("s_nop 1")


def gen_k1(a):
    name = "k1_kernel"
    kernel_begin(a, name)
    LX = 0
    LW0 = 49152
    LW1 = 98304
    LE = 147456
    LRED = 81920
    LTR = 0
    sW, sMT, sNT = 3, 4, 5
    sT0, sT1, sT2, sT3 = 6, 7, 8, 9
    sStride, sStr4, sStr64 = 10, 11, 12
    sKVmode = 13
    sKVe, sKVo = 14, 15
    P = dict(x=16, wq=18, wk=20, wv=22, wo=24, wg=28, wu=30, wd=32, gw=34, out=36, ws=40)
    SX, SW0, SW1, SWS, SE, SGW, SSL = 44, 48, 52, 56, 60, 64, 68
    sOffA, sOffB = 72, 73
    sSlab, sRB, sIsQ = 74, 75, 76
    sM0x, sM0w = 77, 78
    sKS = 79
    vL = 0
    vXd0, vXd1, vWd = 1, 2, 3
    vXr = [4, 5, 6, 7]
    vW0r, vW1r = 8, 9
    vKVx, vKVw = 10, 11
    vT0, vT1, vT2, vT3 = 12, 13, 14, 15
    FR = [16, 32]
    vR1, vR2 = 48, 52
    vSL = 56
    vGX, vGW = 64, 68
    vKA = 72
    vL16 = 88
    vT4, vT5 = 89, 90
    ACC = 96

    a("s_cmp_ge_u32 s2, 256")
    a("s_cbranch_scc1 K1_END")
    stamp(a, 0)
    a("s_load_dwordx16 s[16:31], s[0:1], 0")
    a("s_load_dwordx8 s[32:39], s[0:1], 64")
    a("s_load_dwordx2 s[40:41], s[0:1], 96")
    a("v_lshrrev_b32 v1, 6, v0")
    a("v_and_b32 v0, 63, v0")
    a("v_readfirstlane_b32 s%d, v1" % sW)
    a("s_and_b32 s%d, s2, 7" % sT0)
    a("s_lshr_b32 s%d, s2, 3" % sT1)
    a("s_and_b32 s%d, s%d, 1" % (sMT, sT0))
    a("s_lshl_b32 s%d, s%d, 3" % (sMT, sMT))
    a("s_and_b32 s%d, s%d, 7" % (sT2, sT1))
    a("s_add_u32 s%d, s%d, s%d" % (sMT, sMT, sT2))
    a("s_lshr_b32 s%d, s%d, 1" % (sNT, sT0))
    a("s_lshl_b32 s%d, s%d, 2" % (sNT, sNT))
    a("s_lshr_b32 s%d, s%d, 3" % (sT2, sT1))
    a("s_add_u32 s%d, s%d, s%d" % (sNT, sNT, sT2))
    a("v_lshlrev_b32 v%d, 4, v0" % vL16)
    a("s_cmp_ge_u32 s%d, 14" % sNT)
    a("s_cselect_b32 s%d, 1, 0" % sIsQ)
    a("s_movk_i32 s%d, 3584" % sStride)
    a("s_cselect_b32 s%d, 1024, s%d" % (sStride, sStride))
    a("s_lshl_b32 s%d, s%d, 2" % (sStr4, sStride))
    a("s_lshl_b32 s%d, s%d, 6" % (sStr64, sStride))
    a("s_lshl_b32 s%d, s%d, 11" % (sM0x, sW))
    a("s_and_b32 s%d, s%d, 3" % (sRB, sNT))
    a("s_lshr_b32 s%d, s%d, 2" % (sT0, sNT))
    a("s_add_u32 s%d, s%d, 1" % (sKVmode, sT0))
    a("s_cmp_ge_u32 s%d, 8" % sNT)
    a("s_cselect_b32 s%d, 0, s%d" % (sKVmode, sKVmode))
    a("s_cmp_lt_u32 s%d, 4" % sW)
    a("s_cselect_b32 s%d, s%d, 0" % (sKVe, sKVmode))
    a("s_cselect_b32 s%d, 0, s%d" % (sKVo, sKVmode))
    a("s_lshl_b32 s%d, s%d, 7" % (sT0, sMT))
    a("s_lshl_b32 s%d, s%d, 4" % (sT1, sW))
    a("s_add_u32 s%d, s%d, s%d" % (sT0, sT0, sT1))
    a("v_lshrrev_b32 v%d, 3, v0" % vT0)
    a("v_add_u32 v%d, s%d, v%d" % (vT0, sT0, vT0))
    a("v_lshlrev_b32 v%d, 10, v%d" % (vT0, vT0))
    a("v_and_b32 v%d, 7, v0" % vT1)
    a("v_lshrrev_b32 v%d, 4, v0" % vT2)
    a("v_xor_b32 v%d, v%d, v%d" % (vT1, vT1, vT2))
    a("v_lshl_add_u32 v%d, v%d, 4, v%d" % (vXd0, vT1, vT0))
    a("v_xor_b32 v%d, 64, v%d" % (vXd1, vXd0))
    a("v_add_u32 v%d, 0x2000, v%d" % (vXd1, vXd1))
    a("s_lshl_b32 s%d, s%d, 3" % (sT1, sW))
    a("v_add_u32 v%d, s%d, v%d" % (vT0, sT1, vT2))
    a("v_mul_lo_u32 v%d, v%d, s%d" % (vT0, vT0, sStride))
    a("v_bfe_u32 v%d, v0, 2, 2" % vT1)
    a("v_xor_b32 v%d, v%d, v%d" % (vT1, vT1, vT2))
    a("v_lshl_add_u32 v%d, v%d, 6, v%d" % (vT0, vT1, vT0))
    a("v_and_b32 v%d, 3, v0" % vT1)
    a("v_lshl_add_u32 v%d, v%d, 4, v%d" % (vWd, vT1, vT0))
    a("s_lshr_b32 s%d, s%d, 2" % (sT0, sW))
    a("s_lshl_b32 s%d, s%d, 13" % (sT0, sT0))
    a("v_and_b32 v%d, 31, v0" % vT0)
    a("v_lshlrev_b32 v%d, 7, v%d" % (vT0, vT0))
    a("v_lshrrev_b32 v%d, 5, v0" % vT1)
    a("v_bfe_u32 v%d, v0, 1, 3" % vT3)
    a("v_xor_b32 v%d, v%d, v%d" % (vT3, vT3, vT1))
    a("v_lshl_add_u32 v%d, v%d, 4, v%d" % (vT0, vT3, vT0))
    a("v_add_u32 v%d, s%d, v%d" % (vXr[0], sT0, vT0))
    for ks in (1, 2, 3):
        a("v_xor_b32 v%d, %d, v%d" % (vXr[ks], ks * 32, vXr[0]))
    a("s_and_b32 s%d, s%d, 3" % (sT1, sW))
    a("s_lshl_b32 s%d, s%d, 5" % (sT2, sT1))
    a("v_xor_b32 v%d, s%d, v%d" % (vKVx, sT2, vT0))
    a("s_lshl_b32 s%d, s%d, 12" % (sT2, sRB))
    a("v_add_u32 v%d, s%d, v%d" % (vKVx, sT2, vKVx))
    a("v_bfe_u32 v%d, v0, 2, 2" % vT2)
    a("v_lshl_add_u32 v%d, v%d, 3, v%d" % (vT3, vT1, vT2))
    a("v_lshlrev_b32 v%d, 8, v%d" % (vT0, vT3))
    a("v_xor_b32 v%d, s%d, v%d" % (vT2, sT1, vT2))
    a("v_lshl_add_u32 v%d, v%d, 6, v%d" % (vT0, vT2, vT0))
    a("v_bfe_u32 v%d, v0, 4, 1" % vT2)
    a("v_lshl_add_u32 v%d, v%d, 5, v%d" % (vT0, vT2, vT0))
    a("v_and_b32 v%d, 3, v0" % vT2)
    a("v_lshl_add_u32 v%d, v%d, 3, v%d" % (vT0, vT2, vT0))
    a("v_add_u32 v%d, %d, v%d" % (vW0r, LW0, vT0))
    a("v_add_u32 v%d, %d, v%d" % (vW1r, LW1, vT0))
    a("s_lshl_b32 s%d, s%d, 9" % (sT2, sT1))
    a("s_add_u32 s%d, s%d, %d" % (sT2, sT2, LE))
    a("v_lshlrev_b32 v%d, 5, v%d" % (vT0, vT3))
    a("v_lshl_add_u32 v%d, v%d, 3, v%d" % (vT0, vT2, vT0))
    a("v_add_u32 v%d, s%d, v%d" % (vKVw, sT2, vT0))
    a("s_waitcnt lgkmcnt(0)")
    srd(a, SX, P['x'], P['x'] + 1, 2097152)
    srd(a, SWS, P['ws'], P['ws'] + 1, WS_SIZE)
    srd(a, SGW, P['gw'], P['gw'] + 1, 1024)
    a("s_cmp_eq_u32 s%d, 1" % sIsQ)
    a("s_cselect_b32 s%d, s%d, s%d" % (SW0, P['wq'], P['wg']))
    a("s_cselect_b32 s%d, s%d, s%d" % (SW0 + 1, P['wq'] + 1, P['wg'] + 1))
    a("s_cselect_b32 s%d, s%d, s%d" % (SW1, P['wq'], P['wu']))
    a("s_cselect_b32 s%d, s%d, s%d" % (SW1 + 1, P['wq'] + 1, P['wu'] + 1))
    a("s_mov_b32 s%d, 0x1c0000" % sT0)
    a("s_cselect_b32 s%d, 0x80000, s%d" % (sT0, sT0))
    a("s_lshl_b32 s%d, s%d, 8" % (sT1, sNT))
    a("s_sub_u32 s%d, s%d, 14" % (sT2, sNT))
    a("s_lshl_b32 s%d, s%d, 9" % (sT2, sT2))
    a("s_add_u32 s%d, s%d, 256" % (sT3, sT2))
    a("s_cmp_eq_u32 s%d, 1" % sIsQ)
    a("s_cselect_b32 s%d, s%d, s%d" % (sT2, sT2, sT1))
    a("s_cselect_b32 s%d, s%d, s%d" % (sT3, sT3, sT1))
    a("s_add_u32 s%d, s%d, s%d" % (SW0, SW0, sT2))
    a("s_addc_u32 s%d, s%d, 0" % (SW0 + 1, SW0 + 1))
    a("s_sub_u32 s%d, s%d, s%d" % (SW0 + 2, sT0, sT2))
    a("s_mov_b32 s%d, 0x20000" % (SW0 + 3))
    a("s_add_u32 s%d, s%d, s%d" % (SW1, SW1, sT3))
    a("s_addc_u32 s%d, s%d, 0" % (SW1 + 1, SW1 + 1))
    a("s_sub_u32 s%d, s%d, s%d" % (SW1 + 2, sT0, sT3))
    a("s_mov_b32 s%d, 0x20000" % (SW1 + 3))

    def dma_stage(s):
        b = s % 3
        a("s_add_u32 m0, s%d, %d" % (sM0x, LX + b * 16384))
        a("s_movk_i32 s%d, %d" % (sOffA, s * 128))
        a("buffer_load_dwordx4 v%d, s[%d:%d], s%d offen lds" % (vXd0, SX, SX + 3, sOffA))
        a("s_add_u32 m0, s%d, %d" % (sM0x, LX + b * 16384 + 1024))
        a("s_mul_i32 s%d, s%d, %d" % (sOffB, sStr64, s))
        a("buffer_load_dwordx4 v%d, s[%d:%d], s%d offen lds" % (vXd1, SX, SX + 3, sOffA))
        a("s_add_u32 m0, s%d, %d" % (sM0x, LW0 + b * 16384))
        a("s_add_u32 s%d, s%d, s%d" % (sOffA, sOffB, sStr4))
        a("buffer_load_dwordx4 v%d, s[%d:%d], s%d offen lds" % (vWd, SW0, SW0 + 3, sOffB))
        a("s_add_u32 m0, s%d, %d" % (sM0x, LW0 + b * 16384 + 1024))
        a("s_nop 0")
        a("buffer_load_dwordx4 v%d, s[%d:%d], s%d offen lds" % (vWd, SW0, SW0 + 3, sOffA))
        a("s_add_u32 m0, s%d, %d" % (sM0x, LW1 + b * 16384))
        a("s_nop 0")
        a("buffer_load_dwordx4 v%d, s[%d:%d], s%d offen lds" % (vWd, SW1, SW1 + 3, sOffB))
        a("s_add_u32 m0, s%d, %d" % (sM0x, LW1 + b * 16384 + 1024))
        a("s_nop 0")
        a("buffer_load_dwordx4 v%d, s[%d:%d], s%d offen lds" % (vWd, SW1, SW1 + 3, sOffA))

    dma_stage(0)
    a("s_lshl_b32 s%d, s%d, 7" % (sT0, sMT))
    a("s_lshl_b32 s%d, s%d, 3" % (sT1, sNT))
    a("s_add_u32 s%d, s%d, s%d" % (sT0, sT0, sT1))
    a("s_add_u32 s%d, s%d, s%d" % (sKS, sT0, sW))
    a("s_lshl_b32 s%d, s%d, 10" % (sT0, sKS))
    a("buffer_load_dwordx4 v[%d:%d], v%d, s[%d:%d], s%d offen" % (vGX, vGX + 3, vL16, SX, SX + 3, sT0))
    a("buffer_load_dwordx4 v[%d:%d], v%d, s[%d:%d], 0 offen" % (vGW, vGW + 3, vL16, SGW, SGW + 3))
    a("s_cmp_eq_u32 s%d, 0" % sKVmode)
    a("s_cbranch_scc1 K1_NOE")
    a("s_cmp_eq_u32 s%d, 1" % sKVmode)
    a("s_cselect_b32 s%d, s%d, s%d" % (SE, P['wk'], P['wv']))
    a("s_cselect_b32 s%d, s%d, s%d" % (SE + 1, P['wk'] + 1, P['wv'] + 1))
    a("s_mov_b32 s%d, 16384" % (SE + 2))
    a("s_mov_b32 s%d, 0x20000" % (SE + 3))
    a("s_add_u32 m0, s%d, %d" % (sM0x, LE))
    a("s_nop 0")
    a("buffer_load_dwordx4 v%d, s[%d:%d], s%d offen lds" % (vL16, SE, SE + 3, sM0x))
    a("buffer_load_dwordx4 v%d, s[%d:%d], s%d offen offset:1024 lds" % (vL16, SE, SE + 3, sM0x))
    a.label("K1_NOE")
    a("s_cmp_lt_u32 s%d, 7" % sNT)
    a("s_cbranch_scc1 K1_NOSL")
    a("s_mul_i32 s%d, s%d, 9" % (sSlab, sMT))
    a("s_add_u32 s%d, s%d, s%d" % (sSlab, sSlab, sNT))
    a("s_sub_u32 s%d, s%d, 7" % (sSlab, sSlab))
    a("s_sub_u32 s%d, s%d, 32" % (sT0, sSlab))
    a("s_cmp_lt_u32 s%d, 32" % sSlab)
    a("s_cselect_b32 s%d, s%d, s%d" % (SSL, P['wo'], P['wd']))
    a("s_cselect_b32 s%d, s%d, s%d" % (SSL + 1, P['wo'] + 1, P['wd'] + 1))
    a("s_mov_b32 s%d, 0x1c0000" % (SSL + 2))
    a("s_cselect_b32 s%d, 0x80000, s%d" % (SSL + 2, SSL + 2))
    a("s_mov_b32 s%d, 0x20000" % (SSL + 3))
    a("s_cselect_b32 s%d, s%d, s%d" % (sT0, sSlab, sT0))
    a("s_lshl_b32 s%d, s%d, 14" % (sT0, sT0))
    a("s_lshl_b32 s%d, s%d, 7" % (sT1, sW))
    a("s_add_u32 s%d, s%d, s%d" % (sT0, sT0, sT1))
    a("s_add_u32 s%d, s%d, 8192" % (sT1, sT0))
    a("v_lshrrev_b32 v%d, 3, v0" % vT0)
    a("v_and_b32 v%d, 7, v0" % vT1)
    a("v_lshlrev_b32 v%d, 10, v%d" % (vT0, vT0))
    a("v_lshl_add_u32 v%d, v%d, 4, v%d" % (vT0, vT1, vT0))
    a("buffer_load_dwordx4 v[%d:%d], v%d, s[%d:%d], s%d offen" % (vSL, vSL + 3, vT0, SSL, SSL + 3, sT0))
    a("buffer_load_dwordx4 v[%d:%d], v%d, s[%d:%d], s%d offen" % (vSL + 4, vSL + 7, vT0, SSL, SSL + 3, sT1))
    a.label("K1_NOSL")
    dma_stage(1)
    dma_stage(2)
    for r in range(16):
        a("v_mov_b32 v%d, 0" % (vKA + r))

    def reads(s, ks, fs):
        b = s % 3
        f = FR[fs]
        a("ds_read_b128 v[%d:%d], v%d offset:%d" % (f, f + 3, vXr[ks], LX + b * 16384))
        a("ds_read_b64_tr_b16 v[%d:%d], v%d offset:%d" % (f + 8, f + 9, vW0r, b * 16384 + (16 * ks) * 256))
        a("ds_read_b64_tr_b16 v[%d:%d], v%d offset:%d" % (f + 10, f + 11, vW0r, b * 16384 + (16 * ks + 4) * 256))
        a("ds_read_b128 v[%d:%d], v%d offset:%d" % (f + 4, f + 7, vXr[ks], LX + b * 16384 + 4096))
        a("ds_read_b64_tr_b16 v[%d:%d], v%d offset:%d" % (f + 12, f + 13, vW1r, b * 16384 + (16 * ks) * 256))
        a("ds_read_b64_tr_b16 v[%d:%d], v%d offset:%d" % (f + 14, f + 15, vW1r, b * 16384 + (16 * ks + 4) * 256))

    def kv_reads(s):
        b = s % 3
        flag = sKVe if s % 2 == 0 else sKVo
        a("s_cmp_eq_u32 s%d, 0" % flag)
        a("s_cbranch_scc1 K1_KVR%d_E" % s)
        a("s_cmp_eq_u32 s%d, 1" % flag)
        a("s_cbranch_scc1 K1_KVR%d_K" % s)
        a("ds_read_b128 v[%d:%d], v%d offset:%d" % (vR1, vR1 + 3, vKVx, LX + b * 16384))
        a("ds_read_b64_tr_b16 v[%d:%d], v%d offset:%d" % (vR2, vR2 + 1, vKVw, s * 2048))
        a("ds_read_b64_tr_b16 v[%d:%d], v%d offset:%d" % (vR2 + 2, vR2 + 3, vKVw, s * 2048 + 128))
        a("s_branch K1_KVR%d_E" % s)
        a.label("K1_KVR%d_K" % s)
        a("ds_read_b128 v[%d:%d], v%d offset:%d" % (vR2, vR2 + 3, vKVx, LX + b * 16384))
        a("ds_read_b64_tr_b16 v[%d:%d], v%d offset:%d" % (vR1, vR1 + 1, vKVw, s * 2048))
        a("ds_read_b64_tr_b16 v[%d:%d], v%d offset:%d" % (vR1 + 2, vR1 + 3, vKVw, s * 2048 + 128))
        a.label("K1_KVR%d_E" % s)

    def kv_mfma(s):
        flag = sKVe if s % 2 == 0 else sKVo
        a("s_cmp_eq_u32 s%d, 0" % flag)
        a("s_cbranch_scc1 K1_KVM%d_E" % s)
        a("%s v[%d:%d], v[%d:%d], v[%d:%d], v[%d:%d]" % (MFMA, vKA, vKA + 15, vR1, vR1 + 3, vR2, vR2 + 3, vKA, vKA + 15))
        a.label("K1_KVM%d_E" % s)

    def mfmas(fs, first):
        f = FR[fs]
        for half in (0, 1):
            for i in (0, 1):
                acc = ACC + (half * 2 + i) * 16
                c = "0" if first else "v[%d:%d]" % (acc, acc + 15)
                a("%s v[%d:%d], v[%d:%d], v[%d:%d], %s" % (MFMA, acc, acc + 15, f + 8 + half * 4, f + 11 + half * 4,
                                                           f + i * 4, f + i * 4 + 3, c))

    stamp(a, 1)
    a("s_waitcnt vmcnt(12)")
    a("s_barrier")
    stamp(a, 2)
    kv_reads(0)
    reads(0, 0, 0)
    fs = 0
    for s in range(8):
        for ks in range(4):
            if ks < 3:
                reads(s, ks + 1, fs ^ 1)
                a("s_waitcnt lgkmcnt(6)")
            else:
                a("s_waitcnt lgkmcnt(0)")
                kv_mfma(s)
                if s < 7:
                    a("s_waitcnt vmcnt(%d)" % (6 if s + 2 <= 7 else 0))
                    a("s_barrier")
                    kv_reads(s + 1)
                    reads(s + 1, 0, fs ^ 1)
                    if s + 3 <= 7:
                        dma_stage(s + 3)
            mfmas(fs, s == 0 and ks == 0)
            fs ^= 1

    stamp(a, 3)
    a("v_mov_b32 v%d, 0" % vT0)
    for j in range(4):
        a("v_dot2_f32_bf16 v%d, v%d, v%d, v%d" % (vT0, vGX + j, vGW + j, vT0))
    a.nop(3)
    a("v_mov_b32 v%d, v%d" % (vT1, vT0))
    wave_reduce(a, "v_add_f32", vT1)
    a("v_mul_f32 v%d, 0x%08x, v%d" % (vT1, f32bits(-math.log2(math.e)), vT1))
    a("v_exp_f32 v%d, v%d" % (vT1, vT1))
    a.nop(1)
    a("v_add_f32 v%d, 1.0, v%d" % (vT1, vT1))
    a("v_rcp_f32 v%d, v%d" % (vT1, vT1))
    a("s_lshl_b32 s%d, s%d, 2" % (sT0, sKS))
    a("s_add_u32 s%d, s%d, %d" % (sT0, sT0, WS_G))
    a("v_mov_b32 v%d, 0" % vT2)
    a("s_mov_b64 s[%d:%d], exec" % (80, 81))
    a("s_mov_b32 exec_lo, 0")
    a("s_mov_b32 exec_hi, 0x80000000")
    a("buffer_store_dword v%d, v%d, s[%d:%d], s%d offen" % (vT1, vT2, SWS, SWS + 3, sT0))
    a("s_mov_b64 exec, s[%d:%d]" % (80, 81))

    a("s_cmp_eq_u32 s%d, 0" % sKVmode)
    a("s_cbranch_scc1 K1_KV_DONE")
    a("s_lshl_b32 s%d, s%d, 12" % (sT0, sW))
    a("s_add_u32 s%d, s%d, %d" % (sT0, sT0, LRED))
    a("v_add_u32 v%d, s%d, v%d" % (vT0, sT0, vL16))
    for q in range(4):
        a("ds_write_b128 v%d, v[%d:%d] offset:%d" % (vT0, vKA + 4 * q, vKA + 4 * q + 3, q * 1024))
    a("s_waitcnt lgkmcnt(0)")
    a("s_barrier")
    a("s_cmp_ge_u32 s%d, s%d" % (sW, sKVmode))
    a("s_cbranch_scc1 K1_KV_DONE")
    a("s_lshl_b32 s%d, s%d, 11" % (sT0, sW))
    a("s_add_u32 s%d, s%d, %d" % (sT0, sT0, LRED))
    a("v_add_u32 v%d, s%d, v%d" % (vT0, sT0, vL16))
    a("ds_read_b128 v[%d:%d], v%d offset:0" % (vKA, vKA + 3, vT0))
    a("ds_read_b128 v[%d:%d], v%d offset:1024" % (vKA + 4, vKA + 7, vT0))
    for rnd, ws_ in enumerate(((1, 2, 3, 4), (5, 6, 7))):
        for j, w_ in enumerate(ws_):
            a("ds_read_b128 v[%d:%d], v%d offset:%d" % (16 + 8 * j, 19 + 8 * j, vT0, w_ * 4096))
            a("ds_read_b128 v[%d:%d], v%d offset:%d" % (20 + 8 * j, 23 + 8 * j, vT0, w_ * 4096 + 1024))
        a("s_waitcnt lgkmcnt(0)")
        for j, w_ in enumerate(ws_):
            for r in range(8):
                a("v_add_f32 v%d, v%d, v%d" % (vKA + r, vKA + r, 16 + 8 * j + r))
    for j in range(4):
        a("v_cvt_pk_bf16_f32 v%d, v%d, v%d" % (vR1 + j, vKA + 2 * j, vKA + 2 * j + 1))
    a("s_lshl_b32 s%d, s%d, 2" % (sT0, sMT))
    a("s_add_u32 s%d, s%d, s%d" % (sT0, sT0, sRB))
    a("s_mul_i32 s%d, s%d, %d" % (sT1, sT0, KVBLK))
    a("s_add_u32 s%d, s%d, %d" % (sT1, sT1, WS_KV))
    a("s_cmp_eq_u32 s%d, 2" % sKVmode)
    a("s_cbranch_scc1 K1_KV_V")
    a("buffer_store_dwordx4 v[%d:%d], v%d, s[%d:%d], s%d offen" % (vR1, vR1 + 3, vL16, SWS, SWS + 3, sT1))
    a("v_mov_b32 v%d, 0" % vT1)
    for j in range(4):
        a("v_dot2_f32_bf16 v%d, v%d, v%d, v%d" % (vT1, vR1 + j, vR1 + j, vT1))
    a.nop(3)
    a("v_mov_b32 v%d, v%d" % (vT2, vT1))
    a.nop(2)
    a("v_permlane32_swap_b32 v%d, v%d" % (vT1, vT2))
    a.nop(2)
    a("v_add_f32 v%d, v%d, v%d" % (vT1, vT1, vT2))
    wave_reduce(a, "v_max_f32", vT1)
    a("s_lshl_b32 s%d, s%d, 2" % (sT0, sT0))
    a("s_add_u32 s%d, s%d, %d" % (sT0, sT0, WS_NRM))
    a("v_mov_b32 v%d, 0" % vT2)
    a("s_mov_b32 exec_lo, 0")
    a("s_mov_b32 exec_hi, 0x80000000")
    a("buffer_store_dword v%d, v%d, s[%d:%d], s%d offen" % (vT1, vT2, SWS, SWS + 3, sT0))
    a("s_mov_b64 exec, s[%d:%d]" % (80, 81))
    a("s_branch K1_KV_DONE")
    a.label("K1_KV_V")
    a("v_max3_f32 v%d, |v%d|, |v%d|, |v%d|" % (vT1, vKA, vKA + 1, vKA + 2))
    a("v_max3_f32 v%d, |v%d|, |v%d|, v%d" % (vT1, vKA + 3, vKA + 4, vT1))
    a("v_max3_f32 v%d, |v%d|, |v%d|, v%d" % (vT1, vKA + 5, vKA + 6, vT1))
    a("v_max_f32 v%d, |v%d|, v%d" % (vT1, vKA + 7, vT1))
    a("s_mov_b32 s%d, 0x%08x" % (sT2, f32bits(2.0 ** 60)))
    a("v_cmp_lt_f32 vcc, s%d, v%d" % (sT2, vT1))
    a("s_cmp_lg_u64 vcc, 0")
    a("s_cselect_b32 s%d, 0x7f800000, 0" % sT2)
    a("v_mov_b32 v%d, s%d" % (vT1, sT2))
    a("s_lshl_b32 s%d, s%d, 1" % (sT0, sT0))
    a("s_add_u32 s%d, s%d, s%d" % (sT0, sT0, sW))
    a("s_lshl_b32 s%d, s%d, 2" % (sT0, sT0))
    a("s_add_u32 s%d, s%d, %d" % (sT0, sT0, WS_NRM + 256))
    a("v_mov_b32 v%d, 0" % vT2)
    a("s_mov_b32 exec_lo, 0")
    a("s_mov_b32 exec_hi, 0x80000000")
    a("buffer_store_dword v%d, v%d, s[%d:%d], s%d offen" % (vT1, vT2, SWS, SWS + 3, sT0))
    a("s_mov_b64 exec, s[%d:%d]" % (80, 81))
    a("v_and_b32 v%d, 16, v0" % vT1)
    a("v_cmp_eq_u32 vcc, 0, v%d" % vT1)
    a("v_lshrrev_b32 v%d, 5, v0" % vT2)
    a("v_and_b32 v%d, 15, v0" % vT3)
    a("v_lshlrev_b32 v%d, 8, v%d" % (vT2, vT2))
    a("v_lshl_add_u32 v%d, v%d, 4, v%d" % (vT2, vT3, vT2))
    a("v_mov_b32 v%d, 0x200" % vT3)
    a("v_mov_b32 v%d, 0x3f803f80" % vT1)
    a("v_cndmask_b32 v%d, v%d, v%d, vcc" % (vT2, vT3, vT2))
    for j in range(4):
        a("v_cndmask_b32 v%d, v%d, v%d, vcc" % (vR1 + j, vT1, vR1 + j))
    a("s_mul_i32 s%d, s%d, 528" % (sT0, sW))
    a("s_add_u32 s%d, s%d, s%d" % (sT1, sT1, sT0))
    a("s_add_u32 s%d, s%d, 1024" % (sT1, sT1))
    a("buffer_store_dwordx4 v[%d:%d], v%d, s[%d:%d], s%d offen" % (vR1, vR1 + 3, vT2, SWS, SWS + 3, sT1))
    a.label("K1_KV_DONE")

    a("s_cmp_lt_u32 s%d, 7" % sNT)
    a("s_cbranch_scc1 K1_SL_DONE")
    a("v_add_u32 v%d, s%d, v%d" % (vT0, sM0x, vL16))
    a("ds_write_b128 v%d, v[%d:%d] offset:%d" % (vT0, vSL, vSL + 3, LTR))
    a("ds_write_b128 v%d, v[%d:%d] offset:%d" % (vT0, vSL + 4, vSL + 7, LTR + 1024))
    a("v_lshrrev_b32 v%d, 5, v0" % vT1)
    a("v_bfe_u32 v%d, v0, 2, 2" % vT2)
    a("v_lshl_add_u32 v%d, v%d, 2, v%d" % (vT1, vT1, vT2))
    a("v_lshlrev_b32 v%d, 7, v%d" % (vT1, vT1))
    a("v_bfe_u32 v%d, v0, 4, 1" % vT2)
    a("v_lshl_add_u32 v%d, v%d, 5, v%d" % (vT1, vT2, vT1))
    a("v_and_b32 v%d, 3, v0" % vT2)
    a("v_lshl_add_u32 v%d, v%d, 3, v%d" % (vT1, vT2, vT1))
    a("v_add_u32 v%d, s%d, v%d" % (vT1, sM0x, vT1))
    a("s_waitcnt lgkmcnt(0)")
    for f in range(2):
        for u in range(2):
            a("ds_read_b64_tr_b16 v[%d:%d], v%d offset:%d" % (16 + 4 * f + 2 * u, 17 + 4 * f + 2 * u, vT1,
                                                             LTR + u * 1024 + f * 64))
    a("s_mul_i32 s%d, s%d, 288" % (sT0, sW))
    a("s_add_u32 s%d, s%d, s%d" % (sT0, sT0, sSlab))
    a("s_lshl_b32 s%d, s%d, 10" % (sT0, sT0))
    a("s_add_u32 s%d, s%d, %d" % (sT0, sT0, WS_WF))
    a("s_add_u32 s%d, s%d, %d" % (sT1, sT0, 144 * 1024))
    a("s_waitcnt lgkmcnt(0)")
    a("buffer_store_dwordx4 v[16:19], v%d, s[%d:%d], s%d offen" % (vL16, SWS, SWS + 3, sT0))
    a("buffer_store_dwordx4 v[20:23], v%d, s[%d:%d], s%d offen" % (vL16, SWS, SWS + 3, sT1))
    a.label("K1_SL_DONE")

    stamp(a, 4)
    a("s_lshr_b32 s%d, s%d, 2" % (sT0, sW))
    a("s_lshl_b32 s%d, s%d, 1" % (sT0, sT0))
    a("s_lshl_b32 s%d, s%d, 2" % (sT1, sMT))
    a("s_add_u32 s%d, s%d, s%d" % (sT0, sT0, sT1))
    a("s_and_b32 s%d, s%d, 3" % (sT1, sW))
    a("s_cmp_eq_u32 s%d, 1" % sIsQ)
    a("s_cbranch_scc1 K1_EPI_Q")
    a("s_mul_i32 s%d, s%d, 144" % (sT0, sT0))
    a("s_lshl_b32 s%d, s%d, 3" % (sT2, sNT))
    a("s_add_u32 s%d, s%d, s%d" % (sT0, sT0, sT2))
    a("s_lshl_b32 s%d, s%d, 1" % (sT1, sT1))
    a("s_add_u32 s%d, s%d, s%d" % (sT0, sT0, sT1))
    a("s_lshl_b32 s%d, s%d, 10" % (sT0, sT0))
    a("s_add_u32 s%d, s%d, %d" % (sT0, sT0, WS_AF + 32 * 1024))
    a("s_add_u32 s%d, s%d, %d" % (sT1, sT0, 144 * 1024))
    for i in (0, 1):
        g = ACC + i * 16
        u = ACC + (2 + i) * 16
        for r in range(16):
            a("v_mul_f32 v%d, v%d, v%d" % (g + r, g + r, u + r))
        for j in range(8):
            a("v_cvt_pk_bf16_f32 v%d, v%d, v%d" % (u + j, g + 2 * j, g + 2 * j + 1))
        so = sT0 if i == 0 else sT1
        a("buffer_store_dwordx4 v[%d:%d], v%d, s[%d:%d], s%d offen" % (u, u + 3, vL16, SWS, SWS + 3, so))
        a("buffer_store_dwordx4 v[%d:%d], v%d, s[%d:%d], s%d offen offset:1024" % (u + 4, u + 7, vL16, SWS, SWS + 3, so))
    stamp(a, 5)
    a("s_waitcnt vmcnt(0)")
    stamp(a, 6)
    stamp_flush(a, 0, 7, SWS, sW, 2)
    a("s_endpgm")
    a.label("K1_EPI_Q")
    a("s_lshl_b32 s%d, s%d, 5" % (sT0, sT0))
    a("s_sub_u32 s%d, s%d, 14" % (sT2, sNT))
    a("s_lshl_b32 s%d, s%d, 4" % (sT2, sT2))
    a("s_add_u32 s%d, s%d, s%d" % (sT0, sT0, sT2))
    a("s_lshl_b32 s%d, s%d, 1" % (sT1, sT1))
    a("s_add_u32 s%d, s%d, s%d" % (sT0, sT0, sT1))
    a("s_lshl_b32 s%d, s%d, 10" % (sT0, sT0))
    a("s_mov_b32 s%d, 0x%08x" % (sT3, f32bits(QSCALE)))
    for half in (0, 1):
        for i in (0, 1):
            t = ACC + (half * 2 + i) * 16
            for r in range(16):
                a("v_mul_f32 v%d, s%d, v%d" % (t + r, sT3, t + r))
            d = 16 + (half * 2 + i) * 8
            for j in range(8):
                a("v_cvt_pk_bf16_f32 v%d, v%d, v%d" % (d + j, t + 2 * j, t + 2 * j + 1))
            a("s_add_u32 s%d, s%d, %d" % (sT1, sT0, WS_QF + (i * 32 + half * 8) * 1024))
            a("buffer_store_dwordx4 v[%d:%d], v%d, s[%d:%d], s%d offen" % (d, d + 3, vL16, SWS, SWS + 3, sT1))
            a("buffer_store_dwordx4 v[%d:%d], v%d, s[%d:%d], s%d offen offset:1024" % (d + 4, d + 7, vL16, SWS, SWS + 3, sT1))
    stamp(a, 5)
    a("s_waitcnt vmcnt(0)")
    stamp(a, 6)
    stamp_flush(a, 0, 7, SWS, sW, 2)
    a.label("K1_END")
    a("s_endpgm")
    kernel_desc(a, name, 160, 102)
    return "; @launch kernel=%s grid=(256,1,1) block=(512,1,1) lds=163840" % name


def gen_k2(a):
    name = "k2_kernel"
    kernel_begin(a, name)
    sW = 3
    sT0, sT1, sT2, sT3 = 4, 5, 6, 7
    SWS = 8
    sIt, sSkipBar = 12, 13
    sID = 14
    vL16 = 1
    vKa, vVa = 2, 3
    vT0, vT1, vT2, vT3 = 4, 5, 6, 7
    vQ = 8
    vKF = [12, 16]
    vVF = [20, 28]
    vP = 36
    vS = [48, 64]
    vO = 80
    vC = 96
    NB = 4
    NIT = 64 // NB

    a("s_cmp_ge_u32 s2, 256")
    a("s_cbranch_scc1 K2_END")
    stamp(a, 0)
    a("s_load_dwordx2 s[16:17], s[0:1], 96")
    a("v_lshrrev_b32 v1, 6, v0")
    a("v_and_b32 v0, 63, v0")
    a("v_readfirstlane_b32 s%d, v1" % sW)
    a("v_lshlrev_b32 v%d, 4, v0" % vL16)
    a("v_mov_b32 v%d, v%d" % (vKa, vL16))
    a("v_and_b32 v%d, 16, v0" % vT1)
    a("v_cmp_eq_u32 vcc, 0, v%d" % vT1)
    a("v_lshrrev_b32 v%d, 5, v0" % vT2)
    a("v_and_b32 v%d, 15, v0" % vT3)
    a("v_lshlrev_b32 v%d, 8, v%d" % (vT2, vT2))
    a("v_lshl_add_u32 v%d, v%d, 4, v%d" % (vT2, vT3, vT2))
    a("v_mov_b32 v%d, 0x200" % vT3)
    a("v_cndmask_b32 v%d, v%d, v%d, vcc" % (vVa, vT3, vT2))
    a("v_add_u32 v%d, 1024, v%d" % (vVa, vVa))
    a("s_lshl_b32 s%d, s2, 3" % sID)
    a("s_add_u32 s%d, s%d, s%d" % (sID, sID, sW))
    a("s_waitcnt lgkmcnt(0)")
    srd(a, SWS, 16, 17, WS_SIZE)
    a("s_lshl_b32 s%d, s%d, 10" % (sT0, sID))
    a("buffer_load_dwordx4 v[%d:%d], v%d, s[%d:%d], s%d offen" % (vQ, vQ + 3, vL16, SWS, SWS + 3, sT0))
    a("v_lshlrev_b32 v%d, 2, v0" % vT0)
    a("s_mov_b32 s%d, %d" % (sT1, WS_NRM))
    a("buffer_load_dword v%d, v%d, s[%d:%d], s%d offen" % (vT1, vT0, SWS, SWS + 3, sT1))
    a("buffer_load_dword v%d, v%d, s[%d:%d], s%d offen offset:256" % (vT2, vT0, SWS, SWS + 3, sT1))
    a("buffer_load_dword v%d, v%d, s[%d:%d], s%d offen offset:512" % (vT3, vT0, SWS, SWS + 3, sT1))
    a("s_lshl_b32 s%d, s%d, 10" % (sT0, sW))
    a("s_add_u32 s%d, s%d, %d" % (sT1, sT0, WS_KV))
    for j in range(17):
        if j == 16:
            a("s_cmp_ge_u32 s%d, 2" % sW)
            a("s_cbranch_scc1 K2_DMA_DONE")
        a("s_add_u32 m0, s%d, %d" % (sT0, j * 8192))
        a("s_add_u32 s%d, s%d, %d" % (sT2, sT1, j * 8192))
        a("buffer_load_dwordx4 v%d, s[%d:%d], s%d offen lds" % (vL16, SWS, SWS + 3, sT2))
    a.label("K2_DMA_DONE")
    for r in range(16):
        a("v_mov_b32 v%d, 0" % (vC + r))
    for r in range(16):
        a("v_mov_b32 v%d, 0" % (vO + r))
    stamp(a, 1)
    a("s_waitcnt vmcnt(14)")
    a("v_max3_f32 v%d, v%d, v%d, v%d" % (vT1, vT1, vT2, vT3))
    wave_reduce(a, "v_max_f32", vT1)
    a("v_mov_b32 v%d, 0" % vT2)
    for j in range(4):
        a("v_dot2_f32_bf16 v%d, v%d, v%d, v%d" % (vT2, vQ + j, vQ + j, vT2))
    a("v_readlane_b32 s%d, v%d, 63" % (sT0, vT1))
    a.nop(3)
    a("v_mov_b32 v%d, v%d" % (vT3, vT2))
    a.nop(2)
    a("v_permlane32_swap_b32 v%d, v%d" % (vT2, vT3))
    a.nop(2)
    a("v_add_f32 v%d, v%d, v%d" % (vT2, vT2, vT3))
    a("v_mul_f32 v%d, s%d, v%d" % (vT2, sT0, vT2))
    a("s_mov_b32 s%d, 0x%08x" % (sT1, f32bits(900.0)))
    a("v_cmp_nge_f32 vcc, s%d, v%d" % (sT1, vT2))
    a("s_mov_b32 s%d, 0" % sSkipBar)
    a("s_barrier")
    a("s_cmp_lg_u64 vcc, 0")
    a("s_cbranch_scc0 K2_FAST")
    a("s_waitcnt vmcnt(0)")
    a("s_barrier")
    a("s_mov_b32 s%d, 1" % sSkipBar)
    a("v_mov_b32 v%d, 0xff800000" % vT0)
    a("v_mov_b32 v%d, v%d" % (vT1, vKa))
    a("s_mov_b32 s%d, 0" % sIt)
    a.label("K2_MAXLOOP")
    a("ds_read_b128 v[%d:%d], v%d" % (vKF[0], vKF[0] + 3, vT1))
    a("v_add_u32 v%d, %d, v%d" % (vT1, KVBLK, vT1))
    a("s_waitcnt lgkmcnt(0)")
    a("%s v[%d:%d], v[%d:%d], v[%d:%d], 0" % (MFMA, vS[0], vS[0] + 15, vKF[0], vKF[0] + 3, vQ, vQ + 3))
    a.nop(16)
    for j in range(8):
        a("v_max3_f32 v%d, v%d, v%d, v%d" % (vT0, vS[0] + 2 * j, vS[0] + 2 * j + 1, vT0))
    a("s_add_u32 s%d, s%d, 1" % (sIt, sIt))
    a("s_cmp_lt_u32 s%d, 64" % sIt)
    a("s_cbranch_scc1 K2_MAXLOOP")
    a("v_mov_b32 v%d, v%d" % (vT1, vT0))
    a.nop(2)
    a("v_permlane32_swap_b32 v%d, v%d" % (vT0, vT1))
    a.nop(2)
    a("v_max_f32 v%d, v%d, v%d" % (vT0, vT0, vT1))
    for r in range(16):
        a("v_sub_f32 v%d, 0, v%d" % (vC + r, vT0))
    a.label("K2_FAST")
    stamp(a, 2)

    def rdK(buf, off):
        a("ds_read_b128 v[%d:%d], v%d offset:%d" % (vKF[buf], vKF[buf] + 3, vKa, off))

    def rdV(buf, off):
        a("ds_read_b128 v[%d:%d], v%d offset:%d" % (vVF[buf], vVF[buf] + 3, vVa, off))
        a("ds_read_b128 v[%d:%d], v%d offset:%d" % (vVF[buf] + 4, vVF[buf] + 7, vVa, off + 528))

    def mS(sbuf, kbuf):
        a("%s v[%d:%d], v[%d:%d], v[%d:%d], v[%d:%d]" % (MFMA, vS[sbuf], vS[sbuf] + 15, vKF[kbuf], vKF[kbuf] + 3,
                                                        vQ, vQ + 3, vC, vC + 15))

    def mPV(vbuf, t):
        a("%s v[%d:%d], v[%d:%d], v[%d:%d], v[%d:%d]" % (MFMA, vO, vO + 15, vVF[vbuf] + 4 * t, vVF[vbuf] + 4 * t + 3,
                                                        vP + 4 * t, vP + 4 * t + 3, vO, vO + 15))

    def E(sb, r):
        a("v_exp_f32 v%d, v%d" % (vS[sb] + r, vS[sb] + r))

    def C(sb, j):
        a("v_cvt_pk_bf16_f32 v%d, v%d, v%d" % (vP + j, vS[sb] + 2 * j, vS[sb] + 2 * j + 1))

    rdK(0, 0)
    rdK(1, KVBLK)
    rdV(0, 0)
    a("s_waitcnt lgkmcnt(3)")
    mS(0, 0)
    a("s_mov_b32 s%d, 0" % sIt)
    a.nop(12)
    a.label("K2_LOOP")
    for bb in range(NB):
        p = bb & 1
        off = bb * KVBLK
        for r in range(0, 6):
            E(p, r)
        C(p, 0)
        C(p, 1)
        a("s_waitcnt lgkmcnt(2)")
        mS(p ^ 1, p ^ 1)
        if bb == NB - 2:
            a("s_cmp_lg_u32 s%d, 0" % sSkipBar)
            a("s_cbranch_scc1 K2_NOBAR")
            a("s_waitcnt vmcnt(0)")
            a("s_barrier")
            a("s_mov_b32 s%d, 1" % sSkipBar)
            a.label("K2_NOBAR")
        rdK(p, off + 2 * KVBLK)
        E(p, 6)
        E(p, 7)
        C(p, 2)
        E(p, 8)
        C(p, 3)
        E(p, 9)
        E(p, 10)
        E(p, 11)
        a("s_waitcnt lgkmcnt(1)")
        mPV(p, 0)
        C(p, 4)
        C(p, 5)
        for r in range(12, 16):
            E(p, r)
        C(p, 6)
        C(p, 7)
        rdV(p ^ 1, off + KVBLK)
        mPV(p, 1)
    a("v_add_u32 v%d, %d, v%d" % (vKa, NB * KVBLK, vKa))
    a("v_add_u32 v%d, %d, v%d" % (vVa, NB * KVBLK, vVa))
    a("s_add_u32 s%d, s%d, 1" % (sIt, sIt))
    a("s_cmp_lt_u32 s%d, %d" % (sIt, NIT))
    a("s_cbranch_scc1 K2_LOOP")
    stamp(a, 3)
    a.nop(16)
    a("v_rcp_f32 v%d, v%d" % (vT0, vO + 8))
    a("s_lshr_b32 s%d, s%d, 5" % (sT0, sID))
    a("s_and_b32 s%d, s%d, 31" % (sT1, sID))
    a("s_mul_i32 s%d, s%d, 144" % (sT0, sT0))
    a("s_add_u32 s%d, s%d, s%d" % (sT0, sT0, sT1))
    a("s_lshl_b32 s%d, s%d, 10" % (sT0, sT0))
    a("s_add_u32 s%d, s%d, %d" % (sT0, sT0, WS_AF))
    for r in range(8):
        a("v_mul_f32 v%d, v%d, v%d" % (vO + r, vO + r, vT0))
    for j in range(4):
        a("v_cvt_pk_bf16_f32 v%d, v%d, v%d" % (vP + j, vO + 2 * j, vO + 2 * j + 1))
    a("buffer_store_dwordx4 v[%d:%d], v%d, s[%d:%d], s%d offen" % (vP, vP + 3, vL16, SWS, SWS + 3, sT0))
    stamp(a, 4)
    a("s_waitcnt vmcnt(0)")
    stamp(a, 5)
    stamp_flush(a, 1, 6, SWS, sW, 2)
    a.label("K2_END")
    a("s_endpgm")
    kernel_desc(a, name, 112, 102)
    return "; @launch kernel=%s grid=(256,1,1) block=(512,1,1) lds=%d" % (name, 66 * KVBLK)


def gen_k3(a):
    name = "k3_kernel"
    kernel_begin(a, name)
    sW = 3
    sT0, sT1, sT2, sT3 = 4, 5, 6, 7
    SWS, SOUT = 8, 12
    sMB, sNB = 20, 21
    sOff = 22
    vL16 = 1
    vA0, vA1, vB0, vB1 = 2, 3, 4, 5
    vT0, vT1, vT2, vT3 = 6, 7, 8, 9
    vG0, vG1 = 10, 11
    DEPTH = 4
    FB = 16
    ACA = 80
    ACB = 144
    a("s_cmp_ge_u32 s2, 256")
    a("s_cbranch_scc1 K3_END")
    stamp(a, 0)
    a("s_load_dwordx2 s[16:17], s[0:1], 96")
    a("s_load_dwordx2 s[18:19], s[0:1], 80")
    a("v_lshrrev_b32 v1, 6, v0")
    a("v_and_b32 v0, 63, v0")
    a("v_readfirstlane_b32 s%d, v1" % sW)
    a("v_lshlrev_b32 v%d, 4, v0" % vL16)
    a("s_and_b32 s%d, s2, 7" % sT0)
    a("s_lshr_b32 s%d, s2, 3" % sT1)
    a("s_lshl_b32 s%d, s%d, 2" % (sMB, sT0))
    a("s_and_b32 s%d, s%d, 3" % (sT2, sT1))
    a("s_add_u32 s%d, s%d, s%d" % (sMB, sMB, sT2))
    a("s_lshr_b32 s%d, s%d, 2" % (sNB, sT1))
    a("s_mul_i32 s%d, s%d, 288" % (sT0, sNB))
    a("s_add_u32 s%d, s%d, s%d" % (sT0, sT0, sW))
    a("s_lshl_b32 s%d, s%d, 10" % (sT0, sT0))
    a("s_add_u32 s%d, s%d, %d" % (sT0, sT0, WS_WF))
    a("v_add_u32 v%d, s%d, v%d" % (vA0, sT0, vL16))
    a("v_add_u32 v%d, %d, v%d" % (vA1, 144 * 1024, vA0))
    a("s_mul_i32 s%d, s%d, 288" % (sT0, sMB))
    a("s_add_u32 s%d, s%d, s%d" % (sT0, sT0, sW))
    a("s_lshl_b32 s%d, s%d, 10" % (sT0, sT0))
    a("s_add_u32 s%d, s%d, %d" % (sT0, sT0, WS_AF))
    a("v_add_u32 v%d, s%d, v%d" % (vB0, sT0, vL16))
    a("v_add_u32 v%d, %d, v%d" % (vB1, 144 * 1024, vB0))
    a("s_waitcnt lgkmcnt(0)")
    srd(a, SWS, 16, 17, WS_SIZE)
    srd(a, SOUT, 18, 19, 2097152)
    a("v_and_b32 v%d, 31, v0" % vT0)
    a("v_lshlrev_b32 v%d, 2, v%d" % (vT0, vT0))
    a("s_lshl_b32 s%d, s%d, 8" % (sT0, sMB))
    a("s_add_u32 s%d, s%d, %d" % (sT0, sT0, WS_G))
    a("buffer_load_dword v%d, v%d, s[%d:%d], s%d offen" % (vG0, vT0, SWS, SWS + 3, sT0))
    a("buffer_load_dword v%d, v%d, s[%d:%d], s%d offen offset:128" % (vG1, vT0, SWS, SWS + 3, sT0))
    NS = 18

    def loads(j):
        f = FB + (j % DEPTH) * 16
        a("s_mov_b32 s%d, %d" % (sOff, j * 8192))
        for k, v in enumerate((vA0, vA1, vB0, vB1)):
            a("buffer_load_dwordx4 v[%d:%d], v%d, s[%d:%d], s%d offen" % (f + 4 * k, f + 4 * k + 3, v, SWS, SWS + 3, sOff))

    for j in range(DEPTH - 1):
        loads(j)
    for j in range(NS):
        if j + DEPTH - 1 < NS:
            loads(j + DEPTH - 1)
            a("s_waitcnt vmcnt(%d)" % (4 * (DEPTH - 1)))
        else:
            a("s_waitcnt vmcnt(%d)" % (4 * (NS - 1 - j)))
        if j == 0:
            stamp(a, 1)
        f = FB + (j % DEPTH) * 16
        base = ACA if j < 4 else ACB
        first = j == 0 or j == 4
        for an in (0, 1):
            for i in (0, 1):
                acc = base + (an * 2 + i) * 16
                c = "0" if first else "v[%d:%d]" % (acc, acc + 15)
                a("%s v[%d:%d], v[%d:%d], v[%d:%d], %s" % (MFMA, acc, acc + 15, f + 4 * an, f + 4 * an + 3,
                                                           f + 8 + 4 * i, f + 11 + 4 * i, c))
    stamp(a, 2)
    a("v_sub_f32 v%d, 1.0, v%d" % (vT0, vG0))
    a("v_sub_f32 v%d, 1.0, v%d" % (vT1, vG1))
    for an in (0, 1):
        for i in (0, 1):
            acc = ACA + (an * 2 + i) * 16
            for r in range(16):
                a("v_mul_f32 v%d, v%d, v%d" % (acc + r, acc + r, vG0 + i))
    a.nop(8)
    for an in (0, 1):
        for i in (0, 1):
            acc = ACA + (an * 2 + i) * 16
            accb = ACB + (an * 2 + i) * 16
            for r in range(16):
                a("v_fmac_f32 v%d, v%d, v%d" % (acc + r, accb + r, vT0 + i))
    a("v_and_b32 v%d, 31, v0" % vT0)
    a("v_lshrrev_b32 v%d, 5, v0" % vT1)
    a("v_and_b32 v%d, 15, v0" % vT2)
    a("v_xor_b32 v%d, v%d, v%d" % (vT1, vT1, vT2))
    a("v_lshlrev_b32 v%d, 8, v%d" % (vT0, vT0))
    a("v_lshl_add_u32 v%d, v%d, 4, v%d" % (vT0, vT1, vT0))
    a("s_lshl_b32 s%d, s%d, 14" % (sT0, sW))
    a("v_add_u32 v%d, s%d, v%d" % (vT0, sT0, vT0))
    for an in (0, 1):
        for q in range(4):
            c = an * 8 + q * 2
            a("v_xor_b32 v%d, %d, v%d" % (vT1, c * 16, vT0))
            for i in (0, 1):
                acc = ACA + (an * 2 + i) * 16 + 4 * q
                a("ds_write_b128 v%d, v[%d:%d] offset:%d" % (vT1, acc, acc + 3, i * 8192))
        a("s_waitcnt lgkmcnt(4)")
    a("v_lshrrev_b32 v%d, 3, v0" % vT0)
    a("s_lshl_b32 s%d, s%d, 3" % (sT0, sW))
    a("v_add_u32 v%d, s%d, v%d" % (vT0, sT0, vT0))
    a("v_and_b32 v%d, 15, v%d" % (vT1, vT0))
    a("v_and_b32 v%d, 7, v0" % vT2)
    a("v_lshlrev_b32 v%d, 1, v%d" % (vT3, vT2))
    a("v_xor_b32 v%d, v%d, v%d" % (vT1, vT1, vT3))
    a("v_lshlrev_b32 v%d, 8, v%d" % (vT3, vT0))
    a("v_lshl_add_u32 v%d, v%d, 4, v%d" % (vA0, vT1, vT3))
    a("v_xor_b32 v%d, 16, v%d" % (vA1, vA0))
    a("v_add_u32 v%d, 0x10000, v%d" % (vB0, vA0))
    a("v_add_u32 v%d, 0x10000, v%d" % (vB1, vA1))
    a("v_lshlrev_b32 v%d, 10, v%d" % (vT0, vT0))
    a("v_lshl_add_u32 v%d, v%d, 4, v%d" % (vT0, vT2, vT0))
    a("s_lshl_b32 s%d, s%d, 16" % (sT0, sMB))
    a("s_lshl_b32 s%d, s%d, 7" % (sT1, sNB))
    a("s_add_u32 s%d, s%d, s%d" % (sT0, sT0, sT1))
    a("s_waitcnt lgkmcnt(0)")
    a("s_barrier")
    stamp(a, 3)
    for w_ in range(8):
        if w_ == 7:
            a("s_waitcnt lgkmcnt(12)")
        lo, hi = (vA0, vA1) if w_ < 4 else (vB0, vB1)
        a("ds_read_b128 v[%d:%d], v%d offset:%d" % (FB + 8 * w_, FB + 8 * w_ + 3, lo, (w_ & 3) * 16384))
        a("ds_read_b128 v[%d:%d], v%d offset:%d" % (FB + 8 * w_ + 4, FB + 8 * w_ + 7, hi, (w_ & 3) * 16384))
    for w_ in range(1, 8):
        a("s_waitcnt lgkmcnt(%d)" % (2 * (7 - w_)))
        for r in range(8):
            a("v_add_f32 v%d, v%d, v%d" % (FB + r, FB + r, FB + 8 * w_ + r))
    for j in range(4):
        a("v_cvt_pk_bf16_f32 v%d, v%d, v%d" % (FB + 8 + j, FB + 2 * j, FB + 2 * j + 1))
    a("buffer_store_dwordx4 v[%d:%d], v%d, s[%d:%d], s%d offen" % (FB + 8, FB + 11, vT0, SOUT, SOUT + 3, sT0))
    stamp(a, 4)
    a("s_waitcnt vmcnt(0)")
    stamp(a, 5)
    stamp_flush(a, 2, 6, SWS, sW, 2)
    a.label("K3_END")
    a("s_endpgm")
    kernel_desc(a, name, 208, 102)
    return "; @launch kernel=%s grid=(256,1,1) block=(512,1,1) lds=131072" % name


def main():
    out = sys.argv[1] if len(sys.argv) > 1 else "cdna_kernels/%s.s" % NAME
    a = Asm()
    a.raw(".amdgcn_target \"amdgcn-amd-amdhsa--gfx950\"")
    launches = [gen_k1(a), gen_k2(a), gen_k3(a)]
    hdr = ["; generated by work/gen.py (hand-designed kernels, laid out by script)"] + launches
    open(out, "w").write("\n".join(hdr) + "\n" + a.text())


if __name__ == "__main__":
    main()
```

```python
import sys, math, os
from gen import Asm, f32bits, kernel_begin, kernel_desc, srd, wave_reduce, MFMA, NAME, QSCALE

PROF = int(os.environ.get("PROF", "0"))

WS_QF = 0
WS_AF = 2 << 20
WS_WF = 11 << 20
WS_KV = 14 << 20
WS_G = 15 << 20
WS_NRM = (15 << 20) + 16384
WS_HFL = (15 << 20) + 32768
WS_OFL = (15 << 20) + 65536
WS_PROF = 32 << 20
WS_SIZE = 268435456
VUNIT = 544
VOFF = 1040
KVBLK = VOFF + 2 * VUNIT
SPIN_MAX = 1 << 16

BUFSZ = 49280
PB = {2: 0, 0: BUFSZ, 1: 2 * BUFSZ}
OX, OWG, OWU, OWQ = 0, 16384, 30848, 45184
L_KVRED = 3 * BUFSZ
L_QX = L_KVRED + 2048
L_GW = L_QX + 8192
LDS_BYTES = 163840


def gen(a):
    name = NAME + "_kernel"
    kernel_begin(a, name)
    sW, sMT, sNT = 3, 4, 5
    sT0, sT1, sT2, sT3 = 6, 7, 8, 9
    sStep = 10
    sKV = 11
    sRB = 12
    sUnit = 13
    sMB, sNB = 14, 15
    P = dict(x=16, wq=18, wk=20, wv=22, wo=24, wg=28, wu=30, wd=32, gw=34, out=36, dbg=38, ws=40)
    SX, SA, SB, SWS, SE, SDBG, SOUT = 44, 48, 52, 56, 60, 64, 68
    sM0x = 72
    sM0w = [73, 74, 75, 76]
    sOffA, sOffB = 77, 78
    sOwnO, sOwnH, sPolH, sPolO = 79, 42, 43, 86
    sEx = 80
    sIt, sSkip = 82, 83
    sSpin = 26
    sKoff = 27

    stamp_names = []

    def stamp(label):
        if not PROF:
            return
        idx = len(stamp_names)
        stamp_names.append(str(label))
        a("s_memtime s[84:85]")
        if idx == 0:
            a("s_memrealtime s[100:101]")
        a("s_waitcnt lgkmcnt(0)")
        a("v_writelane_b32 v208, s84, %d" % idx)

    vL16 = 1
    vXd0, vXd1 = 2, 3
    vWd = [4, 5, 6, 7]
    vXr = [8, 9, 10, 11]
    vW0 = 12
    vW1 = list(range(13, 21))
    vT0, vT1, vT2, vT3, vT4 = 21, 22, 23, 24, 25
    vGm = [26, 27]
    vGq = 28
    vOldH, vOldO = 29, 30
    vPoll = 31
    FR = [32, 48]
    vKX = 64
    vKW = 80
    vKA = 96
    vGWf = [112, 116]
    vGWa = 124 + 4
    vSL = 120
    vGWa = 192
    vOwn = 193
    ACC = 128

    a("s_cmp_ge_u32 s2, 256")
    a("s_cbranch_scc1 L_END")
    a("s_load_dwordx16 s[16:31], s[0:1], 0")
    a("s_load_dwordx8 s[32:39], s[0:1], 64")
    a("s_load_dwordx2 s[40:41], s[0:1], 96")
    stamp("start")
    a("v_lshrrev_b32 v1, 6, v0")
    a("v_and_b32 v0, 63, v0")
    a("v_readfirstlane_b32 s%d, v1" % sW)
    a("s_and_b32 s%d, s2, 7" % sT0)
    a("s_lshr_b32 s%d, s2, 3" % sT1)
    a("s_and_b32 s%d, s%d, 1" % (sMT, sT0))
    a("s_lshl_b32 s%d, s%d, 3" % (sMT, sMT))
    a("s_and_b32 s%d, s%d, 7" % (sT2, sT1))
    a("s_add_u32 s%d, s%d, s%d" % (sMT, sMT, sT2))
    a("s_lshr_b32 s%d, s%d, 1" % (sNT, sT0))
    a("s_lshl_b32 s%d, s%d, 2" % (sNT, sNT))
    a("s_lshr_b32 s%d, s%d, 3" % (sT2, sT1))
    a("s_add_u32 s%d, s%d, s%d" % (sNT, sNT, sT2))
    a("s_lshl_b32 s%d, s%d, 2" % (sMB, sT0))
    a("s_and_b32 s%d, s%d, 3" % (sT2, sT1))
    a("s_add_u32 s%d, s%d, s%d" % (sMB, sMB, sT2))
    a("s_lshr_b32 s%d, s%d, 2" % (sNB, sT1))
    a("v_lshlrev_b32 v%d, 4, v0" % vL16)
    a("s_lshl_b32 s%d, s%d, 11" % (sM0x, sW))
    a("s_and_b32 s%d, s%d, 3" % (sRB, sNT))
    a("s_lshr_b32 s%d, s%d, 2" % (sT0, sNT))
    a("s_add_u32 s%d, s%d, 1" % (sKV, sT0))
    a("s_cmp_ge_u32 s%d, 8" % sNT)
    a("s_cselect_b32 s%d, 0, s%d" % (sKV, sKV))
    a("s_and_b32 s%d, s%d, 7" % (sT0, sNT))
    a("s_lshl_b32 s%d, s%d, 3" % (sT1, sMT))
    a("s_add_u32 s%d, s%d, s%d" % (sT0, sT0, sT1))
    a("s_add_u32 s%d, s%d, 1024" % (sT1, sT0))
    a("s_cmp_eq_u32 s%d, 7" % sW)
    a("s_cselect_b32 s%d, s%d, -1" % (sT1, sT1))
    a("s_lshl_b32 s%d, s%d, 3" % (sT0, sT0))
    a("s_add_u32 s%d, s%d, s%d" % (sT0, sT0, sW))
    a("s_cmp_eq_u32 s%d, 0" % sKV)
    a("s_cselect_b32 s%d, s%d, s%d" % (sUnit, sT0, sT1))
    for j in range(4):
        a("s_lshl_b32 s%d, s%d, 2" % (sT0, sW))
        a("s_add_u32 s%d, s%d, %d" % (sT0, sT0, j))
        a("s_lshl_b32 s%d, s%d, 10" % (sM0w[j], sT0))
        a("s_cmp_ge_u32 s%d, 14" % sT0)
        a("s_cselect_b32 s%d, 128, 0" % sT1)
        a("s_add_u32 s%d, s%d, s%d" % (sM0w[j], sM0w[j], sT1))
        a("s_add_u32 s%d, s%d, %d" % (sM0w[j], sM0w[j], OWG))
    a("s_lshl_b32 s%d, s%d, 7" % (sT0, sMT))
    a("s_lshl_b32 s%d, s%d, 4" % (sT1, sW))
    a("s_add_u32 s%d, s%d, s%d" % (sT0, sT0, sT1))
    a("v_lshrrev_b32 v%d, 3, v0" % vT0)
    a("v_add_u32 v%d, s%d, v%d" % (vT0, sT0, vT0))
    a("v_lshlrev_b32 v%d, 10, v%d" % (vT0, vT0))
    a("v_and_b32 v%d, 7, v0" % vT1)
    a("v_lshrrev_b32 v%d, 4, v0" % vT2)
    a("v_xor_b32 v%d, v%d, v%d" % (vT1, vT1, vT2))
    a("v_lshl_add_u32 v%d, v%d, 4, v%d" % (vXd0, vT1, vT0))
    a("v_xor_b32 v%d, 64, v%d" % (vXd1, vXd0))
    a("v_add_u32 v%d, 0x2000, v%d" % (vXd1, vXd1))
    a("s_cmp_eq_u32 s%d, 7" % sW)
    a("s_cbranch_scc1 L_WD_Q")
    a("s_mul_i32 s%d, s%d, 224" % (sT2, sNT))
    a("s_movk_i32 s%d, 4682" % sT3)
    for j in range(4):
        a("s_lshl_b32 s%d, s%d, 2" % (sT0, sW))
        a("s_add_u32 s%d, s%d, %d" % (sT0, sT0, j))
        a("s_sub_u32 s%d, s%d, 14" % (sT1, sT0))
        a("s_cmp_ge_u32 s%d, 14" % sT0)
        a("s_cselect_b32 s%d, s%d, s%d" % (sT0, sT1, sT0))
        a("s_lshl_b32 s%d, s%d, 6" % (sT0, sT0))
        a("v_add_u32 v%d, s%d, v0" % (vT0, sT0))
        a("v_mul_u32_u24 v%d, s%d, v%d" % (vT1, sT3, vT0))
        a("v_lshrrev_b32 v%d, 16, v%d" % (vT1, vT1))
        a("v_mul_u32_u24 v%d, 14, v%d" % (vT2, vT1))
        a("v_sub_u32 v%d, v%d, v%d" % (vT0, vT0, vT2))
        a("v_mul_u32_u24 v%d, 0xe00, v%d" % (vT1, vT1))
        a("v_lshl_add_u32 v%d, v%d, 4, v%d" % (vT0, vT0, vT1))
        a("v_add_u32 v%d, s%d, v%d" % (vWd[j], sT2, vT0))
    a("s_mov_b32 s%d, %d" % (sStep, 64 * 3584))
    a("s_branch L_WD_E")
    a.label("L_WD_Q")
    a("s_lshl_b32 s%d, s%d, 6" % (sT2, sNT))
    a("v_lshrrev_b32 v%d, 2, v0" % vT0)
    a("v_and_b32 v%d, 3, v0" % vT1)
    a("v_lshlrev_b32 v%d, 10, v%d" % (vT0, vT0))
    a("v_lshl_add_u32 v%d, v%d, 4, v%d" % (vT0, vT1, vT0))
    a("v_add_u32 v%d, s%d, v%d" % (vWd[0], sT2, vT0))
    for j in range(1, 4):
        a("v_add_u32 v%d, %d, v%d" % (vWd[j], j * 16384, vWd[0]))
    a("s_mov_b32 s%d, 65536" % sStep)
    a.label("L_WD_E")
    a("s_waitcnt lgkmcnt(0)")
    srd(a, SX, P['x'], P['x'] + 1, 2097152)
    for S, lim in ((SA, 4), (SB, 3)):
        a("s_cmp_lt_u32 s%d, %d" % (sW, lim))
        a("s_cselect_b32 s%d, s%d, s%d" % (S, P['wg'], P['wu']))
        a("s_cselect_b32 s%d, s%d, s%d" % (S + 1, P['wg'] + 1, P['wu'] + 1))
        a("s_mov_b32 s%d, 0x1c0000" % (S + 2))
        a("s_cmp_eq_u32 s%d, 7" % sW)
        a("s_cselect_b32 s%d, s%d, s%d" % (S, P['wq'], S))
        a("s_cselect_b32 s%d, s%d, s%d" % (S + 1, P['wq'] + 1, S + 1))
        a("s_cselect_b32 s%d, 0x80000, s%d" % (S + 2, S + 2))
        a("s_mov_b32 s%d, 0x20000" % (S + 3))

    def dma_list(s):
        b = PB[s % 3]
        g = []
        g.append(["s_add_u32 m0, s%d, %d" % (sM0x, b + OX),
                  "s_movk_i32 s%d, %d" % (sOffA, s * 128),
                  "buffer_load_dwordx4 v%d, s[%d:%d], s%d offen lds" % (vXd0, SX, SX + 3, sOffA)])
        g.append(["s_add_u32 m0, s%d, %d" % (sM0x, b + OX + 1024),
                  "s_mul_i32 s%d, s%d, %d" % (sOffB, sStep, s),
                  "buffer_load_dwordx4 v%d, s[%d:%d], s%d offen lds" % (vXd1, SX, SX + 3, sOffA)])
        for j in range(4):
            S = SA if j < 2 else SB
            g.append(["s_add_u32 m0, s%d, %d" % (sM0w[j], b),
                      "s_nop 0",
                      "buffer_load_dwordx4 v%d, s[%d:%d], s%d offen lds" % (vWd[j], S, S + 3, sOffB)])
        return g

    def kv_dma_list(first, n):
        g = []
        for j in range(n):
            off = (first + 8 * j) * 1024
            g.append(["s_lshr_b32 s%d, s%d, 1" % (sOffA, sM0x),
                      "s_add_u32 m0, s%d, %d" % (sOffA, off),
                      "s_add_u32 s%d, s%d, %d" % (sOffA, sKoff, off),
                      "buffer_load_dwordx4 v%d, s[%d:%d], s%d offen sc1 lds" % (vL16, SWS, SWS + 3, sOffA)])
        return g

    def emit_groups(g):
        for grp in g:
            for ins in grp:
                a(ins)

    emit_groups(dma_list(0))
    srd(a, SWS, P['ws'], P['ws'] + 1, WS_SIZE)
    srd(a, SDBG, P['dbg'], P['dbg'] + 1, 256)
    srd(a, SOUT, P['out'], P['out'] + 1, 2097152)
    a("s_lshr_b32 s%d, s%d, 1" % (sKoff, sM0x))
    a("s_add_u32 s%d, s%d, %d" % (sKoff, sKoff, WS_KV))
    srd(a, SE, P['gw'], P['gw'] + 1, 1024)
    a("s_cmp_lg_u32 s%d, 0" % sW)
    a("s_cbranch_scc1 L_NOGW")
    a("s_mov_b32 m0, %d" % L_GW)
    a("s_nop 0")
    a("buffer_load_dwordx4 v%d, s[%d:%d], 0 offen lds" % (vL16, SE, SE + 3))
    a.label("L_NOGW")
    a("s_lshr_b32 s%d, s%d, 1" % (sT0, sW))
    a("s_lshl_b32 s%d, s%d, 2" % (sT1, sMT))
    a("s_add_u32 s%d, s%d, s%d" % (sT0, sT0, sT1))
    a("s_lshl_b32 s%d, s%d, 5" % (sT0, sT0))
    a("s_lshl_b32 s%d, s%d, 1" % (sT1, sNT))
    a("s_add_u32 s%d, s%d, s%d" % (sT0, sT0, sT1))
    a("s_and_b32 s%d, s%d, 1" % (sT1, sW))
    a("s_add_u32 s%d, s%d, s%d" % (sT0, sT0, sT1))
    a("s_lshl_b32 s%d, s%d, 7" % (sT0, sT0))
    a("s_add_u32 s%d, s%d, %d" % (sOwnO, sT0, WS_OFL))
    a("s_lshl_b32 s%d, s%d, 4" % (sT1, sMT))
    a("s_add_u32 s%d, s%d, s%d" % (sT1, sT1, sNT))
    a("s_lshl_b32 s%d, s%d, 7" % (sT1, sT1))
    a("s_add_u32 s%d, s%d, %d" % (sOwnH, sT1, WS_HFL))
    a("v_mov_b32 v%d, s%d" % (vT0, sOwnO))
    a("v_mov_b32 v%d, s%d" % (vT1, sOwnH))
    a("v_cmp_eq_u32 vcc, 1, v0")
    a("s_lshr_b32 s%d, s%d, 1" % (sT0, sMB))
    a("s_lshl_b32 s%d, s%d, 11" % (sT0, sT0))
    a("s_add_u32 s%d, s%d, %d" % (sPolH, sT0, WS_HFL))
    a("v_cndmask_b32 v%d, v%d, v%d, vcc" % (vT0, vT0, vT1))
    a("buffer_load_dword v%d, v%d, s[%d:%d], 0 offen sc1" % (vOwn, vT0, SWS, SWS + 3))
    a("v_and_b32 v%d, 15, v0" % vT1)
    a("v_lshlrev_b32 v%d, 7, v%d" % (vT1, vT1))
    a("buffer_load_dword v%d, v%d, s[%d:%d], s%d offen sc1" % (vOldH, vT1, SWS, SWS + 3, sPolH))
    a("v_and_b32 v%d, 1, v0" % vT1)
    a("v_bfe_u32 v%d, v0, 1, 2" % vT2)
    a("v_lshlrev_b32 v%d, 12, v%d" % (vT1, vT1))
    a("v_lshl_add_u32 v%d, v%d, 10, v%d" % (vT1, vT2, vT1))
    a("s_lshl_b32 s%d, s%d, 13" % (sT0, sMB))
    a("s_lshl_b32 s%d, s%d, 7" % (sT1, sW))
    a("s_add_u32 s%d, s%d, s%d" % (sT0, sT0, sT1))
    a("s_add_u32 s%d, s%d, %d" % (sPolO, sT0, WS_OFL))
    a("buffer_load_dword v%d, v%d, s[%d:%d], s%d offen sc1" % (vOldO, vT1, SWS, SWS + 3, sPolO))
    a("s_mov_b64 s[%d:%d], exec" % (sEx, sEx + 1))
    a("s_cmp_eq_u32 s%d, 0" % sKV)
    a("s_cbranch_scc1 L_NOKVL")
    a("s_cmp_eq_u32 s%d, 1" % sKV)
    a("s_cselect_b32 s%d, s%d, s%d" % (SE, P['wk'], P['wv']))
    a("s_cselect_b32 s%d, s%d, s%d" % (SE + 1, P['wk'] + 1, P['wv'] + 1))
    a("s_mov_b32 s%d, 16384" % (SE + 2))
    a("s_add_u32 m0, s%d, %d" % (sM0x, PB[2] + OX))
    a("s_lshl_b32 s%d, s%d, 2" % (sT0, sMT))
    a("buffer_load_dwordx4 v%d, s[%d:%d], s%d offen lds" % (vL16, SE, SE + 3, sM0x))
    a("buffer_load_dwordx4 v%d, s[%d:%d], s%d offen offset:1024 lds" % (vL16, SE, SE + 3, sM0x))
    a("s_add_u32 s%d, s%d, s%d" % (sT0, sT0, sRB))
    a("s_lshl_b32 s%d, s%d, 15" % (sT0, sT0))
    a("s_lshl_b32 s%d, s%d, 7" % (sT1, sW))
    a("s_add_u32 s%d, s%d, s%d" % (sT0, sT0, sT1))
    a("v_and_b32 v%d, 31, v0" % vT0)
    a("v_lshrrev_b32 v%d, 5, v0" % vT1)
    a("v_lshlrev_b32 v%d, 10, v%d" % (vT0, vT0))
    a("v_lshl_add_u32 v%d, v%d, 4, v%d" % (vT0, vT1, vT0))
    for ks in range(4):
        a("buffer_load_dwordx4 v[%d:%d], v%d, s[%d:%d], s%d offen offset:%d" % (vKX + 4 * ks, vKX + 4 * ks + 3, vT0,
                                                                              SX, SX + 3, sT0, ks * 32))
    a.label("L_NOKVL")
    a("s_cmp_lt_i32 s%d, 0" % sUnit)
    a("s_cbranch_scc1 L_NOSLL")
    a("s_lshr_b32 s%d, s%d, 3" % (sT0, sUnit))
    a("s_sub_u32 s%d, s%d, 32" % (sT1, sT0))
    a("s_cmp_lt_u32 s%d, 32" % sT0)
    a("s_cselect_b32 s%d, s%d, s%d" % (SE, P['wo'], P['wd']))
    a("s_cselect_b32 s%d, s%d, s%d" % (SE + 1, P['wo'] + 1, P['wd'] + 1))
    a("s_mov_b32 s%d, 0x1c0000" % (SE + 2))
    a("s_cselect_b32 s%d, 0x80000, s%d" % (SE + 2, SE + 2))
    a("s_cselect_b32 s%d, s%d, s%d" % (sT0, sT0, sT1))
    a("s_lshl_b32 s%d, s%d, 14" % (sT0, sT0))
    a("s_and_b32 s%d, s%d, 7" % (sT1, sUnit))
    a("s_lshl_b32 s%d, s%d, 7" % (sT1, sT1))
    a("s_add_u32 s%d, s%d, s%d" % (sT0, sT0, sT1))
    a("s_add_u32 s%d, s%d, 8192" % (sT1, sT0))
    a("v_lshrrev_b32 v%d, 3, v0" % vT0)
    a("v_and_b32 v%d, 7, v0" % vT1)
    a("v_lshlrev_b32 v%d, 10, v%d" % (vT0, vT0))
    a("v_lshl_add_u32 v%d, v%d, 4, v%d" % (vT0, vT1, vT0))
    a("s_add_u32 m0, s%d, %d" % (sM0w[0], PB[2]))
    a("s_nop 0")
    a("buffer_load_dwordx4 v%d, s[%d:%d], s%d offen lds" % (vT0, SE, SE + 3, sT0))
    a("s_add_u32 m0, s%d, %d" % (sM0w[0], PB[2] + 1024))
    a("s_nop 0")
    a("buffer_load_dwordx4 v%d, s[%d:%d], s%d offen lds" % (vT0, SE, SE + 3, sT1))
    a.label("L_NOSLL")
    emit_groups(dma_list(1))
    b0 = PB[0]
    a("s_lshr_b32 s%d, s%d, 2" % (sT0, sW))
    a("s_lshl_b32 s%d, s%d, 13" % (sT0, sT0))
    a("s_add_u32 s%d, s%d, %d" % (sT0, sT0, b0 + OX))
    a("v_and_b32 v%d, 31, v0" % vT0)
    a("v_lshlrev_b32 v%d, 7, v%d" % (vT0, vT0))
    a("v_lshrrev_b32 v%d, 5, v0" % vT1)
    a("v_bfe_u32 v%d, v0, 1, 3" % vT3)
    a("v_xor_b32 v%d, v%d, v%d" % (vT3, vT3, vT1))
    a("v_lshl_add_u32 v%d, v%d, 4, v%d" % (vT0, vT3, vT0))
    for ks in range(4):
        a("v_xor_b32 v%d, %d, v%d" % (vT2, ks * 32, vT0))
        a("v_add_u32 v%d, s%d, v%d" % (vXr[ks], sT0, vT2))
    a("v_bfe_u32 v%d, v0, 2, 2" % vT2)
    a("v_lshl_add_u32 v%d, v%d, 3, v%d" % (vT3, vT1, vT2))
    a("v_and_b32 v%d, 3, v0" % vT2)
    a("v_bfe_u32 v%d, v0, 4, 1" % vT4)
    a("v_mul_u32_u24 v%d, 0xe0, v%d" % (vT0, vT3))
    a("v_lshl_add_u32 v%d, v%d, 3, v%d" % (vT0, vT2, vT0))
    a("v_mul_u32_u24 v%d, %d, v%d" % (vT1, OWU - OWG, vT4))
    a("v_add_u32 v%d, v%d, v%d" % (vT0, vT0, vT1))
    a("s_and_b32 s%d, s%d, 3" % (sT1, sW))
    a("s_lshl_b32 s%d, s%d, 6" % (sT0, sT1))
    a("s_add_u32 s%d, s%d, %d" % (sT0, sT0, b0 + OWG))
    a("v_add_u32 v%d, s%d, v%d" % (vW0, sT0, vT0))
    a("s_cmp_eq_u32 s%d, 3" % sT1)
    a("s_cbranch_scc1 L_W1_Q")
    for q in range(8):
        ks, u = q >> 1, q & 1
        a("v_add_u32 v%d, %d, v%d" % (vW1[q], 32 + (16 * ks + 4 * u) * 224, vW0))
    a("s_branch L_W1_E")
    a.label("L_W1_Q")
    a("v_lshlrev_b32 v%d, 6, v%d" % (vT0, vT3))
    a("v_lshl_add_u32 v%d, v%d, 3, v%d" % (vT0, vT2, vT0))
    a("v_lshl_add_u32 v%d, v%d, 5, v%d" % (vT0, vT4, vT0))
    for q in range(8):
        ks, u = q >> 1, q & 1
        a("v_add_u32 v%d, %d, v%d" % (vW1[q], b0 + OWQ + (16 * ks + 4 * u) * 64, vT0))
    a.label("L_W1_E")

    a("v_lshrrev_b32 v%d, 5, v0" % vT0)
    a("v_lshlrev_b32 v%d, 4, v%d" % (vT0, vT0))
    a("v_add_u32 v%d, %d, v%d" % (vGWa, L_GW, vT0))
    a("v_mov_b32 v%d, 0" % vGm[0])
    a("v_mov_b32 v%d, 0" % vGm[1])

    def gdots(fs):
        f = FR[fs]
        return ["v_dot2c_f32_bf16 v%d, v%d, v%d" % (vGm[i], f + 4 * i + j, vGWf[fs] + j) for j in range(4) for i in (0, 1)]

    def reads(s, ks, fs):
        f = FR[fs]
        return [
            "ds_read_b128 v[%d:%d], v%d offset:%d" % (vGWf[fs], vGWf[fs] + 3, vGWa, s * 128 + ks * 32),
            "ds_read_b128 v[%d:%d], v%d" % (f, f + 3, vXr[ks]),
            "ds_read_b64_tr_b16 v[%d:%d], v%d offset:%d" % (f + 8, f + 9, vW0, (16 * ks) * 224),
            "ds_read_b64_tr_b16 v[%d:%d], v%d offset:%d" % (f + 10, f + 11, vW0, (16 * ks + 4) * 224),
            "ds_read_b128 v[%d:%d], v%d offset:4096" % (f + 4, f + 7, vXr[ks]),
            "ds_read_b64_tr_b16 v[%d:%d], v%d" % (f + 12, f + 13, vW1[2 * ks]),
            "ds_read_b64_tr_b16 v[%d:%d], v%d" % (f + 14, f + 15, vW1[2 * ks + 1]),
        ]

    def mfmas(fs, first):
        f = FR[fs]
        out = []
        for an in (0, 1):
            for i in (0, 1):
                acc = ACC + (an * 2 + i) * 16
                c = "0" if first else "v[%d:%d]" % (acc, acc + 15)
                out.append("%s v[%d:%d], v[%d:%d], v[%d:%d], %s" % (MFMA, acc, acc + 15, f + 8 + an * 4, f + 11 + an * 4,
                                                                   f + i * 4, f + i * 4 + 3, c))
        return out

    def advance_addrs(s):
        d = PB[(s + 1) % 3] - PB[s % 3]
        for r in vXr + [vW0] + vW1:
            if d >= 0:
                a("v_add_u32 v%d, %d, v%d" % (r, d, r))
            else:
                a("v_subrev_u32 v%d, %d, v%d" % (r, -d, r))

    def early_jobs():
        a("s_cmp_eq_u32 s%d, 0" % sKV)
        a("s_cbranch_scc1 L_EJ_NOKV1")
        a("v_lshrrev_b32 v%d, 5, v0" % vT1)
        a("v_bfe_u32 v%d, v0, 2, 2" % vT2)
        a("v_lshl_add_u32 v%d, v%d, 3, v%d" % (vT1, vT1, vT2))
        a("v_and_b32 v%d, 3, v0" % vT2)
        a("v_lshlrev_b32 v%d, 5, v%d" % (vT1, vT1))
        a("v_lshl_add_u32 v%d, v%d, 3, v%d" % (vT1, vT2, vT1))
        a("v_add_u32 v%d, s%d, v%d" % (vT1, sM0x, vT1))
        for ks in range(4):
            for u in range(2):
                a("ds_read_b64_tr_b16 v[%d:%d], v%d offset:%d" % (vKW + 4 * ks + 2 * u, vKW + 4 * ks + 2 * u + 1, vT1,
                                                                 PB[2] + OX + (16 * ks + 4 * u) * 32))
        a.label("L_EJ_NOKV1")
        a("s_cmp_lt_i32 s%d, 0" % sUnit)
        a("s_cbranch_scc1 L_EJ_NOSL1")
        a("v_lshrrev_b32 v%d, 5, v0" % vT1)
        a("v_bfe_u32 v%d, v0, 2, 2" % vT2)
        a("v_lshl_add_u32 v%d, v%d, 2, v%d" % (vT1, vT1, vT2))
        a("v_lshlrev_b32 v%d, 7, v%d" % (vT1, vT1))
        a("v_bfe_u32 v%d, v0, 4, 1" % vT2)
        a("v_lshl_add_u32 v%d, v%d, 5, v%d" % (vT1, vT2, vT1))
        a("v_and_b32 v%d, 3, v0" % vT2)
        a("v_lshl_add_u32 v%d, v%d, 3, v%d" % (vT1, vT2, vT1))
        a("v_add_u32 v%d, s%d, v%d" % (vT1, sM0w[0], vT1))
        for f in range(2):
            for u in range(2):
                a("ds_read_b64_tr_b16 v[%d:%d], v%d offset:%d" % (vSL + 4 * f + 2 * u, vSL + 4 * f + 2 * u + 1, vT1,
                                                                 PB[2] + u * 1024 + f * 64))
        a.label("L_EJ_NOSL1")
        a("s_waitcnt lgkmcnt(0)")
        a("s_cmp_lt_i32 s%d, 0" % sUnit)
        a("s_cbranch_scc1 L_EJ_NOSL2")
        a("s_and_b32 s%d, s%d, 7" % (sT0, sUnit))
        a("s_mul_i32 s%d, s%d, 288" % (sT0, sT0))
        a("s_lshr_b32 s%d, s%d, 3" % (sT1, sUnit))
        a("s_add_u32 s%d, s%d, s%d" % (sT0, sT0, sT1))
        a("s_lshl_b32 s%d, s%d, 10" % (sT0, sT0))
        a("s_add_u32 s%d, s%d, %d" % (sT0, sT0, WS_WF))
        a("s_add_u32 s%d, s%d, %d" % (sT1, sT0, 144 * 1024))
        a("buffer_store_dwordx4 v[%d:%d], v%d, s[%d:%d], s%d offen sc1" % (vSL, vSL + 3, vL16, SWS, SWS + 3, sT0))
        a("buffer_store_dwordx4 v[%d:%d], v%d, s[%d:%d], s%d offen sc1" % (vSL + 4, vSL + 7, vL16, SWS, SWS + 3, sT1))
        a.label("L_EJ_NOSL2")
        a("s_cmp_eq_u32 s%d, 0" % sKV)
        a("s_cbranch_scc1 L_EJ_NOKV2")
        a("s_cmp_eq_u32 s%d, 2" % sKV)
        a("s_cbranch_scc1 L_EJ_V")
        for ks in range(4):
            c = "0" if ks == 0 else "v[%d:%d]" % (vKA, vKA + 15)
            a("%s v[%d:%d], v[%d:%d], v[%d:%d], %s" % (MFMA, vKA, vKA + 15, vKW + 4 * ks, vKW + 4 * ks + 3,
                                                       vKX + 4 * ks, vKX + 4 * ks + 3, c))
        a.nop(14)
        a("s_branch L_EJ_KVW")
        a.label("L_EJ_V")
        for ks in range(4):
            c = "0" if ks == 0 else "v[%d:%d]" % (vKA, vKA + 15)
            a("%s v[%d:%d], v[%d:%d], v[%d:%d], %s" % (MFMA, vKA, vKA + 15, vKX + 4 * ks, vKX + 4 * ks + 3,
                                                       vKW + 4 * ks, vKW + 4 * ks + 3, c))
        a("v_and_b32 v%d, 16, v0" % vT1)
        a("v_cmp_eq_u32 vcc, 0, v%d" % vT1)
        a.nop(14)
        for r in range(8):
            a("v_cndmask_b32 v%d, v%d, v%d, vcc" % (vKA + r, vKA + 8 + r, vKA + r))
        a.label("L_EJ_KVW")
        a("s_cmp_lg_u32 s%d, 0" % sW)
        a("s_cbranch_scc1 L_EJ_NOKV2")
        a("v_lshlrev_b32 v%d, 2, v0" % vT1)
        a("v_add_u32 v%d, %d, v%d" % (vT1, L_KVRED, vT1))
        for r in range(8):
            a("ds_write_b32 v%d, v%d offset:%d" % (vT1, vKA + r, r * 256))
        a("s_waitcnt lgkmcnt(0)")
        a.label("L_EJ_NOKV2")

    def kv_adds():
        a("s_cmp_eq_u32 s%d, 0" % sKV)
        a("s_cbranch_scc1 L_KA_E")
        a("s_cmp_eq_u32 s%d, 0" % sW)
        a("s_cbranch_scc1 L_KA_E")
        a("v_lshlrev_b32 v%d, 2, v0" % vT1)
        a("v_add_u32 v%d, %d, v%d" % (vT1, L_KVRED, vT1))
        for r in range(8):
            a("ds_add_f32 v%d, v%d offset:%d" % (vT1, vKA + r, r * 256))
        a("s_waitcnt lgkmcnt(0)")
        a.label("L_KA_E")

    def kv_final():
        a("s_cmp_eq_u32 s%d, 0" % sKV)
        a("s_cbranch_scc1 L_KF_E")
        a("s_cmp_lg_u32 s%d, 0" % sW)
        a("s_cbranch_scc1 L_KF_E")
        a("v_lshlrev_b32 v%d, 2, v0" % vT1)
        a("v_add_u32 v%d, %d, v%d" % (vT1, L_KVRED, vT1))
        for r in range(8):
            a("ds_read_b32 v%d, v%d offset:%d" % (vKA + r, vT1, r * 256))
        a("s_lshl_b32 s%d, s%d, 2" % (sT0, sMT))
        a("s_add_u32 s%d, s%d, s%d" % (sT0, sT0, sRB))
        a("s_mul_i32 s%d, s%d, %d" % (sT1, sT0, KVBLK))
        a("s_add_u32 s%d, s%d, %d" % (sT1, sT1, WS_KV))
        a("s_add_u32 s%d, s%d, 1024" % (sT0, sT1))
        a("s_waitcnt lgkmcnt(0)")
        for j in range(4):
            a("v_cvt_pk_bf16_f32 v%d, v%d, v%d" % (vKA + 8 + j, vKA + 2 * j, vKA + 2 * j + 1))
        a("s_cmp_eq_u32 s%d, 2" % sKV)
        a("s_cbranch_scc1 L_KF_V")
        a("buffer_store_dwordx4 v[%d:%d], v%d, s[%d:%d], s%d offen sc1" % (vKA + 8, vKA + 11, vL16, SWS, SWS + 3, sT1))
        a("v_mov_b32 v%d, 0" % vT1)
        for j in range(4):
            a("v_dot2_f32_bf16 v%d, v%d, v%d, v%d" % (vT1, vKA + 8 + j, vKA + 8 + j, vT1))
        a.nop(3)
        a("v_mov_b32 v%d, v%d" % (vT2, vT1))
        a.nop(2)
        a("v_permlane32_swap_b32 v%d, v%d" % (vT1, vT2))
        a.nop(2)
        a("v_add_f32 v%d, v%d, v%d" % (vT1, vT1, vT2))
        wave_reduce(a, "v_max_f32", vT1)
        a("s_branch L_KF_N")
        a.label("L_KF_V")
        a("v_bfe_u32 v%d, v0, 4, 1" % vT1)
        a("v_mul_u32_u24 v%d, %d, v%d" % (vT1, VUNIT, vT1))
        a("v_lshrrev_b32 v%d, 5, v0" % vT2)
        a("v_lshl_add_u32 v%d, v%d, 8, v%d" % (vT1, vT2, vT1))
        a("v_and_b32 v%d, 15, v0" % vT2)
        a("v_lshl_add_u32 v%d, v%d, 4, v%d" % (vT1, vT2, vT1))
        a("buffer_store_dwordx4 v[%d:%d], v%d, s[%d:%d], s%d offen offset:%d sc1" % (vKA + 8, vKA + 11, vT1, SWS, SWS + 3, sT1, VOFF))
        a("v_max3_f32 v%d, |v%d|, |v%d|, |v%d|" % (vT4, vKA, vKA + 1, vKA + 2))
        a("v_max3_f32 v%d, |v%d|, |v%d|, v%d" % (vT4, vKA + 3, vKA + 4, vT4))
        a("v_max3_f32 v%d, |v%d|, |v%d|, v%d" % (vT4, vKA + 5, vKA + 6, vT4))
        a("v_max_f32 v%d, |v%d|, v%d" % (vT4, vKA + 7, vT4))
        a("s_mov_b32 s%d, 0x%08x" % (sT2, f32bits(2.0 ** 60)))
        a("v_cmp_lt_f32 vcc, s%d, v%d" % (sT2, vT4))
        a("v_bfe_u32 v%d, v0, 3, 1" % vT1)
        a("v_mul_u32_u24 v%d, %d, v%d" % (vT1, VUNIT, vT1))
        a("s_cmp_lg_u64 vcc, 0")
        a("s_cselect_b32 s%d, 0x7f800000, 0" % sT2)
        a("v_and_b32 v%d, 7, v0" % vT2)
        a("v_lshl_add_u32 v%d, v%d, 2, v%d" % (vT1, vT2, vT1))
        a("v_cmp_gt_u32 vcc, 4, v%d" % vT2)
        a("v_mov_b32 v%d, 0x3f803f80" % vT3)
        a("v_and_b32 v%d, 15, v0" % vT2)
        a("v_cndmask_b32 v%d, 0, v%d, vcc" % (vT3, vT3))
        a("v_cmp_eq_u32 vcc, 12, v%d" % vT2)
        a("v_mov_b32 v%d, s%d" % (vT4, sT2))
        a("s_mov_b64 exec, 0xffff")
        a("v_cndmask_b32 v%d, v%d, v%d, vcc" % (vT3, vT3, vT4))
        a("buffer_store_dword v%d, v%d, s[%d:%d], s%d offen offset:%d sc1" % (vT3, vT1, SWS, SWS + 3, sT1, VOFF + 512))
        a("s_mov_b64 exec, s[%d:%d]" % (sEx, sEx + 1))
        a("s_branch L_KF_E")
        a.label("L_KF_N")
        a("v_mov_b32 v%d, 0" % vT2)
        a("s_mov_b32 exec_lo, 0")
        a("s_mov_b32 exec_hi, 0x80000000")
        a("buffer_store_dword v%d, v%d, s[%d:%d], s%d offen sc1" % (vT1, vT2, SWS, SWS + 3, sT0))
        a("s_mov_b64 exec, s[%d:%d]" % (sEx, sEx + 1))
        a.label("L_KF_E")

    def early_signal():
        a("s_cmp_lg_u32 s%d, 0" % sW)
        a("s_cbranch_scc1 L_ES_E")
        a("v_mov_b32 v%d, 1" % vT1)
        a("v_mov_b32 v%d, 0" % vT2)
        a("s_lshl_b32 s%d, s%d, 2" % (sT0, sMT))
        a("s_mov_b64 exec, 1")
        a("buffer_atomic_add v%d, v%d, s[%d:%d], s%d offen sc1" % (vT1, vT2, SDBG, SDBG + 3, sT0))
        a("s_mov_b64 exec, s[%d:%d]" % (sEx, sEx + 1))
        a.label("L_ES_E")

    def early_poll_issue():
        a("s_cmp_lg_u32 s%d, 0" % sW)
        a("s_cbranch_scc1 L_EP_E")
        a("v_and_b32 v%d, 15, v0" % vT4)
        a("v_lshlrev_b32 v%d, 2, v%d" % (vT4, vT4))
        a("buffer_load_dword v%d, v%d, s[%d:%d], 0 offen sc1" % (vPoll, vT4, SDBG, SDBG + 3))
        a.label("L_EP_E")

    def early_poll_check():
        a("s_cmp_lg_u32 s%d, 0" % sW)
        a("s_cbranch_scc1 L_EC_E")
        a("s_mov_b32 s%d, 0" % sSpin)
        a.label("L_EC_L")
        a("v_cmp_ne_u32 vcc, 16, v%d" % vPoll)
        a("s_cmp_eq_u64 vcc, 0")
        a("s_cbranch_scc1 L_EC_E")
        a("s_add_u32 s%d, s%d, 1" % (sSpin, sSpin))
        a("s_cmp_ge_u32 s%d, %d" % (sSpin, SPIN_MAX))
        a("s_cbranch_scc1 L_EC_E")
        a("s_sleep 2")
        a("buffer_load_dword v%d, v%d, s[%d:%d], 0 offen sc1" % (vPoll, vT4, SDBG, SDBG + 3))
        a("s_waitcnt vmcnt(0)")
        a("s_branch L_EC_L")
        a.label("L_EC_E")

    def g_loads():
        g = []
        g.append(["v_and_b32 v%d, 31, v0" % vT0,
                  "v_lshlrev_b32 v%d, 2, v%d" % (vT0, vT0),
                  "s_lshr_b32 s%d, s%d, 2" % (sT0, sW),
                  "s_lshl_b32 s%d, s%d, 8" % (sT0, sT0),
                  "s_lshl_b32 s%d, s%d, 9" % (sT1, sMT),
                  "s_add_u32 s%d, s%d, %d" % (sT1, sT1, WS_G),
                  "s_add_u32 s%d, s%d, s%d" % (sT0, sT0, sT1),
                  "buffer_load_dword v%d, v%d, s[%d:%d], s%d offen sc1" % (vGm[0], vT0, SWS, SWS + 3, sT0),
                  "buffer_load_dword v%d, v%d, s[%d:%d], s%d offen offset:128 sc1" % (vGm[1], vT0, SWS, SWS + 3, sT0),
                  "s_lshr_b32 s%d, s%d, 1" % (sT0, sW),
                  "s_lshl_b32 s%d, s%d, 7" % (sT0, sT0),
                  "s_add_u32 s%d, s%d, s%d" % (sT0, sT0, sT1),
                  "buffer_load_dword v%d, v%d, s[%d:%d], s%d offen sc1" % (vGq, vT0, SWS, SWS + 3, sT0),
                  "v_lshlrev_b32 v%d, 2, v0" % vT0,
                  "s_mov_b32 s%d, %d" % (sT1, WS_NRM),
                  "buffer_load_dword v%d, v%d, s[%d:%d], s%d offen sc1" % (vN[0], vT0, SWS, SWS + 3, sT1),
                  "buffer_load_dword v%d, v%d, s[%d:%d], s%d offen offset:256 sc1" % (vN[1], vT0, SWS, SWS + 3, sT1)])
        return g

    stamp("pro")
    a("s_waitcnt vmcnt(6)")
    a("s_barrier")
    stamp("bar0")
    for ins in reads(0, 0, 0):
        a(ins)
    fs = 0
    pending = []
    for s in range(8):
        for ks in range(4):
            if ks < 3:
                for ins in reads(s, ks + 1, fs ^ 1):
                    a(ins)
                a("s_waitcnt lgkmcnt(7)")
            else:
                assert not pending
                advance_addrs(s) if s < 7 else None
                a("s_waitcnt lgkmcnt(0)")
                stamp("s%dc" % s)
                if s == 0:
                    a("s_waitcnt vmcnt(0)")
                    stamp("s0w")
                    early_jobs()
                    emit_groups(dma_list(2))
                elif s < 7:
                    a("s_waitcnt vmcnt(%d)" % {1: 6, 2: 6, 3: 6, 4: 6, 5: 6, 6: 6}[s])
                if s == 2:
                    early_signal()
                if s == 5:
                    early_poll_check()
                if s < 7:
                    stamp("s%dv" % s)
                    a("s_barrier")
                    stamp("s%db" % s)
                    for ins in reads(s + 1, 0, fs ^ 1):
                        a(ins)
                    if s == 0:
                        kv_adds()
                    if s == 1:
                        kv_final()
                    if s == 4:
                        early_poll_issue()
                    if s + 3 <= 7:
                        pending = dma_list(s + 3)
                    elif s == 5:
                        pending = kv_dma_list(0, 6)
                    elif s == 6:
                        pending = kv_dma_list(48, 6)
            gd = gdots(fs)
            for m in mfmas(fs, s == 0 and ks == 0):
                a(m)
                a(gd.pop(0))
                a(gd.pop(0))
                if pending:
                    emit_groups([pending.pop(0)])
            fs ^= 1
    stamp("g1end")
    a.nop(3)
    a("v_mov_b32 v%d, v%d" % (vT0, vGm[0]))
    a("v_mov_b32 v%d, v%d" % (vT1, vGm[1]))
    a.nop(1)
    a("v_permlane32_swap_b32 v%d, v%d" % (vT0, vGm[0]))
    a("v_permlane32_swap_b32 v%d, v%d" % (vT1, vGm[1]))
    a.nop(1)
    a("v_add_f32 v%d, v%d, v%d" % (vT0, vT0, vGm[0]))
    a("v_add_f32 v%d, v%d, v%d" % (vT1, vT1, vGm[1]))
    a("v_mul_f32 v%d, 0x%08x, v%d" % (vT0, f32bits(-math.log2(math.e)), vT0))
    a("v_mul_f32 v%d, 0x%08x, v%d" % (vT1, f32bits(-math.log2(math.e)), vT1))
    a("v_exp_f32 v%d, v%d" % (vT0, vT0))
    a("v_exp_f32 v%d, v%d" % (vT1, vT1))
    a("s_bitcmp1_b32 s%d, 1" % sW)
    a("v_add_f32 v%d, 1.0, v%d" % (vT0, vT0))
    a("v_add_f32 v%d, 1.0, v%d" % (vT1, vT1))
    a("v_rcp_f32 v%d, v%d" % (vT0, vT0))
    a("v_rcp_f32 v%d, v%d" % (vT1, vT1))
    a("s_cselect_b64 vcc, -1, 0")
    a("v_sub_f32 v%d, 1.0, v%d" % (vGm[0], vT0))
    a("v_sub_f32 v%d, 1.0, v%d" % (vGm[1], vT1))
    a("v_cndmask_b32 v%d, v%d, v%d, vcc" % (vGq, vT0, vT1))
    a("v_add_u32 v20, 1, v%d" % vOwn)
    a("s_lshr_b32 s%d, s%d, 2" % (sT0, sW))
    a("s_lshl_b32 s%d, s%d, 1" % (sT0, sT0))
    a("s_lshl_b32 s%d, s%d, 2" % (sT1, sMT))
    a("s_add_u32 s%d, s%d, s%d" % (sT0, sT0, sT1))
    a("s_mul_i32 s%d, s%d, 144" % (sT0, sT0))
    a("s_mul_i32 s%d, s%d, 7" % (sT1, sNT))
    a("s_add_u32 s%d, s%d, s%d" % (sT0, sT0, sT1))
    a("s_and_b32 s%d, s%d, 3" % (sT2, sW))
    a("s_lshl_b32 s%d, s%d, 1" % (sT1, sT2))
    a("s_add_u32 s%d, s%d, s%d" % (sT0, sT0, sT1))
    a("s_lshl_b32 s%d, s%d, 10" % (sT0, sT0))
    a("s_add_u32 s%d, s%d, %d" % (sT0, sT0, WS_AF + 32 * 1024))
    a("s_add_u32 s%d, s%d, %d" % (sT1, sT0, 144 * 1024))

    def h_tile(an, i):
        t = ACC + (an * 2 + i) * 16
        for r in range(8):
            a("v_mul_f32 v%d, v%d, v%d" % (t + r, t + r, t + 8 + r))
        for r in range(8):
            a("v_mul_f32 v%d, v%d, v%d" % (t + r, t + r, vGm[i]))
        for j in range(4):
            a("v_cvt_pk_bf16_f32 v%d, v%d, v%d" % (t + 8 + j, t + 2 * j, t + 2 * j + 1))
        a("buffer_store_dwordx4 v[%d:%d], v%d, s[%d:%d], s%d offen offset:%d sc1" % (t + 8, t + 11, vL16, SWS, SWS + 3,
                                                                                    sT0 if i == 0 else sT1, an * 1024))

    a("s_cmp_eq_u32 s%d, 3" % sT2)
    a("s_cbranch_scc1 L_EPI_Q")
    h_tile(1, 0)
    h_tile(1, 1)
    a("s_branch L_EPI_C")
    a.label("L_EPI_Q")
    a("s_mov_b32 s%d, 0x%08x" % (sT3, f32bits(QSCALE)))
    a("s_lshr_b32 s%d, s%d, 2" % (sT2, sW))
    a("s_lshl_b32 s%d, s%d, 12" % (sT2, sT2))
    a("s_add_u32 s%d, s%d, %d" % (sT2, sT2, L_QX))
    a("v_add_u32 v%d, s%d, v%d" % (vT0, sT2, vL16))
    for i in (0, 1):
        t = ACC + (2 + i) * 16
        for r in range(16):
            a("v_mul_f32 v%d, s%d, v%d" % (t + r, sT3, t + r))
        d = FR[0] + 8 * i
        for j in range(8):
            a("v_cvt_pk_bf16_f32 v%d, v%d, v%d" % (d + j, t + 2 * j, t + 2 * j + 1))
        a("ds_write_b128 v%d, v[%d:%d] offset:%d" % (vT0, d, d + 3, i * 2048))
        a("ds_write_b128 v%d, v[%d:%d] offset:%d" % (vT0, d + 4, d + 7, i * 2048 + 1024))
    a.label("L_EPI_C")
    h_tile(0, 0)
    h_tile(0, 1)

    vKa, vVa = 2, 3
    vA0, vA1, vB0, vB1 = 4, 5, 6, 7
    vQ = 8
    vKF = [12, 16]
    vVF = [32, 40]
    vP = 48
    vF = 56
    vS = [72, 88]
    vO = 104
    vC = 192
    NB = 4
    a("v_mov_b32 v%d, v%d" % (vKa, vL16))
    a("v_lshrrev_b32 v%d, 5, v0" % vT2)
    a("v_and_b32 v%d, 15, v0" % vT3)
    a("v_lshlrev_b32 v%d, 8, v%d" % (vT2, vT2))
    a("v_lshl_add_u32 v%d, v%d, 4, v%d" % (vT2, vT3, vT2))
    a("v_and_b32 v%d, 27, v0" % vT1)
    a("v_cmp_eq_u32 vcc, 16, v%d" % vT1)
    a("v_mov_b32 v%d, 0x200" % vT3)
    a("v_mov_b32 v%d, 0x210" % vT4)
    a("v_and_b32 v%d, 16, v0" % vT1)
    a("v_cndmask_b32 v%d, v%d, v%d, vcc" % (vT3, vT4, vT3))
    a("v_cmp_eq_u32 vcc, 0, v%d" % vT1)
    a("s_lshl_b32 s%d, s%d, 10" % (sT0, sW))
    a("s_add_u32 s%d, s%d, %d" % (sT0, sT0, L_QX))
    a("v_cndmask_b32 v%d, v%d, v%d, vcc" % (vVa, vT3, vT2))
    a("v_add_u32 v%d, %d, v%d" % (vVa, VOFF, vVa))
    a("v_add_u32 v%d, s%d, v%d" % (vT0, sT0, vL16))
    a("s_mul_i32 s%d, s%d, 288" % (sT0, sNB))
    a("s_add_u32 s%d, s%d, s%d" % (sT0, sT0, sW))
    a("s_lshl_b32 s%d, s%d, 10" % (sT0, sT0))
    a("s_add_u32 s%d, s%d, %d" % (sT0, sT0, WS_WF))
    a("v_add_u32 v%d, s%d, v%d" % (vA0, sT0, vL16))
    a("v_add_u32 v%d, %d, v%d" % (vA1, 144 * 1024, vA0))
    a("s_mul_i32 s%d, s%d, 288" % (sT0, sMB))
    a("s_add_u32 s%d, s%d, s%d" % (sT0, sT0, sW))
    a("s_lshl_b32 s%d, s%d, 10" % (sT0, sT0))
    a("s_add_u32 s%d, s%d, %d" % (sT0, sT0, WS_AF))
    a("v_add_u32 v%d, s%d, v%d" % (vB0, sT0, vL16))
    a("v_add_u32 v%d, %d, v%d" % (vB1, 144 * 1024, vB0))
    for r in range(16):
        a("v_mov_b32 v%d, 0" % (vC + r))
    for r in range(16):
        a("v_mov_b32 v%d, 0" % (vO + r))
    a("s_waitcnt vmcnt(8) lgkmcnt(0)")
    a("s_barrier")
    stamp("Bq")
    a("ds_read_b128 v[%d:%d], v%d" % (vQ, vQ + 3, vT0))
    emit_groups(kv_dma_list(96, 5))
    for r in range(64):
        a("v_mov_b32 v%d, 0" % (ACC + r))
    a("s_waitcnt lgkmcnt(0)")

    def rdK(buf, off):
        a("ds_read_b128 v[%d:%d], v%d offset:%d" % (vKF[buf], vKF[buf] + 3, vKa, off))

    def rdV(buf, off):
        a("ds_read_b128 v[%d:%d], v%d offset:%d" % (vVF[buf], vVF[buf] + 3, vVa, off))
        a("ds_read_b128 v[%d:%d], v%d offset:%d" % (vVF[buf] + 4, vVF[buf] + 7, vVa, off + VUNIT))

    def mS(sbuf, kbuf):
        a("%s v[%d:%d], v[%d:%d], v[%d:%d], v[%d:%d]" % (MFMA, vS[sbuf], vS[sbuf] + 15, vKF[kbuf], vKF[kbuf] + 3,
                                                        vQ, vQ + 3, vC, vC + 15))

    def mPV(vbuf, t):
        a("%s v[%d:%d], v[%d:%d], v[%d:%d], v[%d:%d]" % (MFMA, vO, vO + 15, vVF[vbuf] + 4 * t, vVF[vbuf] + 4 * t + 3,
                                                        vP + 4 * t, vP + 4 * t + 3, vO, vO + 15))

    def E(sb, r):
        a("v_exp_f32 v%d, v%d" % (vS[sb] + r, vS[sb] + r))

    def C(sb, j):
        a("v_cvt_pk_bf16_f32 v%d, v%d, v%d" % (vP + j, vS[sb] + 2 * j, vS[sb] + 2 * j + 1))

    def mF(q):
        an, i = q >> 1, q & 1
        acc = ACC + (an * 2 + i) * 16
        a("%s v[%d:%d], v[%d:%d], v[%d:%d], v[%d:%d]" % (MFMA, acc, acc + 15, vF + 4 * an, vF + 4 * an + 3,
                                                        vF + 8 + 4 * i, vF + 11 + 4 * i, acc, acc + 15))

    def body(kind):
        for bb in range(NB):
            p = bb & 1
            off = bb * KVBLK
            ffn = kind == "B" and bb >= 2
            if kind == "B" and bb == 0:
                for k_, v in enumerate((vA0, vA1, vB0, vB1)):
                    a("buffer_load_dwordx4 v[%d:%d], v%d, s[%d:%d], s%d offen sc1" % (vF + 4 * k_, vF + 4 * k_ + 3, v,
                                                                                    SWS, SWS + 3, sOffB))
                a("s_add_u32 s%d, s%d, 8192" % (sOffB, sOffB))
            for r in range(0, 4):
                E(p, r)
            if ffn:
                if bb == 2:
                    a("s_waitcnt vmcnt(0)")
                mF((bb - 2) * 2)
            E(p, 4)
            E(p, 5)
            C(p, 0)
            C(p, 1)
            a("s_waitcnt lgkmcnt(2)")
            mS(p ^ 1, p ^ 1)
            rdK(p, off + 2 * KVBLK)
            E(p, 6)
            E(p, 7)
            C(p, 2)
            E(p, 8)
            C(p, 3)
            E(p, 9)
            E(p, 10)
            E(p, 11)
            a("s_waitcnt lgkmcnt(1)")
            mPV(p, 0)
            C(p, 4)
            C(p, 5)
            E(p, 12)
            E(p, 13)
            if ffn:
                mF((bb - 2) * 2 + 1)
            E(p, 14)
            E(p, 15)
            C(p, 6)
            C(p, 7)
            rdV(p ^ 1, off + KVBLK)
            mPV(p, 1)
        a("v_add_u32 v%d, %d, v%d" % (vKa, NB * KVBLK, vKa))
        a("v_add_u32 v%d, %d, v%d" % (vVa, NB * KVBLK, vVa))

    def attn_start():
        rdK(0, 0)
        rdK(1, KVBLK)
        rdV(0, 0)
        a("s_waitcnt lgkmcnt(3)")
        mS(0, 0)
        a("s_mov_b32 s%d, 0" % sIt)
        a.nop(12)

    a("s_mov_b32 s%d, %d" % (sOffB, 4 * 8192))
    a("s_mov_b32 s%d, 0" % sSkip)
    attn_start()
    a.label("L_LOOPA")
    body("A")
    a("s_cmp_lg_u32 s%d, 0" % sSkip)
    a("s_cbranch_scc1 L_NOBKV")
    a("s_waitcnt vmcnt(0)")
    a("s_barrier")
    a("s_mov_b32 s%d, 1" % sSkip)
    a("v_mul_u32_u24 v%d, %d, v0" % (vT0, KVBLK))
    a("ds_read_b32 v%d, v%d offset:1024" % (vT1, vT0))
    a("ds_read_b32 v%d, v%d offset:%d" % (vT2, vT0, VOFF + VUNIT + 528))
    a("s_cmp_lg_u32 s%d, 0" % sW)
    a("s_cbranch_scc1 L_NOHF")
    a("v_mov_b32 v%d, 0" % vT3)
    a("s_mov_b64 exec, 2")
    a("buffer_store_dword v20, v%d, s[%d:%d], s%d offen sc1" % (vT3, SWS, SWS + 3, sOwnH))
    a("s_mov_b64 exec, s[%d:%d]" % (sEx, sEx + 1))
    a.label("L_NOHF")
    a("v_mov_b32 v%d, 0" % vT3)
    for j in range(4):
        a("v_dot2_f32_bf16 v%d, v%d, v%d, v%d" % (vT3, vQ + j, vQ + j, vT3))
    a("s_waitcnt lgkmcnt(0)")
    a("v_max_f32 v%d, v%d, v%d" % (vT1, vT1, vT2))
    a.nop(2)
    a("v_mov_b32 v%d, v%d" % (vT4, vT3))
    wave_reduce(a, "v_max_f32", vT1)
    a("v_permlane32_swap_b32 v%d, v%d" % (vT3, vT4))
    a.nop(1)
    a("v_readlane_b32 s%d, v%d, 63" % (sT3, vT1))
    a("v_add_f32 v%d, v%d, v%d" % (vT3, vT3, vT4))
    a("s_mov_b32 s%d, 0x%08x" % (sT1, f32bits(900.0)))
    a.nop(1)
    a("v_mul_f32 v%d, s%d, v%d" % (vT3, sT3, vT3))
    a("v_cmp_nge_f32 vcc, s%d, v%d" % (sT1, vT3))
    a("s_cmp_eq_u64 vcc, 0")
    a("s_cbranch_scc1 L_NOBKV")
    a("v_mov_b32 v%d, 0xff800000" % vT0)
    a("v_mov_b32 v%d, v%d" % (vT1, vL16))
    a("s_mov_b32 s%d, 0" % sIt)
    a.label("L_MAXLOOP")
    a("ds_read_b128 v[%d:%d], v%d" % (vKF[0], vKF[0] + 3, vT1))
    a("v_add_u32 v%d, %d, v%d" % (vT1, KVBLK, vT1))
    a("s_waitcnt lgkmcnt(0)")
    a("%s v[%d:%d], v[%d:%d], v[%d:%d], 0" % (MFMA, vS[0], vS[0] + 15, vKF[0], vKF[0] + 3, vQ, vQ + 3))
    a.nop(16)
    for j in range(8):
        a("v_max3_f32 v%d, v%d, v%d, v%d" % (vT0, vS[0] + 2 * j, vS[0] + 2 * j + 1, vT0))
    a("s_add_u32 s%d, s%d, 1" % (sIt, sIt))
    a("s_cmp_lt_u32 s%d, 64" % sIt)
    a("s_cbranch_scc1 L_MAXLOOP")
    a("v_mov_b32 v%d, v%d" % (vT1, vT0))
    a.nop(2)
    a("v_permlane32_swap_b32 v%d, v%d" % (vT0, vT1))
    a.nop(2)
    a("v_max_f32 v%d, v%d, v%d" % (vT0, vT0, vT1))
    for r in range(16):
        a("v_sub_f32 v%d, 0, v%d" % (vC + r, vT0))
    for r in range(16):
        a("v_mov_b32 v%d, 0" % (vO + r))
    a("v_subrev_u32 v%d, %d, v%d" % (vKa, NB * KVBLK, vKa))
    a("v_subrev_u32 v%d, %d, v%d" % (vVa, NB * KVBLK, vVa))
    attn_start()
    a("s_branch L_LOOPA")
    a.label("L_NOBKV")
    a("s_add_u32 s%d, s%d, 1" % (sIt, sIt))
    a("s_cmp_lt_u32 s%d, 2" % sIt)
    a("s_cbranch_scc1 L_LOOPA")
    a("v_and_b32 v%d, 15, v0" % vT4)
    a("v_lshlrev_b32 v%d, 7, v%d" % (vT4, vT4))
    a("s_mov_b32 s%d, 0" % sSpin)
    a.label("L_HP_L")
    a("buffer_load_dword v%d, v%d, s[%d:%d], s%d offen sc1" % (vPoll, vT4, SWS, SWS + 3, sPolH))
    a("s_waitcnt vmcnt(0)")
    a("v_cmp_eq_u32 vcc, v%d, v%d" % (vOldH, vPoll))
    a("s_cmp_eq_u64 vcc, 0")
    a("s_cbranch_scc1 L_HP_E")
    a("s_add_u32 s%d, s%d, 1" % (sSpin, sSpin))
    a("s_cmp_ge_u32 s%d, %d" % (sSpin, SPIN_MAX))
    a("s_cbranch_scc1 L_HP_E")
    a("s_sleep 2")
    a("s_branch L_HP_L")
    a.label("L_HP_E")
    stamp("hpoll")
    a.label("L_LOOPB")
    body("B")
    a("s_add_u32 s%d, s%d, 1" % (sIt, sIt))
    a("s_cmp_lt_u32 s%d, 16" % sIt)
    a("s_cbranch_scc1 L_LOOPB")
    stamp("attn")

    vWo = 72
    vOf = 32
    a.nop(8)
    for j in range(4):
        a("s_mov_b32 s%d, %d" % (sOffB, j * 8192))
        a("buffer_load_dwordx4 v[%d:%d], v%d, s[%d:%d], s%d offen sc1" % (vWo + 8 * j, vWo + 8 * j + 3, vA0, SWS, SWS + 3, sOffB))
        a("buffer_load_dwordx4 v[%d:%d], v%d, s[%d:%d], s%d offen sc1" % (vWo + 8 * j + 4, vWo + 8 * j + 7, vA1, SWS, SWS + 3, sOffB))
    a("v_rcp_f32 v%d, v%d" % (vT0, vO + 8))
    a("s_lshr_b32 s%d, s%d, 1" % (sT0, sW))
    a("s_lshl_b32 s%d, s%d, 2" % (sT1, sMT))
    a("s_add_u32 s%d, s%d, s%d" % (sT0, sT0, sT1))
    a("s_lshl_b32 s%d, s%d, 1" % (sT1, sNT))
    a("s_and_b32 s%d, s%d, 1" % (sT2, sW))
    a("s_add_u32 s%d, s%d, s%d" % (sT1, sT1, sT2))
    a("v_mul_f32 v%d, v%d, v%d" % (vT0, vT0, vGq))
    a("s_mul_i32 s%d, s%d, 144" % (sT0, sT0))
    a("s_add_u32 s%d, s%d, s%d" % (sT0, sT0, sT1))
    a("s_lshl_b32 s%d, s%d, 10" % (sT0, sT0))
    a("s_add_u32 s%d, s%d, %d" % (sT0, sT0, WS_AF))
    for r in range(8):
        a("v_mul_f32 v%d, v%d, v%d" % (vO + r, vO + r, vT0))
    for j in range(4):
        a("v_cvt_pk_bf16_f32 v%d, v%d, v%d" % (vO + 8 + j, vO + 2 * j, vO + 2 * j + 1))
    a("buffer_store_dwordx4 v[%d:%d], v%d, s[%d:%d], s%d offen sc1" % (vO + 8, vO + 11, vL16, SWS, SWS + 3, sT0))
    a("v_and_b32 v%d, 1, v0" % vT1)
    a("v_bfe_u32 v%d, v0, 1, 2" % vT2)
    a("v_lshlrev_b32 v%d, 12, v%d" % (vT1, vT1))
    a("v_lshl_add_u32 v%d, v%d, 10, v%d" % (vT4, vT2, vT1))
    a("v_mov_b32 v%d, 0" % vT2)
    a("s_waitcnt vmcnt(0)")
    stamp("ost")
    a("s_mov_b64 exec, 1")
    a("buffer_store_dword v20, v%d, s[%d:%d], s%d offen sc1" % (vT2, SWS, SWS + 3, sOwnO))
    a("s_mov_b64 exec, s[%d:%d]" % (sEx, sEx + 1))
    a("s_mov_b32 s%d, 0" % sSpin)
    a.label("L_OP_L")
    a("buffer_load_dword v%d, v%d, s[%d:%d], s%d offen sc1" % (vPoll, vT4, SWS, SWS + 3, sPolO))
    a("s_waitcnt vmcnt(0)")
    a("v_cmp_eq_u32 vcc, v%d, v%d" % (vOldO, vPoll))
    a("s_cmp_eq_u64 vcc, 0")
    a("s_cbranch_scc1 L_OP_E")
    a("s_add_u32 s%d, s%d, 1" % (sSpin, sSpin))
    a("s_cmp_ge_u32 s%d, %d" % (sSpin, SPIN_MAX))
    a("s_cbranch_scc1 L_OP_E")
    a("s_sleep 1")
    a("s_branch L_OP_L")
    a.label("L_OP_E")
    stamp("opoll")
    for j in range(4):
        a("s_mov_b32 s%d, %d" % (sOffB, j * 8192))
        a("buffer_load_dwordx4 v[%d:%d], v%d, s[%d:%d], s%d offen sc1" % (vOf + 8 * j, vOf + 8 * j + 3, vB0, SWS, SWS + 3, sOffB))
        a("buffer_load_dwordx4 v[%d:%d], v%d, s[%d:%d], s%d offen sc1" % (vOf + 8 * j + 4, vOf + 8 * j + 7, vB1, SWS, SWS + 3, sOffB))
    a("v_and_b32 v%d, 31, v0" % vT0)
    a("v_lshrrev_b32 v%d, 5, v0" % vT1)
    a("v_and_b32 v%d, 15, v0" % vT2)
    a("v_xor_b32 v%d, v%d, v%d" % (vT1, vT1, vT2))
    a("v_lshlrev_b32 v%d, 8, v%d" % (vT0, vT0))
    a("v_lshl_add_u32 v%d, v%d, 4, v%d" % (vT0, vT1, vT0))
    a("s_lshl_b32 s%d, s%d, 14" % (sT0, sW))
    a("v_add_u32 v%d, s%d, v%d" % (vT0, sT0, vT0))
    a("s_waitcnt lgkmcnt(0)")
    a("s_barrier")
    for j in range(4):
        a("s_waitcnt vmcnt(%d)" % (2 * (3 - j)))
        for an in (0, 1):
            for i in (0, 1):
                acc = ACC + (an * 2 + i) * 16
                a("%s v[%d:%d], v[%d:%d], v[%d:%d], v[%d:%d]" % (MFMA, acc, acc + 15, vWo + 8 * j + 4 * an, vWo + 8 * j + 4 * an + 3,
                                                                vOf + 8 * j + 4 * i, vOf + 8 * j + 4 * i + 3, acc, acc + 15))
    stamp("womf")
    vR0, vR1, vR2, vR3, vOo = 2, 3, 4, 5, 6
    a("v_lshrrev_b32 v%d, 3, v0" % vT4)
    a("s_lshl_b32 s%d, s%d, 3" % (sT0, sW))
    a("v_add_u32 v%d, s%d, v%d" % (vT4, sT0, vT4))
    a("v_and_b32 v%d, 15, v%d" % (vT1, vT4))
    a("v_and_b32 v%d, 7, v0" % vT2)
    a("v_lshlrev_b32 v%d, 1, v%d" % (vT3, vT2))
    a("v_xor_b32 v%d, v%d, v%d" % (vT1, vT1, vT3))
    a("v_lshlrev_b32 v%d, 8, v%d" % (vT3, vT4))
    a("v_lshl_add_u32 v%d, v%d, 4, v%d" % (vR0, vT1, vT3))
    a("v_xor_b32 v%d, 16, v%d" % (vR1, vR0))
    a("v_add_u32 v%d, 0x10000, v%d" % (vR2, vR0))
    a("v_add_u32 v%d, 0x10000, v%d" % (vR3, vR1))
    a("v_lshlrev_b32 v%d, 10, v%d" % (vT4, vT4))
    a("v_lshl_add_u32 v%d, v%d, 4, v%d" % (vOo, vT2, vT4))
    a("s_lshl_b32 s%d, s%d, 16" % (sT0, sMB))
    a("s_lshl_b32 s%d, s%d, 7" % (sT1, sNB))
    a("s_add_u32 s%d, s%d, s%d" % (sT0, sT0, sT1))
    for an in (0, 1):
        for q in range(4):
            c = an * 8 + q * 2
            a("v_xor_b32 v%d, %d, v%d" % (vT1, c * 16, vT0))
            for i in (0, 1):
                acc = ACC + (an * 2 + i) * 16 + 4 * q
                a("ds_write_b128 v%d, v[%d:%d] offset:%d" % (vT1, acc, acc + 3, i * 8192))
        a("s_waitcnt lgkmcnt(4)")
    a("s_waitcnt lgkmcnt(0)")
    a("s_barrier")
    FB = 32
    for w_ in range(8):
        if w_ == 7:
            a("s_waitcnt lgkmcnt(12)")
        lo, hi = (vR0, vR1) if w_ < 4 else (vR2, vR3)
        a("ds_read_b128 v[%d:%d], v%d offset:%d" % (FB + 8 * w_, FB + 8 * w_ + 3, lo, (w_ & 3) * 16384))
        a("ds_read_b128 v[%d:%d], v%d offset:%d" % (FB + 8 * w_ + 4, FB + 8 * w_ + 7, hi, (w_ & 3) * 16384))
    for w_ in range(1, 8):
        a("s_waitcnt lgkmcnt(%d)" % (2 * (7 - w_)))
        for r in range(8):
            a("v_add_f32 v%d, v%d, v%d" % (FB + r, FB + r, FB + 8 * w_ + r))
    for j in range(4):
        a("v_cvt_pk_bf16_f32 v%d, v%d, v%d" % (FB + 8 + j, FB + 2 * j, FB + 2 * j + 1))
    a("buffer_store_dwordx4 v[%d:%d], v%d, s[%d:%d], s%d offen" % (FB + 8, FB + 11, vOo, SOUT, SOUT + 3, sT0))
    if PROF:
        a("s_waitcnt vmcnt(0)")
        stamp("end")
        a("s_memrealtime s[98:99]")
        a("s_waitcnt lgkmcnt(0)")
        a("v_writelane_b32 v208, s98, 62")
        a("v_writelane_b32 v208, s100, 63")
        a("s_lshl_b32 s82, s2, 3")
        a("s_add_u32 s82, s82, s%d" % sW)
        a("s_lshl_b32 s82, s82, 8")
        a("s_add_u32 s82, s82, %d" % WS_PROF)
        a("v_lshlrev_b32 v2, 2, v0")
        a("buffer_store_dword v208, v2, s[%d:%d], s82 offen" % (SWS, SWS + 3))
        open("stamps.txt", "w").write(" ".join(stamp_names))
    a.label("L_END")
    a("s_endpgm")
    kernel_desc(a, name, 216 if PROF else 208, 102)
    return "; @launch grid=(256,1,1) block=(512,1,1) lds=%d" % LDS_BYTES


def main():
    out = sys.argv[1] if len(sys.argv) > 1 else "cdna_kernels/%s.s" % NAME
    a = Asm()
    a.raw(".amdgcn_target \"amdgcn-amd-amdhsa--gfx950\"")
    launch = gen(a)
    hdr = ["; generated by work/gen2.py (hand-designed kernel, laid out by script)", launch]
    open(out, "w").write("\n".join(hdr) + "\n" + a.text())


if __name__ == "__main__":
    main()
```

```python
import sys, math, os
from gen import Asm, f32bits, kernel_begin, kernel_desc, srd, wave_reduce, MFMA, NAME, QSCALE

PROF = int(os.environ.get("PROF", "0"))
DIAG = int(os.environ.get("DIAG", "0"))

WS_QF = 0
WS_AF = 2 << 20
WS_WF = 11 << 20
WS_KV = 14 << 20
WS_G = 15 << 20
WS_NRM = (15 << 20) + 16384
WS_HFL = (15 << 20) + 32768
WS_OFL = (15 << 20) + 65536
WS_PROF = 32 << 20
WS_SIZE = 268435456
VUNIT = 544
VOFF = 1040
KVBLK = VOFF + 2 * VUNIT
SPIN_MAX = 1 << 16

BUFSZ = 49280
PB = {2: 0, 0: BUFSZ, 1: 2 * BUFSZ}
OX, OWG, OWU, OWQ = 0, 16384, 30848, 45184
L_KVRED = 3 * BUFSZ
L_QX = L_KVRED + 2048
L_GW = L_QX + 8192
LDS_BYTES = 163840


def gen(a):
    name = NAME + "_kernel"
    kernel_begin(a, name)
    sW, sMT, sNT = 3, 4, 5
    sT0, sT1, sT2, sT3 = 6, 7, 8, 9
    sStep = 10
    sKV = 11
    sRB = 12
    sUnit = 13
    sMB, sNB = 14, 15
    P = dict(x=16, wq=18, wk=20, wv=22, wo=24, wg=28, wu=30, wd=32, gw=34, out=36, dbg=38, ws=40)
    SX, SA, SB, SWS, SE, SDBG, SOUT = 44, 48, 52, 56, 60, 64, 68
    sM0x = 72
    sM0w = [73, 74, 75, 76]
    sOffA, sOffB = 77, 78
    sOwnO, sOwnH, sPolH, sPolO = 79, 42, 43, 86
    sEx = 80
    sIt, sSkip = 82, 83
    sSpin = 26
    sKoff = 27

    stamp_names = []

    diag_n = [0]

    def stamp(label):
        if DIAG and label in ("start", "bar0", "g1end", "hpoll", "attn", "opoll"):
            a("s_memrealtime s[84:85]")
            a("s_waitcnt lgkmcnt(0)")
            a("s_mov_b32 s%d, s84" % (88 + diag_n[0]))
            diag_n[0] += 1
        if not PROF:
            return
        idx = len(stamp_names)
        stamp_names.append(str(label))
        a("s_memtime s[84:85]")
        if idx == 0:
            a("s_memrealtime s[100:101]")
        a("s_waitcnt lgkmcnt(0)")
        a("v_writelane_b32 v208, s84, %d" % idx)

    vL16 = 1
    vXd0, vXd1 = 2, 3
    vWd = [4, 5, 6, 7]
    vXr = [8, 9, 10, 11]
    vW0 = 12
    vW1 = list(range(13, 21))
    vT0, vT1, vT2, vT3, vT4 = 21, 22, 23, 24, 25
    vGm = [26, 27]
    vGq = 28
    vOldH, vOldO = 29, 30
    vPoll = 31
    FR = [32, 48]
    vKX = 64
    vKW = 80
    vKA = 96
    vGWf = [112, 116]
    vGWa = 124 + 4
    vSL = 120
    vGWa = 192
    vOwn = 193
    ACC = 128

    a("s_cmp_ge_u32 s2, 256")
    a("s_cbranch_scc1 L_END")
    a("s_load_dwordx16 s[16:31], s[0:1], 0")
    a("s_load_dwordx8 s[32:39], s[0:1], 64")
    a("s_load_dwordx2 s[40:41], s[0:1], 96")
    stamp("start")
    a("v_lshrrev_b32 v1, 6, v0")
    a("v_and_b32 v0, 63, v0")
    a("v_readfirstlane_b32 s%d, v1" % sW)
    a("s_and_b32 s%d, s2, 7" % sT0)
    a("s_lshr_b32 s%d, s2, 3" % sT1)
    a("s_and_b32 s%d, s%d, 1" % (sMT, sT0))
    a("s_lshl_b32 s%d, s%d, 3" % (sMT, sMT))
    a("s_and_b32 s%d, s%d, 7" % (sT2, sT1))
    a("s_add_u32 s%d, s%d, s%d" % (sMT, sMT, sT2))
    a("s_lshr_b32 s%d, s%d, 1" % (sNT, sT0))
    a("s_lshl_b32 s%d, s%d, 2" % (sNT, sNT))
    a("s_lshr_b32 s%d, s%d, 3" % (sT2, sT1))
    a("s_add_u32 s%d, s%d, s%d" % (sNT, sNT, sT2))
    a("s_lshl_b32 s%d, s%d, 2" % (sMB, sT0))
    a("s_and_b32 s%d, s%d, 3" % (sT2, sT1))
    a("s_add_u32 s%d, s%d, s%d" % (sMB, sMB, sT2))
    a("s_lshr_b32 s%d, s%d, 2" % (sNB, sT1))
    a("v_lshlrev_b32 v%d, 4, v0" % vL16)
    a("s_lshl_b32 s%d, s%d, 11" % (sM0x, sW))
    a("s_and_b32 s%d, s%d, 3" % (sRB, sNT))
    a("s_lshr_b32 s%d, s%d, 2" % (sT0, sNT))
    a("s_add_u32 s%d, s%d, 1" % (sKV, sT0))
    a("s_cmp_ge_u32 s%d, 8" % sNT)
    a("s_cselect_b32 s%d, 0, s%d" % (sKV, sKV))
    a("s_and_b32 s%d, s%d, 7" % (sT0, sNT))
    a("s_lshl_b32 s%d, s%d, 3" % (sT1, sMT))
    a("s_add_u32 s%d, s%d, s%d" % (sT0, sT0, sT1))
    a("s_add_u32 s%d, s%d, 1024" % (sT1, sT0))
    a("s_cmp_eq_u32 s%d, 7" % sW)
    a("s_cselect_b32 s%d, s%d, -1" % (sT1, sT1))
    a("s_lshl_b32 s%d, s%d, 3" % (sT0, sT0))
    a("s_add_u32 s%d, s%d, s%d" % (sT0, sT0, sW))
    a("s_cmp_eq_u32 s%d, 0" % sKV)
    a("s_cselect_b32 s%d, s%d, s%d" % (sUnit, sT0, sT1))
    for j in range(4):
        a("s_lshl_b32 s%d, s%d, 2" % (sT0, sW))
        a("s_add_u32 s%d, s%d, %d" % (sT0, sT0, j))
        a("s_lshl_b32 s%d, s%d, 10" % (sM0w[j], sT0))
        a("s_cmp_ge_u32 s%d, 14" % sT0)
        a("s_cselect_b32 s%d, 128, 0" % sT1)
        a("s_add_u32 s%d, s%d, s%d" % (sM0w[j], sM0w[j], sT1))
        a("s_add_u32 s%d, s%d, %d" % (sM0w[j], sM0w[j], OWG))
    a("s_lshl_b32 s%d, s%d, 7" % (sT0, sMT))
    a("s_lshl_b32 s%d, s%d, 4" % (sT1, sW))
    a("s_add_u32 s%d, s%d, s%d" % (sT0, sT0, sT1))
    a("v_lshrrev_b32 v%d, 3, v0" % vT0)
    a("v_add_u32 v%d, s%d, v%d" % (vT0, sT0, vT0))
    a("v_lshlrev_b32 v%d, 10, v%d" % (vT0, vT0))
    a("v_and_b32 v%d, 7, v0" % vT1)
    a("v_lshrrev_b32 v%d, 4, v0" % vT2)
    a("v_xor_b32 v%d, v%d, v%d" % (vT1, vT1, vT2))
    a("v_lshl_add_u32 v%d, v%d, 4, v%d" % (vXd0, vT1, vT0))
    a("v_xor_b32 v%d, 64, v%d" % (vXd1, vXd0))
    a("v_add_u32 v%d, 0x2000, v%d" % (vXd1, vXd1))
    a("s_cmp_eq_u32 s%d, 7" % sW)
    a("s_cbranch_scc1 L_WD_Q")
    a("s_mul_i32 s%d, s%d, 224" % (sT2, sNT))
    a("s_movk_i32 s%d, 4682" % sT3)
    for j in range(4):
        a("s_lshl_b32 s%d, s%d, 2" % (sT0, sW))
        a("s_add_u32 s%d, s%d, %d" % (sT0, sT0, j))
        a("s_sub_u32 s%d, s%d, 14" % (sT1, sT0))
        a("s_cmp_ge_u32 s%d, 14" % sT0)
        a("s_cselect_b32 s%d, s%d, s%d" % (sT0, sT1, sT0))
        a("s_lshl_b32 s%d, s%d, 6" % (sT0, sT0))
        a("v_add_u32 v%d, s%d, v0" % (vT0, sT0))
        a("v_mul_u32_u24 v%d, s%d, v%d" % (vT1, sT3, vT0))
        a("v_lshrrev_b32 v%d, 16, v%d" % (vT1, vT1))
        a("v_mul_u32_u24 v%d, 14, v%d" % (vT2, vT1))
        a("v_sub_u32 v%d, v%d, v%d" % (vT0, vT0, vT2))
        a("v_mul_u32_u24 v%d, 0xe00, v%d" % (vT1, vT1))
        a("v_lshl_add_u32 v%d, v%d, 4, v%d" % (vT0, vT0, vT1))
        a("v_add_u32 v%d, s%d, v%d" % (vWd[j], sT2, vT0))
    a("s_mov_b32 s%d, %d" % (sStep, 64 * 3584))
    a("s_branch L_WD_E")
    a.label("L_WD_Q")
    a("s_lshl_b32 s%d, s%d, 6" % (sT2, sNT))
    a("v_lshrrev_b32 v%d, 2, v0" % vT0)
    a("v_and_b32 v%d, 3, v0" % vT1)
    a("v_lshlrev_b32 v%d, 10, v%d" % (vT0, vT0))
    a("v_lshl_add_u32 v%d, v%d, 4, v%d" % (vT0, vT1, vT0))
    a("v_add_u32 v%d, s%d, v%d" % (vWd[0], sT2, vT0))
    for j in range(1, 4):
        a("v_add_u32 v%d, %d, v%d" % (vWd[j], j * 16384, vWd[0]))
    a("s_mov_b32 s%d, 65536" % sStep)
    a.label("L_WD_E")
    a("s_waitcnt lgkmcnt(0)")
    srd(a, SX, P['x'], P['x'] + 1, 2097152)
    for S, lim in ((SA, 4), (SB, 3)):
        a("s_cmp_lt_u32 s%d, %d" % (sW, lim))
        a("s_cselect_b32 s%d, s%d, s%d" % (S, P['wg'], P['wu']))
        a("s_cselect_b32 s%d, s%d, s%d" % (S + 1, P['wg'] + 1, P['wu'] + 1))
        a("s_mov_b32 s%d, 0x1c0000" % (S + 2))
        a("s_cmp_eq_u32 s%d, 7" % sW)
        a("s_cselect_b32 s%d, s%d, s%d" % (S, P['wq'], S))
        a("s_cselect_b32 s%d, s%d, s%d" % (S + 1, P['wq'] + 1, S + 1))
        a("s_cselect_b32 s%d, 0x80000, s%d" % (S + 2, S + 2))
        a("s_mov_b32 s%d, 0x20000" % (S + 3))

    def dma_list(s):
        b = PB[s % 3]
        g = []
        g.append(["s_add_u32 m0, s%d, %d" % (sM0x, b + OX),
                  "s_movk_i32 s%d, %d" % (sOffA, s * 128),
                  "buffer_load_dwordx4 v%d, s[%d:%d], s%d offen lds" % (vXd0, SX, SX + 3, sOffA)])
        g.append(["s_add_u32 m0, s%d, %d" % (sM0x, b + OX + 1024),
                  "s_mul_i32 s%d, s%d, %d" % (sOffB, sStep, s),
                  "buffer_load_dwordx4 v%d, s[%d:%d], s%d offen lds" % (vXd1, SX, SX + 3, sOffA)])
        for j in range(4):
            S = SA if j < 2 else SB
            g.append(["s_add_u32 m0, s%d, %d" % (sM0w[j], b),
                      "s_nop 0",
                      "buffer_load_dwordx4 v%d, s[%d:%d], s%d offen lds" % (vWd[j], S, S + 3, sOffB)])
        return g

    def kv_dma_list(first, n):
        g = []
        for j in range(n):
            off = (first + 8 * j) * 1024
            g.append(["s_lshr_b32 s%d, s%d, 1" % (sOffA, sM0x),
                      "s_add_u32 m0, s%d, %d" % (sOffA, off),
                      "s_add_u32 s%d, s%d, %d" % (sOffA, sKoff, off),
                      "buffer_load_dwordx4 v%d, s[%d:%d], s%d offen sc1 lds" % (vL16, SWS, SWS + 3, sOffA)])
        return g

    def emit_groups(g):
        for grp in g:
            for ins in grp:
                a(ins)

    emit_groups(dma_list(0))
    srd(a, SWS, P['ws'], P['ws'] + 1, WS_SIZE)
    srd(a, SDBG, P['dbg'], P['dbg'] + 1, 256)
    srd(a, SOUT, P['out'], P['out'] + 1, 2097152)
    a("s_lshr_b32 s%d, s%d, 1" % (sKoff, sM0x))
    a("s_add_u32 s%d, s%d, %d" % (sKoff, sKoff, WS_KV))
    srd(a, SE, P['gw'], P['gw'] + 1, 1024)
    a("s_cmp_lg_u32 s%d, 0" % sW)
    a("s_cbranch_scc1 L_NOGW")
    a("s_mov_b32 m0, %d" % L_GW)
    a("s_nop 0")
    a("buffer_load_dwordx4 v%d, s[%d:%d], 0 offen lds" % (vL16, SE, SE + 3))
    a.label("L_NOGW")
    a("s_lshr_b32 s%d, s%d, 1" % (sT0, sW))
    a("s_lshl_b32 s%d, s%d, 2" % (sT1, sMT))
    a("s_add_u32 s%d, s%d, s%d" % (sT0, sT0, sT1))
    a("s_lshl_b32 s%d, s%d, 5" % (sT0, sT0))
    a("s_lshl_b32 s%d, s%d, 1" % (sT1, sNT))
    a("s_add_u32 s%d, s%d, s%d" % (sT0, sT0, sT1))
    a("s_and_b32 s%d, s%d, 1" % (sT1, sW))
    a("s_add_u32 s%d, s%d, s%d" % (sT0, sT0, sT1))
    a("s_lshl_b32 s%d, s%d, 7" % (sT0, sT0))
    a("s_add_u32 s%d, s%d, %d" % (sOwnO, sT0, WS_OFL))
    a("s_lshl_b32 s%d, s%d, 4" % (sT1, sMT))
    a("s_add_u32 s%d, s%d, s%d" % (sT1, sT1, sNT))
    a("s_lshl_b32 s%d, s%d, 7" % (sT1, sT1))
    a("s_add_u32 s%d, s%d, %d" % (sOwnH, sT1, WS_HFL))
    a("v_mov_b32 v%d, s%d" % (vT0, sOwnO))
    a("v_mov_b32 v%d, s%d" % (vT1, sOwnH))
    a("v_cmp_eq_u32 vcc, 1, v0")
    a("s_lshr_b32 s%d, s%d, 1" % (sT0, sMB))
    a("s_lshl_b32 s%d, s%d, 11" % (sT0, sT0))
    a("s_add_u32 s%d, s%d, %d" % (sPolH, sT0, WS_HFL))
    a("v_cndmask_b32 v%d, v%d, v%d, vcc" % (vT0, vT0, vT1))
    a("buffer_load_dword v%d, v%d, s[%d:%d], 0 offen sc1" % (vOwn, vT0, SWS, SWS + 3))
    a("v_and_b32 v%d, 15, v0" % vT1)
    a("v_lshlrev_b32 v%d, 7, v%d" % (vT1, vT1))
    a("buffer_load_dword v%d, v%d, s[%d:%d], s%d offen sc1" % (vOldH, vT1, SWS, SWS + 3, sPolH))
    a("v_and_b32 v%d, 1, v0" % vT1)
    a("v_bfe_u32 v%d, v0, 1, 2" % vT2)
    a("v_lshlrev_b32 v%d, 12, v%d" % (vT1, vT1))
    a("v_lshl_add_u32 v%d, v%d, 10, v%d" % (vT1, vT2, vT1))
    a("s_lshl_b32 s%d, s%d, 13" % (sT0, sMB))
    a("s_lshl_b32 s%d, s%d, 7" % (sT1, sW))
    a("s_add_u32 s%d, s%d, s%d" % (sT0, sT0, sT1))
    a("s_add_u32 s%d, s%d, %d" % (sPolO, sT0, WS_OFL))
    a("buffer_load_dword v%d, v%d, s[%d:%d], s%d offen sc1" % (vOldO, vT1, SWS, SWS + 3, sPolO))
    a("s_mov_b64 s[%d:%d], exec" % (sEx, sEx + 1))
    a("s_cmp_eq_u32 s%d, 0" % sKV)
    a("s_cbranch_scc1 L_NOKVL")
    a("s_cmp_eq_u32 s%d, 1" % sKV)
    a("s_cselect_b32 s%d, s%d, s%d" % (SE, P['wk'], P['wv']))
    a("s_cselect_b32 s%d, s%d, s%d" % (SE + 1, P['wk'] + 1, P['wv'] + 1))
    a("s_mov_b32 s%d, 16384" % (SE + 2))
    a("s_add_u32 m0, s%d, %d" % (sM0x, PB[2] + OX))
    a("s_lshl_b32 s%d, s%d, 2" % (sT0, sMT))
    a("buffer_load_dwordx4 v%d, s[%d:%d], s%d offen lds" % (vL16, SE, SE + 3, sM0x))
    a("buffer_load_dwordx4 v%d, s[%d:%d], s%d offen offset:1024 lds" % (vL16, SE, SE + 3, sM0x))
    a("s_add_u32 s%d, s%d, s%d" % (sT0, sT0, sRB))
    a("s_lshl_b32 s%d, s%d, 15" % (sT0, sT0))
    a("s_lshl_b32 s%d, s%d, 7" % (sT1, sW))
    a("s_add_u32 s%d, s%d, s%d" % (sT0, sT0, sT1))
    a("v_and_b32 v%d, 31, v0" % vT0)
    a("v_lshrrev_b32 v%d, 5, v0" % vT1)
    a("v_lshlrev_b32 v%d, 10, v%d" % (vT0, vT0))
    a("v_lshl_add_u32 v%d, v%d, 4, v%d" % (vT0, vT1, vT0))
    for ks in range(4):
        a("buffer_load_dwordx4 v[%d:%d], v%d, s[%d:%d], s%d offen offset:%d" % (vKX + 4 * ks, vKX + 4 * ks + 3, vT0,
                                                                              SX, SX + 3, sT0, ks * 32))
    a.label("L_NOKVL")
    a("s_cmp_lt_i32 s%d, 0" % sUnit)
    a("s_cbranch_scc1 L_NOSLL")
    a("s_lshr_b32 s%d, s%d, 3" % (sT0, sUnit))
    a("s_sub_u32 s%d, s%d, 32" % (sT1, sT0))
    a("s_cmp_lt_u32 s%d, 32" % sT0)
    a("s_cselect_b32 s%d, s%d, s%d" % (SE, P['wo'], P['wd']))
    a("s_cselect_b32 s%d, s%d, s%d" % (SE + 1, P['wo'] + 1, P['wd'] + 1))
    a("s_mov_b32 s%d, 0x1c0000" % (SE + 2))
    a("s_cselect_b32 s%d, 0x80000, s%d" % (SE + 2, SE + 2))
    a("s_cselect_b32 s%d, s%d, s%d" % (sT0, sT0, sT1))
    a("s_lshl_b32 s%d, s%d, 14" % (sT0, sT0))
    a("s_and_b32 s%d, s%d, 7" % (sT1, sUnit))
    a("s_lshl_b32 s%d, s%d, 7" % (sT1, sT1))
    a("s_add_u32 s%d, s%d, s%d" % (sT0, sT0, sT1))
    a("s_add_u32 s%d, s%d, 8192" % (sT1, sT0))
    a("v_lshrrev_b32 v%d, 3, v0" % vT0)
    a("v_and_b32 v%d, 7, v0" % vT1)
    a("v_lshlrev_b32 v%d, 10, v%d" % (vT0, vT0))
    a("v_lshl_add_u32 v%d, v%d, 4, v%d" % (vT0, vT1, vT0))
    a("s_add_u32 m0, s%d, %d" % (sM0w[0], PB[2]))
    a("s_nop 0")
    a("buffer_load_dwordx4 v%d, s[%d:%d], s%d offen lds" % (vT0, SE, SE + 3, sT0))
    a("s_add_u32 m0, s%d, %d" % (sM0w[0], PB[2] + 1024))
    a("s_nop 0")
    a("buffer_load_dwordx4 v%d, s[%d:%d], s%d offen lds" % (vT0, SE, SE + 3, sT1))
    a.label("L_NOSLL")
    emit_groups(dma_list(1))
    b0 = PB[0]
    a("s_lshr_b32 s%d, s%d, 2" % (sT0, sW))
    a("s_lshl_b32 s%d, s%d, 13" % (sT0, sT0))
    a("s_add_u32 s%d, s%d, %d" % (sT0, sT0, b0 + OX))
    a("v_and_b32 v%d, 31, v0" % vT0)
    a("v_lshlrev_b32 v%d, 7, v%d" % (vT0, vT0))
    a("v_lshrrev_b32 v%d, 5, v0" % vT1)
    a("v_bfe_u32 v%d, v0, 1, 3" % vT3)
    a("v_xor_b32 v%d, v%d, v%d" % (vT3, vT3, vT1))
    a("v_lshl_add_u32 v%d, v%d, 4, v%d" % (vT0, vT3, vT0))
    for ks in range(4):
        a("v_xor_b32 v%d, %d, v%d" % (vT2, ks * 32, vT0))
        a("v_add_u32 v%d, s%d, v%d" % (vXr[ks], sT0, vT2))
    a("v_bfe_u32 v%d, v0, 2, 2" % vT2)
    a("v_lshl_add_u32 v%d, v%d, 3, v%d" % (vT3, vT1, vT2))
    a("v_and_b32 v%d, 3, v0" % vT2)
    a("v_bfe_u32 v%d, v0, 4, 1" % vT4)
    a("v_mul_u32_u24 v%d, 0xe0, v%d" % (vT0, vT3))
    a("v_lshl_add_u32 v%d, v%d, 3, v%d" % (vT0, vT2, vT0))
    a("v_mul_u32_u24 v%d, %d, v%d" % (vT1, OWU - OWG, vT4))
    a("v_add_u32 v%d, v%d, v%d" % (vT0, vT0, vT1))
    a("s_and_b32 s%d, s%d, 3" % (sT1, sW))
    a("s_lshl_b32 s%d, s%d, 6" % (sT0, sT1))
    a("s_add_u32 s%d, s%d, %d" % (sT0, sT0, b0 + OWG))
    a("v_add_u32 v%d, s%d, v%d" % (vW0, sT0, vT0))
    a("s_cmp_eq_u32 s%d, 3" % sT1)
    a("s_cbranch_scc1 L_W1_Q")
    for q in range(8):
        ks, u = q >> 1, q & 1
        a("v_add_u32 v%d, %d, v%d" % (vW1[q], 32 + (16 * ks + 4 * u) * 224, vW0))
    a("s_branch L_W1_E")
    a.label("L_W1_Q")
    a("v_lshlrev_b32 v%d, 6, v%d" % (vT0, vT3))
    a("v_lshl_add_u32 v%d, v%d, 3, v%d" % (vT0, vT2, vT0))
    a("v_lshl_add_u32 v%d, v%d, 5, v%d" % (vT0, vT4, vT0))
    for q in range(8):
        ks, u = q >> 1, q & 1
        a("v_add_u32 v%d, %d, v%d" % (vW1[q], b0 + OWQ + (16 * ks + 4 * u) * 64, vT0))
    a.label("L_W1_E")

    a("v_lshrrev_b32 v%d, 5, v0" % vT0)
    a("v_lshlrev_b32 v%d, 4, v%d" % (vT0, vT0))
    a("v_add_u32 v%d, %d, v%d" % (vGWa, L_GW, vT0))
    a("v_mov_b32 v%d, 0" % vGm[0])
    a("v_mov_b32 v%d, 0" % vGm[1])

    def gdots(fs):
        f = FR[fs]
        return ["v_dot2c_f32_bf16 v%d, v%d, v%d" % (vGm[i], f + 4 * i + j, vGWf[fs] + j) for j in range(4) for i in (0, 1)]

    def reads(s, ks, fs):
        f = FR[fs]
        return [
            "ds_read_b128 v[%d:%d], v%d offset:%d" % (vGWf[fs], vGWf[fs] + 3, vGWa, s * 128 + ks * 32),
            "ds_read_b128 v[%d:%d], v%d" % (f, f + 3, vXr[ks]),
            "ds_read_b64_tr_b16 v[%d:%d], v%d offset:%d" % (f + 8, f + 9, vW0, (16 * ks) * 224),
            "ds_read_b64_tr_b16 v[%d:%d], v%d offset:%d" % (f + 10, f + 11, vW0, (16 * ks + 4) * 224),
            "ds_read_b128 v[%d:%d], v%d offset:4096" % (f + 4, f + 7, vXr[ks]),
            "ds_read_b64_tr_b16 v[%d:%d], v%d" % (f + 12, f + 13, vW1[2 * ks]),
            "ds_read_b64_tr_b16 v[%d:%d], v%d" % (f + 14, f + 15, vW1[2 * ks + 1]),
        ]

    def mfmas(fs, first):
        f = FR[fs]
        out = []
        for an in (0, 1):
            for i in (0, 1):
                acc = ACC + (an * 2 + i) * 16
                c = "0" if first else "v[%d:%d]" % (acc, acc + 15)
                out.append("%s v[%d:%d], v[%d:%d], v[%d:%d], %s" % (MFMA, acc, acc + 15, f + 8 + an * 4, f + 11 + an * 4,
                                                                   f + i * 4, f + i * 4 + 3, c))
        return out

    def advance_addrs(s):
        d = PB[(s + 1) % 3] - PB[s % 3]
        for r in vXr + [vW0] + vW1:
            if d >= 0:
                a("v_add_u32 v%d, %d, v%d" % (r, d, r))
            else:
                a("v_subrev_u32 v%d, %d, v%d" % (r, -d, r))

    def early_jobs():
        a("s_cmp_eq_u32 s%d, 0" % sKV)
        a("s_cbranch_scc1 L_EJ_NOKV1")
        a("v_lshrrev_b32 v%d, 5, v0" % vT1)
        a("v_bfe_u32 v%d, v0, 2, 2" % vT2)
        a("v_lshl_add_u32 v%d, v%d, 3, v%d" % (vT1, vT1, vT2))
        a("v_and_b32 v%d, 3, v0" % vT2)
        a("v_lshlrev_b32 v%d, 5, v%d" % (vT1, vT1))
        a("v_lshl_add_u32 v%d, v%d, 3, v%d" % (vT1, vT2, vT1))
        a("v_add_u32 v%d, s%d, v%d" % (vT1, sM0x, vT1))
        for ks in range(4):
            for u in range(2):
                a("ds_read_b64_tr_b16 v[%d:%d], v%d offset:%d" % (vKW + 4 * ks + 2 * u, vKW + 4 * ks + 2 * u + 1, vT1,
                                                                 PB[2] + OX + (16 * ks + 4 * u) * 32))
        a.label("L_EJ_NOKV1")
        a("s_cmp_lt_i32 s%d, 0" % sUnit)
        a("s_cbranch_scc1 L_EJ_NOSL1")
        a("v_lshrrev_b32 v%d, 5, v0" % vT1)
        a("v_bfe_u32 v%d, v0, 2, 2" % vT2)
        a("v_lshl_add_u32 v%d, v%d, 2, v%d" % (vT1, vT1, vT2))
        a("v_lshlrev_b32 v%d, 7, v%d" % (vT1, vT1))
        a("v_bfe_u32 v%d, v0, 4, 1" % vT2)
        a("v_lshl_add_u32 v%d, v%d, 5, v%d" % (vT1, vT2, vT1))
        a("v_and_b32 v%d, 3, v0" % vT2)
        a("v_lshl_add_u32 v%d, v%d, 3, v%d" % (vT1, vT2, vT1))
        a("v_add_u32 v%d, s%d, v%d" % (vT1, sM0w[0], vT1))
        for f in range(2):
            for u in range(2):
                a("ds_read_b64_tr_b16 v[%d:%d], v%d offset:%d" % (vSL + 4 * f + 2 * u, vSL + 4 * f + 2 * u + 1, vT1,
                                                                 PB[2] + u * 1024 + f * 64))
        a.label("L_EJ_NOSL1")
        a("s_waitcnt lgkmcnt(0)")
        a("s_cmp_lt_i32 s%d, 0" % sUnit)
        a("s_cbranch_scc1 L_EJ_NOSL2")
        a("s_and_b32 s%d, s%d, 7" % (sT0, sUnit))
        a("s_mul_i32 s%d, s%d, 288" % (sT0, sT0))
        a("s_lshr_b32 s%d, s%d, 3" % (sT1, sUnit))
        a("s_add_u32 s%d, s%d, s%d" % (sT0, sT0, sT1))
        a("s_lshl_b32 s%d, s%d, 10" % (sT0, sT0))
        a("s_add_u32 s%d, s%d, %d" % (sT0, sT0, WS_WF))
        a("s_add_u32 s%d, s%d, %d" % (sT1, sT0, 144 * 1024))
        a("buffer_store_dwordx4 v[%d:%d], v%d, s[%d:%d], s%d offen sc1" % (vSL, vSL + 3, vL16, SWS, SWS + 3, sT0))
        a("buffer_store_dwordx4 v[%d:%d], v%d, s[%d:%d], s%d offen sc1" % (vSL + 4, vSL + 7, vL16, SWS, SWS + 3, sT1))
        a.label("L_EJ_NOSL2")
        a("s_cmp_eq_u32 s%d, 0" % sKV)
        a("s_cbranch_scc1 L_EJ_NOKV2")
        a("s_cmp_eq_u32 s%d, 2" % sKV)
        a("s_cbranch_scc1 L_EJ_V")
        for ks in range(4):
            c = "0" if ks == 0 else "v[%d:%d]" % (vKA, vKA + 15)
            a("%s v[%d:%d], v[%d:%d], v[%d:%d], %s" % (MFMA, vKA, vKA + 15, vKW + 4 * ks, vKW + 4 * ks + 3,
                                                       vKX + 4 * ks, vKX + 4 * ks + 3, c))
        a.nop(14)
        a("s_branch L_EJ_KVW")
        a.label("L_EJ_V")
        for ks in range(4):
            c = "0" if ks == 0 else "v[%d:%d]" % (vKA, vKA + 15)
            a("%s v[%d:%d], v[%d:%d], v[%d:%d], %s" % (MFMA, vKA, vKA + 15, vKX + 4 * ks, vKX + 4 * ks + 3,
                                                       vKW + 4 * ks, vKW + 4 * ks + 3, c))
        a("v_and_b32 v%d, 16, v0" % vT1)
        a("v_cmp_eq_u32 vcc, 0, v%d" % vT1)
        a.nop(14)
        for r in range(8):
            a("v_cndmask_b32 v%d, v%d, v%d, vcc" % (vKA + r, vKA + 8 + r, vKA + r))
        a.label("L_EJ_KVW")
        a("s_cmp_lg_u32 s%d, 0" % sW)
        a("s_cbranch_scc1 L_EJ_NOKV2")
        a("v_lshlrev_b32 v%d, 2, v0" % vT1)
        a("v_add_u32 v%d, %d, v%d" % (vT1, L_KVRED, vT1))
        for r in range(8):
            a("ds_write_b32 v%d, v%d offset:%d" % (vT1, vKA + r, r * 256))
        a("s_waitcnt lgkmcnt(0)")
        a.label("L_EJ_NOKV2")

    def kv_adds():
        a("s_cmp_eq_u32 s%d, 0" % sKV)
        a("s_cbranch_scc1 L_KA_E")
        a("s_cmp_eq_u32 s%d, 0" % sW)
        a("s_cbranch_scc1 L_KA_E")
        a("v_lshlrev_b32 v%d, 2, v0" % vT1)
        a("v_add_u32 v%d, %d, v%d" % (vT1, L_KVRED, vT1))
        for r in range(8):
            a("ds_add_f32 v%d, v%d offset:%d" % (vT1, vKA + r, r * 256))
        a("s_waitcnt lgkmcnt(0)")
        a.label("L_KA_E")

    def kv_final():
        a("s_cmp_eq_u32 s%d, 0" % sKV)
        a("s_cbranch_scc1 L_KF_E")
        a("s_cmp_lg_u32 s%d, 0" % sW)
        a("s_cbranch_scc1 L_KF_E")
        a("v_lshlrev_b32 v%d, 2, v0" % vT1)
        a("v_add_u32 v%d, %d, v%d" % (vT1, L_KVRED, vT1))
        for r in range(8):
            a("ds_read_b32 v%d, v%d offset:%d" % (vKA + r, vT1, r * 256))
        a("s_lshl_b32 s%d, s%d, 2" % (sT0, sMT))
        a("s_add_u32 s%d, s%d, s%d" % (sT0, sT0, sRB))
        a("s_mul_i32 s%d, s%d, %d" % (sT1, sT0, KVBLK))
        a("s_add_u32 s%d, s%d, %d" % (sT1, sT1, WS_KV))
        a("s_add_u32 s%d, s%d, 1024" % (sT0, sT1))
        a("s_waitcnt lgkmcnt(0)")
        for j in range(4):
            a("v_cvt_pk_bf16_f32 v%d, v%d, v%d" % (vKA + 8 + j, vKA + 2 * j, vKA + 2 * j + 1))
        a("s_cmp_eq_u32 s%d, 2" % sKV)
        a("s_cbranch_scc1 L_KF_V")
        a("buffer_store_dwordx4 v[%d:%d], v%d, s[%d:%d], s%d offen sc1" % (vKA + 8, vKA + 11, vL16, SWS, SWS + 3, sT1))
        a("v_mov_b32 v%d, 0" % vT1)
        for j in range(4):
            a("v_dot2_f32_bf16 v%d, v%d, v%d, v%d" % (vT1, vKA + 8 + j, vKA + 8 + j, vT1))
        a.nop(3)
        a("v_mov_b32 v%d, v%d" % (vT2, vT1))
        a.nop(2)
        a("v_permlane32_swap_b32 v%d, v%d" % (vT1, vT2))
        a.nop(2)
        a("v_add_f32 v%d, v%d, v%d" % (vT1, vT1, vT2))
        wave_reduce(a, "v_max_f32", vT1)
        a("s_branch L_KF_N")
        a.label("L_KF_V")
        a("v_bfe_u32 v%d, v0, 4, 1" % vT1)
        a("v_mul_u32_u24 v%d, %d, v%d" % (vT1, VUNIT, vT1))
        a("v_lshrrev_b32 v%d, 5, v0" % vT2)
        a("v_lshl_add_u32 v%d, v%d, 8, v%d" % (vT1, vT2, vT1))
        a("v_and_b32 v%d, 15, v0" % vT2)
        a("v_lshl_add_u32 v%d, v%d, 4, v%d" % (vT1, vT2, vT1))
        a("buffer_store_dwordx4 v[%d:%d], v%d, s[%d:%d], s%d offen offset:%d sc1" % (vKA + 8, vKA + 11, vT1, SWS, SWS + 3, sT1, VOFF))
        a("v_max3_f32 v%d, |v%d|, |v%d|, |v%d|" % (vT4, vKA, vKA + 1, vKA + 2))
        a("v_max3_f32 v%d, |v%d|, |v%d|, v%d" % (vT4, vKA + 3, vKA + 4, vT4))
        a("v_max3_f32 v%d, |v%d|, |v%d|, v%d" % (vT4, vKA + 5, vKA + 6, vT4))
        a("v_max_f32 v%d, |v%d|, v%d" % (vT4, vKA + 7, vT4))
        a("s_mov_b32 s%d, 0x%08x" % (sT2, f32bits(2.0 ** 60)))
        a("v_cmp_lt_f32 vcc, s%d, v%d" % (sT2, vT4))
        a("v_bfe_u32 v%d, v0, 3, 1" % vT1)
        a("v_mul_u32_u24 v%d, %d, v%d" % (vT1, VUNIT, vT1))
        a("s_cmp_lg_u64 vcc, 0")
        a("s_cselect_b32 s%d, 0x7f800000, 0" % sT2)
        a("v_and_b32 v%d, 7, v0" % vT2)
        a("v_lshl_add_u32 v%d, v%d, 2, v%d" % (vT1, vT2, vT1))
        a("v_cmp_gt_u32 vcc, 4, v%d" % vT2)
        a("v_mov_b32 v%d, 0x3f803f80" % vT3)
        a("v_and_b32 v%d, 15, v0" % vT2)
        a("v_cndmask_b32 v%d, 0, v%d, vcc" % (vT3, vT3))
        a("v_cmp_eq_u32 vcc, 12, v%d" % vT2)
        a("v_mov_b32 v%d, s%d" % (vT4, sT2))
        a("s_mov_b64 exec, 0xffff")
        a("v_cndmask_b32 v%d, v%d, v%d, vcc" % (vT3, vT3, vT4))
        a("buffer_store_dword v%d, v%d, s[%d:%d], s%d offen offset:%d sc1" % (vT3, vT1, SWS, SWS + 3, sT1, VOFF + 512))
        a("s_mov_b64 exec, s[%d:%d]" % (sEx, sEx + 1))
        a("s_branch L_KF_E")
        a.label("L_KF_N")
        a("v_mov_b32 v%d, 0" % vT2)
        a("s_mov_b32 exec_lo, 0")
        a("s_mov_b32 exec_hi, 0x80000000")
        a("buffer_store_dword v%d, v%d, s[%d:%d], s%d offen sc1" % (vT1, vT2, SWS, SWS + 3, sT0))
        a("s_mov_b64 exec, s[%d:%d]" % (sEx, sEx + 1))
        a.label("L_KF_E")

    def early_signal():
        a("s_cmp_lg_u32 s%d, 0" % sW)
        a("s_cbranch_scc1 L_ES_E")
        a("v_mov_b32 v%d, 1" % vT1)
        a("v_mov_b32 v%d, 0" % vT2)
        a("s_lshl_b32 s%d, s%d, 2" % (sT0, sMT))
        a("s_mov_b64 exec, 1")
        a("buffer_atomic_add v%d, v%d, s[%d:%d], s%d offen offset:64 sc1" % (vT1, vT2, SDBG, SDBG + 3, sT0))
        a("s_mov_b64 exec, s[%d:%d]" % (sEx, sEx + 1))
        a.label("L_ES_E")

    def early_poll_issue():
        a("s_cmp_lg_u32 s%d, 0" % sW)
        a("s_cbranch_scc1 L_EP_E")
        a("v_and_b32 v%d, 15, v0" % vT4)
        a("v_lshlrev_b32 v%d, 2, v%d" % (vT4, vT4))
        a("buffer_load_dword v%d, v%d, s[%d:%d], 0 offen offset:64 sc1" % (vPoll, vT4, SDBG, SDBG + 3))
        a.label("L_EP_E")

    def early_poll_check():
        a("s_cmp_lg_u32 s%d, 0" % sW)
        a("s_cbranch_scc1 L_EC_E")
        a("s_mov_b32 s%d, 0" % sSpin)
        a.label("L_EC_L")
        a("v_cmp_ne_u32 vcc, 16, v%d" % vPoll)
        a("s_cmp_eq_u64 vcc, 0")
        a("s_cbranch_scc1 L_EC_E")
        a("s_add_u32 s%d, s%d, 1" % (sSpin, sSpin))
        a("s_cmp_ge_u32 s%d, %d" % (sSpin, SPIN_MAX))
        a("s_cbranch_scc1 L_EC_E")
        a("s_sleep 2")
        a("buffer_load_dword v%d, v%d, s[%d:%d], 0 offen offset:64 sc1" % (vPoll, vT4, SDBG, SDBG + 3))
        a("s_waitcnt vmcnt(0)")
        a("s_branch L_EC_L")
        a.label("L_EC_E")

    def g_loads():
        g = []
        g.append(["v_and_b32 v%d, 31, v0" % vT0,
                  "v_lshlrev_b32 v%d, 2, v%d" % (vT0, vT0),
                  "s_lshr_b32 s%d, s%d, 2" % (sT0, sW),
                  "s_lshl_b32 s%d, s%d, 8" % (sT0, sT0),
                  "s_lshl_b32 s%d, s%d, 9" % (sT1, sMT),
                  "s_add_u32 s%d, s%d, %d" % (sT1, sT1, WS_G),
                  "s_add_u32 s%d, s%d, s%d" % (sT0, sT0, sT1),
                  "buffer_load_dword v%d, v%d, s[%d:%d], s%d offen sc1" % (vGm[0], vT0, SWS, SWS + 3, sT0),
                  "buffer_load_dword v%d, v%d, s[%d:%d], s%d offen offset:128 sc1" % (vGm[1], vT0, SWS, SWS + 3, sT0),
                  "s_lshr_b32 s%d, s%d, 1" % (sT0, sW),
                  "s_lshl_b32 s%d, s%d, 7" % (sT0, sT0),
                  "s_add_u32 s%d, s%d, s%d" % (sT0, sT0, sT1),
                  "buffer_load_dword v%d, v%d, s[%d:%d], s%d offen sc1" % (vGq, vT0, SWS, SWS + 3, sT0),
                  "v_lshlrev_b32 v%d, 2, v0" % vT0,
                  "s_mov_b32 s%d, %d" % (sT1, WS_NRM),
                  "buffer_load_dword v%d, v%d, s[%d:%d], s%d offen sc1" % (vN[0], vT0, SWS, SWS + 3, sT1),
                  "buffer_load_dword v%d, v%d, s[%d:%d], s%d offen offset:256 sc1" % (vN[1], vT0, SWS, SWS + 3, sT1)])
        return g

    stamp("pro")
    a("s_waitcnt vmcnt(6)")
    a("s_barrier")
    stamp("bar0")
    for ins in reads(0, 0, 0):
        a(ins)
    fs = 0
    pending = []
    for s in range(8):
        for ks in range(4):
            if ks < 3:
                for ins in reads(s, ks + 1, fs ^ 1):
                    a(ins)
                a("s_waitcnt lgkmcnt(7)")
            else:
                assert not pending
                advance_addrs(s) if s < 7 else None
                a("s_waitcnt lgkmcnt(0)")
                stamp("s%dc" % s)
                if s == 0:
                    a("s_waitcnt vmcnt(0)")
                    stamp("s0w")
                    early_jobs()
                    emit_groups(dma_list(2))
                elif s < 7:
                    a("s_waitcnt vmcnt(%d)" % {1: 6, 2: 6, 3: 6, 4: 6, 5: 6, 6: 6}[s])
                if s == 2:
                    early_signal()
                if s == 5:
                    early_poll_check()
                if s < 7:
                    stamp("s%dv" % s)
                    a("s_barrier")
                    stamp("s%db" % s)
                    for ins in reads(s + 1, 0, fs ^ 1):
                        a(ins)
                    if s == 0:
                        kv_adds()
                    if s == 1:
                        kv_final()
                    if s == 4:
                        early_poll_issue()
                    if s + 3 <= 7:
                        pending = dma_list(s + 3)
                    elif s == 5:
                        pending = kv_dma_list(0, 6)
                    elif s == 6:
                        pending = kv_dma_list(48, 6)
            gd = gdots(fs)
            for m in mfmas(fs, s == 0 and ks == 0):
                a(m)
                a(gd.pop(0))
                a(gd.pop(0))
                if pending:
                    emit_groups([pending.pop(0)])
            fs ^= 1
    stamp("g1end")
    a.nop(3)
    a("v_mov_b32 v%d, v%d" % (vT0, vGm[0]))
    a("v_mov_b32 v%d, v%d" % (vT1, vGm[1]))
    a.nop(1)
    a("v_permlane32_swap_b32 v%d, v%d" % (vT0, vGm[0]))
    a("v_permlane32_swap_b32 v%d, v%d" % (vT1, vGm[1]))
    a.nop(1)
    a("v_add_f32 v%d, v%d, v%d" % (vT0, vT0, vGm[0]))
    a("v_add_f32 v%d, v%d, v%d" % (vT1, vT1, vGm[1]))
    a("v_mul_f32 v%d, 0x%08x, v%d" % (vT0, f32bits(-math.log2(math.e)), vT0))
    a("v_mul_f32 v%d, 0x%08x, v%d" % (vT1, f32bits(-math.log2(math.e)), vT1))
    a("v_exp_f32 v%d, v%d" % (vT0, vT0))
    a("v_exp_f32 v%d, v%d" % (vT1, vT1))
    a("s_bitcmp1_b32 s%d, 1" % sW)
    a("v_add_f32 v%d, 1.0, v%d" % (vT0, vT0))
    a("v_add_f32 v%d, 1.0, v%d" % (vT1, vT1))
    a("v_rcp_f32 v%d, v%d" % (vT0, vT0))
    a("v_rcp_f32 v%d, v%d" % (vT1, vT1))
    a("s_cselect_b64 vcc, -1, 0")
    a("v_sub_f32 v%d, 1.0, v%d" % (vGm[0], vT0))
    a("v_sub_f32 v%d, 1.0, v%d" % (vGm[1], vT1))
    a("v_cndmask_b32 v%d, v%d, v%d, vcc" % (vGq, vT0, vT1))
    a("v_add_u32 v20, 1, v%d" % vOwn)
    a("s_lshr_b32 s%d, s%d, 2" % (sT0, sW))
    a("s_lshl_b32 s%d, s%d, 1" % (sT0, sT0))
    a("s_lshl_b32 s%d, s%d, 2" % (sT1, sMT))
    a("s_add_u32 s%d, s%d, s%d" % (sT0, sT0, sT1))
    a("s_mul_i32 s%d, s%d, 144" % (sT0, sT0))
    a("s_mul_i32 s%d, s%d, 7" % (sT1, sNT))
    a("s_add_u32 s%d, s%d, s%d" % (sT0, sT0, sT1))
    a("s_and_b32 s%d, s%d, 3" % (sT2, sW))
    a("s_lshl_b32 s%d, s%d, 1" % (sT1, sT2))
    a("s_add_u32 s%d, s%d, s%d" % (sT0, sT0, sT1))
    a("s_lshl_b32 s%d, s%d, 10" % (sT0, sT0))
    a("s_add_u32 s%d, s%d, %d" % (sT0, sT0, WS_AF + 32 * 1024))
    a("s_add_u32 s%d, s%d, %d" % (sT1, sT0, 144 * 1024))

    def h_tile(an, i):
        t = ACC + (an * 2 + i) * 16
        for r in range(8):
            a("v_mul_f32 v%d, v%d, v%d" % (t + r, t + r, t + 8 + r))
        for r in range(8):
            a("v_mul_f32 v%d, v%d, v%d" % (t + r, t + r, vGm[i]))
        for j in range(4):
            a("v_cvt_pk_bf16_f32 v%d, v%d, v%d" % (t + 8 + j, t + 2 * j, t + 2 * j + 1))
        a("buffer_store_dwordx4 v[%d:%d], v%d, s[%d:%d], s%d offen offset:%d sc1" % (t + 8, t + 11, vL16, SWS, SWS + 3,
                                                                                    sT0 if i == 0 else sT1, an * 1024))

    a("s_cmp_eq_u32 s%d, 3" % sT2)
    a("s_cbranch_scc1 L_EPI_Q")
    h_tile(1, 0)
    h_tile(1, 1)
    a("s_branch L_EPI_C")
    a.label("L_EPI_Q")
    a("s_mov_b32 s%d, 0x%08x" % (sT3, f32bits(QSCALE)))
    a("s_lshr_b32 s%d, s%d, 2" % (sT2, sW))
    a("s_lshl_b32 s%d, s%d, 12" % (sT2, sT2))
    a("s_add_u32 s%d, s%d, %d" % (sT2, sT2, L_QX))
    a("v_add_u32 v%d, s%d, v%d" % (vT0, sT2, vL16))
    for i in (0, 1):
        t = ACC + (2 + i) * 16
        for r in range(16):
            a("v_mul_f32 v%d, s%d, v%d" % (t + r, sT3, t + r))
        d = FR[0] + 8 * i
        for j in range(8):
            a("v_cvt_pk_bf16_f32 v%d, v%d, v%d" % (d + j, t + 2 * j, t + 2 * j + 1))
        a("ds_write_b128 v%d, v[%d:%d] offset:%d" % (vT0, d, d + 3, i * 2048))
        a("ds_write_b128 v%d, v[%d:%d] offset:%d" % (vT0, d + 4, d + 7, i * 2048 + 1024))
    a.label("L_EPI_C")
    h_tile(0, 0)
    h_tile(0, 1)

    vKa, vVa = 2, 3
    vA0, vA1, vB0, vB1 = 4, 5, 6, 7
    vQ = 8
    vKF = [12, 16]
    vVF = [32, 40]
    vP = 48
    vF = 56
    vS = [72, 88]
    vO = 104
    vC = 192
    NB = 4
    a("v_mov_b32 v%d, v%d" % (vKa, vL16))
    a("v_lshrrev_b32 v%d, 5, v0" % vT2)
    a("v_and_b32 v%d, 15, v0" % vT3)
    a("v_lshlrev_b32 v%d, 8, v%d" % (vT2, vT2))
    a("v_lshl_add_u32 v%d, v%d, 4, v%d" % (vT2, vT3, vT2))
    a("v_and_b32 v%d, 27, v0" % vT1)
    a("v_cmp_eq_u32 vcc, 16, v%d" % vT1)
    a("v_mov_b32 v%d, 0x200" % vT3)
    a("v_mov_b32 v%d, 0x210" % vT4)
    a("v_and_b32 v%d, 16, v0" % vT1)
    a("v_cndmask_b32 v%d, v%d, v%d, vcc" % (vT3, vT4, vT3))
    a("v_cmp_eq_u32 vcc, 0, v%d" % vT1)
    a("s_lshl_b32 s%d, s%d, 10" % (sT0, sW))
    a("s_add_u32 s%d, s%d, %d" % (sT0, sT0, L_QX))
    a("v_cndmask_b32 v%d, v%d, v%d, vcc" % (vVa, vT3, vT2))
    a("v_add_u32 v%d, %d, v%d" % (vVa, VOFF, vVa))
    a("v_add_u32 v%d, s%d, v%d" % (vT0, sT0, vL16))
    a("s_mul_i32 s%d, s%d, 288" % (sT0, sNB))
    a("s_add_u32 s%d, s%d, s%d" % (sT0, sT0, sW))
    a("s_lshl_b32 s%d, s%d, 10" % (sT0, sT0))
    a("s_add_u32 s%d, s%d, %d" % (sT0, sT0, WS_WF))
    a("v_add_u32 v%d, s%d, v%d" % (vA0, sT0, vL16))
    a("v_add_u32 v%d, %d, v%d" % (vA1, 144 * 1024, vA0))
    a("s_mul_i32 s%d, s%d, 288" % (sT0, sMB))
    a("s_add_u32 s%d, s%d, s%d" % (sT0, sT0, sW))
    a("s_lshl_b32 s%d, s%d, 10" % (sT0, sT0))
    a("s_add_u32 s%d, s%d, %d" % (sT0, sT0, WS_AF))
    a("v_add_u32 v%d, s%d, v%d" % (vB0, sT0, vL16))
    a("v_add_u32 v%d, %d, v%d" % (vB1, 144 * 1024, vB0))
    for r in range(16):
        a("v_mov_b32 v%d, 0" % (vC + r))
    for r in range(16):
        a("v_mov_b32 v%d, 0" % (vO + r))
    a("s_waitcnt vmcnt(8) lgkmcnt(0)")
    a("s_barrier")
    stamp("Bq")
    a("ds_read_b128 v[%d:%d], v%d" % (vQ, vQ + 3, vT0))
    emit_groups(kv_dma_list(96, 5))
    for r in range(64):
        a("v_mov_b32 v%d, 0" % (ACC + r))
    a("s_waitcnt lgkmcnt(0)")

    def rdK(buf, off):
        a("ds_read_b128 v[%d:%d], v%d offset:%d" % (vKF[buf], vKF[buf] + 3, vKa, off))

    def rdV(buf, off):
        a("ds_read_b128 v[%d:%d], v%d offset:%d" % (vVF[buf], vVF[buf] + 3, vVa, off))
        a("ds_read_b128 v[%d:%d], v%d offset:%d" % (vVF[buf] + 4, vVF[buf] + 7, vVa, off + VUNIT))

    def mS(sbuf, kbuf):
        a("%s v[%d:%d], v[%d:%d], v[%d:%d], v[%d:%d]" % (MFMA, vS[sbuf], vS[sbuf] + 15, vKF[kbuf], vKF[kbuf] + 3,
                                                        vQ, vQ + 3, vC, vC + 15))

    def mPV(vbuf, t):
        a("%s v[%d:%d], v[%d:%d], v[%d:%d], v[%d:%d]" % (MFMA, vO, vO + 15, vVF[vbuf] + 4 * t, vVF[vbuf] + 4 * t + 3,
                                                        vP + 4 * t, vP + 4 * t + 3, vO, vO + 15))

    def E(sb, r):
        a("v_exp_f32 v%d, v%d" % (vS[sb] + r, vS[sb] + r))

    def C(sb, j):
        a("v_cvt_pk_bf16_f32 v%d, v%d, v%d" % (vP + j, vS[sb] + 2 * j, vS[sb] + 2 * j + 1))

    def mF(q):
        an, i = q >> 1, q & 1
        acc = ACC + (an * 2 + i) * 16
        a("%s v[%d:%d], v[%d:%d], v[%d:%d], v[%d:%d]" % (MFMA, acc, acc + 15, vF + 4 * an, vF + 4 * an + 3,
                                                        vF + 8 + 4 * i, vF + 11 + 4 * i, acc, acc + 15))

    def body(kind):
        for bb in range(NB):
            p = bb & 1
            off = bb * KVBLK
            ffn = kind == "B" and bb >= 2
            if kind == "B" and bb == 0:
                for k_, v in enumerate((vA0, vA1, vB0, vB1)):
                    a("buffer_load_dwordx4 v[%d:%d], v%d, s[%d:%d], s%d offen sc1" % (vF + 4 * k_, vF + 4 * k_ + 3, v,
                                                                                    SWS, SWS + 3, sOffB))
                a("s_add_u32 s%d, s%d, 8192" % (sOffB, sOffB))
            for r in range(0, 4):
                E(p, r)
            if ffn:
                if bb == 2:
                    a("s_waitcnt vmcnt(0)")
                mF((bb - 2) * 2)
            E(p, 4)
            E(p, 5)
            C(p, 0)
            C(p, 1)
            a("s_waitcnt lgkmcnt(2)")
            mS(p ^ 1, p ^ 1)
            rdK(p, off + 2 * KVBLK)
            E(p, 6)
            E(p, 7)
            C(p, 2)
            E(p, 8)
            C(p, 3)
            E(p, 9)
            E(p, 10)
            E(p, 11)
            a("s_waitcnt lgkmcnt(1)")
            mPV(p, 0)
            C(p, 4)
            C(p, 5)
            E(p, 12)
            E(p, 13)
            if ffn:
                mF((bb - 2) * 2 + 1)
            E(p, 14)
            E(p, 15)
            C(p, 6)
            C(p, 7)
            rdV(p ^ 1, off + KVBLK)
            mPV(p, 1)
        a("v_add_u32 v%d, %d, v%d" % (vKa, NB * KVBLK, vKa))
        a("v_add_u32 v%d, %d, v%d" % (vVa, NB * KVBLK, vVa))

    def attn_start():
        rdK(0, 0)
        rdK(1, KVBLK)
        rdV(0, 0)
        a("s_waitcnt lgkmcnt(3)")
        mS(0, 0)
        a("s_mov_b32 s%d, 0" % sIt)
        a.nop(12)

    a("s_mov_b32 s%d, %d" % (sOffB, 4 * 8192))
    a("s_mov_b32 s%d, 0" % sSkip)
    attn_start()
    a.label("L_LOOPA")
    body("A")
    a("s_cmp_lg_u32 s%d, 0" % sSkip)
    a("s_cbranch_scc1 L_NOBKV")
    a("s_waitcnt vmcnt(0)")
    a("s_barrier")
    a("s_mov_b32 s%d, 1" % sSkip)
    a("v_mul_u32_u24 v%d, %d, v0" % (vT0, KVBLK))
    a("ds_read_b32 v%d, v%d offset:1024" % (vT1, vT0))
    a("ds_read_b32 v%d, v%d offset:%d" % (vT2, vT0, VOFF + VUNIT + 528))
    a("s_cmp_lg_u32 s%d, 0" % sW)
    a("s_cbranch_scc1 L_NOHF")
    a("v_mov_b32 v%d, 0" % vT3)
    a("s_mov_b64 exec, 2")
    a("buffer_store_dword v20, v%d, s[%d:%d], s%d offen sc1" % (vT3, SWS, SWS + 3, sOwnH))
    a("s_mov_b64 exec, s[%d:%d]" % (sEx, sEx + 1))
    a.label("L_NOHF")
    a("v_mov_b32 v%d, 0" % vT3)
    for j in range(4):
        a("v_dot2_f32_bf16 v%d, v%d, v%d, v%d" % (vT3, vQ + j, vQ + j, vT3))
    a("s_waitcnt lgkmcnt(0)")
    a("v_max_f32 v%d, v%d, v%d" % (vT1, vT1, vT2))
    a.nop(2)
    a("v_mov_b32 v%d, v%d" % (vT4, vT3))
    wave_reduce(a, "v_max_f32", vT1)
    a("v_permlane32_swap_b32 v%d, v%d" % (vT3, vT4))
    a.nop(1)
    a("v_readlane_b32 s%d, v%d, 63" % (sT3, vT1))
    a("v_add_f32 v%d, v%d, v%d" % (vT3, vT3, vT4))
    a("s_mov_b32 s%d, 0x%08x" % (sT1, f32bits(900.0)))
    a.nop(1)
    a("v_mul_f32 v%d, s%d, v%d" % (vT3, sT3, vT3))
    a("v_cmp_nge_f32 vcc, s%d, v%d" % (sT1, vT3))
    a("s_cmp_eq_u64 vcc, 0")
    a("s_cbranch_scc1 L_NOBKV")
    a("v_mov_b32 v%d, 0xff800000" % vT0)
    a("v_mov_b32 v%d, v%d" % (vT1, vL16))
    a("s_mov_b32 s%d, 0" % sIt)
    a.label("L_MAXLOOP")
    a("ds_read_b128 v[%d:%d], v%d" % (vKF[0], vKF[0] + 3, vT1))
    a("v_add_u32 v%d, %d, v%d" % (vT1, KVBLK, vT1))
    a("s_waitcnt lgkmcnt(0)")
    a("%s v[%d:%d], v[%d:%d], v[%d:%d], 0" % (MFMA, vS[0], vS[0] + 15, vKF[0], vKF[0] + 3, vQ, vQ + 3))
    a.nop(16)
    for j in range(8):
        a("v_max3_f32 v%d, v%d, v%d, v%d" % (vT0, vS[0] + 2 * j, vS[0] + 2 * j + 1, vT0))
    a("s_add_u32 s%d, s%d, 1" % (sIt, sIt))
    a("s_cmp_lt_u32 s%d, 64" % sIt)
    a("s_cbranch_scc1 L_MAXLOOP")
    a("v_mov_b32 v%d, v%d" % (vT1, vT0))
    a.nop(2)
    a("v_permlane32_swap_b32 v%d, v%d" % (vT0, vT1))
    a.nop(2)
    a("v_max_f32 v%d, v%d, v%d" % (vT0, vT0, vT1))
    for r in range(16):
        a("v_sub_f32 v%d, 0, v%d" % (vC + r, vT0))
    for r in range(16):
        a("v_mov_b32 v%d, 0" % (vO + r))
    a("v_subrev_u32 v%d, %d, v%d" % (vKa, NB * KVBLK, vKa))
    a("v_subrev_u32 v%d, %d, v%d" % (vVa, NB * KVBLK, vVa))
    attn_start()
    a("s_branch L_LOOPA")
    a.label("L_NOBKV")
    a("s_add_u32 s%d, s%d, 1" % (sIt, sIt))
    a("s_cmp_lt_u32 s%d, 2" % sIt)
    a("s_cbranch_scc1 L_LOOPA")
    a("v_and_b32 v%d, 15, v0" % vT4)
    a("v_lshlrev_b32 v%d, 7, v%d" % (vT4, vT4))
    a("s_mov_b32 s%d, 0" % sSpin)
    a.label("L_HP_L")
    a("buffer_load_dword v%d, v%d, s[%d:%d], s%d offen sc1" % (vPoll, vT4, SWS, SWS + 3, sPolH))
    a("s_waitcnt vmcnt(0)")
    a("v_cmp_eq_u32 vcc, v%d, v%d" % (vOldH, vPoll))
    a("s_cmp_eq_u64 vcc, 0")
    a("s_cbranch_scc1 L_HP_E")
    a("s_add_u32 s%d, s%d, 1" % (sSpin, sSpin))
    a("s_cmp_ge_u32 s%d, %d" % (sSpin, SPIN_MAX))
    a("s_cbranch_scc1 L_HP_E")
    a("s_sleep 2")
    a("s_branch L_HP_L")
    a.label("L_HP_E")
    stamp("hpoll")
    a.label("L_LOOPB")
    body("B")
    a("s_add_u32 s%d, s%d, 1" % (sIt, sIt))
    a("s_cmp_lt_u32 s%d, 16" % sIt)
    a("s_cbranch_scc1 L_LOOPB")
    stamp("attn")

    vWo = 72
    vOf = 32
    a.nop(8)
    for j in range(4):
        a("s_mov_b32 s%d, %d" % (sOffB, j * 8192))
        a("buffer_load_dwordx4 v[%d:%d], v%d, s[%d:%d], s%d offen sc1" % (vWo + 8 * j, vWo + 8 * j + 3, vA0, SWS, SWS + 3, sOffB))
        a("buffer_load_dwordx4 v[%d:%d], v%d, s[%d:%d], s%d offen sc1" % (vWo + 8 * j + 4, vWo + 8 * j + 7, vA1, SWS, SWS + 3, sOffB))
    a("v_rcp_f32 v%d, v%d" % (vT0, vO + 8))
    a("s_lshr_b32 s%d, s%d, 1" % (sT0, sW))
    a("s_lshl_b32 s%d, s%d, 2" % (sT1, sMT))
    a("s_add_u32 s%d, s%d, s%d" % (sT0, sT0, sT1))
    a("s_lshl_b32 s%d, s%d, 1" % (sT1, sNT))
    a("s_and_b32 s%d, s%d, 1" % (sT2, sW))
    a("s_add_u32 s%d, s%d, s%d" % (sT1, sT1, sT2))
    a("v_mul_f32 v%d, v%d, v%d" % (vT0, vT0, vGq))
    a("s_mul_i32 s%d, s%d, 144" % (sT0, sT0))
    a("s_add_u32 s%d, s%d, s%d" % (sT0, sT0, sT1))
    a("s_lshl_b32 s%d, s%d, 10" % (sT0, sT0))
    a("s_add_u32 s%d, s%d, %d" % (sT0, sT0, WS_AF))
    for r in range(8):
        a("v_mul_f32 v%d, v%d, v%d" % (vO + r, vO + r, vT0))
    for j in range(4):
        a("v_cvt_pk_bf16_f32 v%d, v%d, v%d" % (vO + 8 + j, vO + 2 * j, vO + 2 * j + 1))
    a("buffer_store_dwordx4 v[%d:%d], v%d, s[%d:%d], s%d offen sc1" % (vO + 8, vO + 11, vL16, SWS, SWS + 3, sT0))
    a("v_and_b32 v%d, 1, v0" % vT1)
    a("v_bfe_u32 v%d, v0, 1, 2" % vT2)
    a("v_lshlrev_b32 v%d, 12, v%d" % (vT1, vT1))
    a("v_lshl_add_u32 v%d, v%d, 10, v%d" % (vT4, vT2, vT1))
    a("v_mov_b32 v%d, 0" % vT2)
    a("s_waitcnt vmcnt(0)")
    stamp("ost")
    a("s_mov_b64 exec, 1")
    a("buffer_store_dword v20, v%d, s[%d:%d], s%d offen sc1" % (vT2, SWS, SWS + 3, sOwnO))
    a("s_mov_b64 exec, s[%d:%d]" % (sEx, sEx + 1))
    a("s_mov_b32 s%d, 0" % sSpin)
    a.label("L_OP_L")
    a("buffer_load_dword v%d, v%d, s[%d:%d], s%d offen sc1" % (vPoll, vT4, SWS, SWS + 3, sPolO))
    a("s_waitcnt vmcnt(0)")
    a("v_cmp_eq_u32 vcc, v%d, v%d" % (vOldO, vPoll))
    a("s_cmp_eq_u64 vcc, 0")
    a("s_cbranch_scc1 L_OP_E")
    a("s_add_u32 s%d, s%d, 1" % (sSpin, sSpin))
    a("s_cmp_ge_u32 s%d, %d" % (sSpin, SPIN_MAX))
    a("s_cbranch_scc1 L_OP_E")
    a("s_sleep 1")
    a("s_branch L_OP_L")
    a.label("L_OP_E")
    stamp("opoll")
    for j in range(4):
        a("s_mov_b32 s%d, %d" % (sOffB, j * 8192))
        a("buffer_load_dwordx4 v[%d:%d], v%d, s[%d:%d], s%d offen sc1" % (vOf + 8 * j, vOf + 8 * j + 3, vB0, SWS, SWS + 3, sOffB))
        a("buffer_load_dwordx4 v[%d:%d], v%d, s[%d:%d], s%d offen sc1" % (vOf + 8 * j + 4, vOf + 8 * j + 7, vB1, SWS, SWS + 3, sOffB))
    a("v_and_b32 v%d, 31, v0" % vT0)
    a("v_lshrrev_b32 v%d, 5, v0" % vT1)
    a("v_and_b32 v%d, 15, v0" % vT2)
    a("v_xor_b32 v%d, v%d, v%d" % (vT1, vT1, vT2))
    a("v_lshlrev_b32 v%d, 8, v%d" % (vT0, vT0))
    a("v_lshl_add_u32 v%d, v%d, 4, v%d" % (vT0, vT1, vT0))
    a("s_lshl_b32 s%d, s%d, 14" % (sT0, sW))
    a("v_add_u32 v%d, s%d, v%d" % (vT0, sT0, vT0))
    a("s_waitcnt lgkmcnt(0)")
    a("s_barrier")
    for j in range(4):
        a("s_waitcnt vmcnt(%d)" % (2 * (3 - j)))
        for an in (0, 1):
            for i in (0, 1):
                acc = ACC + (an * 2 + i) * 16
                a("%s v[%d:%d], v[%d:%d], v[%d:%d], v[%d:%d]" % (MFMA, acc, acc + 15, vWo + 8 * j + 4 * an, vWo + 8 * j + 4 * an + 3,
                                                                vOf + 8 * j + 4 * i, vOf + 8 * j + 4 * i + 3, acc, acc + 15))
    stamp("womf")
    vR0, vR1, vR2, vR3, vOo = 2, 3, 4, 5, 6
    a("v_lshrrev_b32 v%d, 3, v0" % vT4)
    a("s_lshl_b32 s%d, s%d, 3" % (sT0, sW))
    a("v_add_u32 v%d, s%d, v%d" % (vT4, sT0, vT4))
    a("v_and_b32 v%d, 15, v%d" % (vT1, vT4))
    a("v_and_b32 v%d, 7, v0" % vT2)
    a("v_lshlrev_b32 v%d, 1, v%d" % (vT3, vT2))
    a("v_xor_b32 v%d, v%d, v%d" % (vT1, vT1, vT3))
    a("v_lshlrev_b32 v%d, 8, v%d" % (vT3, vT4))
    a("v_lshl_add_u32 v%d, v%d, 4, v%d" % (vR0, vT1, vT3))
    a("v_xor_b32 v%d, 16, v%d" % (vR1, vR0))
    a("v_add_u32 v%d, 0x10000, v%d" % (vR2, vR0))
    a("v_add_u32 v%d, 0x10000, v%d" % (vR3, vR1))
    a("v_lshlrev_b32 v%d, 10, v%d" % (vT4, vT4))
    a("v_lshl_add_u32 v%d, v%d, 4, v%d" % (vOo, vT2, vT4))
    a("s_lshl_b32 s%d, s%d, 16" % (sT0, sMB))
    a("s_lshl_b32 s%d, s%d, 7" % (sT1, sNB))
    a("s_add_u32 s%d, s%d, s%d" % (sT0, sT0, sT1))
    for an in (0, 1):
        for q in range(4):
            c = an * 8 + q * 2
            a("v_xor_b32 v%d, %d, v%d" % (vT1, c * 16, vT0))
            for i in (0, 1):
                acc = ACC + (an * 2 + i) * 16 + 4 * q
                a("ds_write_b128 v%d, v[%d:%d] offset:%d" % (vT1, acc, acc + 3, i * 8192))
        a("s_waitcnt lgkmcnt(4)")
    a("s_waitcnt lgkmcnt(0)")
    a("s_barrier")
    FB = 32
    for w_ in range(8):
        if w_ == 7:
            a("s_waitcnt lgkmcnt(12)")
        lo, hi = (vR0, vR1) if w_ < 4 else (vR2, vR3)
        a("ds_read_b128 v[%d:%d], v%d offset:%d" % (FB + 8 * w_, FB + 8 * w_ + 3, lo, (w_ & 3) * 16384))
        a("ds_read_b128 v[%d:%d], v%d offset:%d" % (FB + 8 * w_ + 4, FB + 8 * w_ + 7, hi, (w_ & 3) * 16384))
    for w_ in range(1, 8):
        a("s_waitcnt lgkmcnt(%d)" % (2 * (7 - w_)))
        for r in range(8):
            a("v_add_f32 v%d, v%d, v%d" % (FB + r, FB + r, FB + 8 * w_ + r))
    for j in range(4):
        a("v_cvt_pk_bf16_f32 v%d, v%d, v%d" % (FB + 8 + j, FB + 2 * j, FB + 2 * j + 1))
    a("buffer_store_dwordx4 v[%d:%d], v%d, s[%d:%d], s%d offen" % (FB + 8, FB + 11, vOo, SOUT, SOUT + 3, sT0))
    if DIAG:
        a("s_waitcnt vmcnt(0)")
        a("s_memrealtime s[84:85]")
        a("s_waitcnt lgkmcnt(0)")
        a("s_mov_b32 s94, s84")
        a("s_not_b32 s95, s88")
        a("v_mov_b32 v2, 0")
        a("s_mov_b64 exec, 1")
        for i, sreg in enumerate((95, 88, 89, 90, 91, 92, 93, 94)):
            a("v_mov_b32 v3, s%d" % sreg)
            a("buffer_atomic_umax v3, v2, s[%d:%d], 0 offen offset:%d sc1" % (SDBG, SDBG + 3, 4 * i))
            a("s_nop 1")
    if PROF:
        a("s_waitcnt vmcnt(0)")
        stamp("end")
        a("s_memrealtime s[98:99]")
        a("s_waitcnt lgkmcnt(0)")
        a("v_writelane_b32 v208, s98, 62")
        a("v_writelane_b32 v208, s100, 63")
        a("s_lshl_b32 s82, s2, 3")
        a("s_add_u32 s82, s82, s%d" % sW)
        a("s_lshl_b32 s82, s82, 8")
        a("s_add_u32 s82, s82, %d" % WS_PROF)
        a("v_lshlrev_b32 v2, 2, v0")
        a("buffer_store_dword v208, v2, s[%d:%d], s82 offen" % (SWS, SWS + 3))
        open("stamps.txt", "w").write(" ".join(stamp_names))
    a.label("L_END")
    a("s_endpgm")
    kernel_desc(a, name, 216 if PROF else 208, 102)
    return "; @launch grid=(256,1,1) block=(512,1,1) lds=%d" % LDS_BYTES


def main():
    out = sys.argv[1] if len(sys.argv) > 1 else "cdna_kernels/%s.s" % NAME
    a = Asm()
    a.raw(".amdgcn_target \"amdgcn-amd-amdhsa--gfx950\"")
    launch = gen(a)
    hdr = ["; generated by work/gen2.py (hand-designed kernel, laid out by script)", launch]
    open(out, "w").write("\n".join(hdr) + "\n" + a.text())


if __name__ == "__main__":
    main()
```

```python
import sys, math, os
from gen import Asm, f32bits, kernel_begin, kernel_desc, srd, wave_reduce, MFMA, NAME, QSCALE

PROF = int(os.environ.get("PROF", "0"))
PRIO = int(os.environ.get("PRIO", "1"))
TOUCH = int(os.environ.get("TOUCH", "1"))
HPRIO = int(os.environ.get("HPRIO", "0"))

WS_AF = 2 << 20
WS_KV = 0
WS_G = 0x40000
WS_KFL = 0x50000
WS_HFL = 0x60000
WS_PROF = 32 << 20
WS_SIZE = 268435456
KVBLK = 2048
SPIN_MAX = 1 << 14

BUFSZ = 49152
PB = {2: 0, 0: BUFSZ, 1: 2 * BUFSZ}
OX, OWG, OWU, OWQ = 0, 16384, 30720, 45056
L_TOP = 3 * BUFSZ
L_G8 = L_TOP
L_KMAX = L_TOP + 64
L_GROW = L_TOP + 1024
L_QX = L_TOP + 8192
L_SCR = 131072
LDS_BYTES = 163840
NBKV = 3


def gen(a):
    name = NAME + "_kernel"
    kernel_begin(a, name)
    sW, sMT, sNT = 3, 4, 5
    sT0, sT1, sT2, sT3 = 6, 7, 8, 9
    sStepA, sKV, sRB, sE = 10, 11, 12, 13
    sMB, sNB = 14, 15
    P = dict(x=16, wq=18, wk=20, wv=22, wo=24, wg=28, wu=30, wd=32, gw=34, out=36, dbg=38, ws=40)
    SX, SA, SB, SWS, SE, SDBG, SC = 44, 48, 52, 56, 60, 64, 68
    SOUT = 44
    sH = 72
    sM0x, sM0w, sScr = 73, 74, 75
    sVm = 76
    sOffA, sOffB = 78, 79
    sStepB = 80
    sIt, sSkip = 82, 83
    sSpin, sKoff = 26, 27
    sSlot = 42
    sOffC, sOffD = 86, 87
    stamp_names = {"M": [], "H": []}
    role = ["M"]

    def stamp(label):
        if not PROF:
            return
        lst = stamp_names[role[0]]
        idx = len(lst)
        lst.append(str(label))
        a("s_memtime s[84:85]")
        if label in ("bar0", "Bq", "b3") and role[0] == "M":
            a("s_memrealtime s[98:99]")
        a("s_waitcnt lgkmcnt(0)")
        a("v_writelane_b32 v167, s84, %d" % idx)
        if label in ("bar0", "Bq", "b3") and role[0] == "M":
            a("v_writelane_b32 v167, s98, %d" % {"bar0": 59, "Bq": 60, "b3": 61}[label])

    def prof_flush():
        if not PROF:
            return
        a("s_waitcnt vmcnt(0)")
        stamp("end")
        a("s_memrealtime s[98:99]")
        a("s_waitcnt lgkmcnt(0)")
        a("v_writelane_b32 v167, s98, 62")
        a("v_writelane_b32 v167, s88, 63")
        a("s_mul_i32 s82, s2, 12")
        a("s_add_u32 s82, s82, s%d" % sW)
        a("s_lshl_b32 s82, s82, 8")
        a("s_add_u32 s82, s82, %d" % WS_PROF)
        a("v_lshlrev_b32 v2, 2, v0")
        a("buffer_store_dword v167, v2, s[%d:%d], s82 offen" % (SWS, SWS + 3))

    def emit(lst):
        for ins in lst:
            a(ins)

    def spin_tail(lbl_end, sleep=1):
        a("s_add_u32 s%d, s%d, 1" % (sSpin, sSpin))
        a("s_cmp_ge_u32 s%d, %d" % (sSpin, SPIN_MAX))
        a("s_cbranch_scc1 %s" % lbl_end)
        a("s_sleep %d" % sleep)

    vL16 = 1
    vT0, vT1, vT2, vT3, vT4 = 21, 22, 23, 24, 25

    a("s_cmp_ge_u32 s2, 256")
    a("s_cbranch_scc1 L_END")
    a("s_load_dwordx16 s[16:31], s[0:1], 0")
    a("s_load_dwordx8 s[32:39], s[0:1], 64")
    a("s_load_dwordx2 s[40:41], s[0:1], 96")
    a("s_memrealtime s[88:89]")
    if PROF:
        a("s_memtime s[84:85]")
        a("s_waitcnt lgkmcnt(0)")
        a("v_writelane_b32 v167, s84, 0")
        stamp_names["M"].append("start")
        stamp_names["H"].append("start")
    a("v_lshrrev_b32 v1, 6, v0")
    a("v_and_b32 v0, 63, v0")
    a("v_readfirstlane_b32 s%d, v1" % sW)
    a("s_and_b32 s%d, s2, 7" % sT0)
    a("s_lshr_b32 s%d, s2, 3" % sT1)
    a("s_and_b32 s%d, s%d, 1" % (sMT, sT0))
    a("s_lshl_b32 s%d, s%d, 3" % (sMT, sMT))
    a("s_and_b32 s%d, s%d, 7" % (sT2, sT1))
    a("s_add_u32 s%d, s%d, s%d" % (sMT, sMT, sT2))
    a("s_lshr_b32 s%d, s%d, 1" % (sNT, sT0))
    a("s_lshl_b32 s%d, s%d, 2" % (sNT, sNT))
    a("s_lshr_b32 s%d, s%d, 3" % (sT2, sT1))
    a("s_add_u32 s%d, s%d, s%d" % (sNT, sNT, sT2))
    a("s_lshl_b32 s%d, s%d, 2" % (sMB, sT0))
    a("s_and_b32 s%d, s%d, 3" % (sT2, sT1))
    a("s_add_u32 s%d, s%d, s%d" % (sMB, sMB, sT2))
    a("s_lshr_b32 s%d, s%d, 2" % (sNB, sT1))
    a("v_lshlrev_b32 v%d, 4, v0" % vL16)
    a("s_cmp_ge_u32 s%d, 8" % sW)
    a("s_cbranch_scc1 L_HELPER")

    vXr = [8, 9, 10, 11]
    vW0 = 12
    vW1 = list(range(13, 21))
    vGq = 26
    vGm = [28, 30]
    FR = [32, 48]
    ACC = 64
    vKa, vVa = 2, 3
    vQ = 4
    vKF = [8, 12]
    vS = [32, 48]
    vVF = [64, 72]
    vP = 80
    vO = 128
    vC = 144
    NB = 4
    b0 = PB[0]
    if TOUCH:
        a("s_cmp_ge_u32 s%d, 4" % sW)
        a("s_cbranch_scc1 L_NOTOUCH")
        a("s_waitcnt lgkmcnt(0)")
        a("s_mov_b32 s%d, s%d" % (SE, P['x']))
        a("s_mov_b32 s%d, s%d" % (SE + 1, P['x'] + 1))
        for k, pp in ((1, P['wg']), (2, P['wu']), (3, P['wq'])):
            a("s_cmp_eq_u32 s%d, %d" % (sW, k))
            a("s_cselect_b32 s%d, s%d, s%d" % (SE, pp, SE))
            a("s_cselect_b32 s%d, s%d, s%d" % (SE + 1, pp + 1, SE + 1))
        a("s_mov_b32 s%d, 1024" % (SE + 2))
        a("s_mov_b32 s%d, 0x20000" % (SE + 3))
        a("v_mov_b32 v2, 0")
        a("s_mov_b64 exec, 1")
        a("buffer_load_dword v160, v2, s[%d:%d], 0 offen" % (SE, SE + 3))
        a("s_mov_b64 exec, -1")
        a.label("L_NOTOUCH")
    a("s_lshr_b32 s%d, s%d, 2" % (sT0, sW))
    a("s_lshl_b32 s%d, s%d, 13" % (sT0, sT0))
    a("s_add_u32 s%d, s%d, %d" % (sT0, sT0, b0 + OX))
    a("v_and_b32 v%d, 31, v0" % vT0)
    a("v_lshlrev_b32 v%d, 7, v%d" % (vT0, vT0))
    a("v_lshrrev_b32 v%d, 5, v0" % vT1)
    a("v_bfe_u32 v%d, v0, 1, 3" % vT3)
    a("v_xor_b32 v%d, v%d, v%d" % (vT3, vT3, vT1))
    a("v_lshl_add_u32 v%d, v%d, 4, v%d" % (vT0, vT3, vT0))
    for ks in range(4):
        a("v_xor_b32 v%d, %d, v%d" % (vT2, ks * 32, vT0))
        a("v_add_u32 v%d, s%d, v%d" % (vXr[ks], sT0, vT2))
    a("v_bfe_u32 v%d, v0, 2, 2" % vT2)
    a("v_lshl_add_u32 v%d, v%d, 3, v%d" % (vT3, vT1, vT2))
    a("v_and_b32 v%d, 3, v0" % vT2)
    a("v_bfe_u32 v%d, v0, 4, 1" % vT4)
    a("v_mul_u32_u24 v%d, 0xe0, v%d" % (vT0, vT3))
    a("v_lshl_add_u32 v%d, v%d, 3, v%d" % (vT0, vT2, vT0))
    a("s_and_b32 s%d, s%d, 3" % (sT1, sW))
    a("s_lshl_b32 s%d, s%d, 6" % (sT0, sT1))
    a("s_add_u32 s%d, s%d, %d" % (sT0, sT0, b0 + OWG))
    a("s_movk_i32 s%d, %d" % (sT2, OWU - OWG - 96))
    a("s_cmp_lt_u32 s%d, 2" % sT1)
    a("s_cselect_b32 s%d, %d, s%d" % (sT3, OWU - OWG + 128, sT2))
    a("v_mul_u32_u24 v%d, s%d, v%d" % (vT1, sT3, vT4))
    a("v_add3_u32 v%d, v%d, v%d, s%d" % (vW0, vT0, vT1, sT0))
    a("s_cmp_eq_u32 s%d, 3" % sT1)
    a("s_cbranch_scc1 L_W1_Q")
    a("s_cmp_lt_u32 s%d, 1" % sT1)
    a("s_cselect_b32 s%d, %d, s%d" % (sT3, OWU - OWG + 128, sT2))
    a("v_mul_u32_u24 v%d, s%d, v%d" % (vT1, sT3, vT4))
    a("v_add3_u32 v%d, v%d, v%d, s%d" % (vT0, vT0, vT1, sT0))
    for q in range(8):
        ks, u = q >> 1, q & 1
        a("v_add_u32 v%d, %d, v%d" % (vW1[q], 32 + (16 * ks + 4 * u) * 224, vT0))
    a("s_branch L_W1_E")
    a.label("L_W1_Q")
    a("v_lshlrev_b32 v%d, 6, v%d" % (vT0, vT3))
    a("v_lshl_add_u32 v%d, v%d, 3, v%d" % (vT0, vT2, vT0))
    a("v_lshl_add_u32 v%d, v%d, 5, v%d" % (vT0, vT4, vT0))
    for q in range(8):
        ks, u = q >> 1, q & 1
        a("v_add_u32 v%d, %d, v%d" % (vW1[q], b0 + OWQ + (16 * ks + 4 * u) * 64, vT0))
    a.label("L_W1_E")
    for r in list(range(vC, vC + 16)) + list(range(vO, vO + 16)):
        a("v_mov_b32 v%d, 0" % r)
    a("v_mov_b32 v%d, v%d" % (vKa, vL16))
    a("v_lshrrev_b32 v%d, 5, v0" % vT0)
    a("v_and_b32 v%d, 15, v0" % vT1)
    a("v_lshlrev_b32 v%d, 8, v%d" % (vT2, vT0))
    a("v_lshl_add_u32 v%d, v%d, 4, v%d" % (vT2, vT1, vT2))
    a("v_add_u32 v%d, 1024, v%d" % (vVa, vT2))
    a("v_and_b32 v%d, 27, v0" % vT0)
    a("v_cmp_eq_u32 vcc, 16, v%d" % vT0)
    a("v_mov_b32 v%d, 0x3f803f80" % vT0)
    a("s_mov_b32 s%d, 0x0000ffff" % sVm)
    a("s_mov_b32 s%d, 0x0000ffff" % (sVm + 1))
    a("v_cndmask_b32 v27, 0, v%d, vcc" % vT0)
    a("v_and_b32 v%d, 31, v0" % vT0)
    a("s_lshr_b32 s%d, s%d, 2" % (sT0, sW))
    a("s_lshl_b32 s%d, s%d, 8" % (sT0, sT0))
    a("s_add_u32 s%d, s%d, %d" % (sT0, sT0, L_GROW))
    a("v_lshl_add_u32 v4, v%d, 2, s%d" % (vT0, sT0))
    a("s_lshl_b32 s%d, s%d, 10" % (sT0, sW))
    a("s_add_u32 s%d, s%d, %d" % (sT0, sT0, L_QX))
    a("v_add_u32 v5, s%d, v%d" % (sT0, vL16))
    a("v_mov_b32 v6, %d" % L_KMAX)
    a("s_lshr_b32 s%d, s%d, 2" % (sT0, sW))
    a("s_lshl_b32 s%d, s%d, 1" % (sT0, sT0))
    a("s_lshl_b32 s%d, s%d, 2" % (sT1, sMT))
    a("s_add_u32 s%d, s%d, s%d" % (sT0, sT0, sT1))
    a("s_mul_i32 s%d, s%d, 144" % (sT0, sT0))
    a("s_mul_i32 s%d, s%d, 7" % (sT1, sNT))
    a("s_add_u32 s%d, s%d, s%d" % (sT0, sT0, sT1))
    a("s_and_b32 s%d, s%d, 3" % (sT2, sW))
    a("s_lshl_b32 s%d, s%d, 1" % (sT1, sT2))
    a("s_add_u32 s%d, s%d, s%d" % (sT0, sT0, sT1))
    a("s_lshl_b32 s%d, s%d, 10" % (sT0, sT0))
    a("s_add_u32 s%d, s%d, %d" % (sOffA, sT0, WS_AF + 32 * 1024))
    a("s_add_u32 s%d, s%d, %d" % (sOffB, sOffA, 144 * 1024))
    a("s_lshr_b32 s%d, s%d, 1" % (sT0, sW))
    a("s_lshl_b32 s%d, s%d, 2" % (sT1, sMT))
    a("s_add_u32 s%d, s%d, s%d" % (sT0, sT0, sT1))
    a("s_mul_i32 s%d, s%d, 144" % (sT0, sT0))
    a("s_lshl_b32 s%d, s%d, 1" % (sT1, sNT))
    a("s_add_u32 s%d, s%d, s%d" % (sT0, sT0, sT1))
    a("s_and_b32 s%d, s%d, 1" % (sT1, sW))
    a("s_add_u32 s%d, s%d, s%d" % (sT0, sT0, sT1))
    a("s_lshl_b32 s%d, s%d, 10" % (sT0, sT0))
    a("s_add_u32 s%d, s%d, %d" % (sOffC, sT0, WS_AF))
    a("s_waitcnt lgkmcnt(0)")
    srd(a, SWS, P['ws'], P['ws'] + 1, WS_SIZE)
    srd(a, SOUT, P['out'], P['out'] + 1, 2097152)
    SXm = 48
    mGX, mGW = 128, 132
    srd(a, SXm, P['x'], P['x'] + 1, 2097152)
    srd(a, SE, P['gw'], P['gw'] + 1, 1024)
    a("s_lshl_b32 s%d, s%d, 4" % (sT0, sMT))
    a("s_add_u32 s%d, s%d, s%d" % (sT0, sT0, sNT))
    a("s_lshl_b32 s%d, s%d, 3" % (sT0, sT0))
    a("s_add_u32 s%d, s%d, s%d" % (sT0, sT0, sW))
    a("s_lshl_b32 s%d, s%d, 10" % (sT0, sT0))
    a("s_lshl_b32 s%d, s%d, 2" % (sT1, sW))
    a("s_add_u32 s%d, s%d, %d" % (sT1, sT1, L_G8))
    a("v_mov_b32 v%d, s%d" % (vGq, sT1))

    def g_loads():
        a("buffer_load_dwordx4 v[%d:%d], v%d, s[%d:%d], s%d offen" % (mGX, mGX + 3, vL16, SXm, SXm + 3, sT0))
        a("buffer_load_dwordx4 v[%d:%d], v%d, s[%d:%d], 0 offen" % (mGW, mGW + 3, vL16, SE, SE + 3))

    def g_job():
        a("s_waitcnt vmcnt(0)")
        a("v_mov_b32 v%d, 0" % vT0)
        for j in range(4):
            a("v_dot2_f32_bf16 v%d, v%d, v%d, v%d" % (vT0, mGX + j, mGW + j, vT0))
        for r in range(8):
            a("v_mov_b32 v%d, 0" % (vO + r))
        a("v_mov_b32 v%d, v%d" % (vT1, vT0))
        wave_reduce(a, "v_add_f32", vT1)
        a("v_mul_f32 v%d, 0x%08x, v%d" % (vT1, f32bits(-math.log2(math.e)), vT1))
        a("v_exp_f32 v%d, v%d" % (vT1, vT1))
        a.nop(1)
        a("v_add_f32 v%d, 1.0, v%d" % (vT1, vT1))
        a("v_rcp_f32 v%d, v%d" % (vT1, vT1))
        a("s_mov_b32 exec_lo, 0")
        a("s_mov_b32 exec_hi, 0x80000000")
        a("ds_write_b32 v%d, v%d" % (vGq, vT1))
        a("s_mov_b64 exec, -1")

    def rd_list(ks, fs):
        f = FR[fs]
        return [
            "ds_read_b128 v[%d:%d], v%d" % (f, f + 3, vXr[ks]),
            "ds_read_b64_tr_b16 v[%d:%d], v%d offset:%d" % (f + 8, f + 9, vW0, (16 * ks) * 224),
            "ds_read_b64_tr_b16 v[%d:%d], v%d offset:%d" % (f + 10, f + 11, vW0, (16 * ks + 4) * 224),
            "ds_read_b128 v[%d:%d], v%d offset:4096" % (f + 4, f + 7, vXr[ks]),
            "ds_read_b64_tr_b16 v[%d:%d], v%d" % (f + 12, f + 13, vW1[2 * ks]),
            "ds_read_b64_tr_b16 v[%d:%d], v%d" % (f + 14, f + 15, vW1[2 * ks + 1]),
        ]

    def mfmas(fs, first):
        f = FR[fs]
        out = []
        for an in (0, 1):
            for i in (0, 1):
                acc = ACC + (an * 2 + i) * 16
                c = "0" if first else "v[%d:%d]" % (acc, acc + 15)
                out.append("%s v[%d:%d], v[%d:%d], v[%d:%d], %s" % (MFMA, acc, acc + 15, f + 8 + an * 4, f + 11 + an * 4,
                                                                   f + i * 4, f + i * 4 + 3, c))
        return out

    def adv(s, regs):
        d = PB[(s + 1) % 3] - PB[s % 3]
        return ["v_add_u32 v%d, %d, v%d" % (r, d, r) if d >= 0 else "v_subrev_u32 v%d, %d, v%d" % (r, -d, r) for r in regs]

    g_loads()
    stamp("pro")
    a("s_barrier")
    stamp("bar0")
    emit(rd_list(0, 0))
    fs = 0
    for s in range(8):
        for ks in range(4):
            ms = mfmas(fs, s == 0 and ks == 0)
            if ks < 3:
                nxt = rd_list(ks + 1, fs ^ 1)
                for q in range(4):
                    if q < 3:
                        a("s_waitcnt lgkmcnt(%d)" % (3 if q == 0 else 4))
                    a(ms[q])
                    emit(nxt[2 * q:2 * q + 2])
                    if s < 7 and q == 3:
                        regs = [vXr[ks], vW1[2 * ks], vW1[2 * ks + 1]]
                        if ks == 2:
                            regs += [vXr[3], vW1[6], vW1[7], vW0]
                        emit(adv(s, regs))
            else:
                if s < 7:
                    a("s_waitcnt lgkmcnt(3)")
                    a(ms[0])
                    a("s_waitcnt lgkmcnt(0)")
                    stamp("s%dv" % s)
                    a("s_barrier")
                    stamp("s%db" % s)
                    nxt = rd_list(0, fs ^ 1)
                    emit(nxt[0:3])
                    a(ms[1])
                    emit(nxt[3:6])
                    a(ms[2])
                    a(ms[3])
                    if s == 1:
                        g_job()
                else:
                    a("ds_read_b32 v%d, v4" % vGm[0])
                    a("ds_read_b32 v%d, v4 offset:128" % vGm[1])
                    a("s_waitcnt lgkmcnt(5)")
                    a(ms[0])
                    a("s_waitcnt lgkmcnt(2)")
                    emit(ms[1:])
            fs ^= 1
    stamp("g1end")
    a("s_bitcmp1_b32 s%d, 1" % sW)
    a("s_cselect_b64 vcc, -1, 0")
    a("v_mov_b32 v8, -1")
    a("v_mov_b32 v9, -1")
    a("v_mov_b32 v10, -1")
    a("v_mov_b32 v11, -1")
    a("s_waitcnt lgkmcnt(0)")
    a("buffer_store_dwordx4 v[8:11], v%d, s[%d:%d], s%d offen sc1" % (vL16, SWS, SWS + 3, sOffC))
    a("v_cndmask_b32 v%d, v%d, v%d, vcc" % (vGq, vGm[0], vGm[1]))
    a("v_sub_f32 v%d, 1.0, v%d" % (vGm[0], vGm[0]))
    a("v_sub_f32 v%d, 1.0, v%d" % (vGm[1], vGm[1]))
    a("v_mov_b32 v%d, v%d" % (vGm[0] + 1, vGm[0]))
    a("v_mov_b32 v%d, v%d" % (vGm[1] + 1, vGm[1]))

    def h_tile(an, i, d):
        t = ACC + (an * 2 + i) * 16
        for r in range(0, 8, 2):
            a("v_pk_mul_f32 v[%d:%d], v[%d:%d], v[%d:%d]" % (t + r, t + r + 1, t + r, t + r + 1, t + 8 + r, t + 9 + r))
        for r in range(0, 8, 2):
            a("v_pk_mul_f32 v[%d:%d], v[%d:%d], v[%d:%d]" % (t + r, t + r + 1, t + r, t + r + 1, vGm[i], vGm[i] + 1))
        for j in range(4):
            a("v_cvt_pk_bf16_f32 v%d, v%d, v%d" % (d + j, t + 2 * j, t + 2 * j + 1))
        a("buffer_store_dwordx4 v[%d:%d], v%d, s[%d:%d], s%d offen offset:%d sc1" % (d, d + 3, vL16, SWS, SWS + 3,
                                                                                    sOffA if i == 0 else sOffB, an * 1024))

    a("s_cmp_eq_u32 s%d, 3" % sT2)
    a("s_cbranch_scc1 L_EPI_Q")
    h_tile(1, 0, ACC + 40)
    h_tile(1, 1, ACC + 56)
    a("s_branch L_EPI_C")
    a.label("L_EPI_Q")
    a("v_mov_b32 v24, 0x%08x" % f32bits(QSCALE))
    a("v_mov_b32 v25, 0x%08x" % f32bits(QSCALE))
    a("s_lshr_b32 s%d, s%d, 2" % (sT2, sW))
    a("s_lshl_b32 s%d, s%d, 12" % (sT2, sT2))
    a("s_add_u32 s%d, s%d, %d" % (sT2, sT2, L_QX))
    a("v_add_u32 v%d, s%d, v%d" % (vT0, sT2, vL16))
    for i in (0, 1):
        t = ACC + (2 + i) * 16
        for r in range(0, 16, 2):
            a("v_pk_mul_f32 v[%d:%d], v[%d:%d], v[24:25]" % (t + r, t + r + 1, t + r, t + r + 1))
        d = FR[0] + 8 * i
        for j in range(8):
            a("v_cvt_pk_bf16_f32 v%d, v%d, v%d" % (d + j, t + 2 * j, t + 2 * j + 1))
        a("ds_write_b128 v%d, v[%d:%d] offset:%d" % (vT0, d, d + 3, i * 2048))
        a("ds_write_b128 v%d, v[%d:%d] offset:%d" % (vT0, d + 4, d + 7, i * 2048 + 1024))
    a.label("L_EPI_C")
    h_tile(0, 0, ACC + 44)
    h_tile(0, 1, ACC + 60)
    for r in range(16):
        a("v_mov_b32 v%d, v27" % (vVF[0] + r))
    a("v_mov_b32 v%d, v5" % vT0)
    a("v_mov_b32 v%d, v6" % vT1)
    a("s_waitcnt lgkmcnt(0)")
    a("s_barrier")
    stamp("Bq")
    a("ds_read_b128 v[%d:%d], v%d" % (vQ, vQ + 3, vT0))
    a("ds_read_b32 v%d, v%d" % (vT4, vT1))

    def rdK(buf, off):
        a("ds_read_b128 v[%d:%d], v%d offset:%d" % (vKF[buf], vKF[buf] + 3, vKa, off))

    def rdV(buf, off):
        a("s_mov_b64 exec, s[%d:%d]" % (sVm, sVm + 1))
        a("ds_read_b128 v[%d:%d], v%d offset:%d" % (vVF[buf], vVF[buf] + 3, vVa, off))
        a("ds_read_b128 v[%d:%d], v%d offset:%d" % (vVF[buf] + 4, vVF[buf] + 7, vVa, off + 512))
        a("s_mov_b64 exec, -1")

    def mS(sbuf, kbuf):
        a("%s v[%d:%d], v[%d:%d], v[%d:%d], v[%d:%d]" % (MFMA, vS[sbuf], vS[sbuf] + 15, vKF[kbuf], vKF[kbuf] + 3,
                                                        vQ, vQ + 3, vC, vC + 15))

    def mPV(vbuf, t):
        a("%s v[%d:%d], v[%d:%d], v[%d:%d], v[%d:%d]" % (MFMA, vO, vO + 15, vVF[vbuf] + 4 * t, vVF[vbuf] + 4 * t + 3,
                                                        vP + 4 * t, vP + 4 * t + 3, vO, vO + 15))

    def E(sb, r):
        a("v_exp_f32 v%d, v%d" % (vS[sb] + r, vS[sb] + r))

    def C(sb, j):
        a("v_cvt_pk_bf16_f32 v%d, v%d, v%d" % (vP + j, vS[sb] + 2 * j, vS[sb] + 2 * j + 1))

    rdK(0, 0)
    rdK(1, KVBLK)
    rdV(0, 0)
    a("s_waitcnt lgkmcnt(4)")
    a("v_mov_b32 v%d, 0" % vT3)
    for j in range(4):
        a("v_dot2_f32_bf16 v%d, v%d, v%d, v%d" % (vT3, vQ + j, vQ + j, vT3))
    a("s_mov_b32 s%d, 0x%08x" % (sT1, f32bits(900.0)))
    a("s_mov_b32 s%d, %d" % (sSkip, NBKV))
    a("s_mov_b32 s%d, 0" % sIt)
    a.nop(1)
    a("v_mov_b32 v%d, v%d" % (vT2, vT3))
    a.nop(2)
    a("v_permlane32_swap_b32 v%d, v%d" % (vT3, vT2))
    a.nop(1)
    a("v_add_f32 v%d, v%d, v%d" % (vT3, vT3, vT2))
    a("v_mul_f32 v%d, v%d, v%d" % (vT3, vT4, vT3))
    a("v_cmp_nge_f32 vcc, s%d, v%d" % (sT1, vT3))
    a("s_cmp_eq_u64 vcc, 0")
    a("s_cbranch_scc1 L_FAST")
    a("s_waitcnt vmcnt(0)")
    a("s_barrier")
    a("s_mov_b32 s%d, 99" % sSkip)
    a("v_mov_b32 v%d, 0xff800000" % vT0)
    a("v_mov_b32 v%d, v%d" % (vT1, vL16))
    a.label("L_MAXLOOP")
    a("ds_read_b128 v[%d:%d], v%d" % (vP, vP + 3, vT1))
    a("v_add_u32 v%d, %d, v%d" % (vT1, KVBLK, vT1))
    a("s_waitcnt lgkmcnt(0)")
    a("%s v[%d:%d], v[%d:%d], v[%d:%d], 0" % (MFMA, vS[0], vS[0] + 15, vP, vP + 3, vQ, vQ + 3))
    a.nop(16)
    for j in range(8):
        a("v_max3_f32 v%d, v%d, v%d, v%d" % (vT0, vS[0] + 2 * j, vS[0] + 2 * j + 1, vT0))
    a("s_add_u32 s%d, s%d, 1" % (sIt, sIt))
    a("s_cmp_lt_u32 s%d, 64" % sIt)
    a("s_cbranch_scc1 L_MAXLOOP")
    a("v_mov_b32 v%d, v%d" % (vT1, vT0))
    a("s_mov_b32 s%d, 0" % sIt)
    a.nop(1)
    a("v_permlane32_swap_b32 v%d, v%d" % (vT0, vT1))
    a.nop(2)
    a("v_max_f32 v%d, v%d, v%d" % (vT0, vT0, vT1))
    for r in range(16):
        a("v_sub_f32 v%d, 0, v%d" % (vC + r, vT0))
    a.label("L_FAST")
    a("s_waitcnt lgkmcnt(3)")
    a.nop(1)
    mS(0, 0)
    a.nop(12)
    a.label("L_LOOP")
    for bb in range(NB):
        p = bb & 1
        off = bb * KVBLK
        if PRIO and bb == 0:
            a("s_setprio 1")
        if PRIO and bb == 2:
            a("s_setprio 0")
        for r in range(6):
            E(p, r)
        C(p, 0)
        C(p, 1)
        a("s_waitcnt lgkmcnt(2)")
        mS(p ^ 1, p ^ 1)
        rdK(p, off + 2 * KVBLK)
        E(p, 6)
        E(p, 7)
        C(p, 2)
        E(p, 8)
        C(p, 3)
        E(p, 9)
        E(p, 10)
        E(p, 11)
        a("s_waitcnt lgkmcnt(1)")
        mPV(p, 0)
        C(p, 4)
        C(p, 5)
        for r in range(12, 16):
            E(p, r)
        C(p, 6)
        C(p, 7)
        rdV(p ^ 1, off + KVBLK)
        mPV(p, 1)
    a("v_add_u32 v%d, %d, v%d" % (vKa, NB * KVBLK, vKa))
    a("v_add_u32 v%d, %d, v%d" % (vVa, NB * KVBLK, vVa))
    a("s_add_u32 s%d, s%d, 1" % (sIt, sIt))
    a("s_cmp_lg_u32 s%d, s%d" % (sIt, sSkip))
    a("s_cbranch_scc1 L_NOBKV")
    a("s_waitcnt vmcnt(0)")
    a("s_barrier")
    stamp("bkv")
    a.label("L_NOBKV")
    a("s_cmp_lt_u32 s%d, 16" % sIt)
    a("s_cbranch_scc1 L_LOOP")
    stamp("attn")
    a.nop(6)
    a("v_rcp_f32 v%d, v%d" % (vT0, vO + 8))
    a("v_lshrrev_b32 v%d, 3, v0" % vT4)
    a("v_mul_f32 v%d, v%d, v%d" % (vT0, vT0, vGq))
    for r in range(8):
        a("v_mul_f32 v%d, v%d, v%d" % (vO + r, vO + r, vT0))
    for j in range(4):
        a("v_cvt_pk_bf16_f32 v%d, v%d, v%d" % (vO + 8 + j, vO + 2 * j, vO + 2 * j + 1))
    a("buffer_store_dwordx4 v[%d:%d], v%d, s[%d:%d], s%d offen sc1" % (vO + 8, vO + 11, vL16, SWS, SWS + 3, sOffC))
    a("s_waitcnt lgkmcnt(0)")
    a("s_barrier")
    stamp("b3")
    vR0, vR1, vOo = 8, 9, 10
    a("s_lshl_b32 s%d, s%d, 3" % (sT0, sW))
    a("v_add_u32 v%d, s%d, v%d" % (vT4, sT0, vT4))
    a("v_and_b32 v%d, 15, v%d" % (vT1, vT4))
    a("v_and_b32 v%d, 7, v0" % vT2)
    a("v_lshlrev_b32 v%d, 1, v%d" % (vT3, vT2))
    a("v_xor_b32 v%d, v%d, v%d" % (vT1, vT1, vT3))
    a("v_lshlrev_b32 v%d, 8, v%d" % (vT3, vT4))
    a("v_lshl_add_u32 v%d, v%d, 4, v%d" % (vR0, vT1, vT3))
    a("v_xor_b32 v%d, 16, v%d" % (vR1, vR0))
    a("v_lshlrev_b32 v%d, 10, v%d" % (vT4, vT4))
    a("v_lshl_add_u32 v%d, v%d, 4, v%d" % (vOo, vT2, vT4))
    a("s_lshl_b32 s%d, s%d, 16" % (sT0, sMB))
    a("s_lshl_b32 s%d, s%d, 7" % (sT1, sNB))
    a("s_add_u32 s%d, s%d, s%d" % (sT0, sT0, sT1))
    a("s_barrier")
    stamp("b4")
    FB = 32
    for k_ in range(4):
        a("ds_read_b128 v[%d:%d], v%d offset:%d" % (FB + 8 * k_, FB + 8 * k_ + 3, vR0, k_ * 16384))
        a("ds_read_b128 v[%d:%d], v%d offset:%d" % (FB + 8 * k_ + 4, FB + 8 * k_ + 7, vR1, k_ * 16384))
    for k_ in range(1, 4):
        a("s_waitcnt lgkmcnt(%d)" % (2 * (3 - k_)))
        for r in range(8):
            a("v_add_f32 v%d, v%d, v%d" % (FB + r, FB + r, FB + 8 * k_ + r))
    for j in range(4):
        a("v_cvt_pk_bf16_f32 v%d, v%d, v%d" % (FB + 8 + j, FB + 2 * j, FB + 2 * j + 1))
    a("buffer_store_dwordx4 v[%d:%d], v%d, s[%d:%d], s%d offen" % (FB + 8, FB + 11, vOo, SOUT, SOUT + 3, sT0))
    prof_flush()
    a("s_endpgm")

    role[0] = "H"
    a.label("L_HELPER")
    vXd0, vXd1 = 2, 3
    vWd = list(range(4, 12))
    vEv = 12
    vPl = 14
    vKX = 32
    vKA = 96
    vGX = 112
    vGW = 120
    a("s_setprio 3")
    a("s_sub_u32 s%d, s%d, 8" % (sH, sW))
    a("s_lshl_b32 s%d, s%d, 12" % (sM0x, sH))
    a("s_lshl_b32 s%d, s%d, 13" % (sM0w, sH))
    a("s_lshl_b32 s%d, s%d, 7" % (sT0, sMT))
    a("s_lshl_b32 s%d, s%d, 5" % (sT1, sH))
    a("s_add_u32 s%d, s%d, s%d" % (sT0, sT0, sT1))
    a("v_lshrrev_b32 v%d, 3, v0" % vT0)
    a("v_add_u32 v%d, s%d, v%d" % (vT0, sT0, vT0))
    a("v_lshlrev_b32 v%d, 10, v%d" % (vT0, vT0))
    a("v_and_b32 v%d, 7, v0" % vT1)
    a("v_lshrrev_b32 v%d, 4, v0" % vT2)
    a("v_xor_b32 v%d, v%d, v%d" % (vT1, vT1, vT2))
    a("v_lshl_add_u32 v%d, v%d, 4, v%d" % (vXd0, vT1, vT0))
    a("v_xor_b32 v%d, 64, v%d" % (vXd1, vXd0))
    a("v_add_u32 v%d, 0x2000, v%d" % (vXd1, vXd1))
    a("s_mul_i32 s%d, s%d, 224" % (sT2, sNT))
    a("s_movk_i32 s%d, 4682" % sT3)
    for j in range(8):
        if j == 4:
            a("s_cmp_eq_u32 s%d, 3" % sH)
            a("s_cbranch_scc1 L_WD_Q")
        a("s_lshl_b32 s%d, s%d, 3" % (sT0, sH))
        a("s_add_u32 s%d, s%d, %d" % (sT0, sT0, j))
        a("s_sub_u32 s%d, s%d, 14" % (sT1, sT0))
        a("s_cmp_ge_u32 s%d, 14" % sT0)
        a("s_cselect_b32 s%d, s%d, s%d" % (sT0, sT1, sT0))
        a("s_cselect_b32 s%d, 6, 0" % sOffA)
        a("s_lshl_b32 s%d, s%d, 6" % (sT0, sT0))
        a("v_add_u32 v%d, s%d, v0" % (vT0, sT0))
        a("v_mul_u32_u24 v%d, s%d, v%d" % (vT1, sT3, vT0))
        a("v_lshrrev_b32 v%d, 16, v%d" % (vT1, vT1))
        a("v_mul_u32_u24 v%d, 14, v%d" % (vT2, vT1))
        a("v_sub_u32 v%d, v%d, v%d" % (vT0, vT0, vT2))
        a("v_add_u32 v%d, s%d, v%d" % (vT0, sOffA, vT0))
        a("v_subrev_u32 v%d, 14, v%d" % (vT2, vT0))
        a("v_min_u32 v%d, v%d, v%d" % (vT0, vT0, vT2))
        a("v_mul_u32_u24 v%d, 0xe00, v%d" % (vT1, vT1))
        a("v_lshl_add_u32 v%d, v%d, 4, v%d" % (vT0, vT0, vT1))
        a("v_add_u32 v%d, s%d, v%d" % (vWd[j], sT2, vT0))
    a("s_mov_b32 s%d, %d" % (sStepB, 64 * 3584))
    a("s_branch L_WD_E")
    a.label("L_WD_Q")
    a("s_lshl_b32 s%d, s%d, 6" % (sT2, sNT))
    a("v_lshrrev_b32 v%d, 2, v0" % vT0)
    a("v_and_b32 v%d, 3, v0" % vT1)
    a("v_lshlrev_b32 v%d, 10, v%d" % (vT0, vT0))
    a("v_lshl_add_u32 v%d, v%d, 4, v%d" % (vT0, vT1, vT0))
    a("v_add_u32 v%d, s%d, v%d" % (vWd[4], sT2, vT0))
    for j in range(5, 8):
        a("v_add_u32 v%d, %d, v%d" % (vWd[j], (j - 4) * 16384, vWd[4]))
    a("s_mov_b32 s%d, 65536" % sStepB)
    a.label("L_WD_E")
    a("s_waitcnt lgkmcnt(0)")
    stamp("karg")
    srd(a, SX, P['x'], P['x'] + 1, 2097152)
    for S, lim, q in ((SA, 2, False), (SB, 2, True), (SC, 1, True)):
        a("s_cmp_lt_u32 s%d, %d" % (sH, lim))
        a("s_cselect_b32 s%d, s%d, s%d" % (S, P['wg'], P['wu']))
        a("s_cselect_b32 s%d, s%d, s%d" % (S + 1, P['wg'] + 1, P['wu'] + 1))
        a("s_mov_b32 s%d, 0x1c0000" % (S + 2))
        if q:
            a("s_cmp_eq_u32 s%d, 3" % sH)
            a("s_cselect_b32 s%d, s%d, s%d" % (S, P['wq'], S))
            a("s_cselect_b32 s%d, s%d, s%d" % (S + 1, P['wq'] + 1, S + 1))
            a("s_cselect_b32 s%d, 0x80000, s%d" % (S + 2, S + 2))
        a("s_mov_b32 s%d, 0x20000" % (S + 3))

    def dma_stage(s):
        b = PB[s % 3]
        a("s_mov_b32 s%d, %d" % (sOffA, s * 64 * 3584))
        a("s_mul_i32 s%d, s%d, %d" % (sOffB, sStepB, s))
        for j in range(8):
            S = SA if j < 4 else (SB if j < 6 else SC)
            a("s_add_u32 m0, s%d, %d" % (sM0w, b + OWG + j * 1024))
            if j % 2 == 0:
                i = j // 2
                a("s_movk_i32 s%d, %d" % (sT0, s * 128 + (i >> 1) * 16384))
            else:
                a("s_nop 0")
            a("buffer_load_dwordx4 v%d, s[%d:%d], s%d offen lds" % (vWd[j], S, S + 3, sOffA if j < 4 else sOffB))
            if j % 2 == 0:
                a("s_add_u32 m0, s%d, %d" % (sM0x, b + OX + i * 1024))
                a("s_nop 0")
                a("buffer_load_dwordx4 v%d, s[%d:%d], s%d offen lds" % (vXd1 if i & 1 else vXd0, SX, SX + 3, sT0))

    def kv_dma(first, n):
        for j in range(n):
            off = (first + 4 * j) * 1024
            a("s_add_u32 m0, s%d, %d" % (sKoff, off))
            a("s_add_u32 s%d, s%d, %d" % (sOffA, sKoff, WS_KV + off))
            a("buffer_load_dwordx4 v%d, s[%d:%d], s%d offen sc1 lds" % (vL16, SWS, SWS + 3, sOffA))

    srd(a, SDBG, P['dbg'], P['dbg'] + 1, 256)
    a("s_cmp_lg_u32 s2, 0")
    a("s_cbranch_scc1 L_NOTAG")
    a("s_cmp_lg_u32 s%d, 3" % sH)
    a("s_cbranch_scc1 L_NOTAG")
    a("s_or_b32 s%d, s88, 1" % sT0)
    a("v_mov_b32 v%d, s%d" % (vT0, sT0))
    a("v_mov_b32 v%d, 0" % vT1)
    a("s_mov_b64 exec, 1")
    a("buffer_store_dword v%d, v%d, s[%d:%d], 0 offen sc1" % (vT0, vT1, SDBG, SDBG + 3))
    a("s_mov_b64 exec, -1")
    a.label("L_NOTAG")
    dma_stage(0)
    stamp("d0")
    dma_stage(1)
    stamp("d1")
    srd(a, SWS, P['ws'], P['ws'] + 1, WS_SIZE)
    a("s_lshl_b32 s%d, s%d, 10" % (sKoff, sH))
    a("s_lshl_b32 s%d, s%d, 4" % (sSlot, sMT))
    a("s_add_u32 s%d, s%d, s%d" % (sSlot, sSlot, sNT))
    a("s_lshl_b32 s%d, s%d, 7" % (sSlot, sSlot))
    a("s_and_b32 s%d, s%d, 3" % (sRB, sNT))
    a("s_lshr_b32 s%d, s%d, 2" % (sT0, sNT))
    a("s_add_u32 s%d, s%d, 1" % (sKV, sT0))
    a("s_cmp_ge_u32 s%d, 8" % sNT)
    a("s_cselect_b32 s%d, 0, s%d" % (sKV, sKV))
    a("s_cmp_eq_u32 s%d, 0" % sH)
    a("s_cselect_b32 s%d, s%d, 0" % (sSkip, sKV))
    a("s_cmp_eq_u32 s%d, 1" % sKV)
    a("s_cselect_b32 s%d, s%d, s%d" % (SE, P['wk'], P['wv']))
    a("s_cselect_b32 s%d, s%d, s%d" % (SE + 1, P['wk'] + 1, P['wv'] + 1))
    a("s_mov_b32 s%d, 16384" % (SE + 2))
    a("s_mov_b32 s%d, 0x20000" % (SE + 3))
    a("v_lshrrev_b32 v%d, 4, v0" % vT0)
    a("v_and_b32 v%d, 15, v0" % vT1)
    a("v_xor_b32 v%d, v%d, v%d" % (vT1, vT1, vT0))
    a("v_lshlrev_b32 v%d, 10, v%d" % (vT0, vT0))
    a("v_lshl_add_u32 v18, v%d, 4, v%d" % (vT1, vT0))
    a("s_lshl_b32 s%d, s%d, 2" % (sT0, sMT))
    a("s_add_u32 s%d, s%d, s%d" % (sT0, sT0, sRB))
    a("s_lshl_b32 s%d, s%d, 15" % (sT0, sT0))
    a("s_lshl_b32 s%d, s%d, 8" % (sT1, sH))
    a("s_add_u32 s%d, s%d, s%d" % (sOffC, sT0, sT1))
    a("s_waitcnt vmcnt(12)")
    stamp("w0")
    a("s_barrier")
    a("v_mov_b32 v%d, 0" % vT0)
    a("buffer_load_dword v%d, v%d, s[%d:%d], 0 offen sc1" % (vEv, vT0, SDBG, SDBG + 3))
    a("s_cmp_eq_u32 s%d, 0" % sKV)
    a("s_cbranch_scc1 L_I0_N")
    a("s_add_u32 m0, s%d, %d" % (sM0x, PB[2] + OX))
    a("s_nop 0")
    for j in range(4):
        a("buffer_load_dwordx4 v%d, s[%d:%d], s%d offen offset:%d lds" % (vL16, SE, SE + 3, sM0x, j * 1024))
    for p_ in range(8):
        a("s_add_u32 m0, s%d, %d" % (sM0w, PB[2] + OWG + p_ * 1024))
        a("v_xor_b32 v%d, %d, v18" % (vT0, (p_ & 3) * 64))
        a("s_add_u32 s%d, s%d, %d" % (sT0, sOffC, p_ * 4096))
        a("buffer_load_dwordx4 v%d, s[%d:%d], s%d offen lds" % (vT0, SX, SX + 3, sT0))
    a("v_lshrrev_b32 v%d, 5, v0" % vT1)
    a("v_bfe_u32 v%d, v0, 2, 2" % vT2)
    a("v_lshl_add_u32 v%d, v%d, 3, v%d" % (vT3, vT1, vT2))
    a("v_and_b32 v%d, 3, v0" % vT2)
    a("v_lshlrev_b32 v%d, 5, v%d" % (vT3, vT3))
    a("v_lshl_add_u32 v%d, v%d, 3, v%d" % (vT3, vT2, vT3))
    a("s_add_u32 s%d, s%d, %d" % (sT0, sM0x, PB[2] + OX))
    a("v_add_u32 v19, s%d, v%d" % (sT0, vT3))
    a("v_and_b32 v%d, 31, v0" % vT2)
    a("v_and_b32 v%d, 15, v0" % vT3)
    a("v_xor_b32 v%d, v%d, v%d" % (vT1, vT1, vT3))
    a("v_lshlrev_b32 v%d, 8, v%d" % (vT2, vT2))
    a("v_lshl_add_u32 v%d, v%d, 4, v%d" % (vT2, vT1, vT2))
    a("s_add_u32 s%d, s%d, %d" % (sT0, sM0w, PB[2] + OWG))
    a("v_add_u32 v20, s%d, v%d" % (sT0, vT2))
    a("v_and_b32 v%d, 16, v0" % vT1)
    a("v_cmp_eq_u32 vcc, 0, v%d" % vT1)
    a("s_waitcnt vmcnt(13)")
    stamp("w1")
    a("s_barrier")
    a("s_waitcnt vmcnt(0)")
    vKW = 128
    for ks in range(8):
        a("v_xor_b32 v%d, %d, v20" % (vT0, ks * 32))
        a("ds_read_b128 v[%d:%d], v%d" % (vKX + 4 * ks, vKX + 4 * ks + 3, vT0))
    for ks in range(8):
        if ks in (3, 6):
            a("s_waitcnt lgkmcnt(8)")
        for u in range(2):
            a("ds_read_b64_tr_b16 v[%d:%d], v19 offset:%d" % (vKW + 4 * ks + 2 * u, vKW + 4 * ks + 2 * u + 1, (16 * ks + 4 * u) * 32))
    a("s_waitcnt lgkmcnt(0)")
    a("s_cmp_eq_u32 s%d, 2" % sKV)
    a("s_cbranch_scc1 L_SJ_V")
    for ks in range(8):
        c = "0" if ks == 0 else "v[%d:%d]" % (vKA, vKA + 15)
        a("%s v[%d:%d], v[%d:%d], v[%d:%d], %s" % (MFMA, vKA, vKA + 15, vKW + 4 * ks, vKW + 4 * ks + 3,
                                                   vKX + 4 * ks, vKX + 4 * ks + 3, c))
    a("s_mov_b64 vcc, -1")
    a("s_branch L_SJ_W")
    a.label("L_SJ_V")
    for ks in range(8):
        c = "0" if ks == 0 else "v[%d:%d]" % (vKA, vKA + 15)
        a("%s v[%d:%d], v[%d:%d], v[%d:%d], %s" % (MFMA, vKA, vKA + 15, vKX + 4 * ks, vKX + 4 * ks + 3,
                                                   vKW + 4 * ks, vKW + 4 * ks + 3, c))
    a.label("L_SJ_W")
    dma_stage(2)
    for r in range(8):
        a("v_cndmask_b32 v%d, v%d, v%d, vcc" % (vKA + r, vKA + 8 + r, vKA + r))
    a("s_lshr_b32 s%d, s%d, 1" % (sT0, sM0x))
    a("s_add_u32 s%d, s%d, %d" % (sT0, sT0, L_TOP))
    a("v_add_u32 v%d, s%d, v%d" % (vT1, sT0, vL16))
    a("ds_write_b128 v%d, v[%d:%d]" % (vT1, vKA, vKA + 3))
    a("ds_write_b128 v%d, v[%d:%d] offset:1024" % (vT1, vKA + 4, vKA + 7))
    a("s_branch L_I1")
    a.label("L_I0_N")
    dma_stage(2)
    a("s_waitcnt vmcnt(13)")
    a("s_barrier")
    a.label("L_I1")
    dma_stage(3)
    a("s_waitcnt vmcnt(12) lgkmcnt(0)")
    stamp("w2")
    a("s_barrier")
    a("s_mov_b32 s%d, 0" % sSpin)
    a.label("L_GE_L")
    a("v_readfirstlane_b32 s%d, v%d" % (sE, vEv))
    a("s_cmp_lg_u32 s%d, 0" % sE)
    a("s_cbranch_scc1 L_GE_E")
    spin_tail("L_GE_E")
    a("v_mov_b32 v%d, 0" % vT0)
    a("buffer_load_dword v%d, v%d, s[%d:%d], 0 offen sc1" % (vEv, vT0, SDBG, SDBG + 3))
    a("s_waitcnt vmcnt(0)")
    a("s_branch L_GE_L")
    a.label("L_GE_E")
    a("s_cmp_eq_u32 s%d, 0" % sSkip)
    a("s_cbranch_scc1 L_I2_N")
    a("v_add_u32 v%d, %d, v%d" % (vT2, L_TOP + 2048, vL16))
    for j in range(3):
        a("ds_read_b128 v[%d:%d], v%d offset:%d" % (vKX + 8 * j, vKX + 8 * j + 3, vT2, j * 2048))
        a("ds_read_b128 v[%d:%d], v%d offset:%d" % (vKX + 8 * j + 4, vKX + 8 * j + 7, vT2, j * 2048 + 1024))
    a("s_lshl_b32 s%d, s%d, 2" % (sT0, sMT))
    a("s_add_u32 s%d, s%d, s%d" % (sT0, sT0, sRB))
    a("s_lshl_b32 s%d, s%d, 11" % (sT1, sT0))
    a("s_waitcnt lgkmcnt(0)")
    for j in range(3):
        for r in range(8):
            a("v_add_f32 v%d, v%d, v%d" % (vKA + r, vKA + r, vKX + 8 * j + r))
    for j in range(4):
        a("v_cvt_pk_bf16_f32 v%d, v%d, v%d" % (vKA + 8 + j, vKA + 2 * j, vKA + 2 * j + 1))
    a("s_cmp_eq_u32 s%d, 2" % sKV)
    a("s_cbranch_scc1 L_KF_V")
    a("buffer_store_dwordx4 v[%d:%d], v%d, s[%d:%d], s%d offen offset:%d sc1" % (vKA + 8, vKA + 11, vL16, SWS, SWS + 3, sT1, WS_KV))
    a("v_mov_b32 v%d, 0" % vT1)
    for j in range(4):
        a("v_dot2_f32_bf16 v%d, v%d, v%d, v%d" % (vT1, vKA + 8 + j, vKA + 8 + j, vT1))
    a.nop(3)
    a("v_mov_b32 v%d, v%d" % (vT2, vT1))
    a.nop(2)
    a("v_permlane32_swap_b32 v%d, v%d" % (vT1, vT2))
    a.nop(2)
    a("v_add_f32 v%d, v%d, v%d" % (vPl, vT1, vT2))
    wave_reduce(a, "v_max_f32", vPl)
    a("s_branch L_I2_X")
    a.label("L_KF_V")
    a("v_bfe_u32 v%d, v0, 4, 1" % vT1)
    a("v_lshrrev_b32 v%d, 5, v0" % vT2)
    a("v_lshl_add_u32 v%d, v%d, 1, v%d" % (vT1, vT1, vT2))
    a("v_and_b32 v%d, 15, v0" % vT2)
    a("v_lshlrev_b32 v%d, 8, v%d" % (vT1, vT1))
    a("v_lshl_add_u32 v%d, v%d, 4, v%d" % (vT1, vT2, vT1))
    a("buffer_store_dwordx4 v[%d:%d], v%d, s[%d:%d], s%d offen offset:%d sc1" % (vKA + 8, vKA + 11, vT1, SWS, SWS + 3, sT1, WS_KV + 1024))
    a("v_max3_f32 v%d, |v%d|, |v%d|, |v%d|" % (vT4, vKA, vKA + 1, vKA + 2))
    a("v_max3_f32 v%d, |v%d|, |v%d|, v%d" % (vT4, vKA + 3, vKA + 4, vT4))
    a("v_max3_f32 v%d, |v%d|, |v%d|, v%d" % (vT4, vKA + 5, vKA + 6, vT4))
    a("v_max_f32 v%d, |v%d|, v%d" % (vT4, vKA + 7, vT4))
    a("s_mov_b32 s%d, 0x%08x" % (sT2, f32bits(2.0 ** 60)))
    a("v_cmp_lt_f32 vcc, s%d, v%d" % (sT2, vT4))
    a.nop(1)
    a("s_cmp_lg_u64 vcc, 0")
    a("s_cselect_b32 s%d, 0x7f800000, 0" % sT2)
    a("v_mov_b32 v%d, s%d" % (vPl, sT2))
    a.label("L_I2_X")
    a.label("L_I2_N")
    dma_stage(4)
    a("s_waitcnt vmcnt(12)")
    a("s_cmp_eq_u32 s%d, 0" % sSkip)
    a("s_cbranch_scc1 L_KG_E")
    a("s_lshl_b32 s%d, s%d, 2" % (sT0, sMT))
    a("s_add_u32 s%d, s%d, s%d" % (sT0, sT0, sRB))
    a("s_lshl_b32 s%d, s%d, 1" % (sT0, sT0))
    a("s_add_u32 s%d, s%d, s%d" % (sT0, sT0, sKV))
    a("s_lshl_b32 s%d, s%d, 7" % (sT0, sT0))
    a("s_add_u32 s%d, s%d, %d" % (sT0, sT0, WS_KFL - 128))
    a("v_mov_b32 v%d, s%d" % (vPl + 1, sE))
    a("v_mov_b32 v%d, 0" % vT2)
    a("s_mov_b32 exec_lo, 0")
    a("s_mov_b32 exec_hi, 0x80000000")
    a("buffer_store_dwordx2 v[%d:%d], v%d, s[%d:%d], s%d offen sc1" % (vPl, vPl + 1, vT2, SWS, SWS + 3, sT0))
    a("s_mov_b64 exec, -1")
    a.label("L_KG_E")
    stamp("w3")
    a("s_barrier")
    a("s_cmp_lg_u32 s%d, 1" % sH)
    a("s_cbranch_scc1 L_I3_N")
    a("v_and_b32 v%d, 7, v0" % vT1)
    a("v_lshlrev_b32 v%d, 2, v%d" % (vT1, vT1))
    a("v_add_u32 v%d, %d, v%d" % (vT1, L_G8, vT1))
    a("ds_read_b32 v%d, v%d" % (vPl, vT1))
    a("v_mov_b32 v%d, s%d" % (vPl + 1, sE))
    a("v_lshlrev_b32 v%d, 3, v0" % vT1)
    a("s_add_u32 s%d, s%d, %d" % (sT0, sSlot, WS_G))
    a("s_waitcnt lgkmcnt(0)")
    a("s_mov_b64 exec, 0xff")
    a("buffer_store_dwordx2 v[%d:%d], v%d, s[%d:%d], s%d offen sc1" % (vPl, vPl + 1, vT1, SWS, SWS + 3, sT0))
    a("s_mov_b64 exec, -1")
    a("s_mov_b32 s%d, 1" % sSkip)
    a.label("L_I3_N")
    dma_stage(5)
    a("s_waitcnt vmcnt(13)")
    a("s_cmp_lg_u32 s%d, 0" % sSkip)
    a("s_cbranch_scc1 L_I3_E")
    a("s_waitcnt vmcnt(12)")
    a.label("L_I3_E")
    stamp("w4")
    a("s_barrier")
    dma_stage(6)
    a("s_waitcnt vmcnt(12)")
    stamp("w5")
    a("s_barrier")
    kvpoll = ["buffer_load_dwordx2 v[%d:%d], v%d, s[%d:%d], s%d offen sc1" % (vPl, vPl + 1, vT4, SWS, SWS + 3, sOffC),
              "buffer_load_dwordx2 v[%d:%d], v%d, s[%d:%d], s%d offen offset:128 sc1" % (vPl + 2, vPl + 3, vT4, SWS, SWS + 3, sOffC)]
    dma_stage(7)
    a("s_waitcnt vmcnt(12)")
    stamp("w6")
    a("s_barrier")
    a("s_cmp_lg_u32 s%d, 2" % sH)
    a("s_cbranch_scc1 L_EC_X")
    a("v_lshlrev_b32 v%d, 8, v0" % vT4)
    a("s_mov_b32 s%d, %d" % (sOffC, WS_KFL))
    a("s_mov_b32 s%d, 0" % sSpin)
    a.label("L_EC_L")
    emit(kvpoll)
    a("s_waitcnt vmcnt(0)")
    a("v_cmp_ne_u32 vcc, s%d, v%d" % (sE, vPl + 1))
    a("v_cmp_ne_u32 s[%d:%d], s%d, v%d" % (sT0, sT1, sE, vPl + 3))
    a("s_or_b64 vcc, vcc, s[%d:%d]" % (sT0, sT1))
    a("s_cbranch_scc0 L_EC_E")
    spin_tail("L_EC_E", 2)
    a("s_branch L_EC_L")
    a.label("L_EC_E")
    a("v_max_f32 v%d, v%d, v%d" % (vT1, vPl, vPl + 2))
    wave_reduce(a, "v_max_f32", vT1)
    a("v_mov_b32 v%d, %d" % (vT2, L_KMAX))
    a("s_mov_b32 exec_lo, 0")
    a("s_mov_b32 exec_hi, 0x80000000")
    a("ds_write_b32 v%d, v%d" % (vT2, vT1))
    a("s_mov_b64 exec, -1")
    a("s_waitcnt lgkmcnt(0)")
    a.label("L_EC_X")
    a("s_cmp_lg_u32 s%d, 3" % sH)
    a("s_cbranch_scc1 L_GP_X")
    gl = ["buffer_load_dwordx2 v[%d:%d], v%d, s[%d:%d], s%d offen sc1" % (vPl, vPl + 1, vT3, SWS, SWS + 3, sOffD),
          "buffer_load_dwordx2 v[%d:%d], v%d, s[%d:%d], s%d offen offset:1024 sc1" % (vPl + 2, vPl + 3, vT3, SWS, SWS + 3, sOffD)]
    a("v_lshrrev_b32 v%d, 3, v0" % vT3)
    a("v_and_b32 v%d, 7, v0" % vT1)
    a("v_lshlrev_b32 v%d, 7, v%d" % (vT3, vT3))
    a("v_lshl_add_u32 v%d, v%d, 3, v%d" % (vT3, vT1, vT3))
    a("s_lshl_b32 s%d, s%d, 11" % (sT1, sMT))
    a("s_add_u32 s%d, s%d, %d" % (sOffD, sT1, WS_G))
    a("s_mov_b32 s%d, 0" % sSpin)
    a.label("L_GP_L")
    emit(gl)
    a("s_waitcnt vmcnt(0)")
    a("v_cmp_ne_u32 vcc, s%d, v%d" % (sE, vPl + 1))
    a("v_cmp_ne_u32 s[%d:%d], s%d, v%d" % (sT0, sT1, sE, vPl + 3))
    a("s_or_b64 vcc, vcc, s[%d:%d]" % (sT0, sT1))
    a("s_cbranch_scc0 L_GP_E")
    spin_tail("L_GP_E")
    a("s_branch L_GP_L")
    a.label("L_GP_E")
    a("v_lshlrev_b32 v%d, 2, v0" % vT1)
    a("v_add_u32 v%d, %d, v%d" % (vT1, L_GROW, vT1))
    a("ds_write_b32 v%d, v%d" % (vT1, vPl))
    a("ds_write_b32 v%d, v%d offset:256" % (vT1, vPl + 2))
    a.label("L_GP_X")
    a("s_waitcnt vmcnt(0) lgkmcnt(0)")
    stamp("w7")
    a("s_barrier")
    kv_dma(0, 12)
    vWs, vB0, vB1, vTr0, vTr1, vPa, vPoll = 2, 3, 4, 5, 6, 7, 8
    vFA = 24
    vFB = 32
    AC2 = 64
    vWo = 128
    for r in range(64):
        a("v_mov_b32 v%d, 0" % (AC2 + r))
    a("v_bfe_u32 v%d, v0, 4, 1" % vT1)
    a("v_and_b32 v%d, 7, v0" % vT2)
    a("v_lshlrev_b32 v%d, 2, v%d" % (vT1, vT1))
    a("v_xor_b32 v%d, v%d, v%d" % (vT1, vT1, vT2))
    a("v_lshrrev_b32 v%d, 3, v0" % vT2)
    a("v_lshlrev_b32 v%d, 10, v%d" % (vT2, vT2))
    a("v_lshl_add_u32 v%d, v%d, 4, v%d" % (vT1, vT1, vT2))
    a("s_lshl_b32 s%d, s%d, 14" % (sT0, sH))
    a("s_lshl_b32 s%d, s%d, 7" % (sT1, sNB))
    a("s_add_u32 s%d, s%d, s%d" % (sT0, sT0, sT1))
    a("v_add_u32 v%d, s%d, v%d" % (vWs, sT0, vT1))
    a("v_lshrrev_b32 v%d, 5, v0" % vT0)
    a("v_bfe_u32 v%d, v0, 2, 2" % vT1)
    a("v_lshl_add_u32 v%d, v%d, 2, v%d" % (vT2, vT0, vT1))
    a("v_lshlrev_b32 v%d, 7, v%d" % (vT2, vT2))
    a("v_bfe_u32 v%d, v0, 3, 1" % vT1)
    a("v_lshl_add_u32 v%d, v%d, 6, v%d" % (vT2, vT1, vT2))
    a("v_bfe_u32 v%d, v0, 4, 1" % vT1)
    a("v_lshl_add_u32 v%d, v%d, 5, v%d" % (vT2, vT1, vT2))
    a("v_and_b32 v%d, 3, v0" % vT1)
    a("v_lshl_add_u32 v%d, v%d, 3, v%d" % (vT2, vT1, vT2))
    a("s_add_u32 s%d, s%d, %d" % (sScr, sM0w, L_SCR))
    a("v_add_u32 v%d, s%d, v%d" % (vTr0, sScr, vT2))
    a("v_xor_b32 v%d, 64, v%d" % (vTr1, vTr0))
    a("s_mul_i32 s%d, s%d, 288" % (sT0, sMB))
    a("s_add_u32 s%d, s%d, s%d" % (sT0, sT0, sH))
    a("s_lshl_b32 s%d, s%d, 10" % (sT0, sT0))
    a("s_add_u32 s%d, s%d, %d" % (sT0, sT0, WS_AF))
    a("v_add_u32 v%d, s%d, v%d" % (vB0, sT0, vL16))
    a("v_add_u32 v%d, %d, v%d" % (vB1, 144 * 1024, vB0))
    a("v_and_b32 v%d, 15, v0" % vPa)
    a("v_lshlrev_b32 v%d, 7, v%d" % (vPa, vPa))
    srd(a, SA, P['wd'], P['wd'] + 1, 0x1c0000)
    srd(a, SB, P['wo'], P['wo'] + 1, 0x80000)
    a("s_waitcnt vmcnt(0)")
    stamp("w8")
    a("s_barrier")
    kv_dma(48, 20)
    a("s_waitcnt vmcnt(0)")
    stamp("w9")
    a("s_barrier")
    stamp("bkv")
    a("s_setprio %d" % HPRIO)
    a("s_cmp_lg_u32 s%d, 0" % sH)
    a("s_cbranch_scc1 L_NOHF")
    a("v_mov_b32 v%d, 0" % vT3)
    a("v_mov_b32 v%d, s%d" % (vT2, sE))
    a("s_add_u32 s%d, s%d, %d" % (sT0, sSlot, WS_HFL))
    a("s_mov_b64 exec, 1")
    a("buffer_store_dword v%d, v%d, s[%d:%d], s%d offen sc1" % (vT2, vT3, SWS, SWS + 3, sT0))
    a("s_mov_b64 exec, -1")
    a.label("L_NOHF")

    def w_dma(S, slot, soff, extra):
        for u in range(2):
            a("s_add_u32 m0, s%d, %d" % (sScr, slot * 2048 + u * 1024))
            if soff is None:
                a("s_mov_b32 s%d, %d" % (sT0, extra + u * 8192))
            else:
                a("s_add_u32 s%d, s%d, %d" % (sT0, soff, extra + u * 8192))
            a("buffer_load_dwordx4 v%d, s[%d:%d], s%d offen lds" % (vWs, S, S + 3, sT0))

    def b_loads(slot, soff, extra):
        a("s_add_u32 s%d, s%d, %d" % (sT0, soff, extra))
        a("buffer_load_dwordx4 v[%d:%d], v%d, s[%d:%d], s%d offen sc1" % (vFB + 8 * slot, vFB + 8 * slot + 3, vB0, SWS, SWS + 3, sT0))
        a("buffer_load_dwordx4 v[%d:%d], v%d, s[%d:%d], s%d offen sc1" % (vFB + 8 * slot + 4, vFB + 8 * slot + 7, vB1, SWS, SWS + 3, sT0))

    def tr_reads(dst, slot):
        for an, ad in enumerate((vTr0, vTr1)):
            for u in range(2):
                a("ds_read_b64_tr_b16 v[%d:%d], v%d offset:%d" % (dst + 4 * an + 2 * u, dst + 4 * an + 2 * u + 1, ad,
                                                                 slot * 2048 + u * 1024))

    def m1(fa, fb, an, i):
        acc = AC2 + (an * 2 + i) * 16
        a("%s v[%d:%d], v[%d:%d], v[%d:%d], v[%d:%d]" % (MFMA, acc, acc + 15, fa + 4 * an, fa + 4 * an + 3,
                                                        fb + 4 * i, fb + 4 * i + 3, acc, acc + 15))

    def mm(fa, fb):
        for an in (0, 1):
            for i in (0, 1):
                m1(fa, fb, an, i)

    for j in range(4):
        w_dma(SB, j, None, j * 65536)
    a("s_waitcnt vmcnt(0)")
    for j in range(4):
        tr_reads(vWo + 8 * j, j)
        a("s_waitcnt lgkmcnt(4)")
    a("s_waitcnt lgkmcnt(0)")
    a("s_lshr_b32 s%d, s%d, 1" % (sT0, sMB))
    a("s_lshl_b32 s%d, s%d, 11" % (sT0, sT0))
    a("s_add_u32 s%d, s%d, %d" % (sOffA, sT0, WS_HFL))
    a("s_mov_b32 s%d, 0" % sSpin)
    a.label("L_HP_L")
    a("buffer_load_dword v%d, v%d, s[%d:%d], s%d offen sc1" % (vPoll, vPa, SWS, SWS + 3, sOffA))
    a("s_waitcnt vmcnt(0)")
    a("v_cmp_ne_u32 vcc, s%d, v%d" % (sE, vPoll))
    a("s_cmp_eq_u64 vcc, 0")
    a("s_cbranch_scc1 L_HP_E")
    spin_tail("L_HP_E", 4)
    a("s_branch L_HP_L")
    a.label("L_HP_E")
    stamp("hpoll")
    a("s_mov_b32 s%d, 0" % sOffB)
    a("s_mov_b32 s%d, %d" % (sOffC, 8 * 4096))
    for j in range(4):
        w_dma(SA, j, sOffB, j * 65536)
        b_loads(j, sOffC, j * 4096)
    a("s_mov_b32 s%d, 0" % sIt)
    a.label("L_FFN")
    for j in range(4):
        a("s_waitcnt vmcnt(12)")
        tr_reads(vFA, j)
        a("s_waitcnt lgkmcnt(0)")
        fb = vFB + 8 * j
        m1(vFA, fb, 0, 0)
        a("s_add_u32 m0, s%d, %d" % (sScr, j * 2048))
        a("s_add_u32 s%d, s%d, %d" % (sT0, sOffB, (4 + j) * 65536))
        a("buffer_load_dwordx4 v%d, s[%d:%d], s%d offen lds" % (vWs, SA, SA + 3, sT0))
        m1(vFA, fb, 1, 0)
        a("s_add_u32 m0, s%d, %d" % (sScr, j * 2048 + 1024))
        a("s_add_u32 s%d, s%d, %d" % (sT0, sOffB, (4 + j) * 65536 + 8192))
        a("buffer_load_dwordx4 v%d, s[%d:%d], s%d offen lds" % (vWs, SA, SA + 3, sT0))
        m1(vFA, fb, 0, 1)
        a("s_add_u32 s%d, s%d, %d" % (sT0, sOffC, (4 + j) * 4096))
        a("buffer_load_dwordx4 v[%d:%d], v%d, s[%d:%d], s%d offen sc1" % (fb, fb + 3, vB0, SWS, SWS + 3, sT0))
        m1(vFA, fb, 1, 1)
        a("buffer_load_dwordx4 v[%d:%d], v%d, s[%d:%d], s%d offen sc1" % (fb + 4, fb + 7, vB1, SWS, SWS + 3, sT0))
    a("s_add_u32 s%d, s%d, %d" % (sOffB, sOffB, 4 * 65536))
    a("s_add_u32 s%d, s%d, %d" % (sOffC, sOffC, 4 * 4096))
    a("s_add_u32 s%d, s%d, 1" % (sIt, sIt))
    a("s_cmp_lt_u32 s%d, %d" % (sIt, int(os.environ.get("NFFN", "7"))))
    a("s_cbranch_scc1 L_FFN")
    a("s_waitcnt vmcnt(0)")
    stamp("ffn")
    for j in range(4):
        w_dma(SB, j, None, (4 + j) * 65536)
    a("v_and_b32 v%d, 31, v0" % vT0)
    a("v_lshrrev_b32 v%d, 5, v0" % vT1)
    a("v_and_b32 v%d, 15, v0" % vT3)
    a("v_xor_b32 v%d, v%d, v%d" % (vT1, vT1, vT3))
    a("v_lshlrev_b32 v%d, 8, v%d" % (vT0, vT0))
    a("v_lshl_add_u32 v%d, v%d, 4, v%d" % (vT0, vT1, vT0))
    a("s_lshl_b32 s%d, s%d, 14" % (sT1, sH))
    a("v_add_u32 v%d, s%d, v%d" % (vT0, sT1, vT0))
    for q in range(8):
        a("v_xor_b32 v%d, %d, v%d" % (9 + q, q * 32, vT0))
    a("s_mov_b32 s%d, 0" % sOffC)
    a("s_waitcnt vmcnt(0)")
    a("s_barrier")
    stamp("b3")
    a("s_setprio 3")
    for j in range(4):
        b_loads(j, sOffC, j * 4096)
    for j in range(8):
        sl = j & 3
        fb = vFB + 8 * sl
        a("s_waitcnt vmcnt(%d)" % (6 if j < 5 else 2 * (7 - j)))
        a("s_mov_b32 s%d, 0" % sSpin)
        a.label("L_OP%d_L" % j)
        a("v_max3_u32 v%d, v%d, v%d, v%d" % (vT0, fb, fb + 1, fb + 2))
        a("v_max3_u32 v%d, v%d, v%d, v%d" % (vT1, fb + 3, fb + 4, fb + 5))
        a("v_max3_u32 v%d, v%d, v%d, v%d" % (vT0, fb + 6, fb + 7, vT0))
        a("v_max_u32 v%d, v%d, v%d" % (vT0, vT0, vT1))
        a("v_cmp_eq_u32 vcc, -1, v%d" % vT0)
        a("s_cmp_eq_u64 vcc, 0")
        a("s_cbranch_scc1 L_OP%d_E" % j)
        spin_tail("L_OP%d_E" % j)
        b_loads(sl, sOffC, j * 4096)
        a("s_waitcnt vmcnt(0)")
        a("s_branch L_OP%d_L" % j)
        a.label("L_OP%d_E" % j)
        if j in (0, 7):
            stamp("op%d" % j)
        if j >= 4:
            a("s_waitcnt lgkmcnt(%d)" % (4 * (7 - j)))
        mm(vWo + 8 * sl, fb)
        if j < 4:
            b_loads(sl, sOffC, (4 + j) * 4096)
            if j == 3:
                a("s_waitcnt lgkmcnt(8)")
            tr_reads(vWo + 8 * sl, sl)
    a.nop(9)
    for an in (0, 1):
        for i in (0, 1):
            if (an, i) != (0, 0):
                a.nop(4)
            for q in range(4):
                acc = AC2 + (an * 2 + i) * 16 + 4 * q
                a("ds_write_b128 v%d, v[%d:%d] offset:%d" % (9 + an * 4 + q, acc, acc + 3, i * 8192))
        a("s_waitcnt lgkmcnt(4)")
    a("s_waitcnt lgkmcnt(0)")
    stamp("pw")
    a("s_barrier")
    prof_flush()
    a.label("L_END")
    a("s_endpgm")
    if PROF:
        open("stamps.txt", "w").write(" ".join(stamp_names["M"]) + "\n" + " ".join(stamp_names["H"]))
    kernel_desc(a, name, 168, 102)
    return "; @launch grid=(256,1,1) block=(768,1,1) lds=%d" % LDS_BYTES


def main():
    out = sys.argv[1] if len(sys.argv) > 1 else "cdna_kernels/%s.s" % NAME
    a = Asm()
    a.raw(".amdgcn_target \"amdgcn-amd-amdhsa--gfx950\"")
    launch = gen(a)
    hdr = ["; generated by work/gen5.py (hand-designed kernel, laid out by script)", launch]
    open(out, "w").write("\n".join(hdr) + "\n" + a.text())


if __name__ == "__main__":
    main()
```

```python
import sys, math, os
from gen import Asm, f32bits, kernel_begin, kernel_desc, srd, wave_reduce, MFMA, NAME, QSCALE

PROF = int(os.environ.get("PROF", "0"))
PRIO = int(os.environ.get("PRIO", "1"))
DIAG = int(os.environ.get("DIAG", "0"))
TOUCH = int(os.environ.get("TOUCH", "1"))
HPRIO = int(os.environ.get("HPRIO", "0"))

WS_AF = 2 << 20
WS_KV = 0
WS_G = 0x40000
WS_KFL = 0x50000
WS_HFL = 0x60000
WS_PROF = 32 << 20
WS_SIZE = 268435456
KVBLK = 2048
SPIN_MAX = 1 << 14

BUFSZ = 49152
PB = {2: 0, 0: BUFSZ, 1: 2 * BUFSZ}
OX, OWG, OWU, OWQ = 0, 16384, 30720, 45056
L_TOP = 3 * BUFSZ
L_G8 = L_TOP
L_KMAX = L_TOP + 64
L_GROW = L_TOP + 1024
L_QX = L_TOP + 8192
L_SCR = 131072
LDS_BYTES = 163840
NBKV = 3


def gen(a):
    name = NAME + "_kernel"
    kernel_begin(a, name)
    sW, sMT, sNT = 3, 4, 5
    sT0, sT1, sT2, sT3 = 6, 7, 8, 9
    sStepA, sKV, sRB, sE = 10, 11, 12, 13
    sMB, sNB = 14, 15
    P = dict(x=16, wq=18, wk=20, wv=22, wo=24, wg=28, wu=30, wd=32, gw=34, out=36, dbg=38, ws=40)
    SX, SA, SB, SWS, SE, SDBG, SC = 44, 48, 52, 56, 60, 64, 68
    SOUT = 44
    sH = 72
    sM0x, sM0w, sScr = 73, 74, 75
    sVm = 76
    sOffA, sOffB = 78, 79
    sStepB = 80
    sIt, sSkip = 82, 83
    sSpin, sKoff = 26, 27
    sSlot = 42
    sOffC, sOffD = 86, 87
    stamp_names = {"M": [], "H": []}
    role = ["M"]

    def stamp(label):
        if DIAG and role[0] == "M" and label in ("bar0", "Bq", "b3"):
            a("s_memrealtime s[84:85]")
            a("s_waitcnt lgkmcnt(0)")
            a("s_mov_b32 s%d, s84" % {"bar0": 90, "Bq": 91, "b3": 92}[label])
        if not PROF:
            return
        lst = stamp_names[role[0]]
        idx = len(lst)
        lst.append(str(label))
        a("s_memtime s[84:85]")
        if label in ("bar0", "Bq", "b3") and role[0] == "M":
            a("s_memrealtime s[98:99]")
        a("s_waitcnt lgkmcnt(0)")
        a("v_writelane_b32 v167, s84, %d" % idx)
        if label in ("bar0", "Bq", "b3") and role[0] == "M":
            a("v_writelane_b32 v167, s98, %d" % {"bar0": 59, "Bq": 60, "b3": 61}[label])

    def prof_flush():
        if DIAG and role[0] == "M":
            a("s_waitcnt vmcnt(0)")
            a("s_memrealtime s[84:85]")
            srd(a, SDBG, P['dbg'], P['dbg'] + 1, 256)
            a("s_waitcnt lgkmcnt(0)")
            a("s_cmp_lg_u32 s%d, 7" % sW)
            a("s_cbranch_scc1 L_END")
            a("s_cmp_lt_u32 s2, 248")
            a("s_cbranch_scc1 L_END")
            a("s_and_b32 s93, s2, 7")
            a("s_lshl_b32 s93, s93, 2")
            a("v_mov_b32 v2, 0")
            a("s_mov_b64 exec, 1")
            a("s_sub_u32 s94, s84, s88")
            a("s_and_b32 s95, s88, 0xffff")
            a("s_lshl_b32 s94, s94, 16")
            a("s_or_b32 s94, s94, s95")
            a("v_mov_b32 v3, s94")
            a("buffer_store_dword v3, v2, s[%d:%d], s93 offen offset:32" % (SDBG, SDBG + 3))
            a("s_cmp_lg_u32 s2, 253")
            a("s_cbranch_scc1 L_END")
            for i, sreg in enumerate((90, 91, 92, 84)):
                a("s_sub_u32 s94, s%d, s88" % sreg)
                a("v_mov_b32 v3, s94")
                a("buffer_store_dword v3, v2, s[%d:%d], 0 offen offset:%d" % (SDBG, SDBG + 3, 4 + 4 * i))
                a("s_nop 1")
        if not PROF:
            return
        a("s_waitcnt vmcnt(0)")
        stamp("end")
        a("s_memrealtime s[98:99]")
        a("s_waitcnt lgkmcnt(0)")
        a("v_writelane_b32 v167, s98, 62")
        a("v_writelane_b32 v167, s88, 63")
        a("s_mul_i32 s82, s2, 12")
        a("s_add_u32 s82, s82, s%d" % sW)
        a("s_lshl_b32 s82, s82, 8")
        a("s_add_u32 s82, s82, %d" % WS_PROF)
        a("v_lshlrev_b32 v2, 2, v0")
        a("buffer_store_dword v167, v2, s[%d:%d], s82 offen" % (SWS, SWS + 3))

    def emit(lst):
        for ins in lst:
            a(ins)

    def spin_tail(lbl_end, sleep=1):
        a("s_add_u32 s%d, s%d, 1" % (sSpin, sSpin))
        a("s_cmp_ge_u32 s%d, %d" % (sSpin, SPIN_MAX))
        a("s_cbranch_scc1 %s" % lbl_end)
        a("s_sleep %d" % sleep)

    vL16 = 1
    vT0, vT1, vT2, vT3, vT4 = 21, 22, 23, 24, 25

    a("s_cmp_ge_u32 s2, 256")
    a("s_cbranch_scc1 L_END")
    a("s_load_dwordx16 s[16:31], s[0:1], 0")
    a("s_load_dwordx8 s[32:39], s[0:1], 64")
    a("s_load_dwordx2 s[40:41], s[0:1], 96")
    a("s_memrealtime s[88:89]")
    if PROF:
        a("s_memtime s[84:85]")
        a("s_waitcnt lgkmcnt(0)")
        a("v_writelane_b32 v167, s84, 0")
        stamp_names["M"].append("start")
        stamp_names["H"].append("start")
    a("v_lshrrev_b32 v1, 6, v0")
    a("v_and_b32 v0, 63, v0")
    a("v_readfirstlane_b32 s%d, v1" % sW)
    a("s_and_b32 s%d, s2, 7" % sT0)
    a("s_lshr_b32 s%d, s2, 3" % sT1)
    a("s_and_b32 s%d, s%d, 1" % (sMT, sT0))
    a("s_lshl_b32 s%d, s%d, 3" % (sMT, sMT))
    a("s_and_b32 s%d, s%d, 7" % (sT2, sT1))
    a("s_add_u32 s%d, s%d, s%d" % (sMT, sMT, sT2))
    a("s_lshr_b32 s%d, s%d, 1" % (sNT, sT0))
    a("s_lshl_b32 s%d, s%d, 2" % (sNT, sNT))
    a("s_lshr_b32 s%d, s%d, 3" % (sT2, sT1))
    a("s_add_u32 s%d, s%d, s%d" % (sNT, sNT, sT2))
    a("s_lshl_b32 s%d, s%d, 2" % (sMB, sT0))
    a("s_and_b32 s%d, s%d, 3" % (sT2, sT1))
    a("s_add_u32 s%d, s%d, s%d" % (sMB, sMB, sT2))
    a("s_lshr_b32 s%d, s%d, 2" % (sNB, sT1))
    a("v_lshlrev_b32 v%d, 4, v0" % vL16)
    a("s_cmp_ge_u32 s%d, 8" % sW)
    a("s_cbranch_scc1 L_HELPER")

    vXr = [8, 9, 10, 11]
    vW0 = 12
    vW1 = list(range(13, 21))
    vGq = 26
    vGm = [28, 30]
    FR = [32, 48]
    ACC = 64
    vKa, vVa = 2, 3
    vQ = 4
    vKF = [8, 12]
    vS = [32, 48]
    vVF = [64, 72]
    vP = 80
    vO = 128
    vC = 144
    NB = 4
    b0 = PB[0]
    if TOUCH:
        a("s_cmp_ge_u32 s%d, 4" % sW)
        a("s_cbranch_scc1 L_NOTOUCH")
        a("s_waitcnt lgkmcnt(0)")
        a("s_mov_b32 s%d, s%d" % (SE, P['x']))
        a("s_mov_b32 s%d, s%d" % (SE + 1, P['x'] + 1))
        for k, pp in ((1, P['wg']), (2, P['wu']), (3, P['wq'])):
            a("s_cmp_eq_u32 s%d, %d" % (sW, k))
            a("s_cselect_b32 s%d, s%d, s%d" % (SE, pp, SE))
            a("s_cselect_b32 s%d, s%d, s%d" % (SE + 1, pp + 1, SE + 1))
        a("s_mov_b32 s%d, 1024" % (SE + 2))
        a("s_mov_b32 s%d, 0x20000" % (SE + 3))
        a("v_mov_b32 v2, 0")
        a("s_mov_b64 exec, 1")
        a("buffer_load_dword v160, v2, s[%d:%d], 0 offen" % (SE, SE + 3))
        a("s_mov_b64 exec, -1")
        a.label("L_NOTOUCH")
    a("s_lshr_b32 s%d, s%d, 2" % (sT0, sW))
    a("s_lshl_b32 s%d, s%d, 13" % (sT0, sT0))
    a("s_add_u32 s%d, s%d, %d" % (sT0, sT0, b0 + OX))
    a("v_and_b32 v%d, 31, v0" % vT0)
    a("v_lshlrev_b32 v%d, 7, v%d" % (vT0, vT0))
    a("v_lshrrev_b32 v%d, 5, v0" % vT1)
    a("v_bfe_u32 v%d, v0, 1, 3" % vT3)
    a("v_xor_b32 v%d, v%d, v%d" % (vT3, vT3, vT1))
    a("v_lshl_add_u32 v%d, v%d, 4, v%d" % (vT0, vT3, vT0))
    for ks in range(4):
        a("v_xor_b32 v%d, %d, v%d" % (vT2, ks * 32, vT0))
        a("v_add_u32 v%d, s%d, v%d" % (vXr[ks], sT0, vT2))
    a("v_bfe_u32 v%d, v0, 2, 2" % vT2)
    a("v_lshl_add_u32 v%d, v%d, 3, v%d" % (vT3, vT1, vT2))
    a("v_and_b32 v%d, 3, v0" % vT2)
    a("v_bfe_u32 v%d, v0, 4, 1" % vT4)
    a("v_mul_u32_u24 v%d, 0xe0, v%d" % (vT0, vT3))
    a("v_lshl_add_u32 v%d, v%d, 3, v%d" % (vT0, vT2, vT0))
    a("s_and_b32 s%d, s%d, 3" % (sT1, sW))
    a("s_lshl_b32 s%d, s%d, 6" % (sT0, sT1))
    a("s_add_u32 s%d, s%d, %d" % (sT0, sT0, b0 + OWG))
    a("s_movk_i32 s%d, %d" % (sT2, OWU - OWG - 96))
    a("s_cmp_lt_u32 s%d, 2" % sT1)
    a("s_cselect_b32 s%d, %d, s%d" % (sT3, OWU - OWG + 128, sT2))
    a("v_mul_u32_u24 v%d, s%d, v%d" % (vT1, sT3, vT4))
    a("v_add3_u32 v%d, v%d, v%d, s%d" % (vW0, vT0, vT1, sT0))
    a("s_cmp_eq_u32 s%d, 3" % sT1)
    a("s_cbranch_scc1 L_W1_Q")
    a("s_cmp_lt_u32 s%d, 1" % sT1)
    a("s_cselect_b32 s%d, %d, s%d" % (sT3, OWU - OWG + 128, sT2))
    a("v_mul_u32_u24 v%d, s%d, v%d" % (vT1, sT3, vT4))
    a("v_add3_u32 v%d, v%d, v%d, s%d" % (vT0, vT0, vT1, sT0))
    for q in range(8):
        ks, u = q >> 1, q & 1
        a("v_add_u32 v%d, %d, v%d" % (vW1[q], 32 + (16 * ks + 4 * u) * 224, vT0))
    a("s_branch L_W1_E")
    a.label("L_W1_Q")
    a("v_lshlrev_b32 v%d, 6, v%d" % (vT0, vT3))
    a("v_lshl_add_u32 v%d, v%d, 3, v%d" % (vT0, vT2, vT0))
    a("v_lshl_add_u32 v%d, v%d, 5, v%d" % (vT0, vT4, vT0))
    for q in range(8):
        ks, u = q >> 1, q & 1
        a("v_add_u32 v%d, %d, v%d" % (vW1[q], b0 + OWQ + (16 * ks + 4 * u) * 64, vT0))
    a.label("L_W1_E")
    for r in list(range(vC, vC + 16)) + list(range(vO, vO + 16)):
        a("v_mov_b32 v%d, 0" % r)
    a("v_mov_b32 v%d, v%d" % (vKa, vL16))
    a("v_lshrrev_b32 v%d, 5, v0" % vT0)
    a("v_and_b32 v%d, 15, v0" % vT1)
    a("v_lshlrev_b32 v%d, 8, v%d" % (vT2, vT0))
    a("v_lshl_add_u32 v%d, v%d, 4, v%d" % (vT2, vT1, vT2))
    a("v_add_u32 v%d, 1024, v%d" % (vVa, vT2))
    a("v_and_b32 v%d, 27, v0" % vT0)
    a("v_cmp_eq_u32 vcc, 16, v%d" % vT0)
    a("v_mov_b32 v%d, 0x3f803f80" % vT0)
    a("s_mov_b32 s%d, 0x0000ffff" % sVm)
    a("s_mov_b32 s%d, 0x0000ffff" % (sVm + 1))
    a("v_cndmask_b32 v27, 0, v%d, vcc" % vT0)
    a("v_and_b32 v%d, 31, v0" % vT0)
    a("s_lshr_b32 s%d, s%d, 2" % (sT0, sW))
    a("s_lshl_b32 s%d, s%d, 8" % (sT0, sT0))
    a("s_add_u32 s%d, s%d, %d" % (sT0, sT0, L_GROW))
    a("v_lshl_add_u32 v4, v%d, 2, s%d" % (vT0, sT0))
    a("s_lshl_b32 s%d, s%d, 10" % (sT0, sW))
    a("s_add_u32 s%d, s%d, %d" % (sT0, sT0, L_QX))
    a("v_add_u32 v5, s%d, v%d" % (sT0, vL16))
    a("v_mov_b32 v6, %d" % L_KMAX)
    a("s_lshr_b32 s%d, s%d, 2" % (sT0, sW))
    a("s_lshl_b32 s%d, s%d, 1" % (sT0, sT0))
    a("s_lshl_b32 s%d, s%d, 2" % (sT1, sMT))
    a("s_add_u32 s%d, s%d, s%d" % (sT0, sT0, sT1))
    a("s_mul_i32 s%d, s%d, 144" % (sT0, sT0))
    a("s_mul_i32 s%d, s%d, 7" % (sT1, sNT))
    a("s_add_u32 s%d, s%d, s%d" % (sT0, sT0, sT1))
    a("s_and_b32 s%d, s%d, 3" % (sT2, sW))
    a("s_lshl_b32 s%d, s%d, 1" % (sT1, sT2))
    a("s_add_u32 s%d, s%d, s%d" % (sT0, sT0, sT1))
    a("s_lshl_b32 s%d, s%d, 10" % (sT0, sT0))
    a("s_add_u32 s%d, s%d, %d" % (sOffA, sT0, WS_AF + 32 * 1024))
    a("s_add_u32 s%d, s%d, %d" % (sOffB, sOffA, 144 * 1024))
    a("s_lshr_b32 s%d, s%d, 1" % (sT0, sW))
    a("s_lshl_b32 s%d, s%d, 2" % (sT1, sMT))
    a("s_add_u32 s%d, s%d, s%d" % (sT0, sT0, sT1))
    a("s_mul_i32 s%d, s%d, 144" % (sT0, sT0))
    a("s_lshl_b32 s%d, s%d, 1" % (sT1, sNT))
    a("s_add_u32 s%d, s%d, s%d" % (sT0, sT0, sT1))
    a("s_and_b32 s%d, s%d, 1" % (sT1, sW))
    a("s_add_u32 s%d, s%d, s%d" % (sT0, sT0, sT1))
    a("s_lshl_b32 s%d, s%d, 10" % (sT0, sT0))
    a("s_add_u32 s%d, s%d, %d" % (sOffC, sT0, WS_AF))
    a("s_waitcnt lgkmcnt(0)")
    srd(a, SWS, P['ws'], P['ws'] + 1, WS_SIZE)
    srd(a, SOUT, P['out'], P['out'] + 1, 2097152)
    SXm = 48
    mGX, mGW = 128, 132
    srd(a, SXm, P['x'], P['x'] + 1, 2097152)
    srd(a, SE, P['gw'], P['gw'] + 1, 1024)
    a("s_lshl_b32 s%d, s%d, 4" % (sT0, sMT))
    a("s_add_u32 s%d, s%d, s%d" % (sT0, sT0, sNT))
    a("s_lshl_b32 s%d, s%d, 3" % (sT0, sT0))
    a("s_add_u32 s%d, s%d, s%d" % (sT0, sT0, sW))
    a("s_lshl_b32 s%d, s%d, 10" % (sT0, sT0))
    a("s_lshl_b32 s%d, s%d, 2" % (sT1, sW))
    a("s_add_u32 s%d, s%d, %d" % (sT1, sT1, L_G8))
    a("v_mov_b32 v%d, s%d" % (vGq, sT1))

    def g_loads():
        a("buffer_load_dwordx4 v[%d:%d], v%d, s[%d:%d], s%d offen" % (mGX, mGX + 3, vL16, SXm, SXm + 3, sT0))
        a("buffer_load_dwordx4 v[%d:%d], v%d, s[%d:%d], 0 offen" % (mGW, mGW + 3, vL16, SE, SE + 3))

    def g_job():
        a("s_waitcnt vmcnt(0)")
        a("v_mov_b32 v%d, 0" % vT0)
        for j in range(4):
            a("v_dot2_f32_bf16 v%d, v%d, v%d, v%d" % (vT0, mGX + j, mGW + j, vT0))
        for r in range(8):
            a("v_mov_b32 v%d, 0" % (vO + r))
        a("v_mov_b32 v%d, v%d" % (vT1, vT0))
        wave_reduce(a, "v_add_f32", vT1)
        a("v_mul_f32 v%d, 0x%08x, v%d" % (vT1, f32bits(-math.log2(math.e)), vT1))
        a("v_exp_f32 v%d, v%d" % (vT1, vT1))
        a.nop(1)
        a("v_add_f32 v%d, 1.0, v%d" % (vT1, vT1))
        a("v_rcp_f32 v%d, v%d" % (vT1, vT1))
        a("s_mov_b32 exec_lo, 0")
        a("s_mov_b32 exec_hi, 0x80000000")
        a("ds_write_b32 v%d, v%d" % (vGq, vT1))
        a("s_mov_b64 exec, -1")

    def rd_list(ks, fs):
        f = FR[fs]
        return [
            "ds_read_b128 v[%d:%d], v%d" % (f, f + 3, vXr[ks]),
            "ds_read_b64_tr_b16 v[%d:%d], v%d offset:%d" % (f + 8, f + 9, vW0, (16 * ks) * 224),
            "ds_read_b64_tr_b16 v[%d:%d], v%d offset:%d" % (f + 10, f + 11, vW0, (16 * ks + 4) * 224),
            "ds_read_b128 v[%d:%d], v%d offset:4096" % (f + 4, f + 7, vXr[ks]),
            "ds_read_b64_tr_b16 v[%d:%d], v%d" % (f + 12, f + 13, vW1[2 * ks]),
            "ds_read_b64_tr_b16 v[%d:%d], v%d" % (f + 14, f + 15, vW1[2 * ks + 1]),
        ]

    def mfmas(fs, first):
        f = FR[fs]
        out = []
        for an in (0, 1):
            for i in (0, 1):
                acc = ACC + (an * 2 + i) * 16
                c = "0" if first else "v[%d:%d]" % (acc, acc + 15)
                out.append("%s v[%d:%d], v[%d:%d], v[%d:%d], %s" % (MFMA, acc, acc + 15, f + 8 + an * 4, f + 11 + an * 4,
                                                                   f + i * 4, f + i * 4 + 3, c))
        return out

    def adv(s, regs):
        d = PB[(s + 1) % 3] - PB[s % 3]
        return ["v_add_u32 v%d, %d, v%d" % (r, d, r) if d >= 0 else "v_subrev_u32 v%d, %d, v%d" % (r, -d, r) for r in regs]

    g_loads()
    stamp("pro")
    a("s_barrier")
    stamp("bar0")
    emit(rd_list(0, 0))
    fs = 0
    for s in range(8):
        for ks in range(4):
            ms = mfmas(fs, s == 0 and ks == 0)
            if ks < 3:
                nxt = rd_list(ks + 1, fs ^ 1)
                for q in range(4):
                    if q < 3:
                        a("s_waitcnt lgkmcnt(%d)" % (3 if q == 0 else 4))
                    a(ms[q])
                    emit(nxt[2 * q:2 * q + 2])
                    if s < 7 and q == 3:
                        regs = [vXr[ks], vW1[2 * ks], vW1[2 * ks + 1]]
                        if ks == 2:
                            regs += [vXr[3], vW1[6], vW1[7], vW0]
                        emit(adv(s, regs))
            else:
                if s < 7:
                    a("s_waitcnt lgkmcnt(3)")
                    a(ms[0])
                    a("s_waitcnt lgkmcnt(0)")
                    stamp("s%dv" % s)
                    a("s_barrier")
                    stamp("s%db" % s)
                    nxt = rd_list(0, fs ^ 1)
                    emit(nxt[0:3])
                    a(ms[1])
                    emit(nxt[3:6])
                    a(ms[2])
                    a(ms[3])
                    if s == 1:
                        g_job()
                else:
                    a("ds_read_b32 v%d, v4" % vGm[0])
                    a("ds_read_b32 v%d, v4 offset:128" % vGm[1])
                    a("s_waitcnt lgkmcnt(5)")
                    a(ms[0])
                    a("s_waitcnt lgkmcnt(2)")
                    emit(ms[1:])
            fs ^= 1
    stamp("g1end")
    a("s_bitcmp1_b32 s%d, 1" % sW)
    a("s_cselect_b64 vcc, -1, 0")
    a("v_mov_b32 v8, -1")
    a("v_mov_b32 v9, -1")
    a("v_mov_b32 v10, -1")
    a("v_mov_b32 v11, -1")
    a("s_waitcnt lgkmcnt(0)")
    a("buffer_store_dwordx4 v[8:11], v%d, s[%d:%d], s%d offen sc1" % (vL16, SWS, SWS + 3, sOffC))
    a("v_cndmask_b32 v%d, v%d, v%d, vcc" % (vGq, vGm[0], vGm[1]))
    a("v_sub_f32 v%d, 1.0, v%d" % (vGm[0], vGm[0]))
    a("v_sub_f32 v%d, 1.0, v%d" % (vGm[1], vGm[1]))
    a("v_mov_b32 v%d, v%d" % (vGm[0] + 1, vGm[0]))
    a("v_mov_b32 v%d, v%d" % (vGm[1] + 1, vGm[1]))

    def h_tile(an, i, d):
        t = ACC + (an * 2 + i) * 16
        for r in range(0, 8, 2):
            a("v_pk_mul_f32 v[%d:%d], v[%d:%d], v[%d:%d]" % (t + r, t + r + 1, t + r, t + r + 1, t + 8 + r, t + 9 + r))
        for r in range(0, 8, 2):
            a("v_pk_mul_f32 v[%d:%d], v[%d:%d], v[%d:%d]" % (t + r, t + r + 1, t + r, t + r + 1, vGm[i], vGm[i] + 1))
        for j in range(4):
            a("v_cvt_pk_bf16_f32 v%d, v%d, v%d" % (d + j, t + 2 * j, t + 2 * j + 1))
        a("buffer_store_dwordx4 v[%d:%d], v%d, s[%d:%d], s%d offen offset:%d sc1" % (d, d + 3, vL16, SWS, SWS + 3,
                                                                                    sOffA if i == 0 else sOffB, an * 1024))

    a("s_cmp_eq_u32 s%d, 3" % sT2)
    a("s_cbranch_scc1 L_EPI_Q")
    h_tile(1, 0, ACC + 40)
    h_tile(1, 1, ACC + 56)
    a("s_branch L_EPI_C")
    a.label("L_EPI_Q")
    a("v_mov_b32 v24, 0x%08x" % f32bits(QSCALE))
    a("v_mov_b32 v25, 0x%08x" % f32bits(QSCALE))
    a("s_lshr_b32 s%d, s%d, 2" % (sT2, sW))
    a("s_lshl_b32 s%d, s%d, 12" % (sT2, sT2))
    a("s_add_u32 s%d, s%d, %d" % (sT2, sT2, L_QX))
    a("v_add_u32 v%d, s%d, v%d" % (vT0, sT2, vL16))
    for i in (0, 1):
        t = ACC + (2 + i) * 16
        for r in range(0, 16, 2):
            a("v_pk_mul_f32 v[%d:%d], v[%d:%d], v[24:25]" % (t + r, t + r + 1, t + r, t + r + 1))
        d = FR[0] + 8 * i
        for j in range(8):
            a("v_cvt_pk_bf16_f32 v%d, v%d, v%d" % (d + j, t + 2 * j, t + 2 * j + 1))
        a("ds_write_b128 v%d, v[%d:%d] offset:%d" % (vT0, d, d + 3, i * 2048))
        a("ds_write_b128 v%d, v[%d:%d] offset:%d" % (vT0, d + 4, d + 7, i * 2048 + 1024))
    a.label("L_EPI_C")
    h_tile(0, 0, ACC + 44)
    h_tile(0, 1, ACC + 60)
    for r in range(16):
        a("v_mov_b32 v%d, v27" % (vVF[0] + r))
    a("v_mov_b32 v%d, v5" % vT0)
    a("v_mov_b32 v%d, v6" % vT1)
    a("s_waitcnt lgkmcnt(0)")
    a("s_barrier")
    stamp("Bq")
    a("ds_read_b128 v[%d:%d], v%d" % (vQ, vQ + 3, vT0))
    a("ds_read_b32 v%d, v%d" % (vT4, vT1))

    def rdK(buf, off):
        a("ds_read_b128 v[%d:%d], v%d offset:%d" % (vKF[buf], vKF[buf] + 3, vKa, off))

    def rdV(buf, off):
        a("s_mov_b64 exec, s[%d:%d]" % (sVm, sVm + 1))
        a("ds_read_b128 v[%d:%d], v%d offset:%d" % (vVF[buf], vVF[buf] + 3, vVa, off))
        a("ds_read_b128 v[%d:%d], v%d offset:%d" % (vVF[buf] + 4, vVF[buf] + 7, vVa, off + 512))
        a("s_mov_b64 exec, -1")

    def mS(sbuf, kbuf):
        a("%s v[%d:%d], v[%d:%d], v[%d:%d], v[%d:%d]" % (MFMA, vS[sbuf], vS[sbuf] + 15, vKF[kbuf], vKF[kbuf] + 3,
                                                        vQ, vQ + 3, vC, vC + 15))

    def mPV(vbuf, t):
        a("%s v[%d:%d], v[%d:%d], v[%d:%d], v[%d:%d]" % (MFMA, vO, vO + 15, vVF[vbuf] + 4 * t, vVF[vbuf] + 4 * t + 3,
                                                        vP + 4 * t, vP + 4 * t + 3, vO, vO + 15))

    def E(sb, r):
        a("v_exp_f32 v%d, v%d" % (vS[sb] + r, vS[sb] + r))

    def C(sb, j):
        a("v_cvt_pk_bf16_f32 v%d, v%d, v%d" % (vP + j, vS[sb] + 2 * j, vS[sb] + 2 * j + 1))

    rdK(0, 0)
    rdK(1, KVBLK)
    rdV(0, 0)
    a("s_waitcnt lgkmcnt(4)")
    a("v_mov_b32 v%d, 0" % vT3)
    for j in range(4):
        a("v_dot2_f32_bf16 v%d, v%d, v%d, v%d" % (vT3, vQ + j, vQ + j, vT3))
    a("s_mov_b32 s%d, 0x%08x" % (sT1, f32bits(900.0)))
    a("s_mov_b32 s%d, %d" % (sSkip, NBKV))
    a("s_mov_b32 s%d, 0" % sIt)
    a.nop(1)
    a("v_mov_b32 v%d, v%d" % (vT2, vT3))
    a.nop(2)
    a("v_permlane32_swap_b32 v%d, v%d" % (vT3, vT2))
    a.nop(1)
    a("v_add_f32 v%d, v%d, v%d" % (vT3, vT3, vT2))
    a("v_mul_f32 v%d, v%d, v%d" % (vT3, vT4, vT3))
    a("v_cmp_nge_f32 vcc, s%d, v%d" % (sT1, vT3))
    a("s_cmp_eq_u64 vcc, 0")
    a("s_cbranch_scc1 L_FAST")
    a("s_waitcnt vmcnt(0)")
    a("s_barrier")
    a("s_mov_b32 s%d, 99" % sSkip)
    a("v_mov_b32 v%d, 0xff800000" % vT0)
    a("v_mov_b32 v%d, v%d" % (vT1, vL16))
    a.label("L_MAXLOOP")
    a("ds_read_b128 v[%d:%d], v%d" % (vP, vP + 3, vT1))
    a("v_add_u32 v%d, %d, v%d" % (vT1, KVBLK, vT1))
    a("s_waitcnt lgkmcnt(0)")
    a("%s v[%d:%d], v[%d:%d], v[%d:%d], 0" % (MFMA, vS[0], vS[0] + 15, vP, vP + 3, vQ, vQ + 3))
    a.nop(16)
    for j in range(8):
        a("v_max3_f32 v%d, v%d, v%d, v%d" % (vT0, vS[0] + 2 * j, vS[0] + 2 * j + 1, vT0))
    a("s_add_u32 s%d, s%d, 1" % (sIt, sIt))
    a("s_cmp_lt_u32 s%d, 64" % sIt)
    a("s_cbranch_scc1 L_MAXLOOP")
    a("v_mov_b32 v%d, v%d" % (vT1, vT0))
    a("s_mov_b32 s%d, 0" % sIt)
    a.nop(1)
    a("v_permlane32_swap_b32 v%d, v%d" % (vT0, vT1))
    a.nop(2)
    a("v_max_f32 v%d, v%d, v%d" % (vT0, vT0, vT1))
    for r in range(16):
        a("v_sub_f32 v%d, 0, v%d" % (vC + r, vT0))
    a.label("L_FAST")
    a("s_waitcnt lgkmcnt(3)")
    a.nop(1)
    mS(0, 0)
    a.nop(12)
    a.label("L_LOOP")
    for bb in range(NB):
        p = bb & 1
        off = bb * KVBLK
        if PRIO and bb == 0:
            a("s_setprio 1")
        if PRIO and bb == 2:
            a("s_setprio 0")
        for r in range(6):
            E(p, r)
        C(p, 0)
        C(p, 1)
        a("s_waitcnt lgkmcnt(2)")
        mS(p ^ 1, p ^ 1)
        rdK(p, off + 2 * KVBLK)
        E(p, 6)
        E(p, 7)
        C(p, 2)
        E(p, 8)
        C(p, 3)
        E(p, 9)
        E(p, 10)
        E(p, 11)
        a("s_waitcnt lgkmcnt(1)")
        mPV(p, 0)
        C(p, 4)
        C(p, 5)
        for r in range(12, 16):
            E(p, r)
        C(p, 6)
        C(p, 7)
        rdV(p ^ 1, off + KVBLK)
        mPV(p, 1)
    a("v_add_u32 v%d, %d, v%d" % (vKa, NB * KVBLK, vKa))
    a("v_add_u32 v%d, %d, v%d" % (vVa, NB * KVBLK, vVa))
    a("s_add_u32 s%d, s%d, 1" % (sIt, sIt))
    a("s_cmp_lg_u32 s%d, s%d" % (sIt, sSkip))
    a("s_cbranch_scc1 L_NOBKV")
    a("s_waitcnt vmcnt(0)")
    a("s_barrier")
    stamp("bkv")
    a.label("L_NOBKV")
    a("s_cmp_lt_u32 s%d, 16" % sIt)
    a("s_cbranch_scc1 L_LOOP")
    stamp("attn")
    a.nop(6)
    a("v_rcp_f32 v%d, v%d" % (vT0, vO + 8))
    a("v_lshrrev_b32 v%d, 3, v0" % vT4)
    a("v_mul_f32 v%d, v%d, v%d" % (vT0, vT0, vGq))
    for r in range(8):
        a("v_mul_f32 v%d, v%d, v%d" % (vO + r, vO + r, vT0))
    for j in range(4):
        a("v_cvt_pk_bf16_f32 v%d, v%d, v%d" % (vO + 8 + j, vO + 2 * j, vO + 2 * j + 1))
    a("buffer_store_dwordx4 v[%d:%d], v%d, s[%d:%d], s%d offen sc1" % (vO + 8, vO + 11, vL16, SWS, SWS + 3, sOffC))
    a("s_waitcnt lgkmcnt(0)")
    a("s_barrier")
    stamp("b3")
    vR0, vR1, vOo = 8, 9, 10
    a("s_lshl_b32 s%d, s%d, 3" % (sT0, sW))
    a("v_add_u32 v%d, s%d, v%d" % (vT4, sT0, vT4))
    a("v_and_b32 v%d, 15, v%d" % (vT1, vT4))
    a("v_and_b32 v%d, 7, v0" % vT2)
    a("v_lshlrev_b32 v%d, 1, v%d" % (vT3, vT2))
    a("v_xor_b32 v%d, v%d, v%d" % (vT1, vT1, vT3))
    a("v_lshlrev_b32 v%d, 8, v%d" % (vT3, vT4))
    a("v_lshl_add_u32 v%d, v%d, 4, v%d" % (vR0, vT1, vT3))
    a("v_xor_b32 v%d, 16, v%d" % (vR1, vR0))
    a("v_lshlrev_b32 v%d, 10, v%d" % (vT4, vT4))
    a("v_lshl_add_u32 v%d, v%d, 4, v%d" % (vOo, vT2, vT4))
    a("s_lshl_b32 s%d, s%d, 16" % (sT0, sMB))
    a("s_lshl_b32 s%d, s%d, 7" % (sT1, sNB))
    a("s_add_u32 s%d, s%d, s%d" % (sT0, sT0, sT1))
    a("s_barrier")
    stamp("b4")
    FB = 32
    for k_ in range(4):
        a("ds_read_b128 v[%d:%d], v%d offset:%d" % (FB + 8 * k_, FB + 8 * k_ + 3, vR0, k_ * 16384))
        a("ds_read_b128 v[%d:%d], v%d offset:%d" % (FB + 8 * k_ + 4, FB + 8 * k_ + 7, vR1, k_ * 16384))
    for k_ in range(1, 4):
        a("s_waitcnt lgkmcnt(%d)" % (2 * (3 - k_)))
        for r in range(8):
            a("v_add_f32 v%d, v%d, v%d" % (FB + r, FB + r, FB + 8 * k_ + r))
    for j in range(4):
        a("v_cvt_pk_bf16_f32 v%d, v%d, v%d" % (FB + 8 + j, FB + 2 * j, FB + 2 * j + 1))
    a("buffer_store_dwordx4 v[%d:%d], v%d, s[%d:%d], s%d offen" % (FB + 8, FB + 11, vOo, SOUT, SOUT + 3, sT0))
    prof_flush()
    a("s_endpgm")

    role[0] = "H"
    a.label("L_HELPER")
    vXd0, vXd1 = 2, 3
    vWd = list(range(4, 12))
    vEv = 12
    vPl = 14
    vKX = 32
    vKA = 96
    vGX = 112
    vGW = 120
    a("s_setprio 3")
    a("s_sub_u32 s%d, s%d, 8" % (sH, sW))
    a("s_lshl_b32 s%d, s%d, 12" % (sM0x, sH))
    a("s_lshl_b32 s%d, s%d, 13" % (sM0w, sH))
    a("s_lshl_b32 s%d, s%d, 7" % (sT0, sMT))
    a("s_lshl_b32 s%d, s%d, 5" % (sT1, sH))
    a("s_add_u32 s%d, s%d, s%d" % (sT0, sT0, sT1))
    a("v_lshrrev_b32 v%d, 3, v0" % vT0)
    a("v_add_u32 v%d, s%d, v%d" % (vT0, sT0, vT0))
    a("v_lshlrev_b32 v%d, 10, v%d" % (vT0, vT0))
    a("v_and_b32 v%d, 7, v0" % vT1)
    a("v_lshrrev_b32 v%d, 4, v0" % vT2)
    a("v_xor_b32 v%d, v%d, v%d" % (vT1, vT1, vT2))
    a("v_lshl_add_u32 v%d, v%d, 4, v%d" % (vXd0, vT1, vT0))
    a("v_xor_b32 v%d, 64, v%d" % (vXd1, vXd0))
    a("v_add_u32 v%d, 0x2000, v%d" % (vXd1, vXd1))
    a("s_mul_i32 s%d, s%d, 224" % (sT2, sNT))
    a("s_movk_i32 s%d, 4682" % sT3)
    for j in range(8):
        if j == 4:
            a("s_cmp_eq_u32 s%d, 3" % sH)
            a("s_cbranch_scc1 L_WD_Q")
        a("s_lshl_b32 s%d, s%d, 3" % (sT0, sH))
        a("s_add_u32 s%d, s%d, %d" % (sT0, sT0, j))
        a("s_sub_u32 s%d, s%d, 14" % (sT1, sT0))
        a("s_cmp_ge_u32 s%d, 14" % sT0)
        a("s_cselect_b32 s%d, s%d, s%d" % (sT0, sT1, sT0))
        a("s_cselect_b32 s%d, 6, 0" % sOffA)
        a("s_lshl_b32 s%d, s%d, 6" % (sT0, sT0))
        a("v_add_u32 v%d, s%d, v0" % (vT0, sT0))
        a("v_mul_u32_u24 v%d, s%d, v%d" % (vT1, sT3, vT0))
        a("v_lshrrev_b32 v%d, 16, v%d" % (vT1, vT1))
        a("v_mul_u32_u24 v%d, 14, v%d" % (vT2, vT1))
        a("v_sub_u32 v%d, v%d, v%d" % (vT0, vT0, vT2))
        a("v_add_u32 v%d, s%d, v%d" % (vT0, sOffA, vT0))
        a("v_subrev_u32 v%d, 14, v%d" % (vT2, vT0))
        a("v_min_u32 v%d, v%d, v%d" % (vT0, vT0, vT2))
        a("v_mul_u32_u24 v%d, 0xe00, v%d" % (vT1, vT1))
        a("v_lshl_add_u32 v%d, v%d, 4, v%d" % (vT0, vT0, vT1))
        a("v_add_u32 v%d, s%d, v%d" % (vWd[j], sT2, vT0))
    a("s_mov_b32 s%d, %d" % (sStepB, 64 * 3584))
    a("s_branch L_WD_E")
    a.label("L_WD_Q")
    a("s_lshl_b32 s%d, s%d, 6" % (sT2, sNT))
    a("v_lshrrev_b32 v%d, 2, v0" % vT0)
    a("v_and_b32 v%d, 3, v0" % vT1)
    a("v_lshlrev_b32 v%d, 10, v%d" % (vT0, vT0))
    a("v_lshl_add_u32 v%d, v%d, 4, v%d" % (vT0, vT1, vT0))
    a("v_add_u32 v%d, s%d, v%d" % (vWd[4], sT2, vT0))
    for j in range(5, 8):
        a("v_add_u32 v%d, %d, v%d" % (vWd[j], (j - 4) * 16384, vWd[4]))
    a("s_mov_b32 s%d, 65536" % sStepB)
    a.label("L_WD_E")
    a("s_waitcnt lgkmcnt(0)")
    stamp("karg")
    srd(a, SX, P['x'], P['x'] + 1, 2097152)
    for S, lim, q in ((SA, 2, False), (SB, 2, True), (SC, 1, True)):
        a("s_cmp_lt_u32 s%d, %d" % (sH, lim))
        a("s_cselect_b32 s%d, s%d, s%d" % (S, P['wg'], P['wu']))
        a("s_cselect_b32 s%d, s%d, s%d" % (S + 1, P['wg'] + 1, P['wu'] + 1))
        a("s_mov_b32 s%d, 0x1c0000" % (S + 2))
        if q:
            a("s_cmp_eq_u32 s%d, 3" % sH)
            a("s_cselect_b32 s%d, s%d, s%d" % (S, P['wq'], S))
            a("s_cselect_b32 s%d, s%d, s%d" % (S + 1, P['wq'] + 1, S + 1))
            a("s_cselect_b32 s%d, 0x80000, s%d" % (S + 2, S + 2))
        a("s_mov_b32 s%d, 0x20000" % (S + 3))

    def dma_stage(s):
        b = PB[s % 3]
        a("s_mov_b32 s%d, %d" % (sOffA, s * 64 * 3584))
        a("s_mul_i32 s%d, s%d, %d" % (sOffB, sStepB, s))
        for j in range(8):
            S = SA if j < 4 else (SB if j < 6 else SC)
            a("s_add_u32 m0, s%d, %d" % (sM0w, b + OWG + j * 1024))
            if j % 2 == 0:
                i = j // 2
                a("s_movk_i32 s%d, %d" % (sT0, s * 128 + (i >> 1) * 16384))
            else:
                a("s_nop 0")
            a("buffer_load_dwordx4 v%d, s[%d:%d], s%d offen lds" % (vWd[j], S, S + 3, sOffA if j < 4 else sOffB))
            if j % 2 == 0:
                a("s_add_u32 m0, s%d, %d" % (sM0x, b + OX + i * 1024))
                a("s_nop 0")
                a("buffer_load_dwordx4 v%d, s[%d:%d], s%d offen lds" % (vXd1 if i & 1 else vXd0, SX, SX + 3, sT0))

    def kv_dma(first, n):
        for j in range(n):
            off = (first + 4 * j) * 1024
            a("s_add_u32 m0, s%d, %d" % (sKoff, off))
            a("s_add_u32 s%d, s%d, %d" % (sOffA, sKoff, WS_KV + off))
            a("buffer_load_dwordx4 v%d, s[%d:%d], s%d offen sc1 lds" % (vL16, SWS, SWS + 3, sOffA))

    srd(a, SDBG, P['dbg'], P['dbg'] + 1, 256)
    a("s_cmp_lg_u32 s2, 0")
    a("s_cbranch_scc1 L_NOTAG")
    a("s_cmp_lg_u32 s%d, 3" % sH)
    a("s_cbranch_scc1 L_NOTAG")
    a("s_or_b32 s%d, s88, 1" % sT0)
    a("v_mov_b32 v%d, s%d" % (vT0, sT0))
    a("v_mov_b32 v%d, 0" % vT1)
    a("s_mov_b64 exec, 1")
    a("buffer_store_dword v%d, v%d, s[%d:%d], 0 offen sc1" % (vT0, vT1, SDBG, SDBG + 3))
    a("s_mov_b64 exec, -1")
    a.label("L_NOTAG")
    dma_stage(0)
    stamp("d0")
    dma_stage(1)
    stamp("d1")
    srd(a, SWS, P['ws'], P['ws'] + 1, WS_SIZE)
    a("s_lshl_b32 s%d, s%d, 10" % (sKoff, sH))
    a("s_lshl_b32 s%d, s%d, 4" % (sSlot, sMT))
    a("s_add_u32 s%d, s%d, s%d" % (sSlot, sSlot, sNT))
    a("s_lshl_b32 s%d, s%d, 7" % (sSlot, sSlot))
    a("s_and_b32 s%d, s%d, 3" % (sRB, sNT))
    a("s_lshr_b32 s%d, s%d, 2" % (sT0, sNT))
    a("s_add_u32 s%d, s%d, 1" % (sKV, sT0))
    a("s_cmp_ge_u32 s%d, 8" % sNT)
    a("s_cselect_b32 s%d, 0, s%d" % (sKV, sKV))
    a("s_cmp_eq_u32 s%d, 0" % sH)
    a("s_cselect_b32 s%d, s%d, 0" % (sSkip, sKV))
    a("s_cmp_eq_u32 s%d, 1" % sKV)
    a("s_cselect_b32 s%d, s%d, s%d" % (SE, P['wk'], P['wv']))
    a("s_cselect_b32 s%d, s%d, s%d" % (SE + 1, P['wk'] + 1, P['wv'] + 1))
    a("s_mov_b32 s%d, 16384" % (SE + 2))
    a("s_mov_b32 s%d, 0x20000" % (SE + 3))
    a("v_lshrrev_b32 v%d, 4, v0" % vT0)
    a("v_and_b32 v%d, 15, v0" % vT1)
    a("v_xor_b32 v%d, v%d, v%d" % (vT1, vT1, vT0))
    a("v_lshlrev_b32 v%d, 10, v%d" % (vT0, vT0))
    a("v_lshl_add_u32 v18, v%d, 4, v%d" % (vT1, vT0))
    a("s_lshl_b32 s%d, s%d, 2" % (sT0, sMT))
    a("s_add_u32 s%d, s%d, s%d" % (sT0, sT0, sRB))
    a("s_lshl_b32 s%d, s%d, 15" % (sT0, sT0))
    a("s_lshl_b32 s%d, s%d, 8" % (sT1, sH))
    a("s_add_u32 s%d, s%d, s%d" % (sOffC, sT0, sT1))
    a("s_waitcnt vmcnt(12)")
    stamp("w0")
    a("s_barrier")
    a("v_mov_b32 v%d, 0" % vT0)
    a("buffer_load_dword v%d, v%d, s[%d:%d], 0 offen sc1" % (vEv, vT0, SDBG, SDBG + 3))
    a("s_cmp_eq_u32 s%d, 0" % sKV)
    a("s_cbranch_scc1 L_I0_N")
    a("s_add_u32 m0, s%d, %d" % (sM0x, PB[2] + OX))
    a("s_nop 0")
    for j in range(4):
        a("buffer_load_dwordx4 v%d, s[%d:%d], s%d offen offset:%d lds" % (vL16, SE, SE + 3, sM0x, j * 1024))
    for p_ in range(8):
        a("s_add_u32 m0, s%d, %d" % (sM0w, PB[2] + OWG + p_ * 1024))
        a("v_xor_b32 v%d, %d, v18" % (vT0, (p_ & 3) * 64))
        a("s_add_u32 s%d, s%d, %d" % (sT0, sOffC, p_ * 4096))
        a("buffer_load_dwordx4 v%d, s[%d:%d], s%d offen lds" % (vT0, SX, SX + 3, sT0))
    a("v_lshrrev_b32 v%d, 5, v0" % vT1)
    a("v_bfe_u32 v%d, v0, 2, 2" % vT2)
    a("v_lshl_add_u32 v%d, v%d, 3, v%d" % (vT3, vT1, vT2))
    a("v_and_b32 v%d, 3, v0" % vT2)
    a("v_lshlrev_b32 v%d, 5, v%d" % (vT3, vT3))
    a("v_lshl_add_u32 v%d, v%d, 3, v%d" % (vT3, vT2, vT3))
    a("s_add_u32 s%d, s%d, %d" % (sT0, sM0x, PB[2] + OX))
    a("v_add_u32 v19, s%d, v%d" % (sT0, vT3))
    a("v_and_b32 v%d, 31, v0" % vT2)
    a("v_and_b32 v%d, 15, v0" % vT3)
    a("v_xor_b32 v%d, v%d, v%d" % (vT1, vT1, vT3))
    a("v_lshlrev_b32 v%d, 8, v%d" % (vT2, vT2))
    a("v_lshl_add_u32 v%d, v%d, 4, v%d" % (vT2, vT1, vT2))
    a("s_add_u32 s%d, s%d, %d" % (sT0, sM0w, PB[2] + OWG))
    a("v_add_u32 v20, s%d, v%d" % (sT0, vT2))
    a("v_and_b32 v%d, 16, v0" % vT1)
    a("v_cmp_eq_u32 vcc, 0, v%d" % vT1)
    a("s_waitcnt vmcnt(13)")
    stamp("w1")
    a("s_barrier")
    a("s_waitcnt vmcnt(0)")
    vKW = 128
    for ks in range(8):
        a("v_xor_b32 v%d, %d, v20" % (vT0, ks * 32))
        a("ds_read_b128 v[%d:%d], v%d" % (vKX + 4 * ks, vKX + 4 * ks + 3, vT0))
    for ks in range(8):
        if ks in (3, 6):
            a("s_waitcnt lgkmcnt(8)")
        for u in range(2):
            a("ds_read_b64_tr_b16 v[%d:%d], v19 offset:%d" % (vKW + 4 * ks + 2 * u, vKW + 4 * ks + 2 * u + 1, (16 * ks + 4 * u) * 32))
    a("s_waitcnt lgkmcnt(0)")
    a("s_cmp_eq_u32 s%d, 2" % sKV)
    a("s_cbranch_scc1 L_SJ_V")
    for ks in range(8):
        c = "0" if ks == 0 else "v[%d:%d]" % (vKA, vKA + 15)
        a("%s v[%d:%d], v[%d:%d], v[%d:%d], %s" % (MFMA, vKA, vKA + 15, vKW + 4 * ks, vKW + 4 * ks + 3,
                                                   vKX + 4 * ks, vKX + 4 * ks + 3, c))
    a("s_mov_b64 vcc, -1")
    a("s_branch L_SJ_W")
    a.label("L_SJ_V")
    for ks in range(8):
        c = "0" if ks == 0 else "v[%d:%d]" % (vKA, vKA + 15)
        a("%s v[%d:%d], v[%d:%d], v[%d:%d], %s" % (MFMA, vKA, vKA + 15, vKX + 4 * ks, vKX + 4 * ks + 3,
                                                   vKW + 4 * ks, vKW + 4 * ks + 3, c))
    a.label("L_SJ_W")
    dma_stage(2)
    for r in range(8):
        a("v_cndmask_b32 v%d, v%d, v%d, vcc" % (vKA + r, vKA + 8 + r, vKA + r))
    a("s_lshr_b32 s%d, s%d, 1" % (sT0, sM0x))
    a("s_add_u32 s%d, s%d, %d" % (sT0, sT0, L_TOP))
    a("v_add_u32 v%d, s%d, v%d" % (vT1, sT0, vL16))
    a("ds_write_b128 v%d, v[%d:%d]" % (vT1, vKA, vKA + 3))
    a("ds_write_b128 v%d, v[%d:%d] offset:1024" % (vT1, vKA + 4, vKA + 7))
    a("s_branch L_I1")
    a.label("L_I0_N")
    dma_stage(2)
    a("s_waitcnt vmcnt(13)")
    a("s_barrier")
    a.label("L_I1")
    dma_stage(3)
    a("s_waitcnt vmcnt(12) lgkmcnt(0)")
    stamp("w2")
    a("s_barrier")
    a("s_mov_b32 s%d, 0" % sSpin)
    a.label("L_GE_L")
    a("v_readfirstlane_b32 s%d, v%d" % (sE, vEv))
    a("s_cmp_lg_u32 s%d, 0" % sE)
    a("s_cbranch_scc1 L_GE_E")
    spin_tail("L_GE_E")
    a("v_mov_b32 v%d, 0" % vT0)
    a("buffer_load_dword v%d, v%d, s[%d:%d], 0 offen sc1" % (vEv, vT0, SDBG, SDBG + 3))
    a("s_waitcnt vmcnt(0)")
    a("s_branch L_GE_L")
    a.label("L_GE_E")
    a("s_cmp_eq_u32 s%d, 0" % sSkip)
    a("s_cbranch_scc1 L_I2_N")
    a("v_add_u32 v%d, %d, v%d" % (vT2, L_TOP + 2048, vL16))
    for j in range(3):
        a("ds_read_b128 v[%d:%d], v%d offset:%d" % (vKX + 8 * j, vKX + 8 * j + 3, vT2, j * 2048))
        a("ds_read_b128 v[%d:%d], v%d offset:%d" % (vKX + 8 * j + 4, vKX + 8 * j + 7, vT2, j * 2048 + 1024))
    a("s_lshl_b32 s%d, s%d, 2" % (sT0, sMT))
    a("s_add_u32 s%d, s%d, s%d" % (sT0, sT0, sRB))
    a("s_lshl_b32 s%d, s%d, 11" % (sT1, sT0))
    a("s_waitcnt lgkmcnt(0)")
    for j in range(3):
        for r in range(8):
            a("v_add_f32 v%d, v%d, v%d" % (vKA + r, vKA + r, vKX + 8 * j + r))
    for j in range(4):
        a("v_cvt_pk_bf16_f32 v%d, v%d, v%d" % (vKA + 8 + j, vKA + 2 * j, vKA + 2 * j + 1))
    a("s_cmp_eq_u32 s%d, 2" % sKV)
    a("s_cbranch_scc1 L_KF_V")
    a("buffer_store_dwordx4 v[%d:%d], v%d, s[%d:%d], s%d offen offset:%d sc1" % (vKA + 8, vKA + 11, vL16, SWS, SWS + 3, sT1, WS_KV))
    a("v_mov_b32 v%d, 0" % vT1)
    for j in range(4):
        a("v_dot2_f32_bf16 v%d, v%d, v%d, v%d" % (vT1, vKA + 8 + j, vKA + 8 + j, vT1))
    a.nop(3)
    a("v_mov_b32 v%d, v%d" % (vT2, vT1))
    a.nop(2)
    a("v_permlane32_swap_b32 v%d, v%d" % (vT1, vT2))
    a.nop(2)
    a("v_add_f32 v%d, v%d, v%d" % (vPl, vT1, vT2))
    wave_reduce(a, "v_max_f32", vPl)
    a("s_branch L_I2_X")
    a.label("L_KF_V")
    a("v_bfe_u32 v%d, v0, 4, 1" % vT1)
    a("v_lshrrev_b32 v%d, 5, v0" % vT2)
    a("v_lshl_add_u32 v%d, v%d, 1, v%d" % (vT1, vT1, vT2))
    a("v_and_b32 v%d, 15, v0" % vT2)
    a("v_lshlrev_b32 v%d, 8, v%d" % (vT1, vT1))
    a("v_lshl_add_u32 v%d, v%d, 4, v%d" % (vT1, vT2, vT1))
    a("buffer_store_dwordx4 v[%d:%d], v%d, s[%d:%d], s%d offen offset:%d sc1" % (vKA + 8, vKA + 11, vT1, SWS, SWS + 3, sT1, WS_KV + 1024))
    a("v_max3_f32 v%d, |v%d|, |v%d|, |v%d|" % (vT4, vKA, vKA + 1, vKA + 2))
    a("v_max3_f32 v%d, |v%d|, |v%d|, v%d" % (vT4, vKA + 3, vKA + 4, vT4))
    a("v_max3_f32 v%d, |v%d|, |v%d|, v%d" % (vT4, vKA + 5, vKA + 6, vT4))
    a("v_max_f32 v%d, |v%d|, v%d" % (vT4, vKA + 7, vT4))
    a("s_mov_b32 s%d, 0x%08x" % (sT2, f32bits(2.0 ** 60)))
    a("v_cmp_lt_f32 vcc, s%d, v%d" % (sT2, vT4))
    a.nop(1)
    a("s_cmp_lg_u64 vcc, 0")
    a("s_cselect_b32 s%d, 0x7f800000, 0" % sT2)
    a("v_mov_b32 v%d, s%d" % (vPl, sT2))
    a.label("L_I2_X")
    a.label("L_I2_N")
    dma_stage(4)
    a("s_waitcnt vmcnt(12)")
    a("s_cmp_eq_u32 s%d, 0" % sSkip)
    a("s_cbranch_scc1 L_KG_E")
    a("s_lshl_b32 s%d, s%d, 2" % (sT0, sMT))
    a("s_add_u32 s%d, s%d, s%d" % (sT0, sT0, sRB))
    a("s_lshl_b32 s%d, s%d, 1" % (sT0, sT0))
    a("s_add_u32 s%d, s%d, s%d" % (sT0, sT0, sKV))
    a("s_lshl_b32 s%d, s%d, 7" % (sT0, sT0))
    a("s_add_u32 s%d, s%d, %d" % (sT0, sT0, WS_KFL - 128))
    a("v_mov_b32 v%d, s%d" % (vPl + 1, sE))
    a("v_mov_b32 v%d, 0" % vT2)
    a("s_mov_b32 exec_lo, 0")
    a("s_mov_b32 exec_hi, 0x80000000")
    a("buffer_store_dwordx2 v[%d:%d], v%d, s[%d:%d], s%d offen sc1" % (vPl, vPl + 1, vT2, SWS, SWS + 3, sT0))
    a("s_mov_b64 exec, -1")
    a.label("L_KG_E")
    stamp("w3")
    a("s_barrier")
    a("s_cmp_lg_u32 s%d, 1" % sH)
    a("s_cbranch_scc1 L_I3_N")
    a("v_and_b32 v%d, 7, v0" % vT1)
    a("v_lshlrev_b32 v%d, 2, v%d" % (vT1, vT1))
    a("v_add_u32 v%d, %d, v%d" % (vT1, L_G8, vT1))
    a("ds_read_b32 v%d, v%d" % (vPl, vT1))
    a("v_mov_b32 v%d, s%d" % (vPl + 1, sE))
    a("v_lshlrev_b32 v%d, 3, v0" % vT1)
    a("s_add_u32 s%d, s%d, %d" % (sT0, sSlot, WS_G))
    a("s_waitcnt lgkmcnt(0)")
    a("s_mov_b64 exec, 0xff")
    a("buffer_store_dwordx2 v[%d:%d], v%d, s[%d:%d], s%d offen sc1" % (vPl, vPl + 1, vT1, SWS, SWS + 3, sT0))
    a("s_mov_b64 exec, -1")
    a("s_mov_b32 s%d, 1" % sSkip)
    a.label("L_I3_N")
    dma_stage(5)
    a("s_waitcnt vmcnt(13)")
    a("s_cmp_lg_u32 s%d, 0" % sSkip)
    a("s_cbranch_scc1 L_I3_E")
    a("s_waitcnt vmcnt(12)")
    a.label("L_I3_E")
    stamp("w4")
    a("s_barrier")
    dma_stage(6)
    a("s_waitcnt vmcnt(12)")
    stamp("w5")
    a("s_barrier")
    kvpoll = ["buffer_load_dwordx2 v[%d:%d], v%d, s[%d:%d], s%d offen sc1" % (vPl, vPl + 1, vT4, SWS, SWS + 3, sOffC),
              "buffer_load_dwordx2 v[%d:%d], v%d, s[%d:%d], s%d offen offset:128 sc1" % (vPl + 2, vPl + 3, vT4, SWS, SWS + 3, sOffC)]
    dma_stage(7)
    a("s_waitcnt vmcnt(12)")
    stamp("w6")
    a("s_barrier")
    a("s_cmp_lg_u32 s%d, 2" % sH)
    a("s_cbranch_scc1 L_EC_X")
    a("v_lshlrev_b32 v%d, 8, v0" % vT4)
    a("s_mov_b32 s%d, %d" % (sOffC, WS_KFL))
    a("s_mov_b32 s%d, 0" % sSpin)
    a.label("L_EC_L")
    emit(kvpoll)
    a("s_waitcnt vmcnt(0)")
    a("v_cmp_ne_u32 vcc, s%d, v%d" % (sE, vPl + 1))
    a("v_cmp_ne_u32 s[%d:%d], s%d, v%d" % (sT0, sT1, sE, vPl + 3))
    a("s_or_b64 vcc, vcc, s[%d:%d]" % (sT0, sT1))
    a("s_cbranch_scc0 L_EC_E")
    spin_tail("L_EC_E", 2)
    a("s_branch L_EC_L")
    a.label("L_EC_E")
    a("v_max_f32 v%d, v%d, v%d" % (vT1, vPl, vPl + 2))
    wave_reduce(a, "v_max_f32", vT1)
    a("v_mov_b32 v%d, %d" % (vT2, L_KMAX))
    a("s_mov_b32 exec_lo, 0")
    a("s_mov_b32 exec_hi, 0x80000000")
    a("ds_write_b32 v%d, v%d" % (vT2, vT1))
    a("s_mov_b64 exec, -1")
    a("s_waitcnt lgkmcnt(0)")
    a.label("L_EC_X")
    a("s_cmp_lg_u32 s%d, 3" % sH)
    a("s_cbranch_scc1 L_GP_X")
    gl = ["buffer_load_dwordx2 v[%d:%d], v%d, s[%d:%d], s%d offen sc1" % (vPl, vPl + 1, vT3, SWS, SWS + 3, sOffD),
          "buffer_load_dwordx2 v[%d:%d], v%d, s[%d:%d], s%d offen offset:1024 sc1" % (vPl + 2, vPl + 3, vT3, SWS, SWS + 3, sOffD)]
    a("v_lshrrev_b32 v%d, 3, v0" % vT3)
    a("v_and_b32 v%d, 7, v0" % vT1)
    a("v_lshlrev_b32 v%d, 7, v%d" % (vT3, vT3))
    a("v_lshl_add_u32 v%d, v%d, 3, v%d" % (vT3, vT1, vT3))
    a("s_lshl_b32 s%d, s%d, 11" % (sT1, sMT))
    a("s_add_u32 s%d, s%d, %d" % (sOffD, sT1, WS_G))
    a("s_mov_b32 s%d, 0" % sSpin)
    a.label("L_GP_L")
    emit(gl)
    a("s_waitcnt vmcnt(0)")
    a("v_cmp_ne_u32 vcc, s%d, v%d" % (sE, vPl + 1))
    a("v_cmp_ne_u32 s[%d:%d], s%d, v%d" % (sT0, sT1, sE, vPl + 3))
    a("s_or_b64 vcc, vcc, s[%d:%d]" % (sT0, sT1))
    a("s_cbranch_scc0 L_GP_E")
    spin_tail("L_GP_E")
    a("s_branch L_GP_L")
    a.label("L_GP_E")
    a("v_lshlrev_b32 v%d, 2, v0" % vT1)
    a("v_add_u32 v%d, %d, v%d" % (vT1, L_GROW, vT1))
    a("ds_write_b32 v%d, v%d" % (vT1, vPl))
    a("ds_write_b32 v%d, v%d offset:256" % (vT1, vPl + 2))
    a.label("L_GP_X")
    a("s_waitcnt vmcnt(0) lgkmcnt(0)")
    stamp("w7")
    a("s_barrier")
    kv_dma(0, 12)
    vWs, vB0, vB1, vTr0, vTr1, vPa, vPoll = 2, 3, 4, 5, 6, 7, 8
    vFA = 24
    vFB = 32
    AC2 = 64
    vWo = 128
    for r in range(64):
        a("v_mov_b32 v%d, 0" % (AC2 + r))
    a("v_bfe_u32 v%d, v0, 4, 1" % vT1)
    a("v_and_b32 v%d, 7, v0" % vT2)
    a("v_lshlrev_b32 v%d, 2, v%d" % (vT1, vT1))
    a("v_xor_b32 v%d, v%d, v%d" % (vT1, vT1, vT2))
    a("v_lshrrev_b32 v%d, 3, v0" % vT2)
    a("v_lshlrev_b32 v%d, 10, v%d" % (vT2, vT2))
    a("v_lshl_add_u32 v%d, v%d, 4, v%d" % (vT1, vT1, vT2))
    a("s_lshl_b32 s%d, s%d, 14" % (sT0, sH))
    a("s_lshl_b32 s%d, s%d, 7" % (sT1, sNB))
    a("s_add_u32 s%d, s%d, s%d" % (sT0, sT0, sT1))
    a("v_add_u32 v%d, s%d, v%d" % (vWs, sT0, vT1))
    a("v_lshrrev_b32 v%d, 5, v0" % vT0)
    a("v_bfe_u32 v%d, v0, 2, 2" % vT1)
    a("v_lshl_add_u32 v%d, v%d, 2, v%d" % (vT2, vT0, vT1))
    a("v_lshlrev_b32 v%d, 7, v%d" % (vT2, vT2))
    a("v_bfe_u32 v%d, v0, 3, 1" % vT1)
    a("v_lshl_add_u32 v%d, v%d, 6, v%d" % (vT2, vT1, vT2))
    a("v_bfe_u32 v%d, v0, 4, 1" % vT1)
    a("v_lshl_add_u32 v%d, v%d, 5, v%d" % (vT2, vT1, vT2))
    a("v_and_b32 v%d, 3, v0" % vT1)
    a("v_lshl_add_u32 v%d, v%d, 3, v%d" % (vT2, vT1, vT2))
    a("s_add_u32 s%d, s%d, %d" % (sScr, sM0w, L_SCR))
    a("v_add_u32 v%d, s%d, v%d" % (vTr0, sScr, vT2))
    a("v_xor_b32 v%d, 64, v%d" % (vTr1, vTr0))
    a("s_mul_i32 s%d, s%d, 288" % (sT0, sMB))
    a("s_add_u32 s%d, s%d, s%d" % (sT0, sT0, sH))
    a("s_lshl_b32 s%d, s%d, 10" % (sT0, sT0))
    a("s_add_u32 s%d, s%d, %d" % (sT0, sT0, WS_AF))
    a("v_add_u32 v%d, s%d, v%d" % (vB0, sT0, vL16))
    a("v_add_u32 v%d, %d, v%d" % (vB1, 144 * 1024, vB0))
    a("v_and_b32 v%d, 15, v0" % vPa)
    a("v_lshlrev_b32 v%d, 7, v%d" % (vPa, vPa))
    srd(a, SA, P['wd'], P['wd'] + 1, 0x1c0000)
    srd(a, SB, P['wo'], P['wo'] + 1, 0x80000)
    a("s_waitcnt vmcnt(0)")
    stamp("w8")
    a("s_barrier")
    kv_dma(48, 20)
    a("s_waitcnt vmcnt(0)")
    stamp("w9")
    a("s_barrier")
    stamp("bkv")
    a("s_setprio %d" % HPRIO)
    a("s_cmp_lg_u32 s%d, 0" % sH)
    a("s_cbranch_scc1 L_NOHF")
    a("v_mov_b32 v%d, 0" % vT3)
    a("v_mov_b32 v%d, s%d" % (vT2, sE))
    a("s_add_u32 s%d, s%d, %d" % (sT0, sSlot, WS_HFL))
    a("s_mov_b64 exec, 1")
    a("buffer_store_dword v%d, v%d, s[%d:%d], s%d offen sc1" % (vT2, vT3, SWS, SWS + 3, sT0))
    a("s_mov_b64 exec, -1")
    a.label("L_NOHF")

    def w_dma(S, slot, soff, extra):
        for u in range(2):
            a("s_add_u32 m0, s%d, %d" % (sScr, slot * 2048 + u * 1024))
            if soff is None:
                a("s_mov_b32 s%d, %d" % (sT0, extra + u * 8192))
            else:
                a("s_add_u32 s%d, s%d, %d" % (sT0, soff, extra + u * 8192))
            a("buffer_load_dwordx4 v%d, s[%d:%d], s%d offen lds" % (vWs, S, S + 3, sT0))

    def b_loads(slot, soff, extra):
        a("s_add_u32 s%d, s%d, %d" % (sT0, soff, extra))
        a("buffer_load_dwordx4 v[%d:%d], v%d, s[%d:%d], s%d offen sc1" % (vFB + 8 * slot, vFB + 8 * slot + 3, vB0, SWS, SWS + 3, sT0))
        a("buffer_load_dwordx4 v[%d:%d], v%d, s[%d:%d], s%d offen sc1" % (vFB + 8 * slot + 4, vFB + 8 * slot + 7, vB1, SWS, SWS + 3, sT0))

    def tr_reads(dst, slot):
        for an, ad in enumerate((vTr0, vTr1)):
            for u in range(2):
                a("ds_read_b64_tr_b16 v[%d:%d], v%d offset:%d" % (dst + 4 * an + 2 * u, dst + 4 * an + 2 * u + 1, ad,
                                                                 slot * 2048 + u * 1024))

    def m1(fa, fb, an, i):
        acc = AC2 + (an * 2 + i) * 16
        a("%s v[%d:%d], v[%d:%d], v[%d:%d], v[%d:%d]" % (MFMA, acc, acc + 15, fa + 4 * an, fa + 4 * an + 3,
                                                        fb + 4 * i, fb + 4 * i + 3, acc, acc + 15))

    def mm(fa, fb):
        for an in (0, 1):
            for i in (0, 1):
                m1(fa, fb, an, i)

    for j in range(4):
        w_dma(SB, j, None, j * 65536)
    a("s_waitcnt vmcnt(0)")
    for j in range(4):
        tr_reads(vWo + 8 * j, j)
        a("s_waitcnt lgkmcnt(4)")
    a("s_waitcnt lgkmcnt(0)")
    a("s_lshr_b32 s%d, s%d, 1" % (sT0, sMB))
    a("s_lshl_b32 s%d, s%d, 11" % (sT0, sT0))
    a("s_add_u32 s%d, s%d, %d" % (sOffA, sT0, WS_HFL))
    a("s_mov_b32 s%d, 0" % sSpin)
    a.label("L_HP_L")
    a("buffer_load_dword v%d, v%d, s[%d:%d], s%d offen sc1" % (vPoll, vPa, SWS, SWS + 3, sOffA))
    a("s_waitcnt vmcnt(0)")
    a("v_cmp_ne_u32 vcc, s%d, v%d" % (sE, vPoll))
    a("s_cmp_eq_u64 vcc, 0")
    a("s_cbranch_scc1 L_HP_E")
    spin_tail("L_HP_E", 4)
    a("s_branch L_HP_L")
    a.label("L_HP_E")
    stamp("hpoll")
    a("s_mov_b32 s%d, 0" % sOffB)
    a("s_mov_b32 s%d, %d" % (sOffC, 8 * 4096))
    for j in range(4):
        w_dma(SA, j, sOffB, j * 65536)
        b_loads(j, sOffC, j * 4096)
    a("s_mov_b32 s%d, 0" % sIt)
    a.label("L_FFN")
    for j in range(4):
        a("s_waitcnt vmcnt(12)")
        tr_reads(vFA, j)
        a("s_waitcnt lgkmcnt(0)")
        fb = vFB + 8 * j
        m1(vFA, fb, 0, 0)
        a("s_add_u32 m0, s%d, %d" % (sScr, j * 2048))
        a("s_add_u32 s%d, s%d, %d" % (sT0, sOffB, (4 + j) * 65536))
        a("buffer_load_dwordx4 v%d, s[%d:%d], s%d offen lds" % (vWs, SA, SA + 3, sT0))
        m1(vFA, fb, 1, 0)
        a("s_add_u32 m0, s%d, %d" % (sScr, j * 2048 + 1024))
        a("s_add_u32 s%d, s%d, %d" % (sT0, sOffB, (4 + j) * 65536 + 8192))
        a("buffer_load_dwordx4 v%d, s[%d:%d], s%d offen lds" % (vWs, SA, SA + 3, sT0))
        m1(vFA, fb, 0, 1)
        a("s_add_u32 s%d, s%d, %d" % (sT0, sOffC, (4 + j) * 4096))
        a("buffer_load_dwordx4 v[%d:%d], v%d, s[%d:%d], s%d offen sc1" % (fb, fb + 3, vB0, SWS, SWS + 3, sT0))
        m1(vFA, fb, 1, 1)
        a("buffer_load_dwordx4 v[%d:%d], v%d, s[%d:%d], s%d offen sc1" % (fb + 4, fb + 7, vB1, SWS, SWS + 3, sT0))
    a("s_add_u32 s%d, s%d, %d" % (sOffB, sOffB, 4 * 65536))
    a("s_add_u32 s%d, s%d, %d" % (sOffC, sOffC, 4 * 4096))
    a("s_add_u32 s%d, s%d, 1" % (sIt, sIt))
    a("s_cmp_lt_u32 s%d, %d" % (sIt, int(os.environ.get("NFFN", "7"))))
    a("s_cbranch_scc1 L_FFN")
    a("s_waitcnt vmcnt(0)")
    stamp("ffn")
    for j in range(4):
        w_dma(SB, j, None, (4 + j) * 65536)
    a("v_and_b32 v%d, 31, v0" % vT0)
    a("v_lshrrev_b32 v%d, 5, v0" % vT1)
    a("v_and_b32 v%d, 15, v0" % vT3)
    a("v_xor_b32 v%d, v%d, v%d" % (vT1, vT1, vT3))
    a("v_lshlrev_b32 v%d, 8, v%d" % (vT0, vT0))
    a("v_lshl_add_u32 v%d, v%d, 4, v%d" % (vT0, vT1, vT0))
    a("s_lshl_b32 s%d, s%d, 14" % (sT1, sH))
    a("v_add_u32 v%d, s%d, v%d" % (vT0, sT1, vT0))
    for q in range(8):
        a("v_xor_b32 v%d, %d, v%d" % (9 + q, q * 32, vT0))
    a("s_mov_b32 s%d, 0" % sOffC)
    a("s_waitcnt vmcnt(0)")
    a("s_barrier")
    stamp("b3")
    a("s_setprio 3")
    for j in range(4):
        b_loads(j, sOffC, j * 4096)
    for j in range(8):
        sl = j & 3
        fb = vFB + 8 * sl
        a("s_waitcnt vmcnt(%d)" % (6 if j < 5 else 2 * (7 - j)))
        a("s_mov_b32 s%d, 0" % sSpin)
        a.label("L_OP%d_L" % j)
        a("v_max3_u32 v%d, v%d, v%d, v%d" % (vT0, fb, fb + 1, fb + 2))
        a("v_max3_u32 v%d, v%d, v%d, v%d" % (vT1, fb + 3, fb + 4, fb + 5))
        a("v_max3_u32 v%d, v%d, v%d, v%d" % (vT0, fb + 6, fb + 7, vT0))
        a("v_max_u32 v%d, v%d, v%d" % (vT0, vT0, vT1))
        a("v_cmp_eq_u32 vcc, -1, v%d" % vT0)
        a("s_cmp_eq_u64 vcc, 0")
        a("s_cbranch_scc1 L_OP%d_E" % j)
        spin_tail("L_OP%d_E" % j)
        b_loads(sl, sOffC, j * 4096)
        a("s_waitcnt vmcnt(0)")
        a("s_branch L_OP%d_L" % j)
        a.label("L_OP%d_E" % j)
        if j in (0, 7):
            stamp("op%d" % j)
        if j >= 4:
            a("s_waitcnt lgkmcnt(%d)" % (4 * (7 - j)))
        mm(vWo + 8 * sl, fb)
        if j < 4:
            b_loads(sl, sOffC, (4 + j) * 4096)
            if j == 3:
                a("s_waitcnt lgkmcnt(8)")
            tr_reads(vWo + 8 * sl, sl)
    a.nop(9)
    for an in (0, 1):
        for i in (0, 1):
            if (an, i) != (0, 0):
                a.nop(4)
            for q in range(4):
                acc = AC2 + (an * 2 + i) * 16 + 4 * q
                a("ds_write_b128 v%d, v[%d:%d] offset:%d" % (9 + an * 4 + q, acc, acc + 3, i * 8192))
        a("s_waitcnt lgkmcnt(4)")
    a("s_waitcnt lgkmcnt(0)")
    stamp("pw")
    a("s_barrier")
    prof_flush()
    a.label("L_END")
    a("s_endpgm")
    if PROF:
        open("stamps.txt", "w").write(" ".join(stamp_names["M"]) + "\n" + " ".join(stamp_names["H"]))
    kernel_desc(a, name, 168, 102)
    return "; @launch grid=(256,1,1) block=(768,1,1) lds=%d" % LDS_BYTES


def main():
    out = sys.argv[1] if len(sys.argv) > 1 else "cdna_kernels/%s.s" % NAME
    a = Asm()
    a.raw(".amdgcn_target \"amdgcn-amd-amdhsa--gfx950\"")
    launch = gen(a)
    hdr = ["; generated by work/gen5.py (hand-designed kernel, laid out by script)", launch]
    open(out, "w").write("\n".join(hdr) + "\n" + a.text())


if __name__ == "__main__":
    main()
```

```python
import sys, math, os
from gen import Asm, f32bits, kernel_begin, kernel_desc, srd, wave_reduce, MFMA, NAME, QSCALE

PROF = int(os.environ.get("PROF", "0"))
PRIO = int(os.environ.get("PRIO", "1"))
DIAG = int(os.environ.get("DIAG", "0"))
TOUCH = int(os.environ.get("TOUCH", "1"))
PREF = int(os.environ.get("PREF", "1"))
PFLATE = int(os.environ.get("PFLATE", "1"))
CODEPF = int(os.environ.get("CODEPF", "1"))
HPRIO = int(os.environ.get("HPRIO", "0"))

WS_AF = 2 << 20
WS_KV = 0
WS_G = 0x40000
WS_KFL = 0x50000
WS_HFL = 0x60000
WS_PROF = 32 << 20
WS_SIZE = 268435456
KVBLK = 2048
SPIN_MAX = 1 << 14

BUFSZ = 49152
PB = {2: 0, 0: BUFSZ, 1: 2 * BUFSZ}
OX, OWG, OWU, OWQ = 0, 16384, 30720, 45056
L_TOP = 3 * BUFSZ
L_G8 = L_TOP
L_KMAX = L_TOP + 64
L_GROW = L_TOP + 1024
L_QX = L_TOP + 8192
L_SCR = 131072
LDS_BYTES = 163840
NBKV = 3


def gen(a):
    name = NAME + "_kernel"
    kernel_begin(a, name)
    sW, sMT, sNT = 3, 4, 5
    sT0, sT1, sT2, sT3 = 6, 7, 8, 9
    sStepA, sKV, sRB, sE = 10, 11, 12, 13
    sMB, sNB = 14, 15
    P = dict(x=16, wq=18, wk=20, wv=22, wo=24, wg=28, wu=30, wd=32, gw=34, out=36, dbg=38, ws=40)
    SX, SA, SB, SWS, SE, SDBG, SC = 44, 48, 52, 56, 60, 64, 68
    SOUT = 44
    sH = 72
    sM0x, sM0w, sScr = 73, 74, 75
    sVm = 76
    sOffA, sOffB = 78, 79
    sStepB = 80
    sIt, sSkip = 82, 83
    sSpin, sKoff = 26, 27
    sSlot = 42
    sOffC, sOffD = 86, 87
    stamp_names = {"M": [], "H": []}
    role = ["M"]

    def stamp(label):
        if DIAG and role[0] == "M" and label in ("bar0", "Bq", "b3"):
            a("s_memrealtime s[84:85]")
            a("s_waitcnt lgkmcnt(0)")
            a("s_mov_b32 s%d, s84" % {"bar0": 90, "Bq": 91, "b3": 92}[label])
        if not PROF:
            return
        lst = stamp_names[role[0]]
        idx = len(lst)
        lst.append(str(label))
        a("s_memtime s[84:85]")
        if label in ("bar0", "Bq", "b3") and role[0] == "M":
            a("s_memrealtime s[98:99]")
        a("s_waitcnt lgkmcnt(0)")
        a("v_writelane_b32 v167, s84, %d" % idx)
        if label in ("bar0", "Bq", "b3") and role[0] == "M":
            a("v_writelane_b32 v167, s98, %d" % {"bar0": 59, "Bq": 60, "b3": 61}[label])

    def prof_flush():
        if DIAG and role[0] == "M":
            a("s_waitcnt vmcnt(0)")
            a("s_memrealtime s[84:85]")
            srd(a, SDBG, P['dbg'], P['dbg'] + 1, 256)
            a("s_waitcnt lgkmcnt(0)")
            a("s_cmp_lg_u32 s%d, 7" % sW)
            a("s_cbranch_scc1 L_END")
            a("s_cmp_lt_u32 s2, 248")
            a("s_cbranch_scc1 L_END")
            a("s_and_b32 s93, s2, 7")
            a("s_lshl_b32 s93, s93, 2")
            a("v_mov_b32 v2, 0")
            a("s_mov_b64 exec, 1")
            a("s_sub_u32 s94, s84, s88")
            a("s_and_b32 s95, s88, 0xffff")
            a("s_lshl_b32 s94, s94, 16")
            a("s_or_b32 s94, s94, s95")
            a("v_mov_b32 v3, s94")
            a("buffer_store_dword v3, v2, s[%d:%d], s93 offen offset:32" % (SDBG, SDBG + 3))
            a("s_cmp_lg_u32 s2, 253")
            a("s_cbranch_scc1 L_END")
            for i, sreg in enumerate((90, 91, 92, 84)):
                a("s_sub_u32 s94, s%d, s88" % sreg)
                a("v_mov_b32 v3, s94")
                a("buffer_store_dword v3, v2, s[%d:%d], 0 offen offset:%d" % (SDBG, SDBG + 3, 4 + 4 * i))
                a("s_nop 1")
        if not PROF:
            return
        a("s_waitcnt vmcnt(0)")
        stamp("end")
        a("s_memrealtime s[98:99]")
        a("s_waitcnt lgkmcnt(0)")
        a("v_writelane_b32 v167, s98, 62")
        a("v_writelane_b32 v167, s88, 63")
        a("s_mul_i32 s82, s2, 12")
        a("s_add_u32 s82, s82, s%d" % sW)
        a("s_lshl_b32 s82, s82, 8")
        a("s_add_u32 s82, s82, %d" % WS_PROF)
        a("v_lshlrev_b32 v2, 2, v0")
        a("buffer_store_dword v167, v2, s[%d:%d], s82 offen" % (SWS, SWS + 3))

    def emit(lst):
        for ins in lst:
            a(ins)

    def spin_tail(lbl_end, sleep=1):
        a("s_add_u32 s%d, s%d, 1" % (sSpin, sSpin))
        a("s_cmp_ge_u32 s%d, %d" % (sSpin, SPIN_MAX))
        a("s_cbranch_scc1 %s" % lbl_end)
        a("s_sleep %d" % sleep)

    vL16 = 1
    vT0, vT1, vT2, vT3, vT4 = 21, 22, 23, 24, 25

    a("s_cmp_ge_u32 s2, 256")
    a("s_cbranch_scc1 L_END")
    a("s_load_dwordx16 s[16:31], s[0:1], 0")
    a("s_load_dwordx8 s[32:39], s[0:1], 64")
    a("s_load_dwordx2 s[40:41], s[0:1], 96")
    a("s_memrealtime s[88:89]")
    if PROF:
        a("s_memtime s[84:85]")
        a("s_waitcnt lgkmcnt(0)")
        a("v_writelane_b32 v167, s84, 0")
        stamp_names["M"].append("start")
        stamp_names["H"].append("start")
    a("v_lshrrev_b32 v1, 6, v0")
    a("v_and_b32 v0, 63, v0")
    a("v_readfirstlane_b32 s%d, v1" % sW)
    a("s_and_b32 s%d, s2, 7" % sT0)
    a("s_lshr_b32 s%d, s2, 3" % sT1)
    a("s_and_b32 s%d, s%d, 1" % (sMT, sT0))
    a("s_lshl_b32 s%d, s%d, 3" % (sMT, sMT))
    a("s_and_b32 s%d, s%d, 7" % (sT2, sT1))
    a("s_add_u32 s%d, s%d, s%d" % (sMT, sMT, sT2))
    a("s_lshr_b32 s%d, s%d, 1" % (sNT, sT0))
    a("s_lshl_b32 s%d, s%d, 2" % (sNT, sNT))
    a("s_lshr_b32 s%d, s%d, 3" % (sT2, sT1))
    a("s_add_u32 s%d, s%d, s%d" % (sNT, sNT, sT2))
    a("s_lshl_b32 s%d, s%d, 2" % (sMB, sT0))
    a("s_and_b32 s%d, s%d, 3" % (sT2, sT1))
    a("s_add_u32 s%d, s%d, s%d" % (sMB, sMB, sT2))
    a("s_lshr_b32 s%d, s%d, 2" % (sNB, sT1))
    a("v_lshlrev_b32 v%d, 4, v0" % vL16)
    a("s_cmp_ge_u32 s%d, 8" % sW)
    a("s_cbranch_scc1 L_HELPER")
    if TOUCH:
        a("s_cmp_ge_u32 s%d, 4" % sW)
        a("s_cbranch_scc1 L_NOTOUCH")
        a("s_waitcnt lgkmcnt(0)")
        a("s_mov_b32 s%d, s%d" % (SE, P['x']))
        a("s_mov_b32 s%d, s%d" % (SE + 1, P['x'] + 1))
        for k, pp in ((1, P['wg']), (2, P['wu']), (3, P['wq'])):
            a("s_cmp_eq_u32 s%d, %d" % (sW, k))
            a("s_cselect_b32 s%d, s%d, s%d" % (SE, pp, SE))
            a("s_cselect_b32 s%d, s%d, s%d" % (SE + 1, pp + 1, SE + 1))
        a("s_mov_b32 s%d, 1024" % (SE + 2))
        a("s_mov_b32 s%d, 0x20000" % (SE + 3))
        a("v_mov_b32 v2, 0")
        a("s_mov_b64 exec, 1")
        a("buffer_load_dword v160, v2, s[%d:%d], 0 offen" % (SE, SE + 3))
        a("s_mov_b64 exec, -1")
        a.label("L_NOTOUCH")
    if PREF:
        a("s_waitcnt lgkmcnt(0)")
        a("s_mov_b32 s%d, 0x20000" % (SE + 3))
        a("s_lshl_b32 s%d, s2, 3" % sT0)
        a("s_add_u32 s%d, s%d, s%d" % (sT0, sT0, sW))
        a("s_lshl_b32 s%d, s%d, 10" % (sT0, sT0))
        a("s_mov_b32 s%d, s%d" % (SE, P['x']))
        a("s_mov_b32 s%d, s%d" % (SE + 1, P['x'] + 1))
        a("s_mov_b32 s%d, 0x200000" % (SE + 2))
        a("buffer_load_dwordx4 v[160:163], v%d, s[%d:%d], s%d offen" % (vL16, SE, SE + 3, sT0))
        a("s_cmp_eq_u32 s%d, 7" % sW)
        a("s_cbranch_scc1 L_PF7")
        a("s_mul_i32 s%d, s2, 7" % sT0)
        a("s_add_u32 s%d, s%d, s%d" % (sT0, sT0, sW))
        a("s_lshl_b32 s%d, s%d, 10" % (sT0, sT0))
        a("s_mov_b32 s%d, 0x1c0000" % (SE + 2))
        for nm in (('wg', 'wu') if PFLATE else ('wg', 'wu', 'wd')):
            a("s_mov_b32 s%d, s%d" % (SE, P[nm]))
            a("s_mov_b32 s%d, s%d" % (SE + 1, P[nm] + 1))
            a("buffer_load_dwordx4 v[160:163], v%d, s[%d:%d], s%d offen" % (vL16, SE, SE + 3, sT0))
        a("s_branch L_PFE")
        a.label("L_PF7")
        a("s_lshl_b32 s%d, s2, 11" % sT0)
        a("s_mov_b32 s%d, 0x80000" % (SE + 2))
        if CODEPF:
            a("s_getpc_b64 s[90:91]")
            a.label("L_PC")
            a("s_sub_u32 s90, s90, L_PC-%s" % name)
            a("s_subb_u32 s91, s91, 0")
            a("s_lshr_b32 s%d, s2, 3" % sT1)
            a("s_lshl_b32 s%d, s%d, 10" % (sT1, sT1))
            a("v_add_u32 v2, s%d, v%d" % (sT1, vL16))
            a("v_cmp_gt_u32 vcc, L_CODE_END-%s-16, v2" % name)
            a("s_and_saveexec_b64 s[92:93], vcc")
            a("s_cbranch_execz L_PCX")
            a("global_load_dwordx4 v[160:163], v2, s[90:91]")
            a.label("L_PCX")
            a("s_mov_b64 exec, -1")
        for nm in (('wq',) if PFLATE else ('wq', 'wo')):
            a("s_mov_b32 s%d, s%d" % (SE, P[nm]))
            a("s_mov_b32 s%d, s%d" % (SE + 1, P[nm] + 1))
            a("buffer_load_dwordx4 v[160:163], v%d, s[%d:%d], s%d offen" % (vL16, SE, SE + 3, sT0))
            a("buffer_load_dwordx4 v[160:163], v%d, s[%d:%d], s%d offen offset:1024" % (vL16, SE, SE + 3, sT0))
        a.label("L_PFE")
    a("s_branch L_MAIN")
    a.label("L_HELPER")
    mark0 = len(a.lines)
    a.label("L_MAIN")

    vXr = [8, 9, 10, 11]
    vW0 = 12
    vW1 = list(range(13, 21))
    vGq = 26
    vGm = [28, 30]
    FR = [32, 48]
    ACC = 64
    vKa, vVa = 2, 3
    vQ = 4
    vKF = [8, 12]
    vS = [32, 48]
    vVF = [64, 72]
    vP = 80
    vO = 128
    vC = 144
    NB = 4
    b0 = PB[0]
    a("s_lshr_b32 s%d, s%d, 2" % (sT0, sW))
    a("s_lshl_b32 s%d, s%d, 13" % (sT0, sT0))
    a("s_add_u32 s%d, s%d, %d" % (sT0, sT0, b0 + OX))
    a("v_and_b32 v%d, 31, v0" % vT0)
    a("v_lshlrev_b32 v%d, 7, v%d" % (vT0, vT0))
    a("v_lshrrev_b32 v%d, 5, v0" % vT1)
    a("v_bfe_u32 v%d, v0, 1, 3" % vT3)
    a("v_xor_b32 v%d, v%d, v%d" % (vT3, vT3, vT1))
    a("v_lshl_add_u32 v%d, v%d, 4, v%d" % (vT0, vT3, vT0))
    for ks in range(4):
        a("v_xor_b32 v%d, %d, v%d" % (vT2, ks * 32, vT0))
        a("v_add_u32 v%d, s%d, v%d" % (vXr[ks], sT0, vT2))
    a("v_bfe_u32 v%d, v0, 2, 2" % vT2)
    a("v_lshl_add_u32 v%d, v%d, 3, v%d" % (vT3, vT1, vT2))
    a("v_and_b32 v%d, 3, v0" % vT2)
    a("v_bfe_u32 v%d, v0, 4, 1" % vT4)
    a("v_mul_u32_u24 v%d, 0xe0, v%d" % (vT0, vT3))
    a("v_lshl_add_u32 v%d, v%d, 3, v%d" % (vT0, vT2, vT0))
    a("s_and_b32 s%d, s%d, 3" % (sT1, sW))
    a("s_lshl_b32 s%d, s%d, 6" % (sT0, sT1))
    a("s_add_u32 s%d, s%d, %d" % (sT0, sT0, b0 + OWG))
    a("s_movk_i32 s%d, %d" % (sT2, OWU - OWG - 96))
    a("s_cmp_lt_u32 s%d, 2" % sT1)
    a("s_cselect_b32 s%d, %d, s%d" % (sT3, OWU - OWG + 128, sT2))
    a("v_mul_u32_u24 v%d, s%d, v%d" % (vT1, sT3, vT4))
    a("v_add3_u32 v%d, v%d, v%d, s%d" % (vW0, vT0, vT1, sT0))
    a("s_cmp_eq_u32 s%d, 3" % sT1)
    a("s_cbranch_scc1 L_W1_Q")
    a("s_cmp_lt_u32 s%d, 1" % sT1)
    a("s_cselect_b32 s%d, %d, s%d" % (sT3, OWU - OWG + 128, sT2))
    a("v_mul_u32_u24 v%d, s%d, v%d" % (vT1, sT3, vT4))
    a("v_add3_u32 v%d, v%d, v%d, s%d" % (vT0, vT0, vT1, sT0))
    for q in range(8):
        ks, u = q >> 1, q & 1
        a("v_add_u32 v%d, %d, v%d" % (vW1[q], 32 + (16 * ks + 4 * u) * 224, vT0))
    a("s_branch L_W1_E")
    a.label("L_W1_Q")
    a("v_lshlrev_b32 v%d, 6, v%d" % (vT0, vT3))
    a("v_lshl_add_u32 v%d, v%d, 3, v%d" % (vT0, vT2, vT0))
    a("v_lshl_add_u32 v%d, v%d, 5, v%d" % (vT0, vT4, vT0))
    for q in range(8):
        ks, u = q >> 1, q & 1
        a("v_add_u32 v%d, %d, v%d" % (vW1[q], b0 + OWQ + (16 * ks + 4 * u) * 64, vT0))
    a.label("L_W1_E")
    for r in list(range(vC, vC + 16)) + list(range(vO, vO + 16)):
        a("v_mov_b32 v%d, 0" % r)
    a("v_mov_b32 v%d, v%d" % (vKa, vL16))
    a("v_lshrrev_b32 v%d, 5, v0" % vT0)
    a("v_and_b32 v%d, 15, v0" % vT1)
    a("v_lshlrev_b32 v%d, 8, v%d" % (vT2, vT0))
    a("v_lshl_add_u32 v%d, v%d, 4, v%d" % (vT2, vT1, vT2))
    a("v_add_u32 v%d, 1024, v%d" % (vVa, vT2))
    a("v_and_b32 v%d, 27, v0" % vT0)
    a("v_cmp_eq_u32 vcc, 16, v%d" % vT0)
    a("v_mov_b32 v%d, 0x3f803f80" % vT0)
    a("s_mov_b32 s%d, 0x0000ffff" % sVm)
    a("s_mov_b32 s%d, 0x0000ffff" % (sVm + 1))
    a("v_cndmask_b32 v27, 0, v%d, vcc" % vT0)
    a("v_and_b32 v%d, 31, v0" % vT0)
    a("s_lshr_b32 s%d, s%d, 2" % (sT0, sW))
    a("s_lshl_b32 s%d, s%d, 8" % (sT0, sT0))
    a("s_add_u32 s%d, s%d, %d" % (sT0, sT0, L_GROW))
    a("v_lshl_add_u32 v4, v%d, 2, s%d" % (vT0, sT0))
    a("s_lshl_b32 s%d, s%d, 10" % (sT0, sW))
    a("s_add_u32 s%d, s%d, %d" % (sT0, sT0, L_QX))
    a("v_add_u32 v5, s%d, v%d" % (sT0, vL16))
    a("v_mov_b32 v6, %d" % L_KMAX)
    a("s_lshr_b32 s%d, s%d, 2" % (sT0, sW))
    a("s_lshl_b32 s%d, s%d, 1" % (sT0, sT0))
    a("s_lshl_b32 s%d, s%d, 2" % (sT1, sMT))
    a("s_add_u32 s%d, s%d, s%d" % (sT0, sT0, sT1))
    a("s_mul_i32 s%d, s%d, 144" % (sT0, sT0))
    a("s_mul_i32 s%d, s%d, 7" % (sT1, sNT))
    a("s_add_u32 s%d, s%d, s%d" % (sT0, sT0, sT1))
    a("s_and_b32 s%d, s%d, 3" % (sT2, sW))
    a("s_lshl_b32 s%d, s%d, 1" % (sT1, sT2))
    a("s_add_u32 s%d, s%d, s%d" % (sT0, sT0, sT1))
    a("s_lshl_b32 s%d, s%d, 10" % (sT0, sT0))
    a("s_add_u32 s%d, s%d, %d" % (sOffA, sT0, WS_AF + 32 * 1024))
    a("s_add_u32 s%d, s%d, %d" % (sOffB, sOffA, 144 * 1024))
    a("s_lshr_b32 s%d, s%d, 1" % (sT0, sW))
    a("s_lshl_b32 s%d, s%d, 2" % (sT1, sMT))
    a("s_add_u32 s%d, s%d, s%d" % (sT0, sT0, sT1))
    a("s_mul_i32 s%d, s%d, 144" % (sT0, sT0))
    a("s_lshl_b32 s%d, s%d, 1" % (sT1, sNT))
    a("s_add_u32 s%d, s%d, s%d" % (sT0, sT0, sT1))
    a("s_and_b32 s%d, s%d, 1" % (sT1, sW))
    a("s_add_u32 s%d, s%d, s%d" % (sT0, sT0, sT1))
    a("s_lshl_b32 s%d, s%d, 10" % (sT0, sT0))
    a("s_add_u32 s%d, s%d, %d" % (sOffC, sT0, WS_AF))
    a("s_waitcnt lgkmcnt(0)")
    srd(a, SWS, P['ws'], P['ws'] + 1, WS_SIZE)
    srd(a, SOUT, P['out'], P['out'] + 1, 2097152)
    SXm = 48
    mGX, mGW = 128, 132
    srd(a, SXm, P['x'], P['x'] + 1, 2097152)
    srd(a, SE, P['gw'], P['gw'] + 1, 1024)
    a("s_lshl_b32 s%d, s%d, 4" % (sT0, sMT))
    a("s_add_u32 s%d, s%d, s%d" % (sT0, sT0, sNT))
    a("s_lshl_b32 s%d, s%d, 3" % (sT0, sT0))
    a("s_add_u32 s%d, s%d, s%d" % (sT0, sT0, sW))
    a("s_lshl_b32 s%d, s%d, 10" % (sT0, sT0))
    a("s_lshl_b32 s%d, s%d, 2" % (sT1, sW))
    a("s_add_u32 s%d, s%d, %d" % (sT1, sT1, L_G8))
    a("v_mov_b32 v%d, s%d" % (vGq, sT1))

    def g_loads():
        a("buffer_load_dwordx4 v[%d:%d], v%d, s[%d:%d], s%d offen" % (mGX, mGX + 3, vL16, SXm, SXm + 3, sT0))
        a("buffer_load_dwordx4 v[%d:%d], v%d, s[%d:%d], 0 offen" % (mGW, mGW + 3, vL16, SE, SE + 3))

    def g_job():
        a("s_waitcnt vmcnt(0)")
        if PREF and PFLATE:
            a("s_cmp_eq_u32 s%d, 7" % sW)
            a("s_cselect_b32 s%d, s%d, s%d" % (SE, P['wo'], P['wd']))
            a("s_cselect_b32 s%d, s%d, s%d" % (SE + 1, P['wo'] + 1, P['wd'] + 1))
            a("s_mov_b32 s%d, 0x1c0000" % (SE + 2))
            a("s_cselect_b32 s%d, 0x80000, s%d" % (SE + 2, SE + 2))
            a("s_mul_i32 s%d, s2, 7" % sT0)
            a("s_add_u32 s%d, s%d, s%d" % (sT0, sT0, sW))
            a("s_lshl_b32 s%d, s2, 1" % sT1)
            a("s_cmp_eq_u32 s%d, 7" % sW)
            a("s_cselect_b32 s%d, s%d, s%d" % (sT0, sT1, sT0))
            a("s_lshl_b32 s%d, s%d, 10" % (sT0, sT0))
            a("buffer_load_dwordx4 v[160:163], v%d, s[%d:%d], s%d offen" % (vL16, SE, SE + 3, sT0))
            a("s_cbranch_scc0 L_PFL") if False else None
            a("s_cmp_lg_u32 s%d, 7" % sW)
            a("s_cbranch_scc1 L_PFL")
            a("buffer_load_dwordx4 v[160:163], v%d, s[%d:%d], s%d offen offset:1024" % (vL16, SE, SE + 3, sT0))
            a.label("L_PFL")
        a("v_mov_b32 v%d, 0" % vT0)
        for j in range(4):
            a("v_dot2_f32_bf16 v%d, v%d, v%d, v%d" % (vT0, mGX + j, mGW + j, vT0))
        for r in range(8):
            a("v_mov_b32 v%d, 0" % (vO + r))
        a("v_mov_b32 v%d, v%d" % (vT1, vT0))
        wave_reduce(a, "v_add_f32", vT1)
        a("v_mul_f32 v%d, 0x%08x, v%d" % (vT1, f32bits(-math.log2(math.e)), vT1))
        a("v_exp_f32 v%d, v%d" % (vT1, vT1))
        a.nop(1)
        a("v_add_f32 v%d, 1.0, v%d" % (vT1, vT1))
        a("v_rcp_f32 v%d, v%d" % (vT1, vT1))
        a("s_mov_b32 exec_lo, 0")
        a("s_mov_b32 exec_hi, 0x80000000")
        a("ds_write_b32 v%d, v%d" % (vGq, vT1))
        a("s_mov_b64 exec, -1")

    def rd_list(ks, fs):
        f = FR[fs]
        return [
            "ds_read_b128 v[%d:%d], v%d" % (f, f + 3, vXr[ks]),
            "ds_read_b64_tr_b16 v[%d:%d], v%d offset:%d" % (f + 8, f + 9, vW0, (16 * ks) * 224),
            "ds_read_b64_tr_b16 v[%d:%d], v%d offset:%d" % (f + 10, f + 11, vW0, (16 * ks + 4) * 224),
            "ds_read_b128 v[%d:%d], v%d offset:4096" % (f + 4, f + 7, vXr[ks]),
            "ds_read_b64_tr_b16 v[%d:%d], v%d" % (f + 12, f + 13, vW1[2 * ks]),
            "ds_read_b64_tr_b16 v[%d:%d], v%d" % (f + 14, f + 15, vW1[2 * ks + 1]),
        ]

    def mfmas(fs, first):
        f = FR[fs]
        out = []
        for an in (0, 1):
            for i in (0, 1):
                acc = ACC + (an * 2 + i) * 16
                c = "0" if first else "v[%d:%d]" % (acc, acc + 15)
                out.append("%s v[%d:%d], v[%d:%d], v[%d:%d], %s" % (MFMA, acc, acc + 15, f + 8 + an * 4, f + 11 + an * 4,
                                                                   f + i * 4, f + i * 4 + 3, c))
        return out

    def adv(s, regs):
        d = PB[(s + 1) % 3] - PB[s % 3]
        return ["v_add_u32 v%d, %d, v%d" % (r, d, r) if d >= 0 else "v_subrev_u32 v%d, %d, v%d" % (r, -d, r) for r in regs]

    g_loads()
    stamp("pro")
    a("s_barrier")
    stamp("bar0")
    emit(rd_list(0, 0))
    fs = 0
    for s in range(8):
        for ks in range(4):
            ms = mfmas(fs, s == 0 and ks == 0)
            if ks < 3:
                nxt = rd_list(ks + 1, fs ^ 1)
                for q in range(4):
                    if q < 3:
                        a("s_waitcnt lgkmcnt(%d)" % (3 if q == 0 else 4))
                    a(ms[q])
                    emit(nxt[2 * q:2 * q + 2])
                    if s < 7 and q == 3:
                        regs = [vXr[ks], vW1[2 * ks], vW1[2 * ks + 1]]
                        if ks == 2:
                            regs += [vXr[3], vW1[6], vW1[7], vW0]
                        emit(adv(s, regs))
            else:
                if s < 7:
                    a("s_waitcnt lgkmcnt(3)")
                    a(ms[0])
                    a("s_waitcnt lgkmcnt(0)")
                    stamp("s%dv" % s)
                    a("s_barrier")
                    stamp("s%db" % s)
                    nxt = rd_list(0, fs ^ 1)
                    emit(nxt[0:3])
                    a(ms[1])
                    emit(nxt[3:6])
                    a(ms[2])
                    a(ms[3])
                    if s == 1:
                        g_job()
                else:
                    a("ds_read_b32 v%d, v4" % vGm[0])
                    a("ds_read_b32 v%d, v4 offset:128" % vGm[1])
                    a("s_waitcnt lgkmcnt(5)")
                    a(ms[0])
                    a("s_waitcnt lgkmcnt(2)")
                    emit(ms[1:])
            fs ^= 1
    stamp("g1end")
    a("s_bitcmp1_b32 s%d, 1" % sW)
    a("s_cselect_b64 vcc, -1, 0")
    a("v_mov_b32 v8, -1")
    a("v_mov_b32 v9, -1")
    a("v_mov_b32 v10, -1")
    a("v_mov_b32 v11, -1")
    a("s_waitcnt lgkmcnt(0)")
    a("buffer_store_dwordx4 v[8:11], v%d, s[%d:%d], s%d offen sc1" % (vL16, SWS, SWS + 3, sOffC))
    a("v_cndmask_b32 v%d, v%d, v%d, vcc" % (vGq, vGm[0], vGm[1]))
    a("v_sub_f32 v%d, 1.0, v%d" % (vGm[0], vGm[0]))
    a("v_sub_f32 v%d, 1.0, v%d" % (vGm[1], vGm[1]))
    a("v_mov_b32 v%d, v%d" % (vGm[0] + 1, vGm[0]))
    a("v_mov_b32 v%d, v%d" % (vGm[1] + 1, vGm[1]))

    def h_tile(an, i, d):
        t = ACC + (an * 2 + i) * 16
        for r in range(0, 8, 2):
            a("v_pk_mul_f32 v[%d:%d], v[%d:%d], v[%d:%d]" % (t + r, t + r + 1, t + r, t + r + 1, t + 8 + r, t + 9 + r))
        for r in range(0, 8, 2):
            a("v_pk_mul_f32 v[%d:%d], v[%d:%d], v[%d:%d]" % (t + r, t + r + 1, t + r, t + r + 1, vGm[i], vGm[i] + 1))
        for j in range(4):
            a("v_cvt_pk_bf16_f32 v%d, v%d, v%d" % (d + j, t + 2 * j, t + 2 * j + 1))
        a("buffer_store_dwordx4 v[%d:%d], v%d, s[%d:%d], s%d offen offset:%d sc1" % (d, d + 3, vL16, SWS, SWS + 3,
                                                                                    sOffA if i == 0 else sOffB, an * 1024))

    a("s_cmp_eq_u32 s%d, 3" % sT2)
    a("s_cbranch_scc1 L_EPI_Q")
    h_tile(1, 0, ACC + 40)
    h_tile(1, 1, ACC + 56)
    a("s_branch L_EPI_C")
    a.label("L_EPI_Q")
    a("v_mov_b32 v24, 0x%08x" % f32bits(QSCALE))
    a("v_mov_b32 v25, 0x%08x" % f32bits(QSCALE))
    a("s_lshr_b32 s%d, s%d, 2" % (sT2, sW))
    a("s_lshl_b32 s%d, s%d, 12" % (sT2, sT2))
    a("s_add_u32 s%d, s%d, %d" % (sT2, sT2, L_QX))
    a("v_add_u32 v%d, s%d, v%d" % (vT0, sT2, vL16))
    for i in (0, 1):
        t = ACC + (2 + i) * 16
        for r in range(0, 16, 2):
            a("v_pk_mul_f32 v[%d:%d], v[%d:%d], v[24:25]" % (t + r, t + r + 1, t + r, t + r + 1))
        d = FR[0] + 8 * i
        for j in range(8):
            a("v_cvt_pk_bf16_f32 v%d, v%d, v%d" % (d + j, t + 2 * j, t + 2 * j + 1))
        a("ds_write_b128 v%d, v[%d:%d] offset:%d" % (vT0, d, d + 3, i * 2048))
        a("ds_write_b128 v%d, v[%d:%d] offset:%d" % (vT0, d + 4, d + 7, i * 2048 + 1024))
    a.label("L_EPI_C")
    h_tile(0, 0, ACC + 44)
    h_tile(0, 1, ACC + 60)
    for r in range(16):
        a("v_mov_b32 v%d, v27" % (vVF[0] + r))
    a("v_mov_b32 v%d, v5" % vT0)
    a("v_mov_b32 v%d, v6" % vT1)
    a("s_waitcnt lgkmcnt(0)")
    a("s_barrier")
    stamp("Bq")
    a("ds_read_b128 v[%d:%d], v%d" % (vQ, vQ + 3, vT0))
    a("ds_read_b32 v%d, v%d" % (vT4, vT1))

    def rdK(buf, off):
        a("ds_read_b128 v[%d:%d], v%d offset:%d" % (vKF[buf], vKF[buf] + 3, vKa, off))

    def rdV(buf, off):
        a("s_mov_b64 exec, s[%d:%d]" % (sVm, sVm + 1))
        a("ds_read_b128 v[%d:%d], v%d offset:%d" % (vVF[buf], vVF[buf] + 3, vVa, off))
        a("ds_read_b128 v[%d:%d], v%d offset:%d" % (vVF[buf] + 4, vVF[buf] + 7, vVa, off + 512))
        a("s_mov_b64 exec, -1")

    def mS(sbuf, kbuf):
        a("%s v[%d:%d], v[%d:%d], v[%d:%d], v[%d:%d]" % (MFMA, vS[sbuf], vS[sbuf] + 15, vKF[kbuf], vKF[kbuf] + 3,
                                                        vQ, vQ + 3, vC, vC + 15))

    def mPV(vbuf, t):
        a("%s v[%d:%d], v[%d:%d], v[%d:%d], v[%d:%d]" % (MFMA, vO, vO + 15, vVF[vbuf] + 4 * t, vVF[vbuf] + 4 * t + 3,
                                                        vP + 4 * t, vP + 4 * t + 3, vO, vO + 15))

    def E(sb, r):
        a("v_exp_f32 v%d, v%d" % (vS[sb] + r, vS[sb] + r))

    def C(sb, j):
        a("v_cvt_pk_bf16_f32 v%d, v%d, v%d" % (vP + j, vS[sb] + 2 * j, vS[sb] + 2 * j + 1))

    rdK(0, 0)
    rdK(1, KVBLK)
    rdV(0, 0)
    a("s_waitcnt lgkmcnt(4)")
    a("v_mov_b32 v%d, 0" % vT3)
    for j in range(4):
        a("v_dot2_f32_bf16 v%d, v%d, v%d, v%d" % (vT3, vQ + j, vQ + j, vT3))
    a("s_mov_b32 s%d, 0x%08x" % (sT1, f32bits(900.0)))
    a("s_mov_b32 s%d, %d" % (sSkip, NBKV))
    a("s_mov_b32 s%d, 0" % sIt)
    a.nop(1)
    a("v_mov_b32 v%d, v%d" % (vT2, vT3))
    a.nop(2)
    a("v_permlane32_swap_b32 v%d, v%d" % (vT3, vT2))
    a.nop(1)
    a("v_add_f32 v%d, v%d, v%d" % (vT3, vT3, vT2))
    a("v_mul_f32 v%d, v%d, v%d" % (vT3, vT4, vT3))
    a("v_cmp_nge_f32 vcc, s%d, v%d" % (sT1, vT3))
    a("s_cmp_eq_u64 vcc, 0")
    a("s_cbranch_scc1 L_FAST")
    a("s_waitcnt vmcnt(0)")
    a("s_barrier")
    a("s_mov_b32 s%d, 99" % sSkip)
    a("v_mov_b32 v%d, 0xff800000" % vT0)
    a("v_mov_b32 v%d, v%d" % (vT1, vL16))
    a.label("L_MAXLOOP")
    a("ds_read_b128 v[%d:%d], v%d" % (vP, vP + 3, vT1))
    a("v_add_u32 v%d, %d, v%d" % (vT1, KVBLK, vT1))
    a("s_waitcnt lgkmcnt(0)")
    a("%s v[%d:%d], v[%d:%d], v[%d:%d], 0" % (MFMA, vS[0], vS[0] + 15, vP, vP + 3, vQ, vQ + 3))
    a.nop(16)
    for j in range(8):
        a("v_max3_f32 v%d, v%d, v%d, v%d" % (vT0, vS[0] + 2 * j, vS[0] + 2 * j + 1, vT0))
    a("s_add_u32 s%d, s%d, 1" % (sIt, sIt))
    a("s_cmp_lt_u32 s%d, 64" % sIt)
    a("s_cbranch_scc1 L_MAXLOOP")
    a("v_mov_b32 v%d, v%d" % (vT1, vT0))
    a("s_mov_b32 s%d, 0" % sIt)
    a.nop(1)
    a("v_permlane32_swap_b32 v%d, v%d" % (vT0, vT1))
    a.nop(2)
    a("v_max_f32 v%d, v%d, v%d" % (vT0, vT0, vT1))
    for r in range(16):
        a("v_sub_f32 v%d, 0, v%d" % (vC + r, vT0))
    a.label("L_FAST")
    a("s_waitcnt lgkmcnt(3)")
    a.nop(1)
    mS(0, 0)
    a.nop(12)
    a.label("L_LOOP")
    for bb in range(NB):
        p = bb & 1
        off = bb * KVBLK
        if PRIO and bb == 0:
            a("s_setprio 1")
        if PRIO and bb == 2:
            a("s_setprio 0")
        for r in range(6):
            E(p, r)
        C(p, 0)
        C(p, 1)
        a("s_waitcnt lgkmcnt(2)")
        mS(p ^ 1, p ^ 1)
        rdK(p, off + 2 * KVBLK)
        E(p, 6)
        E(p, 7)
        C(p, 2)
        E(p, 8)
        C(p, 3)
        E(p, 9)
        E(p, 10)
        E(p, 11)
        a("s_waitcnt lgkmcnt(1)")
        mPV(p, 0)
        C(p, 4)
        C(p, 5)
        for r in range(12, 16):
            E(p, r)
        C(p, 6)
        C(p, 7)
        rdV(p ^ 1, off + KVBLK)
        mPV(p, 1)
    a("v_add_u32 v%d, %d, v%d" % (vKa, NB * KVBLK, vKa))
    a("v_add_u32 v%d, %d, v%d" % (vVa, NB * KVBLK, vVa))
    a("s_add_u32 s%d, s%d, 1" % (sIt, sIt))
    a("s_cmp_lg_u32 s%d, s%d" % (sIt, sSkip))
    a("s_cbranch_scc1 L_NOBKV")
    a("s_waitcnt vmcnt(0)")
    a("s_barrier")
    stamp("bkv")
    a.label("L_NOBKV")
    a("s_cmp_lt_u32 s%d, 16" % sIt)
    a("s_cbranch_scc1 L_LOOP")
    stamp("attn")
    a.nop(6)
    a("v_rcp_f32 v%d, v%d" % (vT0, vO + 8))
    a("v_lshrrev_b32 v%d, 3, v0" % vT4)
    a("v_mul_f32 v%d, v%d, v%d" % (vT0, vT0, vGq))
    for r in range(8):
        a("v_mul_f32 v%d, v%d, v%d" % (vO + r, vO + r, vT0))
    for j in range(4):
        a("v_cvt_pk_bf16_f32 v%d, v%d, v%d" % (vO + 8 + j, vO + 2 * j, vO + 2 * j + 1))
    a("buffer_store_dwordx4 v[%d:%d], v%d, s[%d:%d], s%d offen sc1" % (vO + 8, vO + 11, vL16, SWS, SWS + 3, sOffC))
    a("s_waitcnt lgkmcnt(0)")
    a("s_barrier")
    stamp("b3")
    vR0, vR1, vOo = 8, 9, 10
    a("s_lshl_b32 s%d, s%d, 3" % (sT0, sW))
    a("v_add_u32 v%d, s%d, v%d" % (vT4, sT0, vT4))
    a("v_and_b32 v%d, 15, v%d" % (vT1, vT4))
    a("v_and_b32 v%d, 7, v0" % vT2)
    a("v_lshlrev_b32 v%d, 1, v%d" % (vT3, vT2))
    a("v_xor_b32 v%d, v%d, v%d" % (vT1, vT1, vT3))
    a("v_lshlrev_b32 v%d, 8, v%d" % (vT3, vT4))
    a("v_lshl_add_u32 v%d, v%d, 4, v%d" % (vR0, vT1, vT3))
    a("v_xor_b32 v%d, 16, v%d" % (vR1, vR0))
    a("v_lshlrev_b32 v%d, 10, v%d" % (vT4, vT4))
    a("v_lshl_add_u32 v%d, v%d, 4, v%d" % (vOo, vT2, vT4))
    a("s_lshl_b32 s%d, s%d, 16" % (sT0, sMB))
    a("s_lshl_b32 s%d, s%d, 7" % (sT1, sNB))
    a("s_add_u32 s%d, s%d, s%d" % (sT0, sT0, sT1))
    a("s_barrier")
    stamp("b4")
    FB = 32
    for k_ in range(4):
        a("ds_read_b128 v[%d:%d], v%d offset:%d" % (FB + 8 * k_, FB + 8 * k_ + 3, vR0, k_ * 16384))
        a("ds_read_b128 v[%d:%d], v%d offset:%d" % (FB + 8 * k_ + 4, FB + 8 * k_ + 7, vR1, k_ * 16384))
    for k_ in range(1, 4):
        a("s_waitcnt lgkmcnt(%d)" % (2 * (3 - k_)))
        for r in range(8):
            a("v_add_f32 v%d, v%d, v%d" % (FB + r, FB + r, FB + 8 * k_ + r))
    for j in range(4):
        a("v_cvt_pk_bf16_f32 v%d, v%d, v%d" % (FB + 8 + j, FB + 2 * j, FB + 2 * j + 1))
    a("buffer_store_dwordx4 v[%d:%d], v%d, s[%d:%d], s%d offen" % (FB + 8, FB + 11, vOo, SOUT, SOUT + 3, sT0))
    prof_flush()
    a("s_endpgm")

    role[0] = "H"
    mark1 = len(a.lines)
    vXd0, vXd1 = 2, 3
    vWd = list(range(4, 12))
    vEv = 12
    vPl = 14
    vKX = 32
    vKA = 96
    vGX = 112
    vGW = 120
    a("s_setprio 3")
    a("s_sub_u32 s%d, s%d, 8" % (sH, sW))
    a("s_lshl_b32 s%d, s%d, 12" % (sM0x, sH))
    a("s_lshl_b32 s%d, s%d, 13" % (sM0w, sH))
    a("s_lshl_b32 s%d, s%d, 7" % (sT0, sMT))
    a("s_lshl_b32 s%d, s%d, 5" % (sT1, sH))
    a("s_add_u32 s%d, s%d, s%d" % (sT0, sT0, sT1))
    a("v_lshrrev_b32 v%d, 3, v0" % vT0)
    a("v_add_u32 v%d, s%d, v%d" % (vT0, sT0, vT0))
    a("v_lshlrev_b32 v%d, 10, v%d" % (vT0, vT0))
    a("v_and_b32 v%d, 7, v0" % vT1)
    a("v_lshrrev_b32 v%d, 4, v0" % vT2)
    a("v_xor_b32 v%d, v%d, v%d" % (vT1, vT1, vT2))
    a("v_lshl_add_u32 v%d, v%d, 4, v%d" % (vXd0, vT1, vT0))
    a("v_xor_b32 v%d, 64, v%d" % (vXd1, vXd0))
    a("v_add_u32 v%d, 0x2000, v%d" % (vXd1, vXd1))
    a("s_mul_i32 s%d, s%d, 224" % (sT2, sNT))
    a("s_movk_i32 s%d, 4682" % sT3)
    for j in range(8):
        if j == 4:
            a("s_cmp_eq_u32 s%d, 3" % sH)
            a("s_cbranch_scc1 L_WD_Q")
        a("s_lshl_b32 s%d, s%d, 3" % (sT0, sH))
        a("s_add_u32 s%d, s%d, %d" % (sT0, sT0, j))
        a("s_sub_u32 s%d, s%d, 14" % (sT1, sT0))
        a("s_cmp_ge_u32 s%d, 14" % sT0)
        a("s_cselect_b32 s%d, s%d, s%d" % (sT0, sT1, sT0))
        a("s_cselect_b32 s%d, 6, 0" % sOffA)
        a("s_lshl_b32 s%d, s%d, 6" % (sT0, sT0))
        a("v_add_u32 v%d, s%d, v0" % (vT0, sT0))
        a("v_mul_u32_u24 v%d, s%d, v%d" % (vT1, sT3, vT0))
        a("v_lshrrev_b32 v%d, 16, v%d" % (vT1, vT1))
        a("v_mul_u32_u24 v%d, 14, v%d" % (vT2, vT1))
        a("v_sub_u32 v%d, v%d, v%d" % (vT0, vT0, vT2))
        a("v_add_u32 v%d, s%d, v%d" % (vT0, sOffA, vT0))
        a("v_subrev_u32 v%d, 14, v%d" % (vT2, vT0))
        a("v_min_u32 v%d, v%d, v%d" % (vT0, vT0, vT2))
        a("v_mul_u32_u24 v%d, 0xe00, v%d" % (vT1, vT1))
        a("v_lshl_add_u32 v%d, v%d, 4, v%d" % (vT0, vT0, vT1))
        a("v_add_u32 v%d, s%d, v%d" % (vWd[j], sT2, vT0))
    a("s_mov_b32 s%d, %d" % (sStepB, 64 * 3584))
    a("s_branch L_WD_E")
    a.label("L_WD_Q")
    a("s_lshl_b32 s%d, s%d, 6" % (sT2, sNT))
    a("v_lshrrev_b32 v%d, 2, v0" % vT0)
    a("v_and_b32 v%d, 3, v0" % vT1)
    a("v_lshlrev_b32 v%d, 10, v%d" % (vT0, vT0))
    a("v_lshl_add_u32 v%d, v%d, 4, v%d" % (vT0, vT1, vT0))
    a("v_add_u32 v%d, s%d, v%d" % (vWd[4], sT2, vT0))
    for j in range(5, 8):
        a("v_add_u32 v%d, %d, v%d" % (vWd[j], (j - 4) * 16384, vWd[4]))
    a("s_mov_b32 s%d, 65536" % sStepB)
    a.label("L_WD_E")
    a("s_waitcnt lgkmcnt(0)")
    stamp("karg")
    srd(a, SX, P['x'], P['x'] + 1, 2097152)
    for S, lim, q in ((SA, 2, False), (SB, 2, True), (SC, 1, True)):
        a("s_cmp_lt_u32 s%d, %d" % (sH, lim))
        a("s_cselect_b32 s%d, s%d, s%d" % (S, P['wg'], P['wu']))
        a("s_cselect_b32 s%d, s%d, s%d" % (S + 1, P['wg'] + 1, P['wu'] + 1))
        a("s_mov_b32 s%d, 0x1c0000" % (S + 2))
        if q:
            a("s_cmp_eq_u32 s%d, 3" % sH)
            a("s_cselect_b32 s%d, s%d, s%d" % (S, P['wq'], S))
            a("s_cselect_b32 s%d, s%d, s%d" % (S + 1, P['wq'] + 1, S + 1))
            a("s_cselect_b32 s%d, 0x80000, s%d" % (S + 2, S + 2))
        a("s_mov_b32 s%d, 0x20000" % (S + 3))

    def dma_stage(s):
        b = PB[s % 3]
        a("s_mov_b32 s%d, %d" % (sOffA, s * 64 * 3584))
        a("s_mul_i32 s%d, s%d, %d" % (sOffB, sStepB, s))
        for j in range(8):
            S = SA if j < 4 else (SB if j < 6 else SC)
            a("s_add_u32 m0, s%d, %d" % (sM0w, b + OWG + j * 1024))
            if j % 2 == 0:
                i = j // 2
                a("s_movk_i32 s%d, %d" % (sT0, s * 128 + (i >> 1) * 16384))
            else:
                a("s_nop 0")
            a("buffer_load_dwordx4 v%d, s[%d:%d], s%d offen lds" % (vWd[j], S, S + 3, sOffA if j < 4 else sOffB))
            if j % 2 == 0:
                a("s_add_u32 m0, s%d, %d" % (sM0x, b + OX + i * 1024))
                a("s_nop 0")
                a("buffer_load_dwordx4 v%d, s[%d:%d], s%d offen lds" % (vXd1 if i & 1 else vXd0, SX, SX + 3, sT0))

    def kv_dma(first, n):
        for j in range(n):
            off = (first + 4 * j) * 1024
            a("s_add_u32 m0, s%d, %d" % (sKoff, off))
            a("s_add_u32 s%d, s%d, %d" % (sOffA, sKoff, WS_KV + off))
            a("buffer_load_dwordx4 v%d, s[%d:%d], s%d offen sc1 lds" % (vL16, SWS, SWS + 3, sOffA))

    srd(a, SDBG, P['dbg'], P['dbg'] + 1, 256)
    a("s_cmp_lg_u32 s2, 0")
    a("s_cbranch_scc1 L_NOTAG")
    a("s_cmp_lg_u32 s%d, 3" % sH)
    a("s_cbranch_scc1 L_NOTAG")
    a("s_or_b32 s%d, s88, 1" % sT0)
    a("v_mov_b32 v%d, s%d" % (vT0, sT0))
    a("v_mov_b32 v%d, 0" % vT1)
    a("s_mov_b64 exec, 1")
    a("buffer_store_dword v%d, v%d, s[%d:%d], 0 offen sc1" % (vT0, vT1, SDBG, SDBG + 3))
    a("s_mov_b64 exec, -1")
    a.label("L_NOTAG")
    dma_stage(0)
    stamp("d0")
    dma_stage(1)
    stamp("d1")
    srd(a, SWS, P['ws'], P['ws'] + 1, WS_SIZE)
    a("s_lshl_b32 s%d, s%d, 10" % (sKoff, sH))
    a("s_lshl_b32 s%d, s%d, 4" % (sSlot, sMT))
    a("s_add_u32 s%d, s%d, s%d" % (sSlot, sSlot, sNT))
    a("s_lshl_b32 s%d, s%d, 7" % (sSlot, sSlot))
    a("s_and_b32 s%d, s%d, 3" % (sRB, sNT))
    a("s_lshr_b32 s%d, s%d, 2" % (sT0, sNT))
    a("s_add_u32 s%d, s%d, 1" % (sKV, sT0))
    a("s_cmp_ge_u32 s%d, 8" % sNT)
    a("s_cselect_b32 s%d, 0, s%d" % (sKV, sKV))
    a("s_cmp_eq_u32 s%d, 0" % sH)
    a("s_cselect_b32 s%d, s%d, 0" % (sSkip, sKV))
    a("s_cmp_eq_u32 s%d, 1" % sKV)
    a("s_cselect_b32 s%d, s%d, s%d" % (SE, P['wk'], P['wv']))
    a("s_cselect_b32 s%d, s%d, s%d" % (SE + 1, P['wk'] + 1, P['wv'] + 1))
    a("s_mov_b32 s%d, 16384" % (SE + 2))
    a("s_mov_b32 s%d, 0x20000" % (SE + 3))
    a("v_lshrrev_b32 v%d, 4, v0" % vT0)
    a("v_and_b32 v%d, 15, v0" % vT1)
    a("v_xor_b32 v%d, v%d, v%d" % (vT1, vT1, vT0))
    a("v_lshlrev_b32 v%d, 10, v%d" % (vT0, vT0))
    a("v_lshl_add_u32 v18, v%d, 4, v%d" % (vT1, vT0))
    a("s_lshl_b32 s%d, s%d, 2" % (sT0, sMT))
    a("s_add_u32 s%d, s%d, s%d" % (sT0, sT0, sRB))
    a("s_lshl_b32 s%d, s%d, 15" % (sT0, sT0))
    a("s_lshl_b32 s%d, s%d, 8" % (sT1, sH))
    a("s_add_u32 s%d, s%d, s%d" % (sOffC, sT0, sT1))
    a("s_waitcnt vmcnt(12)")
    stamp("w0")
    a("s_barrier")
    a("v_mov_b32 v%d, 0" % vT0)
    a("buffer_load_dword v%d, v%d, s[%d:%d], 0 offen sc1" % (vEv, vT0, SDBG, SDBG + 3))
    a("s_cmp_eq_u32 s%d, 0" % sKV)
    a("s_cbranch_scc1 L_I0_N")
    a("s_add_u32 m0, s%d, %d" % (sM0x, PB[2] + OX))
    a("s_nop 0")
    for j in range(4):
        a("buffer_load_dwordx4 v%d, s[%d:%d], s%d offen offset:%d lds" % (vL16, SE, SE + 3, sM0x, j * 1024))
    for p_ in range(8):
        a("s_add_u32 m0, s%d, %d" % (sM0w, PB[2] + OWG + p_ * 1024))
        a("v_xor_b32 v%d, %d, v18" % (vT0, (p_ & 3) * 64))
        a("s_add_u32 s%d, s%d, %d" % (sT0, sOffC, p_ * 4096))
        a("buffer_load_dwordx4 v%d, s[%d:%d], s%d offen lds" % (vT0, SX, SX + 3, sT0))
    a("v_lshrrev_b32 v%d, 5, v0" % vT1)
    a("v_bfe_u32 v%d, v0, 2, 2" % vT2)
    a("v_lshl_add_u32 v%d, v%d, 3, v%d" % (vT3, vT1, vT2))
    a("v_and_b32 v%d, 3, v0" % vT2)
    a("v_lshlrev_b32 v%d, 5, v%d" % (vT3, vT3))
    a("v_lshl_add_u32 v%d, v%d, 3, v%d" % (vT3, vT2, vT3))
    a("s_add_u32 s%d, s%d, %d" % (sT0, sM0x, PB[2] + OX))
    a("v_add_u32 v19, s%d, v%d" % (sT0, vT3))
    a("v_and_b32 v%d, 31, v0" % vT2)
    a("v_and_b32 v%d, 15, v0" % vT3)
    a("v_xor_b32 v%d, v%d, v%d" % (vT1, vT1, vT3))
    a("v_lshlrev_b32 v%d, 8, v%d" % (vT2, vT2))
    a("v_lshl_add_u32 v%d, v%d, 4, v%d" % (vT2, vT1, vT2))
    a("s_add_u32 s%d, s%d, %d" % (sT0, sM0w, PB[2] + OWG))
    a("v_add_u32 v20, s%d, v%d" % (sT0, vT2))
    a("v_and_b32 v%d, 16, v0" % vT1)
    a("v_cmp_eq_u32 vcc, 0, v%d" % vT1)
    a("s_waitcnt vmcnt(13)")
    stamp("w1")
    a("s_barrier")
    a("s_waitcnt vmcnt(0)")
    vKW = 128
    for ks in range(8):
        a("v_xor_b32 v%d, %d, v20" % (vT0, ks * 32))
        a("ds_read_b128 v[%d:%d], v%d" % (vKX + 4 * ks, vKX + 4 * ks + 3, vT0))
    for ks in range(8):
        if ks in (3, 6):
            a("s_waitcnt lgkmcnt(8)")
        for u in range(2):
            a("ds_read_b64_tr_b16 v[%d:%d], v19 offset:%d" % (vKW + 4 * ks + 2 * u, vKW + 4 * ks + 2 * u + 1, (16 * ks + 4 * u) * 32))
    a("s_waitcnt lgkmcnt(0)")
    a("s_cmp_eq_u32 s%d, 2" % sKV)
    a("s_cbranch_scc1 L_SJ_V")
    for ks in range(8):
        c = "0" if ks == 0 else "v[%d:%d]" % (vKA, vKA + 15)
        a("%s v[%d:%d], v[%d:%d], v[%d:%d], %s" % (MFMA, vKA, vKA + 15, vKW + 4 * ks, vKW + 4 * ks + 3,
                                                   vKX + 4 * ks, vKX + 4 * ks + 3, c))
    a("s_mov_b64 vcc, -1")
    a("s_branch L_SJ_W")
    a.label("L_SJ_V")
    for ks in range(8):
        c = "0" if ks == 0 else "v[%d:%d]" % (vKA, vKA + 15)
        a("%s v[%d:%d], v[%d:%d], v[%d:%d], %s" % (MFMA, vKA, vKA + 15, vKX + 4 * ks, vKX + 4 * ks + 3,
                                                   vKW + 4 * ks, vKW + 4 * ks + 3, c))
    a.label("L_SJ_W")
    dma_stage(2)
    for r in range(8):
        a("v_cndmask_b32 v%d, v%d, v%d, vcc" % (vKA + r, vKA + 8 + r, vKA + r))
    a("s_lshr_b32 s%d, s%d, 1" % (sT0, sM0x))
    a("s_add_u32 s%d, s%d, %d" % (sT0, sT0, L_TOP))
    a("v_add_u32 v%d, s%d, v%d" % (vT1, sT0, vL16))
    a("ds_write_b128 v%d, v[%d:%d]" % (vT1, vKA, vKA + 3))
    a("ds_write_b128 v%d, v[%d:%d] offset:1024" % (vT1, vKA + 4, vKA + 7))
    a("s_branch L_I1")
    a.label("L_I0_N")
    dma_stage(2)
    a("s_waitcnt vmcnt(13)")
    a("s_barrier")
    a.label("L_I1")
    dma_stage(3)
    a("s_waitcnt vmcnt(12) lgkmcnt(0)")
    stamp("w2")
    a("s_barrier")
    a("s_mov_b32 s%d, 0" % sSpin)
    a.label("L_GE_L")
    a("v_readfirstlane_b32 s%d, v%d" % (sE, vEv))
    a("s_cmp_lg_u32 s%d, 0" % sE)
    a("s_cbranch_scc1 L_GE_E")
    spin_tail("L_GE_E")
    a("v_mov_b32 v%d, 0" % vT0)
    a("buffer_load_dword v%d, v%d, s[%d:%d], 0 offen sc1" % (vEv, vT0, SDBG, SDBG + 3))
    a("s_waitcnt vmcnt(0)")
    a("s_branch L_GE_L")
    a.label("L_GE_E")
    a("s_cmp_eq_u32 s%d, 0" % sSkip)
    a("s_cbranch_scc1 L_I2_N")
    a("v_add_u32 v%d, %d, v%d" % (vT2, L_TOP + 2048, vL16))
    for j in range(3):
        a("ds_read_b128 v[%d:%d], v%d offset:%d" % (vKX + 8 * j, vKX + 8 * j + 3, vT2, j * 2048))
        a("ds_read_b128 v[%d:%d], v%d offset:%d" % (vKX + 8 * j + 4, vKX + 8 * j + 7, vT2, j * 2048 + 1024))
    a("s_lshl_b32 s%d, s%d, 2" % (sT0, sMT))
    a("s_add_u32 s%d, s%d, s%d" % (sT0, sT0, sRB))
    a("s_lshl_b32 s%d, s%d, 11" % (sT1, sT0))
    a("s_waitcnt lgkmcnt(0)")
    for j in range(3):
        for r in range(8):
            a("v_add_f32 v%d, v%d, v%d" % (vKA + r, vKA + r, vKX + 8 * j + r))
    for j in range(4):
        a("v_cvt_pk_bf16_f32 v%d, v%d, v%d" % (vKA + 8 + j, vKA + 2 * j, vKA + 2 * j + 1))
    a("s_cmp_eq_u32 s%d, 2" % sKV)
    a("s_cbranch_scc1 L_KF_V")
    a("buffer_store_dwordx4 v[%d:%d], v%d, s[%d:%d], s%d offen offset:%d sc1" % (vKA + 8, vKA + 11, vL16, SWS, SWS + 3, sT1, WS_KV))
    a("v_mov_b32 v%d, 0" % vT1)
    for j in range(4):
        a("v_dot2_f32_bf16 v%d, v%d, v%d, v%d" % (vT1, vKA + 8 + j, vKA + 8 + j, vT1))
    a.nop(3)
    a("v_mov_b32 v%d, v%d" % (vT2, vT1))
    a.nop(2)
    a("v_permlane32_swap_b32 v%d, v%d" % (vT1, vT2))
    a.nop(2)
    a("v_add_f32 v%d, v%d, v%d" % (vPl, vT1, vT2))
    wave_reduce(a, "v_max_f32", vPl)
    a("s_branch L_I2_X")
    a.label("L_KF_V")
    a("v_bfe_u32 v%d, v0, 4, 1" % vT1)
    a("v_lshrrev_b32 v%d, 5, v0" % vT2)
    a("v_lshl_add_u32 v%d, v%d, 1, v%d" % (vT1, vT1, vT2))
    a("v_and_b32 v%d, 15, v0" % vT2)
    a("v_lshlrev_b32 v%d, 8, v%d" % (vT1, vT1))
    a("v_lshl_add_u32 v%d, v%d, 4, v%d" % (vT1, vT2, vT1))
    a("buffer_store_dwordx4 v[%d:%d], v%d, s[%d:%d], s%d offen offset:%d sc1" % (vKA + 8, vKA + 11, vT1, SWS, SWS + 3, sT1, WS_KV + 1024))
    a("v_max3_f32 v%d, |v%d|, |v%d|, |v%d|" % (vT4, vKA, vKA + 1, vKA + 2))
    a("v_max3_f32 v%d, |v%d|, |v%d|, v%d" % (vT4, vKA + 3, vKA + 4, vT4))
    a("v_max3_f32 v%d, |v%d|, |v%d|, v%d" % (vT4, vKA + 5, vKA + 6, vT4))
    a("v_max_f32 v%d, |v%d|, v%d" % (vT4, vKA + 7, vT4))
    a("s_mov_b32 s%d, 0x%08x" % (sT2, f32bits(2.0 ** 60)))
    a("v_cmp_lt_f32 vcc, s%d, v%d" % (sT2, vT4))
    a.nop(1)
    a("s_cmp_lg_u64 vcc, 0")
    a("s_cselect_b32 s%d, 0x7f800000, 0" % sT2)
    a("v_mov_b32 v%d, s%d" % (vPl, sT2))
    a.label("L_I2_X")
    a.label("L_I2_N")
    dma_stage(4)
    a("s_waitcnt vmcnt(12)")
    a("s_cmp_eq_u32 s%d, 0" % sSkip)
    a("s_cbranch_scc1 L_KG_E")
    a("s_lshl_b32 s%d, s%d, 2" % (sT0, sMT))
    a("s_add_u32 s%d, s%d, s%d" % (sT0, sT0, sRB))
    a("s_lshl_b32 s%d, s%d, 1" % (sT0, sT0))
    a("s_add_u32 s%d, s%d, s%d" % (sT0, sT0, sKV))
    a("s_lshl_b32 s%d, s%d, 7" % (sT0, sT0))
    a("s_add_u32 s%d, s%d, %d" % (sT0, sT0, WS_KFL - 128))
    a("v_mov_b32 v%d, s%d" % (vPl + 1, sE))
    a("v_mov_b32 v%d, 0" % vT2)
    a("s_mov_b32 exec_lo, 0")
    a("s_mov_b32 exec_hi, 0x80000000")
    a("buffer_store_dwordx2 v[%d:%d], v%d, s[%d:%d], s%d offen sc1" % (vPl, vPl + 1, vT2, SWS, SWS + 3, sT0))
    a("s_mov_b64 exec, -1")
    a.label("L_KG_E")
    stamp("w3")
    a("s_barrier")
    a("s_cmp_lg_u32 s%d, 1" % sH)
    a("s_cbranch_scc1 L_I3_N")
    a("v_and_b32 v%d, 7, v0" % vT1)
    a("v_lshlrev_b32 v%d, 2, v%d" % (vT1, vT1))
    a("v_add_u32 v%d, %d, v%d" % (vT1, L_G8, vT1))
    a("ds_read_b32 v%d, v%d" % (vPl, vT1))
    a("v_mov_b32 v%d, s%d" % (vPl + 1, sE))
    a("v_lshlrev_b32 v%d, 3, v0" % vT1)
    a("s_add_u32 s%d, s%d, %d" % (sT0, sSlot, WS_G))
    a("s_waitcnt lgkmcnt(0)")
    a("s_mov_b64 exec, 0xff")
    a("buffer_store_dwordx2 v[%d:%d], v%d, s[%d:%d], s%d offen sc1" % (vPl, vPl + 1, vT1, SWS, SWS + 3, sT0))
    a("s_mov_b64 exec, -1")
    a("s_mov_b32 s%d, 1" % sSkip)
    a.label("L_I3_N")
    dma_stage(5)
    a("s_waitcnt vmcnt(13)")
    a("s_cmp_lg_u32 s%d, 0" % sSkip)
    a("s_cbranch_scc1 L_I3_E")
    a("s_waitcnt vmcnt(12)")
    a.label("L_I3_E")
    stamp("w4")
    a("s_barrier")
    dma_stage(6)
    a("s_waitcnt vmcnt(12)")
    stamp("w5")
    a("s_barrier")
    kvpoll = ["buffer_load_dwordx2 v[%d:%d], v%d, s[%d:%d], s%d offen sc1" % (vPl, vPl + 1, vT4, SWS, SWS + 3, sOffC),
              "buffer_load_dwordx2 v[%d:%d], v%d, s[%d:%d], s%d offen offset:128 sc1" % (vPl + 2, vPl + 3, vT4, SWS, SWS + 3, sOffC)]
    dma_stage(7)
    a("s_waitcnt vmcnt(12)")
    stamp("w6")
    a("s_barrier")
    a("s_cmp_lg_u32 s%d, 2" % sH)
    a("s_cbranch_scc1 L_EC_X")
    a("v_lshlrev_b32 v%d, 8, v0" % vT4)
    a("s_mov_b32 s%d, %d" % (sOffC, WS_KFL))
    a("s_mov_b32 s%d, 0" % sSpin)
    a.label("L_EC_L")
    emit(kvpoll)
    a("s_waitcnt vmcnt(0)")
    a("v_cmp_ne_u32 vcc, s%d, v%d" % (sE, vPl + 1))
    a("v_cmp_ne_u32 s[%d:%d], s%d, v%d" % (sT0, sT1, sE, vPl + 3))
    a("s_or_b64 vcc, vcc, s[%d:%d]" % (sT0, sT1))
    a("s_cbranch_scc0 L_EC_E")
    spin_tail("L_EC_E", 2)
    a("s_branch L_EC_L")
    a.label("L_EC_E")
    a("v_max_f32 v%d, v%d, v%d" % (vT1, vPl, vPl + 2))
    wave_reduce(a, "v_max_f32", vT1)
    a("v_mov_b32 v%d, %d" % (vT2, L_KMAX))
    a("s_mov_b32 exec_lo, 0")
    a("s_mov_b32 exec_hi, 0x80000000")
    a("ds_write_b32 v%d, v%d" % (vT2, vT1))
    a("s_mov_b64 exec, -1")
    a("s_waitcnt lgkmcnt(0)")
    a.label("L_EC_X")
    a("s_cmp_lg_u32 s%d, 3" % sH)
    a("s_cbranch_scc1 L_GP_X")
    gl = ["buffer_load_dwordx2 v[%d:%d], v%d, s[%d:%d], s%d offen sc1" % (vPl, vPl + 1, vT3, SWS, SWS + 3, sOffD),
          "buffer_load_dwordx2 v[%d:%d], v%d, s[%d:%d], s%d offen offset:1024 sc1" % (vPl + 2, vPl + 3, vT3, SWS, SWS + 3, sOffD)]
    a("v_lshrrev_b32 v%d, 3, v0" % vT3)
    a("v_and_b32 v%d, 7, v0" % vT1)
    a("v_lshlrev_b32 v%d, 7, v%d" % (vT3, vT3))
    a("v_lshl_add_u32 v%d, v%d, 3, v%d" % (vT3, vT1, vT3))
    a("s_lshl_b32 s%d, s%d, 11" % (sT1, sMT))
    a("s_add_u32 s%d, s%d, %d" % (sOffD, sT1, WS_G))
    a("s_mov_b32 s%d, 0" % sSpin)
    a.label("L_GP_L")
    emit(gl)
    a("s_waitcnt vmcnt(0)")
    a("v_cmp_ne_u32 vcc, s%d, v%d" % (sE, vPl + 1))
    a("v_cmp_ne_u32 s[%d:%d], s%d, v%d" % (sT0, sT1, sE, vPl + 3))
    a("s_or_b64 vcc, vcc, s[%d:%d]" % (sT0, sT1))
    a("s_cbranch_scc0 L_GP_E")
    spin_tail("L_GP_E")
    a("s_branch L_GP_L")
    a.label("L_GP_E")
    a("v_lshlrev_b32 v%d, 2, v0" % vT1)
    a("v_add_u32 v%d, %d, v%d" % (vT1, L_GROW, vT1))
    a("ds_write_b32 v%d, v%d" % (vT1, vPl))
    a("ds_write_b32 v%d, v%d offset:256" % (vT1, vPl + 2))
    a.label("L_GP_X")
    a("s_waitcnt vmcnt(0) lgkmcnt(0)")
    stamp("w7")
    a("s_barrier")
    kv_dma(0, 12)
    vWs, vB0, vB1, vTr0, vTr1, vPa, vPoll = 2, 3, 4, 5, 6, 7, 8
    vFA = 24
    vFB = 32
    AC2 = 64
    vWo = 128
    for r in range(64):
        a("v_mov_b32 v%d, 0" % (AC2 + r))
    a("v_bfe_u32 v%d, v0, 4, 1" % vT1)
    a("v_and_b32 v%d, 7, v0" % vT2)
    a("v_lshlrev_b32 v%d, 2, v%d" % (vT1, vT1))
    a("v_xor_b32 v%d, v%d, v%d" % (vT1, vT1, vT2))
    a("v_lshrrev_b32 v%d, 3, v0" % vT2)
    a("v_lshlrev_b32 v%d, 10, v%d" % (vT2, vT2))
    a("v_lshl_add_u32 v%d, v%d, 4, v%d" % (vT1, vT1, vT2))
    a("s_lshl_b32 s%d, s%d, 14" % (sT0, sH))
    a("s_lshl_b32 s%d, s%d, 7" % (sT1, sNB))
    a("s_add_u32 s%d, s%d, s%d" % (sT0, sT0, sT1))
    a("v_add_u32 v%d, s%d, v%d" % (vWs, sT0, vT1))
    a("v_lshrrev_b32 v%d, 5, v0" % vT0)
    a("v_bfe_u32 v%d, v0, 2, 2" % vT1)
    a("v_lshl_add_u32 v%d, v%d, 2, v%d" % (vT2, vT0, vT1))
    a("v_lshlrev_b32 v%d, 7, v%d" % (vT2, vT2))
    a("v_bfe_u32 v%d, v0, 3, 1" % vT1)
    a("v_lshl_add_u32 v%d, v%d, 6, v%d" % (vT2, vT1, vT2))
    a("v_bfe_u32 v%d, v0, 4, 1" % vT1)
    a("v_lshl_add_u32 v%d, v%d, 5, v%d" % (vT2, vT1, vT2))
    a("v_and_b32 v%d, 3, v0" % vT1)
    a("v_lshl_add_u32 v%d, v%d, 3, v%d" % (vT2, vT1, vT2))
    a("s_add_u32 s%d, s%d, %d" % (sScr, sM0w, L_SCR))
    a("v_add_u32 v%d, s%d, v%d" % (vTr0, sScr, vT2))
    a("v_xor_b32 v%d, 64, v%d" % (vTr1, vTr0))
    a("s_mul_i32 s%d, s%d, 288" % (sT0, sMB))
    a("s_add_u32 s%d, s%d, s%d" % (sT0, sT0, sH))
    a("s_lshl_b32 s%d, s%d, 10" % (sT0, sT0))
    a("s_add_u32 s%d, s%d, %d" % (sT0, sT0, WS_AF))
    a("v_add_u32 v%d, s%d, v%d" % (vB0, sT0, vL16))
    a("v_add_u32 v%d, %d, v%d" % (vB1, 144 * 1024, vB0))
    a("v_and_b32 v%d, 15, v0" % vPa)
    a("v_lshlrev_b32 v%d, 7, v%d" % (vPa, vPa))
    srd(a, SA, P['wd'], P['wd'] + 1, 0x1c0000)
    srd(a, SB, P['wo'], P['wo'] + 1, 0x80000)
    a("s_waitcnt vmcnt(0)")
    stamp("w8")
    a("s_barrier")
    kv_dma(48, 20)
    a("s_waitcnt vmcnt(0)")
    stamp("w9")
    a("s_barrier")
    stamp("bkv")
    a("s_setprio %d" % HPRIO)
    a("s_cmp_lg_u32 s%d, 0" % sH)
    a("s_cbranch_scc1 L_NOHF")
    a("v_mov_b32 v%d, 0" % vT3)
    a("v_mov_b32 v%d, s%d" % (vT2, sE))
    a("s_add_u32 s%d, s%d, %d" % (sT0, sSlot, WS_HFL))
    a("s_mov_b64 exec, 1")
    a("buffer_store_dword v%d, v%d, s[%d:%d], s%d offen sc1" % (vT2, vT3, SWS, SWS + 3, sT0))
    a("s_mov_b64 exec, -1")
    a.label("L_NOHF")

    def w_dma(S, slot, soff, extra):
        for u in range(2):
            a("s_add_u32 m0, s%d, %d" % (sScr, slot * 2048 + u * 1024))
            if soff is None:
                a("s_mov_b32 s%d, %d" % (sT0, extra + u * 8192))
            else:
                a("s_add_u32 s%d, s%d, %d" % (sT0, soff, extra + u * 8192))
            a("buffer_load_dwordx4 v%d, s[%d:%d], s%d offen lds" % (vWs, S, S + 3, sT0))

    def b_loads(slot, soff, extra):
        a("s_add_u32 s%d, s%d, %d" % (sT0, soff, extra))
        a("buffer_load_dwordx4 v[%d:%d], v%d, s[%d:%d], s%d offen sc1" % (vFB + 8 * slot, vFB + 8 * slot + 3, vB0, SWS, SWS + 3, sT0))
        a("buffer_load_dwordx4 v[%d:%d], v%d, s[%d:%d], s%d offen sc1" % (vFB + 8 * slot + 4, vFB + 8 * slot + 7, vB1, SWS, SWS + 3, sT0))

    def tr_reads(dst, slot):
        for an, ad in enumerate((vTr0, vTr1)):
            for u in range(2):
                a("ds_read_b64_tr_b16 v[%d:%d], v%d offset:%d" % (dst + 4 * an + 2 * u, dst + 4 * an + 2 * u + 1, ad,
                                                                 slot * 2048 + u * 1024))

    def m1(fa, fb, an, i):
        acc = AC2 + (an * 2 + i) * 16
        a("%s v[%d:%d], v[%d:%d], v[%d:%d], v[%d:%d]" % (MFMA, acc, acc + 15, fa + 4 * an, fa + 4 * an + 3,
                                                        fb + 4 * i, fb + 4 * i + 3, acc, acc + 15))

    def mm(fa, fb):
        for an in (0, 1):
            for i in (0, 1):
                m1(fa, fb, an, i)

    for j in range(4):
        w_dma(SB, j, None, j * 65536)
    a("s_waitcnt vmcnt(0)")
    for j in range(4):
        tr_reads(vWo + 8 * j, j)
        a("s_waitcnt lgkmcnt(4)")
    a("s_waitcnt lgkmcnt(0)")
    a("s_lshr_b32 s%d, s%d, 1" % (sT0, sMB))
    a("s_lshl_b32 s%d, s%d, 11" % (sT0, sT0))
    a("s_add_u32 s%d, s%d, %d" % (sOffA, sT0, WS_HFL))
    a("s_mov_b32 s%d, 0" % sSpin)
    a.label("L_HP_L")
    a("buffer_load_dword v%d, v%d, s[%d:%d], s%d offen sc1" % (vPoll, vPa, SWS, SWS + 3, sOffA))
    a("s_waitcnt vmcnt(0)")
    a("v_cmp_ne_u32 vcc, s%d, v%d" % (sE, vPoll))
    a("s_cmp_eq_u64 vcc, 0")
    a("s_cbranch_scc1 L_HP_E")
    spin_tail("L_HP_E", 4)
    a("s_branch L_HP_L")
    a.label("L_HP_E")
    stamp("hpoll")
    a("s_mov_b32 s%d, 0" % sOffB)
    a("s_mov_b32 s%d, %d" % (sOffC, 8 * 4096))
    for j in range(4):
        w_dma(SA, j, sOffB, j * 65536)
        b_loads(j, sOffC, j * 4096)
    a("s_mov_b32 s%d, 0" % sIt)
    a.label("L_FFN")
    for j in range(4):
        a("s_waitcnt vmcnt(12)")
        tr_reads(vFA, j)
        a("s_waitcnt lgkmcnt(0)")
        fb = vFB + 8 * j
        m1(vFA, fb, 0, 0)
        a("s_add_u32 m0, s%d, %d" % (sScr, j * 2048))
        a("s_add_u32 s%d, s%d, %d" % (sT0, sOffB, (4 + j) * 65536))
        a("buffer_load_dwordx4 v%d, s[%d:%d], s%d offen lds" % (vWs, SA, SA + 3, sT0))
        m1(vFA, fb, 1, 0)
        a("s_add_u32 m0, s%d, %d" % (sScr, j * 2048 + 1024))
        a("s_add_u32 s%d, s%d, %d" % (sT0, sOffB, (4 + j) * 65536 + 8192))
        a("buffer_load_dwordx4 v%d, s[%d:%d], s%d offen lds" % (vWs, SA, SA + 3, sT0))
        m1(vFA, fb, 0, 1)
        a("s_add_u32 s%d, s%d, %d" % (sT0, sOffC, (4 + j) * 4096))
        a("buffer_load_dwordx4 v[%d:%d], v%d, s[%d:%d], s%d offen sc1" % (fb, fb + 3, vB0, SWS, SWS + 3, sT0))
        m1(vFA, fb, 1, 1)
        a("buffer_load_dwordx4 v[%d:%d], v%d, s[%d:%d], s%d offen sc1" % (fb + 4, fb + 7, vB1, SWS, SWS + 3, sT0))
    a("s_add_u32 s%d, s%d, %d" % (sOffB, sOffB, 4 * 65536))
    a("s_add_u32 s%d, s%d, %d" % (sOffC, sOffC, 4 * 4096))
    a("s_add_u32 s%d, s%d, 1" % (sIt, sIt))
    a("s_cmp_lt_u32 s%d, %d" % (sIt, int(os.environ.get("NFFN", "7"))))
    a("s_cbranch_scc1 L_FFN")
    a("s_waitcnt vmcnt(0)")
    stamp("ffn")
    for j in range(4):
        w_dma(SB, j, None, (4 + j) * 65536)
    a("v_and_b32 v%d, 31, v0" % vT0)
    a("v_lshrrev_b32 v%d, 5, v0" % vT1)
    a("v_and_b32 v%d, 15, v0" % vT3)
    a("v_xor_b32 v%d, v%d, v%d" % (vT1, vT1, vT3))
    a("v_lshlrev_b32 v%d, 8, v%d" % (vT0, vT0))
    a("v_lshl_add_u32 v%d, v%d, 4, v%d" % (vT0, vT1, vT0))
    a("s_lshl_b32 s%d, s%d, 14" % (sT1, sH))
    a("v_add_u32 v%d, s%d, v%d" % (vT0, sT1, vT0))
    for q in range(8):
        a("v_xor_b32 v%d, %d, v%d" % (9 + q, q * 32, vT0))
    a("s_mov_b32 s%d, 0" % sOffC)
    a("s_waitcnt vmcnt(0)")
    a("s_barrier")
    stamp("b3")
    a("s_setprio 3")
    for j in range(4):
        b_loads(j, sOffC, j * 4096)
    for j in range(8):
        sl = j & 3
        fb = vFB + 8 * sl
        a("s_waitcnt vmcnt(%d)" % (6 if j < 5 else 2 * (7 - j)))
        a("s_mov_b32 s%d, 0" % sSpin)
        a.label("L_OP%d_L" % j)
        a("v_max3_u32 v%d, v%d, v%d, v%d" % (vT0, fb, fb + 1, fb + 2))
        a("v_max3_u32 v%d, v%d, v%d, v%d" % (vT1, fb + 3, fb + 4, fb + 5))
        a("v_max3_u32 v%d, v%d, v%d, v%d" % (vT0, fb + 6, fb + 7, vT0))
        a("v_max_u32 v%d, v%d, v%d" % (vT0, vT0, vT1))
        a("v_cmp_eq_u32 vcc, -1, v%d" % vT0)
        a("s_cmp_eq_u64 vcc, 0")
        a("s_cbranch_scc1 L_OP%d_E" % j)
        spin_tail("L_OP%d_E" % j)
        b_loads(sl, sOffC, j * 4096)
        a("s_waitcnt vmcnt(0)")
        a("s_branch L_OP%d_L" % j)
        a.label("L_OP%d_E" % j)
        if j in (0, 7):
            stamp("op%d" % j)
        if j >= 4:
            a("s_waitcnt lgkmcnt(%d)" % (4 * (7 - j)))
        mm(vWo + 8 * sl, fb)
        if j < 4:
            b_loads(sl, sOffC, (4 + j) * 4096)
            if j == 3:
                a("s_waitcnt lgkmcnt(8)")
            tr_reads(vWo + 8 * sl, sl)
    a.nop(9)
    for an in (0, 1):
        for i in (0, 1):
            if (an, i) != (0, 0):
                a.nop(4)
            for q in range(4):
                acc = AC2 + (an * 2 + i) * 16 + 4 * q
                a("ds_write_b128 v%d, v[%d:%d] offset:%d" % (9 + an * 4 + q, acc, acc + 3, i * 8192))
        a("s_waitcnt lgkmcnt(4)")
    a("s_waitcnt lgkmcnt(0)")
    stamp("pw")
    a("s_barrier")
    prof_flush()
    a.label("L_END")
    a("s_endpgm")
    a.lines = a.lines[:mark0] + a.lines[mark1:] + a.lines[mark0:mark1]
    a.label("L_CODE_END")
    if PROF:
        open("stamps.txt", "w").write(" ".join(stamp_names["M"]) + "\n" + " ".join(stamp_names["H"]))
    kernel_desc(a, name, 168, 102)
    return "; @launch grid=(256,1,1) block=(768,1,1) lds=%d" % LDS_BYTES


def main():
    out = sys.argv[1] if len(sys.argv) > 1 else "cdna_kernels/%s.s" % NAME
    a = Asm()
    a.raw(".amdgcn_target \"amdgcn-amd-amdhsa--gfx950\"")
    launch = gen(a)
    hdr = ["; generated by work/gen5.py (hand-designed kernel, laid out by script)", launch]
    open(out, "w").write("\n".join(hdr) + "\n" + a.text())


if __name__ == "__main__":
    main()
```

```python
import sys, math, os
from gen import Asm, f32bits, kernel_begin, kernel_desc, srd, wave_reduce, MFMA, NAME, QSCALE

PROF = int(os.environ.get("PROF", "0"))
PRIO = int(os.environ.get("PRIO", "1"))
DIAG = int(os.environ.get("DIAG", "0"))
TOUCH = int(os.environ.get("TOUCH", "1"))
PREF = int(os.environ.get("PREF", "1"))
PFLATE = int(os.environ.get("PFLATE", "1"))
CODEPF = int(os.environ.get("CODEPF", "1"))
HPRIO = int(os.environ.get("HPRIO", "0"))

WS_AF = 2 << 20
WS_KV = 0
WS_G = 0x40000
WS_KFL = 0x50000
WS_HFL = 0x60000
WS_PROF = 32 << 20
WS_SIZE = 268435456
KVBLK = 2048
SPIN_MAX = 1 << 14

BUFSZ = 49152
PB = {2: 0, 0: BUFSZ, 1: 2 * BUFSZ}
OX, OWG, OWU, OWQ = 0, 16384, 30720, 45056
L_TOP = 3 * BUFSZ
L_G8 = L_TOP
L_KMAX = L_TOP + 64
L_GROW = L_TOP + 1024
L_QX = L_TOP + 8192
L_SCR = 131072
LDS_BYTES = 163840
NBKV = 3


def gen(a):
    name = NAME + "_kernel"
    kernel_begin(a, name)
    sW, sMT, sNT = 3, 4, 5
    sT0, sT1, sT2, sT3 = 6, 7, 8, 9
    sStepA, sKV, sRB, sE = 10, 11, 12, 13
    sMB, sNB = 14, 15
    P = dict(x=16, wq=18, wk=20, wv=22, wo=24, wg=28, wu=30, wd=32, gw=34, out=36, dbg=38, ws=40)
    SX, SA, SB, SWS, SE, SDBG, SC = 44, 48, 52, 56, 60, 64, 68
    SOUT = 44
    sH = 72
    sM0x, sM0w, sScr = 73, 74, 75
    sVm = 76
    sOffA, sOffB = 78, 79
    sStepB = 80
    sIt, sSkip = 82, 83
    sSpin, sKoff = 26, 27
    sSlot = 42
    sOffC, sOffD = 86, 87
    stamp_names = {"M": [], "H": []}
    role = ["M"]

    def stamp(label):
        if DIAG and role[0] == "M" and label in ("bar0", "Bq", "b3"):
            a("s_memrealtime s[84:85]")
            a("s_waitcnt lgkmcnt(0)")
            a("s_mov_b32 s%d, s84" % {"bar0": 90, "Bq": 91, "b3": 92}[label])
        if not PROF:
            return
        lst = stamp_names[role[0]]
        idx = len(lst)
        lst.append(str(label))
        a("s_memtime s[84:85]")
        if label in ("bar0", "Bq", "b3") and role[0] == "M":
            a("s_memrealtime s[98:99]")
        a("s_waitcnt lgkmcnt(0)")
        a("v_writelane_b32 v167, s84, %d" % idx)
        if label in ("bar0", "Bq", "b3") and role[0] == "M":
            a("v_writelane_b32 v167, s98, %d" % {"bar0": 59, "Bq": 60, "b3": 61}[label])

    def prof_flush():
        if DIAG and role[0] == "M":
            a("s_waitcnt vmcnt(0)")
            a("s_memrealtime s[84:85]")
            srd(a, SDBG, P['dbg'], P['dbg'] + 1, 256)
            a("s_waitcnt lgkmcnt(0)")
            a("s_cmp_lg_u32 s%d, 7" % sW)
            a("s_cbranch_scc1 L_END")
            a("s_cmp_lt_u32 s2, 248")
            a("s_cbranch_scc1 L_END")
            a("s_and_b32 s93, s2, 7")
            a("s_lshl_b32 s93, s93, 2")
            a("v_mov_b32 v2, 0")
            a("s_mov_b64 exec, 1")
            a("s_sub_u32 s94, s84, s88")
            a("s_and_b32 s95, s88, 0xffff")
            a("s_lshl_b32 s94, s94, 16")
            a("s_or_b32 s94, s94, s95")
            a("v_mov_b32 v3, s94")
            a("buffer_store_dword v3, v2, s[%d:%d], s93 offen offset:32" % (SDBG, SDBG + 3))
            a("s_cmp_lg_u32 s2, 253")
            a("s_cbranch_scc1 L_END")
            for i, sreg in enumerate((90, 91, 92, 84)):
                a("s_sub_u32 s94, s%d, s88" % sreg)
                a("v_mov_b32 v3, s94")
                a("buffer_store_dword v3, v2, s[%d:%d], 0 offen offset:%d" % (SDBG, SDBG + 3, 4 + 4 * i))
                a("s_nop 1")
        if not PROF:
            return
        a("s_waitcnt vmcnt(0)")
        stamp("end")
        a("s_memrealtime s[98:99]")
        a("s_waitcnt lgkmcnt(0)")
        a("v_writelane_b32 v167, s98, 62")
        a("v_writelane_b32 v167, s88, 63")
        a("s_mul_i32 s82, s2, 12")
        a("s_add_u32 s82, s82, s%d" % sW)
        a("s_lshl_b32 s82, s82, 8")
        a("s_add_u32 s82, s82, %d" % WS_PROF)
        a("v_lshlrev_b32 v2, 2, v0")
        a("buffer_store_dword v167, v2, s[%d:%d], s82 offen" % (SWS, SWS + 3))

    def emit(lst):
        for ins in lst:
            a(ins)

    def spin_tail(lbl_end, sleep=1):
        a("s_add_u32 s%d, s%d, 1" % (sSpin, sSpin))
        a("s_cmp_ge_u32 s%d, %d" % (sSpin, SPIN_MAX))
        a("s_cbranch_scc1 %s" % lbl_end)
        a("s_sleep %d" % sleep)

    vL16 = 1
    vT0, vT1, vT2, vT3, vT4 = 21, 22, 23, 24, 25

    a("s_cmp_ge_u32 s2, 256")
    a("s_cbranch_scc1 L_END")
    a("s_load_dwordx16 s[16:31], s[0:1], 0")
    a("s_load_dwordx8 s[32:39], s[0:1], 64")
    a("s_load_dwordx2 s[40:41], s[0:1], 96")
    a("s_memrealtime s[88:89]")
    if PROF:
        a("s_memtime s[84:85]")
        a("s_waitcnt lgkmcnt(0)")
        a("v_writelane_b32 v167, s84, 0")
        stamp_names["M"].append("start")
        stamp_names["H"].append("start")
    a("v_lshrrev_b32 v1, 6, v0")
    a("v_and_b32 v0, 63, v0")
    a("v_readfirstlane_b32 s%d, v1" % sW)
    a("s_and_b32 s%d, s2, 7" % sT0)
    a("s_lshr_b32 s%d, s2, 3" % sT1)
    a("s_and_b32 s%d, s%d, 1" % (sMT, sT0))
    a("s_lshl_b32 s%d, s%d, 3" % (sMT, sMT))
    a("s_and_b32 s%d, s%d, 7" % (sT2, sT1))
    a("s_add_u32 s%d, s%d, s%d" % (sMT, sMT, sT2))
    a("s_lshr_b32 s%d, s%d, 1" % (sNT, sT0))
    a("s_lshl_b32 s%d, s%d, 2" % (sNT, sNT))
    a("s_lshr_b32 s%d, s%d, 3" % (sT2, sT1))
    a("s_add_u32 s%d, s%d, s%d" % (sNT, sNT, sT2))
    a("s_lshl_b32 s%d, s%d, 2" % (sMB, sT0))
    a("s_and_b32 s%d, s%d, 3" % (sT2, sT1))
    a("s_add_u32 s%d, s%d, s%d" % (sMB, sMB, sT2))
    a("s_lshr_b32 s%d, s%d, 2" % (sNB, sT1))
    a("v_lshlrev_b32 v%d, 4, v0" % vL16)
    a("s_cmp_ge_u32 s%d, 8" % sW)
    a("s_cbranch_scc1 L_HELPER")
    if TOUCH:
        a("s_cmp_ge_u32 s%d, 4" % sW)
        a("s_cbranch_scc1 L_NOTOUCH")
        a("s_waitcnt lgkmcnt(0)")
        a("s_mov_b32 s%d, s%d" % (SE, P['x']))
        a("s_mov_b32 s%d, s%d" % (SE + 1, P['x'] + 1))
        for k, pp in ((1, P['wg']), (2, P['wu']), (3, P['wq'])):
            a("s_cmp_eq_u32 s%d, %d" % (sW, k))
            a("s_cselect_b32 s%d, s%d, s%d" % (SE, pp, SE))
            a("s_cselect_b32 s%d, s%d, s%d" % (SE + 1, pp + 1, SE + 1))
        a("s_mov_b32 s%d, 1024" % (SE + 2))
        a("s_mov_b32 s%d, 0x20000" % (SE + 3))
        a("v_mov_b32 v2, 0")
        a("s_mov_b64 exec, 1")
        a("buffer_load_dword v160, v2, s[%d:%d], 0 offen" % (SE, SE + 3))
        a("s_mov_b64 exec, -1")
        a.label("L_NOTOUCH")
    if PREF:
        a("s_waitcnt lgkmcnt(0)")
        a("s_mov_b32 s%d, 0x20000" % (SE + 3))
        a("s_lshl_b32 s%d, s2, 3" % sT0)
        a("s_add_u32 s%d, s%d, s%d" % (sT0, sT0, sW))
        a("s_lshl_b32 s%d, s%d, 10" % (sT0, sT0))
        a("s_mov_b32 s%d, s%d" % (SE, P['x']))
        a("s_mov_b32 s%d, s%d" % (SE + 1, P['x'] + 1))
        a("s_mov_b32 s%d, 0x200000" % (SE + 2))
        a("buffer_load_dwordx4 v[160:163], v%d, s[%d:%d], s%d offen" % (vL16, SE, SE + 3, sT0))
        a("s_cmp_eq_u32 s%d, 7" % sW)
        a("s_cbranch_scc1 L_PF7")
        a("s_mul_i32 s%d, s2, 7" % sT0)
        a("s_add_u32 s%d, s%d, s%d" % (sT0, sT0, sW))
        a("s_lshl_b32 s%d, s%d, 10" % (sT0, sT0))
        a("s_mov_b32 s%d, 0x1c0000" % (SE + 2))
        for nm in (('wg', 'wu') if PFLATE else ('wg', 'wu', 'wd')):
            a("s_mov_b32 s%d, s%d" % (SE, P[nm]))
            a("s_mov_b32 s%d, s%d" % (SE + 1, P[nm] + 1))
            a("buffer_load_dwordx4 v[160:163], v%d, s[%d:%d], s%d offen" % (vL16, SE, SE + 3, sT0))
        a("s_branch L_PFE")
        a.label("L_PF7")
        a("s_lshl_b32 s%d, s2, 11" % sT0)
        a("s_mov_b32 s%d, 0x80000" % (SE + 2))
        if CODEPF:
            a("s_getpc_b64 s[90:91]")
            a.label("L_PC")
            a("s_sub_u32 s90, s90, L_PC-%s" % name)
            a("s_subb_u32 s91, s91, 0")
            a("s_lshr_b32 s%d, s2, 3" % sT1)
            a("s_lshl_b32 s%d, s%d, 10" % (sT1, sT1))
            a("v_add_u32 v2, s%d, v%d" % (sT1, vL16))
            a("v_cmp_gt_u32 vcc, L_CODE_END-%s-16, v2" % name)
            a("s_and_saveexec_b64 s[92:93], vcc")
            a("s_cbranch_execz L_PCX")
            a("global_load_dwordx4 v[160:163], v2, s[90:91]")
            a.label("L_PCX")
            a("s_mov_b64 exec, -1")
        for nm in (('wq',) if PFLATE else ('wq', 'wo')):
            a("s_mov_b32 s%d, s%d" % (SE, P[nm]))
            a("s_mov_b32 s%d, s%d" % (SE + 1, P[nm] + 1))
            a("buffer_load_dwordx4 v[160:163], v%d, s[%d:%d], s%d offen" % (vL16, SE, SE + 3, sT0))
            a("buffer_load_dwordx4 v[160:163], v%d, s[%d:%d], s%d offen offset:1024" % (vL16, SE, SE + 3, sT0))
        a.label("L_PFE")
    a("s_branch L_MAIN")
    a.label("L_HELPER")
    mark0 = len(a.lines)
    a.label("L_MAIN")

    vXr = [8, 9, 10, 11]
    vW0 = 12
    vW1 = list(range(13, 21))
    vGq = 26
    vGm = [28, 30]
    FR = [32, 48]
    ACC = 64
    vKa, vVa = 2, 3
    vQ = 4
    vKF = [8, 12]
    vS = [32, 48]
    vVF = [64, 72]
    vP = 80
    vO = 128
    vC = 144
    NB = int(os.environ.get("NB", "8"))
    b0 = PB[0]
    a("s_lshr_b32 s%d, s%d, 2" % (sT0, sW))
    a("s_lshl_b32 s%d, s%d, 13" % (sT0, sT0))
    a("s_add_u32 s%d, s%d, %d" % (sT0, sT0, b0 + OX))
    a("v_and_b32 v%d, 31, v0" % vT0)
    a("v_lshlrev_b32 v%d, 7, v%d" % (vT0, vT0))
    a("v_lshrrev_b32 v%d, 5, v0" % vT1)
    a("v_bfe_u32 v%d, v0, 1, 3" % vT3)
    a("v_xor_b32 v%d, v%d, v%d" % (vT3, vT3, vT1))
    a("v_lshl_add_u32 v%d, v%d, 4, v%d" % (vT0, vT3, vT0))
    for ks in range(4):
        a("v_xor_b32 v%d, %d, v%d" % (vT2, ks * 32, vT0))
        a("v_add_u32 v%d, s%d, v%d" % (vXr[ks], sT0, vT2))
    a("v_bfe_u32 v%d, v0, 2, 2" % vT2)
    a("v_lshl_add_u32 v%d, v%d, 3, v%d" % (vT3, vT1, vT2))
    a("v_and_b32 v%d, 3, v0" % vT2)
    a("v_bfe_u32 v%d, v0, 4, 1" % vT4)
    a("v_mul_u32_u24 v%d, 0xe0, v%d" % (vT0, vT3))
    a("v_lshl_add_u32 v%d, v%d, 3, v%d" % (vT0, vT2, vT0))
    a("s_and_b32 s%d, s%d, 3" % (sT1, sW))
    a("s_lshl_b32 s%d, s%d, 6" % (sT0, sT1))
    a("s_add_u32 s%d, s%d, %d" % (sT0, sT0, b0 + OWG))
    a("s_movk_i32 s%d, %d" % (sT2, OWU - OWG - 96))
    a("s_cmp_lt_u32 s%d, 2" % sT1)
    a("s_cselect_b32 s%d, %d, s%d" % (sT3, OWU - OWG + 128, sT2))
    a("v_mul_u32_u24 v%d, s%d, v%d" % (vT1, sT3, vT4))
    a("v_add3_u32 v%d, v%d, v%d, s%d" % (vW0, vT0, vT1, sT0))
    a("s_cmp_eq_u32 s%d, 3" % sT1)
    a("s_cbranch_scc1 L_W1_Q")
    a("s_cmp_lt_u32 s%d, 1" % sT1)
    a("s_cselect_b32 s%d, %d, s%d" % (sT3, OWU - OWG + 128, sT2))
    a("v_mul_u32_u24 v%d, s%d, v%d" % (vT1, sT3, vT4))
    a("v_add3_u32 v%d, v%d, v%d, s%d" % (vT0, vT0, vT1, sT0))
    for q in range(8):
        ks, u = q >> 1, q & 1
        a("v_add_u32 v%d, %d, v%d" % (vW1[q], 32 + (16 * ks + 4 * u) * 224, vT0))
    a("s_branch L_W1_E")
    a.label("L_W1_Q")
    a("v_lshlrev_b32 v%d, 6, v%d" % (vT0, vT3))
    a("v_lshl_add_u32 v%d, v%d, 3, v%d" % (vT0, vT2, vT0))
    a("v_lshl_add_u32 v%d, v%d, 5, v%d" % (vT0, vT4, vT0))
    for q in range(8):
        ks, u = q >> 1, q & 1
        a("v_add_u32 v%d, %d, v%d" % (vW1[q], b0 + OWQ + (16 * ks + 4 * u) * 64, vT0))
    a.label("L_W1_E")
    for r in list(range(vC, vC + 16)) + list(range(vO, vO + 16)):
        a("v_mov_b32 v%d, 0" % r)
    a("v_mov_b32 v%d, v%d" % (vKa, vL16))
    a("v_lshrrev_b32 v%d, 5, v0" % vT0)
    a("v_and_b32 v%d, 15, v0" % vT1)
    a("v_lshlrev_b32 v%d, 8, v%d" % (vT2, vT0))
    a("v_lshl_add_u32 v%d, v%d, 4, v%d" % (vT2, vT1, vT2))
    a("v_add_u32 v%d, 1024, v%d" % (vVa, vT2))
    a("v_and_b32 v%d, 27, v0" % vT0)
    a("v_cmp_eq_u32 vcc, 16, v%d" % vT0)
    a("v_mov_b32 v%d, 0x3f803f80" % vT0)
    a("s_mov_b32 s%d, 0x0000ffff" % sVm)
    a("s_mov_b32 s%d, 0x0000ffff" % (sVm + 1))
    a("v_cndmask_b32 v27, 0, v%d, vcc" % vT0)
    a("v_and_b32 v%d, 31, v0" % vT0)
    a("s_lshr_b32 s%d, s%d, 2" % (sT0, sW))
    a("s_lshl_b32 s%d, s%d, 8" % (sT0, sT0))
    a("s_add_u32 s%d, s%d, %d" % (sT0, sT0, L_GROW))
    a("v_lshl_add_u32 v4, v%d, 2, s%d" % (vT0, sT0))
    a("s_lshl_b32 s%d, s%d, 10" % (sT0, sW))
    a("s_add_u32 s%d, s%d, %d" % (sT0, sT0, L_QX))
    a("v_add_u32 v5, s%d, v%d" % (sT0, vL16))
    a("v_mov_b32 v6, %d" % L_KMAX)
    a("s_lshr_b32 s%d, s%d, 2" % (sT0, sW))
    a("s_lshl_b32 s%d, s%d, 1" % (sT0, sT0))
    a("s_lshl_b32 s%d, s%d, 2" % (sT1, sMT))
    a("s_add_u32 s%d, s%d, s%d" % (sT0, sT0, sT1))
    a("s_mul_i32 s%d, s%d, 144" % (sT0, sT0))
    a("s_mul_i32 s%d, s%d, 7" % (sT1, sNT))
    a("s_add_u32 s%d, s%d, s%d" % (sT0, sT0, sT1))
    a("s_and_b32 s%d, s%d, 3" % (sT2, sW))
    a("s_lshl_b32 s%d, s%d, 1" % (sT1, sT2))
    a("s_add_u32 s%d, s%d, s%d" % (sT0, sT0, sT1))
    a("s_lshl_b32 s%d, s%d, 10" % (sT0, sT0))
    a("s_add_u32 s%d, s%d, %d" % (sOffA, sT0, WS_AF + 32 * 1024))
    a("s_add_u32 s%d, s%d, %d" % (sOffB, sOffA, 144 * 1024))
    a("s_lshr_b32 s%d, s%d, 1" % (sT0, sW))
    a("s_lshl_b32 s%d, s%d, 2" % (sT1, sMT))
    a("s_add_u32 s%d, s%d, s%d" % (sT0, sT0, sT1))
    a("s_mul_i32 s%d, s%d, 144" % (sT0, sT0))
    a("s_lshl_b32 s%d, s%d, 1" % (sT1, sNT))
    a("s_add_u32 s%d, s%d, s%d" % (sT0, sT0, sT1))
    a("s_and_b32 s%d, s%d, 1" % (sT1, sW))
    a("s_add_u32 s%d, s%d, s%d" % (sT0, sT0, sT1))
    a("s_lshl_b32 s%d, s%d, 10" % (sT0, sT0))
    a("s_add_u32 s%d, s%d, %d" % (sOffC, sT0, WS_AF))
    a("s_waitcnt lgkmcnt(0)")
    srd(a, SWS, P['ws'], P['ws'] + 1, WS_SIZE)
    srd(a, SOUT, P['out'], P['out'] + 1, 2097152)
    SXm = 48
    mGX, mGW = 128, 132
    srd(a, SXm, P['x'], P['x'] + 1, 2097152)
    srd(a, SE, P['gw'], P['gw'] + 1, 1024)
    a("s_lshl_b32 s%d, s%d, 4" % (sT0, sMT))
    a("s_add_u32 s%d, s%d, s%d" % (sT0, sT0, sNT))
    a("s_lshl_b32 s%d, s%d, 3" % (sT0, sT0))
    a("s_add_u32 s%d, s%d, s%d" % (sT0, sT0, sW))
    a("s_lshl_b32 s%d, s%d, 10" % (sT0, sT0))
    a("s_lshl_b32 s%d, s%d, 2" % (sT1, sW))
    a("s_add_u32 s%d, s%d, %d" % (sT1, sT1, L_G8))
    a("v_mov_b32 v%d, s%d" % (vGq, sT1))

    def g_loads():
        a("buffer_load_dwordx4 v[%d:%d], v%d, s[%d:%d], s%d offen" % (mGX, mGX + 3, vL16, SXm, SXm + 3, sT0))
        a("buffer_load_dwordx4 v[%d:%d], v%d, s[%d:%d], 0 offen" % (mGW, mGW + 3, vL16, SE, SE + 3))

    def g_job():
        a("s_waitcnt vmcnt(0)")
        if PREF and PFLATE:
            a("s_cmp_eq_u32 s%d, 7" % sW)
            a("s_cselect_b32 s%d, s%d, s%d" % (SE, P['wo'], P['wd']))
            a("s_cselect_b32 s%d, s%d, s%d" % (SE + 1, P['wo'] + 1, P['wd'] + 1))
            a("s_mov_b32 s%d, 0x1c0000" % (SE + 2))
            a("s_cselect_b32 s%d, 0x80000, s%d" % (SE + 2, SE + 2))
            a("s_mul_i32 s%d, s2, 7" % sT0)
            a("s_add_u32 s%d, s%d, s%d" % (sT0, sT0, sW))
            a("s_lshl_b32 s%d, s2, 1" % sT1)
            a("s_cmp_eq_u32 s%d, 7" % sW)
            a("s_cselect_b32 s%d, s%d, s%d" % (sT0, sT1, sT0))
            a("s_lshl_b32 s%d, s%d, 10" % (sT0, sT0))
            a("buffer_load_dwordx4 v[160:163], v%d, s[%d:%d], s%d offen" % (vL16, SE, SE + 3, sT0))
            a("s_cbranch_scc0 L_PFL") if False else None
            a("s_cmp_lg_u32 s%d, 7" % sW)
            a("s_cbranch_scc1 L_PFL")
            a("buffer_load_dwordx4 v[160:163], v%d, s[%d:%d], s%d offen offset:1024" % (vL16, SE, SE + 3, sT0))
            a.label("L_PFL")
        a("v_mov_b32 v%d, 0" % vT0)
        for j in range(4):
            a("v_dot2_f32_bf16 v%d, v%d, v%d, v%d" % (vT0, mGX + j, mGW + j, vT0))
        for r in range(8):
            a("v_mov_b32 v%d, 0" % (vO + r))
        a("v_mov_b32 v%d, v%d" % (vT1, vT0))
        wave_reduce(a, "v_add_f32", vT1)
        a("v_mul_f32 v%d, 0x%08x, v%d" % (vT1, f32bits(-math.log2(math.e)), vT1))
        a("v_exp_f32 v%d, v%d" % (vT1, vT1))
        a.nop(1)
        a("v_add_f32 v%d, 1.0, v%d" % (vT1, vT1))
        a("v_rcp_f32 v%d, v%d" % (vT1, vT1))
        a("s_mov_b32 exec_lo, 0")
        a("s_mov_b32 exec_hi, 0x80000000")
        a("ds_write_b32 v%d, v%d" % (vGq, vT1))
        a("s_mov_b64 exec, -1")

    def rd_list(ks, fs):
        f = FR[fs]
        return [
            "ds_read_b128 v[%d:%d], v%d" % (f, f + 3, vXr[ks]),
            "ds_read_b64_tr_b16 v[%d:%d], v%d offset:%d" % (f + 8, f + 9, vW0, (16 * ks) * 224),
            "ds_read_b64_tr_b16 v[%d:%d], v%d offset:%d" % (f + 10, f + 11, vW0, (16 * ks + 4) * 224),
            "ds_read_b128 v[%d:%d], v%d offset:4096" % (f + 4, f + 7, vXr[ks]),
            "ds_read_b64_tr_b16 v[%d:%d], v%d" % (f + 12, f + 13, vW1[2 * ks]),
            "ds_read_b64_tr_b16 v[%d:%d], v%d" % (f + 14, f + 15, vW1[2 * ks + 1]),
        ]

    def mfmas(fs, first):
        f = FR[fs]
        out = []
        for an in (0, 1):
            for i in (0, 1):
                acc = ACC + (an * 2 + i) * 16
                c = "0" if first else "v[%d:%d]" % (acc, acc + 15)
                out.append("%s v[%d:%d], v[%d:%d], v[%d:%d], %s" % (MFMA, acc, acc + 15, f + 8 + an * 4, f + 11 + an * 4,
                                                                   f + i * 4, f + i * 4 + 3, c))
        return out

    def adv(s, regs):
        d = PB[(s + 1) % 3] - PB[s % 3]
        return ["v_add_u32 v%d, %d, v%d" % (r, d, r) if d >= 0 else "v_subrev_u32 v%d, %d, v%d" % (r, -d, r) for r in regs]

    g_loads()
    stamp("pro")
    a("s_barrier")
    stamp("bar0")
    emit(rd_list(0, 0))
    fs = 0
    for s in range(8):
        for ks in range(4):
            ms = mfmas(fs, s == 0 and ks == 0)
            if ks < 3:
                nxt = rd_list(ks + 1, fs ^ 1)
                for q in range(4):
                    if q < 3:
                        a("s_waitcnt lgkmcnt(%d)" % (3 if q == 0 else 4))
                    a(ms[q])
                    emit(nxt[2 * q:2 * q + 2])
                    if s < 7 and q == 3:
                        regs = [vXr[ks], vW1[2 * ks], vW1[2 * ks + 1]]
                        if ks == 2:
                            regs += [vXr[3], vW1[6], vW1[7], vW0]
                        emit(adv(s, regs))
            else:
                if s < 7:
                    a("s_waitcnt lgkmcnt(3)")
                    a(ms[0])
                    a("s_waitcnt lgkmcnt(0)")
                    stamp("s%dv" % s)
                    a("s_barrier")
                    stamp("s%db" % s)
                    nxt = rd_list(0, fs ^ 1)
                    emit(nxt[0:3])
                    a(ms[1])
                    emit(nxt[3:6])
                    a(ms[2])
                    a(ms[3])
                    if s == 1:
                        g_job()
                else:
                    a("ds_read_b32 v%d, v4" % vGm[0])
                    a("ds_read_b32 v%d, v4 offset:128" % vGm[1])
                    a("s_waitcnt lgkmcnt(5)")
                    a(ms[0])
                    a("s_waitcnt lgkmcnt(2)")
                    emit(ms[1:])
            fs ^= 1
    stamp("g1end")
    a("s_bitcmp1_b32 s%d, 1" % sW)
    a("s_cselect_b64 vcc, -1, 0")
    a("v_mov_b32 v8, -1")
    a("v_mov_b32 v9, -1")
    a("v_mov_b32 v10, -1")
    a("v_mov_b32 v11, -1")
    a("s_waitcnt lgkmcnt(0)")
    a("buffer_store_dwordx4 v[8:11], v%d, s[%d:%d], s%d offen sc1" % (vL16, SWS, SWS + 3, sOffC))
    a("v_cndmask_b32 v%d, v%d, v%d, vcc" % (vGq, vGm[0], vGm[1]))
    a("v_sub_f32 v%d, 1.0, v%d" % (vGm[0], vGm[0]))
    a("v_sub_f32 v%d, 1.0, v%d" % (vGm[1], vGm[1]))
    a("v_mov_b32 v%d, v%d" % (vGm[0] + 1, vGm[0]))
    a("v_mov_b32 v%d, v%d" % (vGm[1] + 1, vGm[1]))

    def h_tile(an, i, d):
        t = ACC + (an * 2 + i) * 16
        for r in range(0, 8, 2):
            a("v_pk_mul_f32 v[%d:%d], v[%d:%d], v[%d:%d]" % (t + r, t + r + 1, t + r, t + r + 1, t + 8 + r, t + 9 + r))
        for r in range(0, 8, 2):
            a("v_pk_mul_f32 v[%d:%d], v[%d:%d], v[%d:%d]" % (t + r, t + r + 1, t + r, t + r + 1, vGm[i], vGm[i] + 1))
        for j in range(4):
            a("v_cvt_pk_bf16_f32 v%d, v%d, v%d" % (d + j, t + 2 * j, t + 2 * j + 1))
        a("buffer_store_dwordx4 v[%d:%d], v%d, s[%d:%d], s%d offen offset:%d sc1" % (d, d + 3, vL16, SWS, SWS + 3,
                                                                                    sOffA if i == 0 else sOffB, an * 1024))

    a("s_cmp_eq_u32 s%d, 3" % sT2)
    a("s_cbranch_scc1 L_EPI_Q")
    h_tile(1, 0, ACC + 40)
    h_tile(1, 1, ACC + 56)
    a("s_branch L_EPI_C")
    a.label("L_EPI_Q")
    a("v_mov_b32 v24, 0x%08x" % f32bits(QSCALE))
    a("v_mov_b32 v25, 0x%08x" % f32bits(QSCALE))
    a("s_lshr_b32 s%d, s%d, 2" % (sT2, sW))
    a("s_lshl_b32 s%d, s%d, 12" % (sT2, sT2))
    a("s_add_u32 s%d, s%d, %d" % (sT2, sT2, L_QX))
    a("v_add_u32 v%d, s%d, v%d" % (vT0, sT2, vL16))
    for i in (0, 1):
        t = ACC + (2 + i) * 16
        for r in range(0, 16, 2):
            a("v_pk_mul_f32 v[%d:%d], v[%d:%d], v[24:25]" % (t + r, t + r + 1, t + r, t + r + 1))
        d = FR[0] + 8 * i
        for j in range(8):
            a("v_cvt_pk_bf16_f32 v%d, v%d, v%d" % (d + j, t + 2 * j, t + 2 * j + 1))
        a("ds_write_b128 v%d, v[%d:%d] offset:%d" % (vT0, d, d + 3, i * 2048))
        a("ds_write_b128 v%d, v[%d:%d] offset:%d" % (vT0, d + 4, d + 7, i * 2048 + 1024))
    a.label("L_EPI_C")
    h_tile(0, 0, ACC + 44)
    h_tile(0, 1, ACC + 60)
    for r in range(16):
        a("v_mov_b32 v%d, v27" % (vVF[0] + r))
    a("v_mov_b32 v%d, v5" % vT0)
    a("v_mov_b32 v%d, v6" % vT1)
    a("s_waitcnt lgkmcnt(0)")
    a("s_barrier")
    stamp("Bq")
    a("ds_read_b128 v[%d:%d], v%d" % (vQ, vQ + 3, vT0))
    a("ds_read_b32 v%d, v%d" % (vT4, vT1))

    inloop = [False]

    def rdK(buf, off):
        if inloop[0] and "nolds" in os.environ.get("X", ""):
            return
        a("ds_read_b128 v[%d:%d], v%d offset:%d" % (vKF[buf], vKF[buf] + 3, vKa, off))

    def rdV(buf, off):
        if inloop[0] and ("nolds" in os.environ.get("X", "") or "nov" in os.environ.get("X", "")):
            return
        ne = "noexec" in os.environ.get("X", "")
        if not ne:
            a("s_mov_b64 exec, s[%d:%d]" % (sVm, sVm + 1))
        a("ds_read_b128 v[%d:%d], v%d offset:%d" % (vVF[buf], vVF[buf] + 3, vVa, off))
        a("ds_read_b128 v[%d:%d], v%d offset:%d" % (vVF[buf] + 4, vVF[buf] + 7, vVa, off + 512))
        if not ne:
            a("s_mov_b64 exec, -1")

    X = os.environ.get("X", "")

    def mS(sbuf, kbuf):
        if "czero" in X:
            a("%s v[%d:%d], v[%d:%d], v[%d:%d], 0" % (MFMA, vS[sbuf], vS[sbuf] + 15, vKF[kbuf], vKF[kbuf] + 3, vQ, vQ + 3))
            return
        a("%s v[%d:%d], v[%d:%d], v[%d:%d], v[%d:%d]" % (MFMA, vS[sbuf], vS[sbuf] + 15, vKF[kbuf], vKF[kbuf] + 3,
                                                        vQ, vQ + 3, vC, vC + 15))

    def mPV(vbuf, t):
        if "nopv" in X:
            return
        if "pv16" in X:
            a("v_mfma_f32_16x16x32_bf16 v[%d:%d], v[%d:%d], v[%d:%d], v[%d:%d]" % (vO + 4 * t, vO + 4 * t + 3, vKF[0], vKF[0] + 3,
                                                        vP + 4 * t, vP + 4 * t + 3, vO + 4 * t, vO + 4 * t + 3))
            return
        a("%s v[%d:%d], v[%d:%d], v[%d:%d], v[%d:%d]" % (MFMA, vO, vO + 15, vVF[vbuf] + 4 * t, vVF[vbuf] + 4 * t + 3,
                                                        vP + 4 * t, vP + 4 * t + 3, vO, vO + 15))

    def E(sb, r):
        a("v_exp_f32 v%d, v%d" % (vS[sb] + r, vS[sb] + r))

    def C(sb, j):
        a("v_cvt_pk_bf16_f32 v%d, v%d, v%d" % (vP + j, vS[sb] + 2 * j, vS[sb] + 2 * j + 1))

    rdK(0, 0)
    rdK(1, KVBLK)
    rdV(0, 0)
    a("s_waitcnt lgkmcnt(4)")
    a("v_mov_b32 v%d, 0" % vT3)
    for j in range(4):
        a("v_dot2_f32_bf16 v%d, v%d, v%d, v%d" % (vT3, vQ + j, vQ + j, vT3))
    a("s_mov_b32 s%d, 0x%08x" % (sT1, f32bits(900.0)))
    a("s_mov_b32 s%d, %d" % (sSkip, 12 // NB if NB == 4 else 2))
    a("s_mov_b32 s%d, 0" % sIt)
    a.nop(1)
    a("v_mov_b32 v%d, v%d" % (vT2, vT3))
    a.nop(2)
    a("v_permlane32_swap_b32 v%d, v%d" % (vT3, vT2))
    a.nop(1)
    a("v_add_f32 v%d, v%d, v%d" % (vT3, vT3, vT2))
    a("v_mul_f32 v%d, v%d, v%d" % (vT3, vT4, vT3))
    a("v_cmp_nge_f32 vcc, s%d, v%d" % (sT1, vT3))
    a("s_cmp_eq_u64 vcc, 0")
    a("s_cbranch_scc1 L_FAST")
    a("s_waitcnt vmcnt(0)")
    a("s_barrier")
    a("s_mov_b32 s%d, 99" % sSkip)
    a("v_mov_b32 v%d, 0xff800000" % vT0)
    a("v_mov_b32 v%d, v%d" % (vT1, vL16))
    a.label("L_MAXLOOP")
    a("ds_read_b128 v[%d:%d], v%d" % (vP, vP + 3, vT1))
    a("v_add_u32 v%d, %d, v%d" % (vT1, KVBLK, vT1))
    a("s_waitcnt lgkmcnt(0)")
    a("%s v[%d:%d], v[%d:%d], v[%d:%d], 0" % (MFMA, vS[0], vS[0] + 15, vP, vP + 3, vQ, vQ + 3))
    a.nop(16)
    for j in range(8):
        a("v_max3_f32 v%d, v%d, v%d, v%d" % (vT0, vS[0] + 2 * j, vS[0] + 2 * j + 1, vT0))
    a("s_add_u32 s%d, s%d, 1" % (sIt, sIt))
    a("s_cmp_lt_u32 s%d, 64" % sIt)
    a("s_cbranch_scc1 L_MAXLOOP")
    a("v_mov_b32 v%d, v%d" % (vT1, vT0))
    a("s_mov_b32 s%d, 0" % sIt)
    a.nop(1)
    a("v_permlane32_swap_b32 v%d, v%d" % (vT0, vT1))
    a.nop(2)
    a("v_max_f32 v%d, v%d, v%d" % (vT0, vT0, vT1))
    for r in range(16):
        a("v_sub_f32 v%d, 0, v%d" % (vC + r, vT0))
    a.label("L_FAST")
    for r in range(12, 16):
        a("v_mov_b32 v%d, 0" % (vS[1] + r))
    a("v_mov_b32 v%d, 0" % (vP + 4))
    a("v_mov_b32 v%d, 0" % (vP + 5))
    a("s_waitcnt lgkmcnt(0)")
    mS(0, 0)
    a.nop(12)
    a.label("L_LOOP")
    inloop[0] = True
    for bb in range(NB):
        p = bb & 1
        off = bb * KVBLK
        if PRIO and bb % 4 == 0:
            a("s_setprio 1")
        if PRIO and bb % 4 == 2:
            a("s_setprio 0")
        E(p, 0)
        E(p, 1)
        C(p ^ 1, 6)
        C(p ^ 1, 7)
        E(p, 2)
        E(p, 3)
        mPV(p ^ 1, 1)
        rdV(p ^ 1, off + KVBLK)
        E(p, 4)
        E(p, 5)
        C(p, 0)
        C(p, 1)
        a("s_waitcnt lgkmcnt(2)")
        mS(p ^ 1, p ^ 1)
        rdK(p, off + 2 * KVBLK)
        E(p, 6)
        E(p, 7)
        E(p, 8)
        E(p, 9)
        C(p, 2)
        C(p, 3)
        E(p, 10)
        E(p, 11)
        mPV(p, 0)
        E(p, 12)
        E(p, 13)
        C(p, 4)
        C(p, 5)
        E(p, 14)
        E(p, 15)
    a("v_add_u32 v%d, %d, v%d" % (vKa, NB * KVBLK, vKa))
    a("v_add_u32 v%d, %d, v%d" % (vVa, NB * KVBLK, vVa))
    a("s_add_u32 s%d, s%d, 1" % (sIt, sIt))
    a("s_cmp_lg_u32 s%d, s%d" % (sIt, sSkip))
    a("s_cbranch_scc1 L_NOBKV")
    a("s_waitcnt vmcnt(0)")
    a("s_barrier")
    stamp("bkv")
    a.label("L_NOBKV")
    a("s_cmp_lt_u32 s%d, %d" % (sIt, 64 // NB))
    a("s_cbranch_scc1 L_LOOP")
    if os.environ.get("REPEAT"):
        inloop[0] = False
        a("s_cmp_eq_u32 s%d, 98" % sSkip)
        a("s_cbranch_scc1 L_RPT_E")
        a("s_mov_b32 s%d, 98" % sSkip)
        a("s_mov_b32 s%d, 0" % sIt)
        a.nop(16)
        for r in range(16):
            a("v_mov_b32 v%d, 0" % (vO + r))
        a("v_subrev_u32 v%d, %d, v%d" % (vKa, 64 * KVBLK, vKa))
        a("v_subrev_u32 v%d, %d, v%d" % (vVa, 64 * KVBLK, vVa))
        a("s_waitcnt lgkmcnt(0)")
        rdK(0, 0)
        rdK(1, KVBLK)
        rdV(0, 0)
        a("s_branch L_FAST")
        a.label("L_RPT_E")
    C(1, 6)
    C(1, 7)
    a.nop(2)
    mPV(1, 1)
    stamp("attn")
    a.nop(13)
    a("v_rcp_f32 v%d, v%d" % (vT0, vO + 8))
    a("v_lshrrev_b32 v%d, 3, v0" % vT4)
    a("v_mul_f32 v%d, v%d, v%d" % (vT0, vT0, vGq))
    for r in range(8):
        a("v_mul_f32 v%d, v%d, v%d" % (vO + r, vO + r, vT0))
    for j in range(4):
        a("v_cvt_pk_bf16_f32 v%d, v%d, v%d" % (vO + 8 + j, vO + 2 * j, vO + 2 * j + 1))
    a("buffer_store_dwordx4 v[%d:%d], v%d, s[%d:%d], s%d offen sc1" % (vO + 8, vO + 11, vL16, SWS, SWS + 3, sOffC))
    a("s_waitcnt lgkmcnt(0)")
    a("s_barrier")
    stamp("b3")
    vR0, vR1, vOo = 8, 9, 10
    a("s_lshl_b32 s%d, s%d, 3" % (sT0, sW))
    a("v_add_u32 v%d, s%d, v%d" % (vT4, sT0, vT4))
    a("v_and_b32 v%d, 15, v%d" % (vT1, vT4))
    a("v_and_b32 v%d, 7, v0" % vT2)
    a("v_lshlrev_b32 v%d, 1, v%d" % (vT3, vT2))
    a("v_xor_b32 v%d, v%d, v%d" % (vT1, vT1, vT3))
    a("v_lshlrev_b32 v%d, 8, v%d" % (vT3, vT4))
    a("v_lshl_add_u32 v%d, v%d, 4, v%d" % (vR0, vT1, vT3))
    a("v_xor_b32 v%d, 16, v%d" % (vR1, vR0))
    a("v_lshlrev_b32 v%d, 10, v%d" % (vT4, vT4))
    a("v_lshl_add_u32 v%d, v%d, 4, v%d" % (vOo, vT2, vT4))
    a("s_lshl_b32 s%d, s%d, 16" % (sT0, sMB))
    a("s_lshl_b32 s%d, s%d, 7" % (sT1, sNB))
    a("s_add_u32 s%d, s%d, s%d" % (sT0, sT0, sT1))
    a("s_barrier")
    stamp("b4")
    FB = 32
    for k_ in range(4):
        a("ds_read_b128 v[%d:%d], v%d offset:%d" % (FB + 8 * k_, FB + 8 * k_ + 3, vR0, k_ * 16384))
        a("ds_read_b128 v[%d:%d], v%d offset:%d" % (FB + 8 * k_ + 4, FB + 8 * k_ + 7, vR1, k_ * 16384))
    for k_ in range(1, 4):
        a("s_waitcnt lgkmcnt(%d)" % (2 * (3 - k_)))
        for r in range(8):
            a("v_add_f32 v%d, v%d, v%d" % (FB + r, FB + r, FB + 8 * k_ + r))
    for j in range(4):
        a("v_cvt_pk_bf16_f32 v%d, v%d, v%d" % (FB + 8 + j, FB + 2 * j, FB + 2 * j + 1))
    a("buffer_store_dwordx4 v[%d:%d], v%d, s[%d:%d], s%d offen" % (FB + 8, FB + 11, vOo, SOUT, SOUT + 3, sT0))
    prof_flush()
    a("s_endpgm")

    role[0] = "H"
    mark1 = len(a.lines)
    vXd0, vXd1 = 2, 3
    vWd = list(range(4, 12))
    vEv = 12
    vPl = 14
    vKX = 32
    vKA = 96
    vGX = 112
    vGW = 120
    a("s_setprio 3")
    a("s_sub_u32 s%d, s%d, 8" % (sH, sW))
    a("s_lshl_b32 s%d, s%d, 12" % (sM0x, sH))
    a("s_lshl_b32 s%d, s%d, 13" % (sM0w, sH))
    a("s_lshl_b32 s%d, s%d, 7" % (sT0, sMT))
    a("s_lshl_b32 s%d, s%d, 5" % (sT1, sH))
    a("s_add_u32 s%d, s%d, s%d" % (sT0, sT0, sT1))
    a("v_lshrrev_b32 v%d, 3, v0" % vT0)
    a("v_add_u32 v%d, s%d, v%d" % (vT0, sT0, vT0))
    a("v_lshlrev_b32 v%d, 10, v%d" % (vT0, vT0))
    a("v_and_b32 v%d, 7, v0" % vT1)
    a("v_lshrrev_b32 v%d, 4, v0" % vT2)
    a("v_xor_b32 v%d, v%d, v%d" % (vT1, vT1, vT2))
    a("v_lshl_add_u32 v%d, v%d, 4, v%d" % (vXd0, vT1, vT0))
    a("v_xor_b32 v%d, 64, v%d" % (vXd1, vXd0))
    a("v_add_u32 v%d, 0x2000, v%d" % (vXd1, vXd1))
    a("s_mul_i32 s%d, s%d, 224" % (sT2, sNT))
    a("s_movk_i32 s%d, 4682" % sT3)
    for j in range(8):
        if j == 4:
            a("s_cmp_eq_u32 s%d, 3" % sH)
            a("s_cbranch_scc1 L_WD_Q")
        a("s_lshl_b32 s%d, s%d, 3" % (sT0, sH))
        a("s_add_u32 s%d, s%d, %d" % (sT0, sT0, j))
        a("s_sub_u32 s%d, s%d, 14" % (sT1, sT0))
        a("s_cmp_ge_u32 s%d, 14" % sT0)
        a("s_cselect_b32 s%d, s%d, s%d" % (sT0, sT1, sT0))
        a("s_cselect_b32 s%d, 6, 0" % sOffA)
        a("s_lshl_b32 s%d, s%d, 6" % (sT0, sT0))
        a("v_add_u32 v%d, s%d, v0" % (vT0, sT0))
        a("v_mul_u32_u24 v%d, s%d, v%d" % (vT1, sT3, vT0))
        a("v_lshrrev_b32 v%d, 16, v%d" % (vT1, vT1))
        a("v_mul_u32_u24 v%d, 14, v%d" % (vT2, vT1))
        a("v_sub_u32 v%d, v%d, v%d" % (vT0, vT0, vT2))
        a("v_add_u32 v%d, s%d, v%d" % (vT0, sOffA, vT0))
        a("v_subrev_u32 v%d, 14, v%d" % (vT2, vT0))
        a("v_min_u32 v%d, v%d, v%d" % (vT0, vT0, vT2))
        a("v_mul_u32_u24 v%d, 0xe00, v%d" % (vT1, vT1))
        a("v_lshl_add_u32 v%d, v%d, 4, v%d" % (vT0, vT0, vT1))
        a("v_add_u32 v%d, s%d, v%d" % (vWd[j], sT2, vT0))
    a("s_mov_b32 s%d, %d" % (sStepB, 64 * 3584))
    a("s_branch L_WD_E")
    a.label("L_WD_Q")
    a("s_lshl_b32 s%d, s%d, 6" % (sT2, sNT))
    a("v_lshrrev_b32 v%d, 2, v0" % vT0)
    a("v_and_b32 v%d, 3, v0" % vT1)
    a("v_lshlrev_b32 v%d, 10, v%d" % (vT0, vT0))
    a("v_lshl_add_u32 v%d, v%d, 4, v%d" % (vT0, vT1, vT0))
    a("v_add_u32 v%d, s%d, v%d" % (vWd[4], sT2, vT0))
    for j in range(5, 8):
        a("v_add_u32 v%d, %d, v%d" % (vWd[j], (j - 4) * 16384, vWd[4]))
    a("s_mov_b32 s%d, 65536" % sStepB)
    a.label("L_WD_E")
    a("s_waitcnt lgkmcnt(0)")
    stamp("karg")
    srd(a, SX, P['x'], P['x'] + 1, 2097152)
    for S, lim, q in ((SA, 2, False), (SB, 2, True), (SC, 1, True)):
        a("s_cmp_lt_u32 s%d, %d" % (sH, lim))
        a("s_cselect_b32 s%d, s%d, s%d" % (S, P['wg'], P['wu']))
        a("s_cselect_b32 s%d, s%d, s%d" % (S + 1, P['wg'] + 1, P['wu'] + 1))
        a("s_mov_b32 s%d, 0x1c0000" % (S + 2))
        if q:
            a("s_cmp_eq_u32 s%d, 3" % sH)
            a("s_cselect_b32 s%d, s%d, s%d" % (S, P['wq'], S))
            a("s_cselect_b32 s%d, s%d, s%d" % (S + 1, P['wq'] + 1, S + 1))
            a("s_cselect_b32 s%d, 0x80000, s%d" % (S + 2, S + 2))
        a("s_mov_b32 s%d, 0x20000" % (S + 3))

    def dma_stage(s):
        b = PB[s % 3]
        a("s_mov_b32 s%d, %d" % (sOffA, s * 64 * 3584))
        a("s_mul_i32 s%d, s%d, %d" % (sOffB, sStepB, s))
        for j in range(8):
            S = SA if j < 4 else (SB if j < 6 else SC)
            a("s_add_u32 m0, s%d, %d" % (sM0w, b + OWG + j * 1024))
            if j % 2 == 0:
                i = j // 2
                a("s_movk_i32 s%d, %d" % (sT0, s * 128 + (i >> 1) * 16384))
            else:
                a("s_nop 0")
            a("buffer_load_dwordx4 v%d, s[%d:%d], s%d offen lds" % (vWd[j], S, S + 3, sOffA if j < 4 else sOffB))
            if j % 2 == 0:
                a("s_add_u32 m0, s%d, %d" % (sM0x, b + OX + i * 1024))
                a("s_nop 0")
                a("buffer_load_dwordx4 v%d, s[%d:%d], s%d offen lds" % (vXd1 if i & 1 else vXd0, SX, SX + 3, sT0))

    def kv_dma(first, n):
        for j in range(n):
            off = (first + 4 * j) * 1024
            a("s_add_u32 m0, s%d, %d" % (sKoff, off))
            a("s_add_u32 s%d, s%d, %d" % (sOffA, sKoff, WS_KV + off))
            a("buffer_load_dwordx4 v%d, s[%d:%d], s%d offen sc1 lds" % (vL16, SWS, SWS + 3, sOffA))

    srd(a, SDBG, P['dbg'], P['dbg'] + 1, 256)
    a("s_cmp_lg_u32 s2, 0")
    a("s_cbranch_scc1 L_NOTAG")
    a("s_cmp_lg_u32 s%d, 3" % sH)
    a("s_cbranch_scc1 L_NOTAG")
    a("s_or_b32 s%d, s88, 1" % sT0)
    a("v_mov_b32 v%d, s%d" % (vT0, sT0))
    a("v_mov_b32 v%d, 0" % vT1)
    a("s_mov_b64 exec, 1")
    a("buffer_store_dword v%d, v%d, s[%d:%d], 0 offen sc1" % (vT0, vT1, SDBG, SDBG + 3))
    a("s_mov_b64 exec, -1")
    a.label("L_NOTAG")
    dma_stage(0)
    stamp("d0")
    dma_stage(1)
    stamp("d1")
    srd(a, SWS, P['ws'], P['ws'] + 1, WS_SIZE)
    a("s_lshl_b32 s%d, s%d, 10" % (sKoff, sH))
    a("s_lshl_b32 s%d, s%d, 4" % (sSlot, sMT))
    a("s_add_u32 s%d, s%d, s%d" % (sSlot, sSlot, sNT))
    a("s_lshl_b32 s%d, s%d, 7" % (sSlot, sSlot))
    a("s_and_b32 s%d, s%d, 3" % (sRB, sNT))
    a("s_lshr_b32 s%d, s%d, 2" % (sT0, sNT))
    a("s_add_u32 s%d, s%d, 1" % (sKV, sT0))
    a("s_cmp_ge_u32 s%d, 8" % sNT)
    a("s_cselect_b32 s%d, 0, s%d" % (sKV, sKV))
    a("s_cmp_eq_u32 s%d, 0" % sH)
    a("s_cselect_b32 s%d, s%d, 0" % (sSkip, sKV))
    a("s_cmp_eq_u32 s%d, 1" % sKV)
    a("s_cselect_b32 s%d, s%d, s%d" % (SE, P['wk'], P['wv']))
    a("s_cselect_b32 s%d, s%d, s%d" % (SE + 1, P['wk'] + 1, P['wv'] + 1))
    a("s_mov_b32 s%d, 16384" % (SE + 2))
    a("s_mov_b32 s%d, 0x20000" % (SE + 3))
    a("v_lshrrev_b32 v%d, 4, v0" % vT0)
    a("v_and_b32 v%d, 15, v0" % vT1)
    a("v_xor_b32 v%d, v%d, v%d" % (vT1, vT1, vT0))
    a("v_lshlrev_b32 v%d, 10, v%d" % (vT0, vT0))
    a("v_lshl_add_u32 v18, v%d, 4, v%d" % (vT1, vT0))
    a("s_lshl_b32 s%d, s%d, 2" % (sT0, sMT))
    a("s_add_u32 s%d, s%d, s%d" % (sT0, sT0, sRB))
    a("s_lshl_b32 s%d, s%d, 15" % (sT0, sT0))
    a("s_lshl_b32 s%d, s%d, 8" % (sT1, sH))
    a("s_add_u32 s%d, s%d, s%d" % (sOffC, sT0, sT1))
    a("s_waitcnt vmcnt(12)")
    stamp("w0")
    a("s_barrier")
    a("v_mov_b32 v%d, 0" % vT0)
    a("buffer_load_dword v%d, v%d, s[%d:%d], 0 offen sc1" % (vEv, vT0, SDBG, SDBG + 3))
    a("s_cmp_eq_u32 s%d, 0" % sKV)
    a("s_cbranch_scc1 L_I0_N")
    a("s_add_u32 m0, s%d, %d" % (sM0x, PB[2] + OX))
    a("s_nop 0")
    for j in range(4):
        a("buffer_load_dwordx4 v%d, s[%d:%d], s%d offen offset:%d lds" % (vL16, SE, SE + 3, sM0x, j * 1024))
    for p_ in range(8):
        a("s_add_u32 m0, s%d, %d" % (sM0w, PB[2] + OWG + p_ * 1024))
        a("v_xor_b32 v%d, %d, v18" % (vT0, (p_ & 3) * 64))
        a("s_add_u32 s%d, s%d, %d" % (sT0, sOffC, p_ * 4096))
        a("buffer_load_dwordx4 v%d, s[%d:%d], s%d offen lds" % (vT0, SX, SX + 3, sT0))
    a("v_lshrrev_b32 v%d, 5, v0" % vT1)
    a("v_bfe_u32 v%d, v0, 2, 2" % vT2)
    a("v_lshl_add_u32 v%d, v%d, 3, v%d" % (vT3, vT1, vT2))
    a("v_and_b32 v%d, 3, v0" % vT2)
    a("v_lshlrev_b32 v%d, 5, v%d" % (vT3, vT3))
    a("v_lshl_add_u32 v%d, v%d, 3, v%d" % (vT3, vT2, vT3))
    a("s_add_u32 s%d, s%d, %d" % (sT0, sM0x, PB[2] + OX))
    a("v_add_u32 v19, s%d, v%d" % (sT0, vT3))
    a("v_and_b32 v%d, 31, v0" % vT2)
    a("v_and_b32 v%d, 15, v0" % vT3)
    a("v_xor_b32 v%d, v%d, v%d" % (vT1, vT1, vT3))
    a("v_lshlrev_b32 v%d, 8, v%d" % (vT2, vT2))
    a("v_lshl_add_u32 v%d, v%d, 4, v%d" % (vT2, vT1, vT2))
    a("s_add_u32 s%d, s%d, %d" % (sT0, sM0w, PB[2] + OWG))
    a("v_add_u32 v20, s%d, v%d" % (sT0, vT2))
    a("v_and_b32 v%d, 16, v0" % vT1)
    a("v_cmp_eq_u32 vcc, 0, v%d" % vT1)
    a("s_waitcnt vmcnt(13)")
    stamp("w1")
    a("s_barrier")
    a("s_waitcnt vmcnt(0)")
    vKW = 128
    for ks in range(8):
        a("v_xor_b32 v%d, %d, v20" % (vT0, ks * 32))
        a("ds_read_b128 v[%d:%d], v%d" % (vKX + 4 * ks, vKX + 4 * ks + 3, vT0))
    for ks in range(8):
        if ks in (3, 6):
            a("s_waitcnt lgkmcnt(8)")
        for u in range(2):
            a("ds_read_b64_tr_b16 v[%d:%d], v19 offset:%d" % (vKW + 4 * ks + 2 * u, vKW + 4 * ks + 2 * u + 1, (16 * ks + 4 * u) * 32))
    a("s_waitcnt lgkmcnt(0)")
    a("s_cmp_eq_u32 s%d, 2" % sKV)
    a("s_cbranch_scc1 L_SJ_V")
    for ks in range(8):
        c = "0" if ks == 0 else "v[%d:%d]" % (vKA, vKA + 15)
        a("%s v[%d:%d], v[%d:%d], v[%d:%d], %s" % (MFMA, vKA, vKA + 15, vKW + 4 * ks, vKW + 4 * ks + 3,
                                                   vKX + 4 * ks, vKX + 4 * ks + 3, c))
    a("s_mov_b64 vcc, -1")
    a("s_branch L_SJ_W")
    a.label("L_SJ_V")
    for ks in range(8):
        c = "0" if ks == 0 else "v[%d:%d]" % (vKA, vKA + 15)
        a("%s v[%d:%d], v[%d:%d], v[%d:%d], %s" % (MFMA, vKA, vKA + 15, vKX + 4 * ks, vKX + 4 * ks + 3,
                                                   vKW + 4 * ks, vKW + 4 * ks + 3, c))
    a.label("L_SJ_W")
    dma_stage(2)
    for r in range(8):
        a("v_cndmask_b32 v%d, v%d, v%d, vcc" % (vKA + r, vKA + 8 + r, vKA + r))
    a("s_lshr_b32 s%d, s%d, 1" % (sT0, sM0x))
    a("s_add_u32 s%d, s%d, %d" % (sT0, sT0, L_TOP))
    a("v_add_u32 v%d, s%d, v%d" % (vT1, sT0, vL16))
    a("ds_write_b128 v%d, v[%d:%d]" % (vT1, vKA, vKA + 3))
    a("ds_write_b128 v%d, v[%d:%d] offset:1024" % (vT1, vKA + 4, vKA + 7))
    a("s_branch L_I1")
    a.label("L_I0_N")
    dma_stage(2)
    a("s_waitcnt vmcnt(13)")
    a("s_barrier")
    a.label("L_I1")
    dma_stage(3)
    a("s_waitcnt vmcnt(12) lgkmcnt(0)")
    stamp("w2")
    a("s_barrier")
    a("s_mov_b32 s%d, 0" % sSpin)
    a.label("L_GE_L")
    a("v_readfirstlane_b32 s%d, v%d" % (sE, vEv))
    a("s_cmp_lg_u32 s%d, 0" % sE)
    a("s_cbranch_scc1 L_GE_E")
    spin_tail("L_GE_E")
    a("v_mov_b32 v%d, 0" % vT0)
    a("buffer_load_dword v%d, v%d, s[%d:%d], 0 offen sc1" % (vEv, vT0, SDBG, SDBG + 3))
    a("s_waitcnt vmcnt(0)")
    a("s_branch L_GE_L")
    a.label("L_GE_E")
    a("s_cmp_eq_u32 s%d, 0" % sSkip)
    a("s_cbranch_scc1 L_I2_N")
    a("v_add_u32 v%d, %d, v%d" % (vT2, L_TOP + 2048, vL16))
    for j in range(3):
        a("ds_read_b128 v[%d:%d], v%d offset:%d" % (vKX + 8 * j, vKX + 8 * j + 3, vT2, j * 2048))
        a("ds_read_b128 v[%d:%d], v%d offset:%d" % (vKX + 8 * j + 4, vKX + 8 * j + 7, vT2, j * 2048 + 1024))
    a("s_lshl_b32 s%d, s%d, 2" % (sT0, sMT))
    a("s_add_u32 s%d, s%d, s%d" % (sT0, sT0, sRB))
    a("s_lshl_b32 s%d, s%d, 11" % (sT1, sT0))
    a("s_waitcnt lgkmcnt(0)")
    for j in range(3):
        for r in range(8):
            a("v_add_f32 v%d, v%d, v%d" % (vKA + r, vKA + r, vKX + 8 * j + r))
    for j in range(4):
        a("v_cvt_pk_bf16_f32 v%d, v%d, v%d" % (vKA + 8 + j, vKA + 2 * j, vKA + 2 * j + 1))
    a("s_cmp_eq_u32 s%d, 2" % sKV)
    a("s_cbranch_scc1 L_KF_V")
    a("buffer_store_dwordx4 v[%d:%d], v%d, s[%d:%d], s%d offen offset:%d sc1" % (vKA + 8, vKA + 11, vL16, SWS, SWS + 3, sT1, WS_KV))
    a("v_mov_b32 v%d, 0" % vT1)
    for j in range(4):
        a("v_dot2_f32_bf16 v%d, v%d, v%d, v%d" % (vT1, vKA + 8 + j, vKA + 8 + j, vT1))
    a.nop(3)
    a("v_mov_b32 v%d, v%d" % (vT2, vT1))
    a.nop(2)
    a("v_permlane32_swap_b32 v%d, v%d" % (vT1, vT2))
    a.nop(2)
    a("v_add_f32 v%d, v%d, v%d" % (vPl, vT1, vT2))
    wave_reduce(a, "v_max_f32", vPl)
    a("s_branch L_I2_X")
    a.label("L_KF_V")
    a("v_bfe_u32 v%d, v0, 4, 1" % vT1)
    a("v_lshrrev_b32 v%d, 5, v0" % vT2)
    a("v_lshl_add_u32 v%d, v%d, 1, v%d" % (vT1, vT1, vT2))
    a("v_and_b32 v%d, 15, v0" % vT2)
    a("v_lshlrev_b32 v%d, 8, v%d" % (vT1, vT1))
    a("v_lshl_add_u32 v%d, v%d, 4, v%d" % (vT1, vT2, vT1))
    a("buffer_store_dwordx4 v[%d:%d], v%d, s[%d:%d], s%d offen offset:%d sc1" % (vKA + 8, vKA + 11, vT1, SWS, SWS + 3, sT1, WS_KV + 1024))
    a("v_max3_f32 v%d, |v%d|, |v%d|, |v%d|" % (vT4, vKA, vKA + 1, vKA + 2))
    a("v_max3_f32 v%d, |v%d|, |v%d|, v%d" % (vT4, vKA + 3, vKA + 4, vT4))
    a("v_max3_f32 v%d, |v%d|, |v%d|, v%d" % (vT4, vKA + 5, vKA + 6, vT4))
    a("v_max_f32 v%d, |v%d|, v%d" % (vT4, vKA + 7, vT4))
    a("s_mov_b32 s%d, 0x%08x" % (sT2, f32bits(2.0 ** 60)))
    a("v_cmp_lt_f32 vcc, s%d, v%d" % (sT2, vT4))
    a.nop(1)
    a("s_cmp_lg_u64 vcc, 0")
    a("s_cselect_b32 s%d, 0x7f800000, 0" % sT2)
    a("v_mov_b32 v%d, s%d" % (vPl, sT2))
    a.label("L_I2_X")
    a.label("L_I2_N")
    dma_stage(4)
    a("s_waitcnt vmcnt(12)")
    a("s_cmp_eq_u32 s%d, 0" % sSkip)
    a("s_cbranch_scc1 L_KG_E")
    a("s_lshl_b32 s%d, s%d, 2" % (sT0, sMT))
    a("s_add_u32 s%d, s%d, s%d" % (sT0, sT0, sRB))
    a("s_lshl_b32 s%d, s%d, 1" % (sT0, sT0))
    a("s_add_u32 s%d, s%d, s%d" % (sT0, sT0, sKV))
    a("s_lshl_b32 s%d, s%d, 7" % (sT0, sT0))
    a("s_add_u32 s%d, s%d, %d" % (sT0, sT0, WS_KFL - 128))
    a("v_mov_b32 v%d, s%d" % (vPl + 1, sE))
    a("v_mov_b32 v%d, 0" % vT2)
    a("s_mov_b32 exec_lo, 0")
    a("s_mov_b32 exec_hi, 0x80000000")
    a("buffer_store_dwordx2 v[%d:%d], v%d, s[%d:%d], s%d offen sc1" % (vPl, vPl + 1, vT2, SWS, SWS + 3, sT0))
    a("s_mov_b64 exec, -1")
    a.label("L_KG_E")
    stamp("w3")
    a("s_barrier")
    a("s_cmp_lg_u32 s%d, 1" % sH)
    a("s_cbranch_scc1 L_I3_N")
    a("v_and_b32 v%d, 7, v0" % vT1)
    a("v_lshlrev_b32 v%d, 2, v%d" % (vT1, vT1))
    a("v_add_u32 v%d, %d, v%d" % (vT1, L_G8, vT1))
    a("ds_read_b32 v%d, v%d" % (vPl, vT1))
    a("v_mov_b32 v%d, s%d" % (vPl + 1, sE))
    a("v_lshlrev_b32 v%d, 3, v0" % vT1)
    a("s_add_u32 s%d, s%d, %d" % (sT0, sSlot, WS_G))
    a("s_waitcnt lgkmcnt(0)")
    a("s_mov_b64 exec, 0xff")
    a("buffer_store_dwordx2 v[%d:%d], v%d, s[%d:%d], s%d offen sc1" % (vPl, vPl + 1, vT1, SWS, SWS + 3, sT0))
    a("s_mov_b64 exec, -1")
    a("s_mov_b32 s%d, 1" % sSkip)
    a.label("L_I3_N")
    dma_stage(5)
    a("s_waitcnt vmcnt(13)")
    a("s_cmp_lg_u32 s%d, 0" % sSkip)
    a("s_cbranch_scc1 L_I3_E")
    a("s_waitcnt vmcnt(12)")
    a.label("L_I3_E")
    stamp("w4")
    a("s_barrier")
    dma_stage(6)
    a("s_waitcnt vmcnt(12)")
    stamp("w5")
    a("s_barrier")
    kvpoll = ["buffer_load_dwordx2 v[%d:%d], v%d, s[%d:%d], s%d offen sc1" % (vPl, vPl + 1, vT4, SWS, SWS + 3, sOffC),
              "buffer_load_dwordx2 v[%d:%d], v%d, s[%d:%d], s%d offen offset:128 sc1" % (vPl + 2, vPl + 3, vT4, SWS, SWS + 3, sOffC)]
    dma_stage(7)
    a("s_waitcnt vmcnt(12)")
    stamp("w6")
    a("s_barrier")
    a("s_cmp_lg_u32 s%d, 2" % sH)
    a("s_cbranch_scc1 L_EC_X")
    a("v_lshlrev_b32 v%d, 8, v0" % vT4)
    a("s_mov_b32 s%d, %d" % (sOffC, WS_KFL))
    a("s_mov_b32 s%d, 0" % sSpin)
    a.label("L_EC_L")
    emit(kvpoll)
    a("s_waitcnt vmcnt(0)")
    a("v_cmp_ne_u32 vcc, s%d, v%d" % (sE, vPl + 1))
    a("v_cmp_ne_u32 s[%d:%d], s%d, v%d" % (sT0, sT1, sE, vPl + 3))
    a("s_or_b64 vcc, vcc, s[%d:%d]" % (sT0, sT1))
    a("s_cbranch_scc0 L_EC_E")
    spin_tail("L_EC_E", 2)
    a("s_branch L_EC_L")
    a.label("L_EC_E")
    a("v_max_f32 v%d, v%d, v%d" % (vT1, vPl, vPl + 2))
    wave_reduce(a, "v_max_f32", vT1)
    a("v_mov_b32 v%d, %d" % (vT2, L_KMAX))
    a("s_mov_b32 exec_lo, 0")
    a("s_mov_b32 exec_hi, 0x80000000")
    a("ds_write_b32 v%d, v%d" % (vT2, vT1))
    a("s_mov_b64 exec, -1")
    a("s_waitcnt lgkmcnt(0)")
    a.label("L_EC_X")
    a("s_cmp_lg_u32 s%d, 3" % sH)
    a("s_cbranch_scc1 L_GP_X")
    gl = ["buffer_load_dwordx2 v[%d:%d], v%d, s[%d:%d], s%d offen sc1" % (vPl, vPl + 1, vT3, SWS, SWS + 3, sOffD),
          "buffer_load_dwordx2 v[%d:%d], v%d, s[%d:%d], s%d offen offset:1024 sc1" % (vPl + 2, vPl + 3, vT3, SWS, SWS + 3, sOffD)]
    a("v_lshrrev_b32 v%d, 3, v0" % vT3)
    a("v_and_b32 v%d, 7, v0" % vT1)
    a("v_lshlrev_b32 v%d, 7, v%d" % (vT3, vT3))
    a("v_lshl_add_u32 v%d, v%d, 3, v%d" % (vT3, vT1, vT3))
    a("s_lshl_b32 s%d, s%d, 11" % (sT1, sMT))
    a("s_add_u32 s%d, s%d, %d" % (sOffD, sT1, WS_G))
    a("s_mov_b32 s%d, 0" % sSpin)
    a.label("L_GP_L")
    emit(gl)
    a("s_waitcnt vmcnt(0)")
    a("v_cmp_ne_u32 vcc, s%d, v%d" % (sE, vPl + 1))
    a("v_cmp_ne_u32 s[%d:%d], s%d, v%d" % (sT0, sT1, sE, vPl + 3))
    a("s_or_b64 vcc, vcc, s[%d:%d]" % (sT0, sT1))
    a("s_cbranch_scc0 L_GP_E")
    spin_tail("L_GP_E")
    a("s_branch L_GP_L")
    a.label("L_GP_E")
    a("v_lshlrev_b32 v%d, 2, v0" % vT1)
    a("v_add_u32 v%d, %d, v%d" % (vT1, L_GROW, vT1))
    a("ds_write_b32 v%d, v%d" % (vT1, vPl))
    a("ds_write_b32 v%d, v%d offset:256" % (vT1, vPl + 2))
    a.label("L_GP_X")
    a("s_waitcnt vmcnt(0) lgkmcnt(0)")
    stamp("w7")
    a("s_barrier")
    kv_dma(0, 12)
    vWs, vB0, vB1, vTr0, vTr1, vPa, vPoll = 2, 3, 4, 5, 6, 7, 8
    vFA = 24
    vFB = 32
    AC2 = 64
    vWo = 128
    for r in range(64):
        a("v_mov_b32 v%d, 0" % (AC2 + r))
    a("v_bfe_u32 v%d, v0, 4, 1" % vT1)
    a("v_and_b32 v%d, 7, v0" % vT2)
    a("v_lshlrev_b32 v%d, 2, v%d" % (vT1, vT1))
    a("v_xor_b32 v%d, v%d, v%d" % (vT1, vT1, vT2))
    a("v_lshrrev_b32 v%d, 3, v0" % vT2)
    a("v_lshlrev_b32 v%d, 10, v%d" % (vT2, vT2))
    a("v_lshl_add_u32 v%d, v%d, 4, v%d" % (vT1, vT1, vT2))
    a("s_lshl_b32 s%d, s%d, 14" % (sT0, sH))
    a("s_lshl_b32 s%d, s%d, 7" % (sT1, sNB))
    a("s_add_u32 s%d, s%d, s%d" % (sT0, sT0, sT1))
    a("v_add_u32 v%d, s%d, v%d" % (vWs, sT0, vT1))
    a("v_lshrrev_b32 v%d, 5, v0" % vT0)
    a("v_bfe_u32 v%d, v0, 2, 2" % vT1)
    a("v_lshl_add_u32 v%d, v%d, 2, v%d" % (vT2, vT0, vT1))
    a("v_lshlrev_b32 v%d, 7, v%d" % (vT2, vT2))
    a("v_bfe_u32 v%d, v0, 3, 1" % vT1)
    a("v_lshl_add_u32 v%d, v%d, 6, v%d" % (vT2, vT1, vT2))
    a("v_bfe_u32 v%d, v0, 4, 1" % vT1)
    a("v_lshl_add_u32 v%d, v%d, 5, v%d" % (vT2, vT1, vT2))
    a("v_and_b32 v%d, 3, v0" % vT1)
    a("v_lshl_add_u32 v%d, v%d, 3, v%d" % (vT2, vT1, vT2))
    a("s_add_u32 s%d, s%d, %d" % (sScr, sM0w, L_SCR))
    a("v_add_u32 v%d, s%d, v%d" % (vTr0, sScr, vT2))
    a("v_xor_b32 v%d, 64, v%d" % (vTr1, vTr0))
    a("s_mul_i32 s%d, s%d, 288" % (sT0, sMB))
    a("s_add_u32 s%d, s%d, s%d" % (sT0, sT0, sH))
    a("s_lshl_b32 s%d, s%d, 10" % (sT0, sT0))
    a("s_add_u32 s%d, s%d, %d" % (sT0, sT0, WS_AF))
    a("v_add_u32 v%d, s%d, v%d" % (vB0, sT0, vL16))
    a("v_add_u32 v%d, %d, v%d" % (vB1, 144 * 1024, vB0))
    a("v_and_b32 v%d, 15, v0" % vPa)
    a("v_lshlrev_b32 v%d, 7, v%d" % (vPa, vPa))
    srd(a, SA, P['wd'], P['wd'] + 1, 0x1c0000)
    srd(a, SB, P['wo'], P['wo'] + 1, 0x80000)
    a("s_waitcnt vmcnt(0)")
    stamp("w8")
    a("s_barrier")
    kv_dma(48, 20)
    a("s_waitcnt vmcnt(0)")
    stamp("w9")
    a("s_barrier")
    stamp("bkv")
    a("s_setprio %d" % HPRIO)
    a("s_cmp_lg_u32 s%d, 0" % sH)
    a("s_cbranch_scc1 L_NOHF")
    a("v_mov_b32 v%d, 0" % vT3)
    a("v_mov_b32 v%d, s%d" % (vT2, sE))
    a("s_add_u32 s%d, s%d, %d" % (sT0, sSlot, WS_HFL))
    a("s_mov_b64 exec, 1")
    a("buffer_store_dword v%d, v%d, s[%d:%d], s%d offen sc1" % (vT2, vT3, SWS, SWS + 3, sT0))
    a("s_mov_b64 exec, -1")
    a.label("L_NOHF")

    def w_dma(S, slot, soff, extra):
        for u in range(2):
            a("s_add_u32 m0, s%d, %d" % (sScr, slot * 2048 + u * 1024))
            if soff is None:
                a("s_mov_b32 s%d, %d" % (sT0, extra + u * 8192))
            else:
                a("s_add_u32 s%d, s%d, %d" % (sT0, soff, extra + u * 8192))
            a("buffer_load_dwordx4 v%d, s[%d:%d], s%d offen lds" % (vWs, S, S + 3, sT0))

    def b_loads(slot, soff, extra):
        a("s_add_u32 s%d, s%d, %d" % (sT0, soff, extra))
        a("buffer_load_dwordx4 v[%d:%d], v%d, s[%d:%d], s%d offen sc1" % (vFB + 8 * slot, vFB + 8 * slot + 3, vB0, SWS, SWS + 3, sT0))
        a("buffer_load_dwordx4 v[%d:%d], v%d, s[%d:%d], s%d offen sc1" % (vFB + 8 * slot + 4, vFB + 8 * slot + 7, vB1, SWS, SWS + 3, sT0))

    def tr_reads(dst, slot):
        for an, ad in enumerate((vTr0, vTr1)):
            for u in range(2):
                a("ds_read_b64_tr_b16 v[%d:%d], v%d offset:%d" % (dst + 4 * an + 2 * u, dst + 4 * an + 2 * u + 1, ad,
                                                                 slot * 2048 + u * 1024))

    def m1(fa, fb, an, i):
        acc = AC2 + (an * 2 + i) * 16
        a("%s v[%d:%d], v[%d:%d], v[%d:%d], v[%d:%d]" % (MFMA, acc, acc + 15, fa + 4 * an, fa + 4 * an + 3,
                                                        fb + 4 * i, fb + 4 * i + 3, acc, acc + 15))

    def mm(fa, fb):
        for an in (0, 1):
            for i in (0, 1):
                m1(fa, fb, an, i)

    for j in range(4):
        w_dma(SB, j, None, j * 65536)
    a("s_waitcnt vmcnt(0)")
    for j in range(4):
        tr_reads(vWo + 8 * j, j)
        a("s_waitcnt lgkmcnt(4)")
    a("s_waitcnt lgkmcnt(0)")
    a("s_lshr_b32 s%d, s%d, 1" % (sT0, sMB))
    a("s_lshl_b32 s%d, s%d, 11" % (sT0, sT0))
    a("s_add_u32 s%d, s%d, %d" % (sOffA, sT0, WS_HFL))
    a("s_mov_b32 s%d, 0" % sSpin)
    a.label("L_HP_L")
    a("buffer_load_dword v%d, v%d, s[%d:%d], s%d offen sc1" % (vPoll, vPa, SWS, SWS + 3, sOffA))
    a("s_waitcnt vmcnt(0)")
    a("v_cmp_ne_u32 vcc, s%d, v%d" % (sE, vPoll))
    a("s_cmp_eq_u64 vcc, 0")
    a("s_cbranch_scc1 L_HP_E")
    spin_tail("L_HP_E", 4)
    a("s_branch L_HP_L")
    a.label("L_HP_E")
    stamp("hpoll")
    a("s_mov_b32 s%d, 0" % sOffB)
    a("s_mov_b32 s%d, %d" % (sOffC, 8 * 4096))
    for j in range(4):
        w_dma(SA, j, sOffB, j * 65536)
        b_loads(j, sOffC, j * 4096)
    a("s_mov_b32 s%d, 0" % sIt)
    a.label("L_FFN")
    for j in range(4):
        a("s_waitcnt vmcnt(12)")
        tr_reads(vFA, j)
        a("s_waitcnt lgkmcnt(0)")
        fb = vFB + 8 * j
        m1(vFA, fb, 0, 0)
        a("s_add_u32 m0, s%d, %d" % (sScr, j * 2048))
        a("s_add_u32 s%d, s%d, %d" % (sT0, sOffB, (4 + j) * 65536))
        a("buffer_load_dwordx4 v%d, s[%d:%d], s%d offen lds" % (vWs, SA, SA + 3, sT0))
        m1(vFA, fb, 1, 0)
        a("s_add_u32 m0, s%d, %d" % (sScr, j * 2048 + 1024))
        a("s_add_u32 s%d, s%d, %d" % (sT0, sOffB, (4 + j) * 65536 + 8192))
        a("buffer_load_dwordx4 v%d, s[%d:%d], s%d offen lds" % (vWs, SA, SA + 3, sT0))
        m1(vFA, fb, 0, 1)
        a("s_add_u32 s%d, s%d, %d" % (sT0, sOffC, (4 + j) * 4096))
        a("buffer_load_dwordx4 v[%d:%d], v%d, s[%d:%d], s%d offen sc1" % (fb, fb + 3, vB0, SWS, SWS + 3, sT0))
        m1(vFA, fb, 1, 1)
        a("buffer_load_dwordx4 v[%d:%d], v%d, s[%d:%d], s%d offen sc1" % (fb + 4, fb + 7, vB1, SWS, SWS + 3, sT0))
    a("s_add_u32 s%d, s%d, %d" % (sOffB, sOffB, 4 * 65536))
    a("s_add_u32 s%d, s%d, %d" % (sOffC, sOffC, 4 * 4096))
    a("s_add_u32 s%d, s%d, 1" % (sIt, sIt))
    a("s_cmp_lt_u32 s%d, %d" % (sIt, int(os.environ.get("NFFN", "7"))))
    a("s_cbranch_scc1 L_FFN")
    a("s_waitcnt vmcnt(0)")
    stamp("ffn")
    for j in range(4):
        w_dma(SB, j, None, (4 + j) * 65536)
    a("v_and_b32 v%d, 31, v0" % vT0)
    a("v_lshrrev_b32 v%d, 5, v0" % vT1)
    a("v_and_b32 v%d, 15, v0" % vT3)
    a("v_xor_b32 v%d, v%d, v%d" % (vT1, vT1, vT3))
    a("v_lshlrev_b32 v%d, 8, v%d" % (vT0, vT0))
    a("v_lshl_add_u32 v%d, v%d, 4, v%d" % (vT0, vT1, vT0))
    a("s_lshl_b32 s%d, s%d, 14" % (sT1, sH))
    a("v_add_u32 v%d, s%d, v%d" % (vT0, sT1, vT0))
    for q in range(8):
        a("v_xor_b32 v%d, %d, v%d" % (9 + q, q * 32, vT0))
    a("s_mov_b32 s%d, 0" % sOffC)
    a("s_waitcnt vmcnt(0)")
    a("s_barrier")
    stamp("b3")
    a("s_setprio 3")
    for j in range(4):
        b_loads(j, sOffC, j * 4096)
    for j in range(8):
        sl = j & 3
        fb = vFB + 8 * sl
        a("s_waitcnt vmcnt(%d)" % (6 if j < 5 else 2 * (7 - j)))
        a("s_mov_b32 s%d, 0" % sSpin)
        a.label("L_OP%d_L" % j)
        a("v_max3_u32 v%d, v%d, v%d, v%d" % (vT0, fb, fb + 1, fb + 2))
        a("v_max3_u32 v%d, v%d, v%d, v%d" % (vT1, fb + 3, fb + 4, fb + 5))
        a("v_max3_u32 v%d, v%d, v%d, v%d" % (vT0, fb + 6, fb + 7, vT0))
        a("v_max_u32 v%d, v%d, v%d" % (vT0, vT0, vT1))
        a("v_cmp_eq_u32 vcc, -1, v%d" % vT0)
        a("s_cmp_eq_u64 vcc, 0")
        a("s_cbranch_scc1 L_OP%d_E" % j)
        spin_tail("L_OP%d_E" % j)
        b_loads(sl, sOffC, j * 4096)
        a("s_waitcnt vmcnt(0)")
        a("s_branch L_OP%d_L" % j)
        a.label("L_OP%d_E" % j)
        if j in (0, 7):
            stamp("op%d" % j)
        if j >= 4:
            a("s_waitcnt lgkmcnt(%d)" % (4 * (7 - j)))
        mm(vWo + 8 * sl, fb)
        if j < 4:
            b_loads(sl, sOffC, (4 + j) * 4096)
            if j == 3:
                a("s_waitcnt lgkmcnt(8)")
            tr_reads(vWo + 8 * sl, sl)
    a.nop(9)
    for an in (0, 1):
        for i in (0, 1):
            if (an, i) != (0, 0):
                a.nop(4)
            for q in range(4):
                acc = AC2 + (an * 2 + i) * 16 + 4 * q
                a("ds_write_b128 v%d, v[%d:%d] offset:%d" % (9 + an * 4 + q, acc, acc + 3, i * 8192))
        a("s_waitcnt lgkmcnt(4)")
    a("s_waitcnt lgkmcnt(0)")
    stamp("pw")
    a("s_barrier")
    prof_flush()
    a.label("L_END")
    a("s_endpgm")
    a.lines = a.lines[:mark0] + a.lines[mark1:] + a.lines[mark0:mark1]
    a.label("L_CODE_END")
    if PROF:
        open("stamps.txt", "w").write(" ".join(stamp_names["M"]) + "\n" + " ".join(stamp_names["H"]))
    kernel_desc(a, name, 168, 102)
    return "; @launch grid=(256,1,1) block=(768,1,1) lds=%d" % LDS_BYTES


def main():
    out = sys.argv[1] if len(sys.argv) > 1 else "cdna_kernels/%s.s" % NAME
    a = Asm()
    a.raw(".amdgcn_target \"amdgcn-amd-amdhsa--gfx950\"")
    launch = gen(a)
    hdr = ["; generated by work/gen5.py (hand-designed kernel, laid out by script)", launch]
    open(out, "w").write("\n".join(hdr) + "\n" + a.text())


if __name__ == "__main__":
    main()
```

```python
import sys, math, os
from gen import Asm, f32bits, kernel_begin, kernel_desc, srd, wave_reduce, MFMA, NAME, QSCALE

PROF = int(os.environ.get("PROF", "0"))
PRIO = int(os.environ.get("PRIO", "1"))
DIAG = int(os.environ.get("DIAG", "0"))
TOUCH = int(os.environ.get("TOUCH", "1"))
PREF = int(os.environ.get("PREF", "1"))
TOUCH2 = int(os.environ.get("TOUCH2", "1"))
PFLATE = int(os.environ.get("PFLATE", "1"))
CODEPF = int(os.environ.get("CODEPF", "1"))
HPRIO = int(os.environ.get("HPRIO", "0"))

WS_AF = 2 << 20
WS_KV = 0
WS_G = 0x40000
WS_KFL = 0x50000
WS_HFL = 0x60000
WS_PROF = 32 << 20
WS_SIZE = 268435456
KVBLK = 2048
SPIN_MAX = 1 << 14

BUFSZ = 49152
PB = {2: 0, 0: BUFSZ, 1: 2 * BUFSZ}
OX, OWG, OWU, OWQ = 0, 16384, 30720, 45056
L_TOP = 3 * BUFSZ
L_G8 = L_TOP
L_KMAX = L_TOP + 64
L_GROW = L_TOP + 1024
L_QX = L_TOP + 8192
L_SCR = 131072
LDS_BYTES = 163840
NBKV = 3


def gen(a):
    name = NAME + "_kernel"
    kernel_begin(a, name)
    sW, sMT, sNT = 3, 4, 5
    sT0, sT1, sT2, sT3 = 6, 7, 8, 9
    sStepA, sKV, sRB, sE = 10, 11, 12, 13
    sMB, sNB = 14, 15
    P = dict(x=16, wq=18, wk=20, wv=22, wo=24, wg=28, wu=30, wd=32, gw=34, out=36, dbg=38, ws=40)
    SX, SA, SB, SWS, SE, SDBG, SC = 44, 48, 52, 56, 60, 64, 68
    SOUT = 44
    sH = 72
    sM0x, sM0w, sScr = 73, 74, 75
    sVm = 76
    sOffA, sOffB = 78, 79
    sStepB = 80
    sIt, sSkip = 82, 83
    sSpin, sKoff = 26, 27
    sSlot = 42
    sOffC, sOffD = 86, 87
    stamp_names = {"M": [], "H": []}
    role = ["M"]

    def stamp(label):
        if DIAG and role[0] == "M" and label in ("bar0", "Bq", "b3"):
            a("s_memrealtime s[84:85]")
            a("s_waitcnt lgkmcnt(0)")
            a("s_mov_b32 s%d, s84" % {"bar0": 90, "Bq": 91, "b3": 92}[label])
        if not PROF:
            return
        lst = stamp_names[role[0]]
        idx = len(lst)
        lst.append(str(label))
        a("s_memtime s[84:85]")
        if label in ("bar0", "Bq", "b3") and role[0] == "M":
            a("s_memrealtime s[98:99]")
        a("s_waitcnt lgkmcnt(0)")
        a("v_writelane_b32 v167, s84, %d" % idx)
        if label in ("bar0", "Bq", "b3") and role[0] == "M":
            a("v_writelane_b32 v167, s98, %d" % {"bar0": 59, "Bq": 60, "b3": 61}[label])

    def prof_flush():
        if DIAG and role[0] == "M":
            a("s_waitcnt vmcnt(0)")
            a("s_memrealtime s[84:85]")
            srd(a, SDBG, P['dbg'], P['dbg'] + 1, 256)
            a("s_waitcnt lgkmcnt(0)")
            a("s_cmp_lg_u32 s%d, 7" % sW)
            a("s_cbranch_scc1 L_END")
            a("s_cmp_lt_u32 s2, 248")
            a("s_cbranch_scc1 L_END")
            a("s_and_b32 s93, s2, 7")
            a("s_lshl_b32 s93, s93, 2")
            a("v_mov_b32 v2, 0")
            a("s_mov_b64 exec, 1")
            a("s_sub_u32 s94, s84, s88")
            a("s_and_b32 s95, s88, 0xffff")
            a("s_lshl_b32 s94, s94, 16")
            a("s_or_b32 s94, s94, s95")
            a("v_mov_b32 v3, s94")
            a("buffer_store_dword v3, v2, s[%d:%d], s93 offen offset:32" % (SDBG, SDBG + 3))
            a("s_cmp_lg_u32 s2, 253")
            a("s_cbranch_scc1 L_END")
            for i, sreg in enumerate((90, 91, 92, 84)):
                a("s_sub_u32 s94, s%d, s88" % sreg)
                a("v_mov_b32 v3, s94")
                a("buffer_store_dword v3, v2, s[%d:%d], 0 offen offset:%d" % (SDBG, SDBG + 3, 4 + 4 * i))
                a("s_nop 1")
        if not PROF:
            return
        a("s_waitcnt vmcnt(0)")
        stamp("end")
        a("s_memrealtime s[98:99]")
        a("s_waitcnt lgkmcnt(0)")
        a("v_writelane_b32 v167, s98, 62")
        a("v_writelane_b32 v167, s88, 63")
        a("s_mul_i32 s82, s2, 12")
        a("s_add_u32 s82, s82, s%d" % sW)
        a("s_lshl_b32 s82, s82, 8")
        a("s_add_u32 s82, s82, %d" % WS_PROF)
        a("v_lshlrev_b32 v2, 2, v0")
        a("buffer_store_dword v167, v2, s[%d:%d], s82 offen" % (SWS, SWS + 3))

    def emit(lst):
        for ins in lst:
            a(ins)

    def spin_tail(lbl_end, sleep=1):
        a("s_add_u32 s%d, s%d, 1" % (sSpin, sSpin))
        a("s_cmp_ge_u32 s%d, %d" % (sSpin, SPIN_MAX))
        a("s_cbranch_scc1 %s" % lbl_end)
        a("s_sleep %d" % sleep)

    vL16 = 1
    vT0, vT1, vT2, vT3, vT4 = 21, 22, 23, 24, 25

    a("s_cmp_ge_u32 s2, 256")
    a("s_cbranch_scc1 L_END")
    a("s_load_dwordx16 s[16:31], s[0:1], 0")
    a("s_load_dwordx8 s[32:39], s[0:1], 64")
    a("s_load_dwordx2 s[40:41], s[0:1], 96")
    a("s_memrealtime s[88:89]")
    if PROF:
        a("s_memtime s[84:85]")
        a("s_waitcnt lgkmcnt(0)")
        a("v_writelane_b32 v167, s84, 0")
        stamp_names["M"].append("start")
        stamp_names["H"].append("start")
    a("v_lshrrev_b32 v1, 6, v0")
    a("v_and_b32 v0, 63, v0")
    a("v_readfirstlane_b32 s%d, v1" % sW)
    a("s_and_b32 s%d, s2, 7" % sT0)
    a("s_lshr_b32 s%d, s2, 3" % sT1)
    a("s_and_b32 s%d, s%d, 1" % (sMT, sT0))
    a("s_lshl_b32 s%d, s%d, 3" % (sMT, sMT))
    a("s_and_b32 s%d, s%d, 7" % (sT2, sT1))
    a("s_add_u32 s%d, s%d, s%d" % (sMT, sMT, sT2))
    a("s_lshr_b32 s%d, s%d, 1" % (sNT, sT0))
    a("s_lshl_b32 s%d, s%d, 2" % (sNT, sNT))
    a("s_lshr_b32 s%d, s%d, 3" % (sT2, sT1))
    a("s_add_u32 s%d, s%d, s%d" % (sNT, sNT, sT2))
    a("s_lshl_b32 s%d, s%d, 2" % (sMB, sT0))
    a("s_and_b32 s%d, s%d, 3" % (sT2, sT1))
    a("s_add_u32 s%d, s%d, s%d" % (sMB, sMB, sT2))
    a("s_lshr_b32 s%d, s%d, 2" % (sNB, sT1))
    a("v_lshlrev_b32 v%d, 4, v0" % vL16)
    a("s_cmp_ge_u32 s%d, 8" % sW)
    a("s_cbranch_scc1 L_HELPER")
    if TOUCH:
        a("s_cmp_ge_u32 s%d, 4" % sW)
        a("s_cbranch_scc1 L_NOTOUCH")
        a("s_waitcnt lgkmcnt(0)")
        a("s_mov_b32 s%d, s%d" % (SE, P['x']))
        a("s_mov_b32 s%d, s%d" % (SE + 1, P['x'] + 1))
        for k, pp in ((1, P['wg']), (2, P['wu']), (3, P['wq'])):
            a("s_cmp_eq_u32 s%d, %d" % (sW, k))
            a("s_cselect_b32 s%d, s%d, s%d" % (SE, pp, SE))
            a("s_cselect_b32 s%d, s%d, s%d" % (SE + 1, pp + 1, SE + 1))
        a("s_mov_b32 s%d, 1024" % (SE + 2))
        a("s_mov_b32 s%d, 0x20000" % (SE + 3))
        a("v_mov_b32 v2, 0")
        a("s_mov_b64 exec, 1")
        a("buffer_load_dword v160, v2, s[%d:%d], 0 offen" % (SE, SE + 3))
        a("s_mov_b64 exec, -1")
        a.label("L_NOTOUCH")
    if PREF:
        a("s_waitcnt lgkmcnt(0)")
        a("s_mov_b32 s%d, 0x20000" % (SE + 3))
        a("s_lshl_b32 s%d, s2, 3" % sT0)
        a("s_add_u32 s%d, s%d, s%d" % (sT0, sT0, sW))
        a("s_lshl_b32 s%d, s%d, 10" % (sT0, sT0))
        a("s_mov_b32 s%d, s%d" % (SE, P['x']))
        a("s_mov_b32 s%d, s%d" % (SE + 1, P['x'] + 1))
        a("s_mov_b32 s%d, 0x200000" % (SE + 2))
        a("buffer_load_dwordx4 v[160:163], v%d, s[%d:%d], s%d offen" % (vL16, SE, SE + 3, sT0))
        a("s_cmp_eq_u32 s%d, 7" % sW)
        a("s_cbranch_scc1 L_PF7")
        a("s_mul_i32 s%d, s2, 7" % sT0)
        a("s_add_u32 s%d, s%d, s%d" % (sT0, sT0, sW))
        a("s_lshl_b32 s%d, s%d, 10" % (sT0, sT0))
        a("s_mov_b32 s%d, 0x1c0000" % (SE + 2))
        for nm in (('wg', 'wu') if PFLATE else ('wg', 'wu', 'wd')):
            a("s_mov_b32 s%d, s%d" % (SE, P[nm]))
            a("s_mov_b32 s%d, s%d" % (SE + 1, P[nm] + 1))
            a("buffer_load_dwordx4 v[160:163], v%d, s[%d:%d], s%d offen" % (vL16, SE, SE + 3, sT0))
        a("s_branch L_PFE")
        a.label("L_PF7")
        a("s_lshl_b32 s%d, s2, 11" % sT0)
        a("s_mov_b32 s%d, 0x80000" % (SE + 2))
        if CODEPF:
            a("s_getpc_b64 s[90:91]")
            a.label("L_PC")
            a("s_sub_u32 s90, s90, L_PC-%s" % name)
            a("s_subb_u32 s91, s91, 0")
            a("s_lshr_b32 s%d, s2, 3" % sT1)
            a("s_lshl_b32 s%d, s%d, 10" % (sT1, sT1))
            a("v_add_u32 v2, s%d, v%d" % (sT1, vL16))
            a("v_cmp_gt_u32 vcc, L_CODE_END-%s-16, v2" % name)
            a("s_and_saveexec_b64 s[92:93], vcc")
            a("s_cbranch_execz L_PCX")
            a("global_load_dwordx4 v[160:163], v2, s[90:91]")
            a.label("L_PCX")
            a("s_mov_b64 exec, -1")
        for nm in (('wq',) if PFLATE else ('wq', 'wo')):
            a("s_mov_b32 s%d, s%d" % (SE, P[nm]))
            a("s_mov_b32 s%d, s%d" % (SE + 1, P[nm] + 1))
            a("buffer_load_dwordx4 v[160:163], v%d, s[%d:%d], s%d offen" % (vL16, SE, SE + 3, sT0))
            a("buffer_load_dwordx4 v[160:163], v%d, s[%d:%d], s%d offen offset:1024" % (vL16, SE, SE + 3, sT0))
        a.label("L_PFE")
    if TOUCH2:
        a("s_mov_b32 s%d, 0x20000" % (SE + 3))
        a("s_mov_b32 s%d, 4" % (SE + 2))
        a("s_mov_b32 s%d, s%d" % (SE, P['ws']))
        a("s_mov_b32 s%d, s%d" % (SE + 1, P['ws'] + 1))
        a("s_mov_b32 s%d, 0" % sT0)
        for k, pp in enumerate((P['wk'], P['wv'], P['dbg'], P['out'], P['wd'])):
            a("s_cmp_eq_u32 s%d, %d" % (sW, k))
            a("s_cselect_b32 s%d, s%d, s%d" % (SE, pp, SE))
            a("s_cselect_b32 s%d, s%d, s%d" % (SE + 1, pp + 1, SE + 1))
        a("s_mul_i32 s%d, s%d, %d" % (sT1, sMT, 4 * 144 * 1024))
        a("s_add_u32 s%d, s%d, %d" % (sT1, sT1, WS_AF + 288 * 1024))
        a("s_cmp_eq_u32 s%d, 6" % sW)
        a("s_cselect_b32 s%d, s%d, s%d" % (sT0, sT1, sT0))
        a("s_mul_i32 s%d, s%d, %d" % (sT1, sMB, 2 * 144 * 1024))
        a("s_add_u32 s%d, s%d, %d" % (sT1, sT1, WS_AF + 144 * 1024))
        a("s_cmp_eq_u32 s%d, 7" % sW)
        a("s_cselect_b32 s%d, s%d, s%d" % (sT0, sT1, sT0))
        a("s_add_u32 s%d, s%d, s%d" % (SE, SE, sT0))
        a("s_addc_u32 s%d, s%d, 0" % (SE + 1, SE + 1))
        a("v_mov_b32 v2, 0")
        a("s_mov_b64 exec, 1")
        a("buffer_load_dword v160, v2, s[%d:%d], 0 offen sc1" % (SE, SE + 3))
        a("s_mov_b64 exec, -1")
    a("s_branch L_MAIN")
    a.label("L_HELPER")
    mark0 = len(a.lines)
    a.label("L_MAIN")

    vXr = [8, 9, 10, 11]
    vW0 = 12
    vW1 = list(range(13, 21))
    vGq = 26
    vGm = [28, 30]
    FR = [32, 48]
    ACC = 64
    vKa, vVa = 2, 3
    vQ = 4
    vKF = [8, 12]
    vS = [32, 48]
    vVF = [64, 72]
    vP = 80
    vO = 128
    vC = 144
    NB = int(os.environ.get("NB", "8"))
    b0 = PB[0]
    a("s_lshr_b32 s%d, s%d, 2" % (sT0, sW))
    a("s_lshl_b32 s%d, s%d, 13" % (sT0, sT0))
    a("s_add_u32 s%d, s%d, %d" % (sT0, sT0, b0 + OX))
    a("v_and_b32 v%d, 31, v0" % vT0)
    a("v_lshlrev_b32 v%d, 7, v%d" % (vT0, vT0))
    a("v_lshrrev_b32 v%d, 5, v0" % vT1)
    a("v_bfe_u32 v%d, v0, 1, 3" % vT3)
    a("v_xor_b32 v%d, v%d, v%d" % (vT3, vT3, vT1))
    a("v_lshl_add_u32 v%d, v%d, 4, v%d" % (vT0, vT3, vT0))
    for ks in range(4):
        a("v_xor_b32 v%d, %d, v%d" % (vT2, ks * 32, vT0))
        a("v_add_u32 v%d, s%d, v%d" % (vXr[ks], sT0, vT2))
    a("v_bfe_u32 v%d, v0, 2, 2" % vT2)
    a("v_lshl_add_u32 v%d, v%d, 3, v%d" % (vT3, vT1, vT2))
    a("v_and_b32 v%d, 3, v0" % vT2)
    a("v_bfe_u32 v%d, v0, 4, 1" % vT4)
    a("v_mul_u32_u24 v%d, 0xe0, v%d" % (vT0, vT3))
    a("v_lshl_add_u32 v%d, v%d, 3, v%d" % (vT0, vT2, vT0))
    a("s_and_b32 s%d, s%d, 3" % (sT1, sW))
    a("s_lshl_b32 s%d, s%d, 6" % (sT0, sT1))
    a("s_add_u32 s%d, s%d, %d" % (sT0, sT0, b0 + OWG))
    a("s_movk_i32 s%d, %d" % (sT2, OWU - OWG - 96))
    a("s_cmp_lt_u32 s%d, 2" % sT1)
    a("s_cselect_b32 s%d, %d, s%d" % (sT3, OWU - OWG + 128, sT2))
    a("v_mul_u32_u24 v%d, s%d, v%d" % (vT1, sT3, vT4))
    a("v_add3_u32 v%d, v%d, v%d, s%d" % (vW0, vT0, vT1, sT0))
    a("s_cmp_eq_u32 s%d, 3" % sT1)
    a("s_cbranch_scc1 L_W1_Q")
    a("s_cmp_lt_u32 s%d, 1" % sT1)
    a("s_cselect_b32 s%d, %d, s%d" % (sT3, OWU - OWG + 128, sT2))
    a("v_mul_u32_u24 v%d, s%d, v%d" % (vT1, sT3, vT4))
    a("v_add3_u32 v%d, v%d, v%d, s%d" % (vT0, vT0, vT1, sT0))
    for q in range(8):
        ks, u = q >> 1, q & 1
        a("v_add_u32 v%d, %d, v%d" % (vW1[q], 32 + (16 * ks + 4 * u) * 224, vT0))
    a("s_branch L_W1_E")
    a.label("L_W1_Q")
    a("v_lshlrev_b32 v%d, 6, v%d" % (vT0, vT3))
    a("v_lshl_add_u32 v%d, v%d, 3, v%d" % (vT0, vT2, vT0))
    a("v_lshl_add_u32 v%d, v%d, 5, v%d" % (vT0, vT4, vT0))
    for q in range(8):
        ks, u = q >> 1, q & 1
        a("v_add_u32 v%d, %d, v%d" % (vW1[q], b0 + OWQ + (16 * ks + 4 * u) * 64, vT0))
    a.label("L_W1_E")
    for r in list(range(vC, vC + 16)) + list(range(vO, vO + 16)):
        a("v_mov_b32 v%d, 0" % r)
    a("v_mov_b32 v%d, v%d" % (vKa, vL16))
    a("v_lshrrev_b32 v%d, 5, v0" % vT0)
    a("v_and_b32 v%d, 15, v0" % vT1)
    a("v_lshlrev_b32 v%d, 8, v%d" % (vT2, vT0))
    a("v_lshl_add_u32 v%d, v%d, 4, v%d" % (vT2, vT1, vT2))
    a("v_add_u32 v%d, 1024, v%d" % (vVa, vT2))
    a("v_and_b32 v%d, 27, v0" % vT0)
    a("v_cmp_eq_u32 vcc, 16, v%d" % vT0)
    a("v_mov_b32 v%d, 0x3f803f80" % vT0)
    a("s_mov_b32 s%d, 0x0000ffff" % sVm)
    a("s_mov_b32 s%d, 0x0000ffff" % (sVm + 1))
    a("v_cndmask_b32 v27, 0, v%d, vcc" % vT0)
    a("v_and_b32 v%d, 31, v0" % vT0)
    a("s_lshr_b32 s%d, s%d, 2" % (sT0, sW))
    a("s_lshl_b32 s%d, s%d, 8" % (sT0, sT0))
    a("s_add_u32 s%d, s%d, %d" % (sT0, sT0, L_GROW))
    a("v_lshl_add_u32 v4, v%d, 2, s%d" % (vT0, sT0))
    a("s_lshl_b32 s%d, s%d, 10" % (sT0, sW))
    a("s_add_u32 s%d, s%d, %d" % (sT0, sT0, L_QX))
    a("v_add_u32 v5, s%d, v%d" % (sT0, vL16))
    a("v_mov_b32 v6, %d" % L_KMAX)
    a("s_lshr_b32 s%d, s%d, 2" % (sT0, sW))
    a("s_lshl_b32 s%d, s%d, 1" % (sT0, sT0))
    a("s_lshl_b32 s%d, s%d, 2" % (sT1, sMT))
    a("s_add_u32 s%d, s%d, s%d" % (sT0, sT0, sT1))
    a("s_mul_i32 s%d, s%d, 144" % (sT0, sT0))
    a("s_mul_i32 s%d, s%d, 7" % (sT1, sNT))
    a("s_add_u32 s%d, s%d, s%d" % (sT0, sT0, sT1))
    a("s_and_b32 s%d, s%d, 3" % (sT2, sW))
    a("s_lshl_b32 s%d, s%d, 1" % (sT1, sT2))
    a("s_add_u32 s%d, s%d, s%d" % (sT0, sT0, sT1))
    a("s_lshl_b32 s%d, s%d, 10" % (sT0, sT0))
    a("s_add_u32 s%d, s%d, %d" % (sOffA, sT0, WS_AF + 32 * 1024))
    a("s_add_u32 s%d, s%d, %d" % (sOffB, sOffA, 144 * 1024))
    a("s_lshr_b32 s%d, s%d, 1" % (sT0, sW))
    a("s_lshl_b32 s%d, s%d, 2" % (sT1, sMT))
    a("s_add_u32 s%d, s%d, s%d" % (sT0, sT0, sT1))
    a("s_mul_i32 s%d, s%d, 144" % (sT0, sT0))
    a("s_lshl_b32 s%d, s%d, 1" % (sT1, sNT))
    a("s_add_u32 s%d, s%d, s%d" % (sT0, sT0, sT1))
    a("s_and_b32 s%d, s%d, 1" % (sT1, sW))
    a("s_add_u32 s%d, s%d, s%d" % (sT0, sT0, sT1))
    a("s_lshl_b32 s%d, s%d, 10" % (sT0, sT0))
    a("s_add_u32 s%d, s%d, %d" % (sOffC, sT0, WS_AF))
    a("s_waitcnt lgkmcnt(0)")
    srd(a, SWS, P['ws'], P['ws'] + 1, WS_SIZE)
    srd(a, SOUT, P['out'], P['out'] + 1, 2097152)
    SXm = 48
    mGX, mGW = 128, 132
    srd(a, SXm, P['x'], P['x'] + 1, 2097152)
    srd(a, SE, P['gw'], P['gw'] + 1, 1024)
    a("s_lshl_b32 s%d, s%d, 4" % (sT0, sMT))
    a("s_add_u32 s%d, s%d, s%d" % (sT0, sT0, sNT))
    a("s_lshl_b32 s%d, s%d, 3" % (sT0, sT0))
    a("s_add_u32 s%d, s%d, s%d" % (sT0, sT0, sW))
    a("s_lshl_b32 s%d, s%d, 10" % (sT0, sT0))
    a("s_lshl_b32 s%d, s%d, 2" % (sT1, sW))
    a("s_add_u32 s%d, s%d, %d" % (sT1, sT1, L_G8))
    a("v_mov_b32 v%d, s%d" % (vGq, sT1))

    def g_loads():
        a("buffer_load_dwordx4 v[%d:%d], v%d, s[%d:%d], s%d offen" % (mGX, mGX + 3, vL16, SXm, SXm + 3, sT0))
        a("buffer_load_dwordx4 v[%d:%d], v%d, s[%d:%d], 0 offen" % (mGW, mGW + 3, vL16, SE, SE + 3))

    def g_job():
        a("s_waitcnt vmcnt(0)")
        if PREF and PFLATE:
            a("s_cmp_eq_u32 s%d, 7" % sW)
            a("s_cselect_b32 s%d, s%d, s%d" % (SE, P['wo'], P['wd']))
            a("s_cselect_b32 s%d, s%d, s%d" % (SE + 1, P['wo'] + 1, P['wd'] + 1))
            a("s_mov_b32 s%d, 0x1c0000" % (SE + 2))
            a("s_cselect_b32 s%d, 0x80000, s%d" % (SE + 2, SE + 2))
            a("s_mul_i32 s%d, s2, 7" % sT0)
            a("s_add_u32 s%d, s%d, s%d" % (sT0, sT0, sW))
            a("s_lshl_b32 s%d, s2, 1" % sT1)
            a("s_cmp_eq_u32 s%d, 7" % sW)
            a("s_cselect_b32 s%d, s%d, s%d" % (sT0, sT1, sT0))
            a("s_lshl_b32 s%d, s%d, 10" % (sT0, sT0))
            a("buffer_load_dwordx4 v[160:163], v%d, s[%d:%d], s%d offen" % (vL16, SE, SE + 3, sT0))
            a("s_cbranch_scc0 L_PFL") if False else None
            a("s_cmp_lg_u32 s%d, 7" % sW)
            a("s_cbranch_scc1 L_PFL")
            a("buffer_load_dwordx4 v[160:163], v%d, s[%d:%d], s%d offen offset:1024" % (vL16, SE, SE + 3, sT0))
            a.label("L_PFL")
        a("v_mov_b32 v%d, 0" % vT0)
        for j in range(4):
            a("v_dot2_f32_bf16 v%d, v%d, v%d, v%d" % (vT0, mGX + j, mGW + j, vT0))
        for r in range(8):
            a("v_mov_b32 v%d, 0" % (vO + r))
        a("v_mov_b32 v%d, v%d" % (vT1, vT0))
        wave_reduce(a, "v_add_f32", vT1)
        a("v_mul_f32 v%d, 0x%08x, v%d" % (vT1, f32bits(-math.log2(math.e)), vT1))
        a("v_exp_f32 v%d, v%d" % (vT1, vT1))
        a.nop(1)
        a("v_add_f32 v%d, 1.0, v%d" % (vT1, vT1))
        a("v_rcp_f32 v%d, v%d" % (vT1, vT1))
        a("s_mov_b32 exec_lo, 0")
        a("s_mov_b32 exec_hi, 0x80000000")
        a("ds_write_b32 v%d, v%d" % (vGq, vT1))
        a("s_mov_b64 exec, -1")

    def rd_list(ks, fs):
        f = FR[fs]
        return [
            "ds_read_b128 v[%d:%d], v%d" % (f, f + 3, vXr[ks]),
            "ds_read_b64_tr_b16 v[%d:%d], v%d offset:%d" % (f + 8, f + 9, vW0, (16 * ks) * 224),
            "ds_read_b64_tr_b16 v[%d:%d], v%d offset:%d" % (f + 10, f + 11, vW0, (16 * ks + 4) * 224),
            "ds_read_b128 v[%d:%d], v%d offset:4096" % (f + 4, f + 7, vXr[ks]),
            "ds_read_b64_tr_b16 v[%d:%d], v%d" % (f + 12, f + 13, vW1[2 * ks]),
            "ds_read_b64_tr_b16 v[%d:%d], v%d" % (f + 14, f + 15, vW1[2 * ks + 1]),
        ]

    def mfmas(fs, first):
        f = FR[fs]
        out = []
        for an in (0, 1):
            for i in (0, 1):
                acc = ACC + (an * 2 + i) * 16
                c = "0" if first else "v[%d:%d]" % (acc, acc + 15)
                out.append("%s v[%d:%d], v[%d:%d], v[%d:%d], %s" % (MFMA, acc, acc + 15, f + 8 + an * 4, f + 11 + an * 4,
                                                                   f + i * 4, f + i * 4 + 3, c))
        return out

    def adv(s, regs):
        d = PB[(s + 1) % 3] - PB[s % 3]
        return ["v_add_u32 v%d, %d, v%d" % (r, d, r) if d >= 0 else "v_subrev_u32 v%d, %d, v%d" % (r, -d, r) for r in regs]

    g_loads()
    stamp("pro")
    a("s_barrier")
    stamp("bar0")
    emit(rd_list(0, 0))
    fs = 0
    for s in range(8):
        for ks in range(4):
            ms = mfmas(fs, s == 0 and ks == 0)
            if ks < 3:
                nxt = rd_list(ks + 1, fs ^ 1)
                for q in range(4):
                    if q < 3:
                        a("s_waitcnt lgkmcnt(%d)" % (3 if q == 0 else 4))
                    a(ms[q])
                    emit(nxt[2 * q:2 * q + 2])
                    if s < 7 and q == 3:
                        regs = [vXr[ks], vW1[2 * ks], vW1[2 * ks + 1]]
                        if ks == 2:
                            regs += [vXr[3], vW1[6], vW1[7], vW0]
                        emit(adv(s, regs))
            else:
                if s < 7:
                    a("s_waitcnt lgkmcnt(3)")
                    a(ms[0])
                    a("s_waitcnt lgkmcnt(0)")
                    stamp("s%dv" % s)
                    a("s_barrier")
                    stamp("s%db" % s)
                    nxt = rd_list(0, fs ^ 1)
                    emit(nxt[0:3])
                    a(ms[1])
                    emit(nxt[3:6])
                    a(ms[2])
                    a(ms[3])
                    if s == 1:
                        g_job()
                else:
                    a("ds_read_b32 v%d, v4" % vGm[0])
                    a("ds_read_b32 v%d, v4 offset:128" % vGm[1])
                    a("s_waitcnt lgkmcnt(5)")
                    a(ms[0])
                    a("s_waitcnt lgkmcnt(2)")
                    emit(ms[1:])
            fs ^= 1
    stamp("g1end")
    a("s_bitcmp1_b32 s%d, 1" % sW)
    a("s_cselect_b64 vcc, -1, 0")
    a("v_mov_b32 v8, -1")
    a("v_mov_b32 v9, -1")
    a("v_mov_b32 v10, -1")
    a("v_mov_b32 v11, -1")
    a("s_waitcnt lgkmcnt(0)")
    a("buffer_store_dwordx4 v[8:11], v%d, s[%d:%d], s%d offen sc1" % (vL16, SWS, SWS + 3, sOffC))
    a("v_cndmask_b32 v%d, v%d, v%d, vcc" % (vGq, vGm[0], vGm[1]))
    a("v_sub_f32 v%d, 1.0, v%d" % (vGm[0], vGm[0]))
    a("v_sub_f32 v%d, 1.0, v%d" % (vGm[1], vGm[1]))
    a("v_mov_b32 v%d, v%d" % (vGm[0] + 1, vGm[0]))
    a("v_mov_b32 v%d, v%d" % (vGm[1] + 1, vGm[1]))

    def h_tile(an, i, d):
        t = ACC + (an * 2 + i) * 16
        for r in range(0, 8, 2):
            a("v_pk_mul_f32 v[%d:%d], v[%d:%d], v[%d:%d]" % (t + r, t + r + 1, t + r, t + r + 1, t + 8 + r, t + 9 + r))
        for r in range(0, 8, 2):
            a("v_pk_mul_f32 v[%d:%d], v[%d:%d], v[%d:%d]" % (t + r, t + r + 1, t + r, t + r + 1, vGm[i], vGm[i] + 1))
        for j in range(4):
            a("v_cvt_pk_bf16_f32 v%d, v%d, v%d" % (d + j, t + 2 * j, t + 2 * j + 1))
        a("buffer_store_dwordx4 v[%d:%d], v%d, s[%d:%d], s%d offen offset:%d sc1" % (d, d + 3, vL16, SWS, SWS + 3,
                                                                                    sOffA if i == 0 else sOffB, an * 1024))

    a("s_cmp_eq_u32 s%d, 3" % sT2)
    a("s_cbranch_scc1 L_EPI_Q")
    h_tile(1, 0, ACC + 40)
    h_tile(1, 1, ACC + 56)
    a("s_branch L_EPI_C")
    a.label("L_EPI_Q")
    a("v_mov_b32 v24, 0x%08x" % f32bits(QSCALE))
    a("v_mov_b32 v25, 0x%08x" % f32bits(QSCALE))
    a("s_lshr_b32 s%d, s%d, 2" % (sT2, sW))
    a("s_lshl_b32 s%d, s%d, 12" % (sT2, sT2))
    a("s_add_u32 s%d, s%d, %d" % (sT2, sT2, L_QX))
    a("v_add_u32 v%d, s%d, v%d" % (vT0, sT2, vL16))
    for i in (0, 1):
        t = ACC + (2 + i) * 16
        for r in range(0, 16, 2):
            a("v_pk_mul_f32 v[%d:%d], v[%d:%d], v[24:25]" % (t + r, t + r + 1, t + r, t + r + 1))
        d = FR[0] + 8 * i
        for j in range(8):
            a("v_cvt_pk_bf16_f32 v%d, v%d, v%d" % (d + j, t + 2 * j, t + 2 * j + 1))
        a("ds_write_b128 v%d, v[%d:%d] offset:%d" % (vT0, d, d + 3, i * 2048))
        a("ds_write_b128 v%d, v[%d:%d] offset:%d" % (vT0, d + 4, d + 7, i * 2048 + 1024))
    a.label("L_EPI_C")
    h_tile(0, 0, ACC + 44)
    h_tile(0, 1, ACC + 60)
    for r in range(16):
        a("v_mov_b32 v%d, v27" % (vVF[0] + r))
    a("v_mov_b32 v%d, v5" % vT0)
    a("v_mov_b32 v%d, v6" % vT1)
    a("s_waitcnt lgkmcnt(0)")
    a("s_barrier")
    stamp("Bq")
    a("ds_read_b128 v[%d:%d], v%d" % (vQ, vQ + 3, vT0))
    a("ds_read_b32 v%d, v%d" % (vT4, vT1))

    inloop = [False]

    def rdK(buf, off):
        if inloop[0] and "nolds" in os.environ.get("X", ""):
            return
        a("ds_read_b128 v[%d:%d], v%d offset:%d" % (vKF[buf], vKF[buf] + 3, vKa, off))

    def rdV(buf, off):
        if inloop[0] and ("nolds" in os.environ.get("X", "") or "nov" in os.environ.get("X", "")):
            return
        ne = "noexec" in os.environ.get("X", "")
        if not ne:
            a("s_mov_b64 exec, s[%d:%d]" % (sVm, sVm + 1))
        a("ds_read_b128 v[%d:%d], v%d offset:%d" % (vVF[buf], vVF[buf] + 3, vVa, off))
        a("ds_read_b128 v[%d:%d], v%d offset:%d" % (vVF[buf] + 4, vVF[buf] + 7, vVa, off + 512))
        if not ne:
            a("s_mov_b64 exec, -1")

    X = os.environ.get("X", "")

    def mS(sbuf, kbuf):
        if "czero" in X:
            a("%s v[%d:%d], v[%d:%d], v[%d:%d], 0" % (MFMA, vS[sbuf], vS[sbuf] + 15, vKF[kbuf], vKF[kbuf] + 3, vQ, vQ + 3))
            return
        a("%s v[%d:%d], v[%d:%d], v[%d:%d], v[%d:%d]" % (MFMA, vS[sbuf], vS[sbuf] + 15, vKF[kbuf], vKF[kbuf] + 3,
                                                        vQ, vQ + 3, vC, vC + 15))

    def mPV(vbuf, t):
        if "nopv" in X:
            return
        if "pv16" in X:
            a("v_mfma_f32_16x16x32_bf16 v[%d:%d], v[%d:%d], v[%d:%d], v[%d:%d]" % (vO + 4 * t, vO + 4 * t + 3, vKF[0], vKF[0] + 3,
                                                        vP + 4 * t, vP + 4 * t + 3, vO + 4 * t, vO + 4 * t + 3))
            return
        a("%s v[%d:%d], v[%d:%d], v[%d:%d], v[%d:%d]" % (MFMA, vO, vO + 15, vVF[vbuf] + 4 * t, vVF[vbuf] + 4 * t + 3,
                                                        vP + 4 * t, vP + 4 * t + 3, vO, vO + 15))

    def E(sb, r):
        a("v_exp_f32 v%d, v%d" % (vS[sb] + r, vS[sb] + r))

    def C(sb, j):
        a("v_cvt_pk_bf16_f32 v%d, v%d, v%d" % (vP + j, vS[sb] + 2 * j, vS[sb] + 2 * j + 1))

    rdK(0, 0)
    rdK(1, KVBLK)
    rdV(0, 0)
    a("s_waitcnt lgkmcnt(4)")
    a("v_mov_b32 v%d, 0" % vT3)
    for j in range(4):
        a("v_dot2_f32_bf16 v%d, v%d, v%d, v%d" % (vT3, vQ + j, vQ + j, vT3))
    a("s_mov_b32 s%d, 0x%08x" % (sT1, f32bits(900.0)))
    a("s_mov_b32 s%d, %d" % (sSkip, 12 // NB if NB == 4 else 2))
    a("s_mov_b32 s%d, 0" % sIt)
    a.nop(1)
    a("v_mov_b32 v%d, v%d" % (vT2, vT3))
    a.nop(2)
    a("v_permlane32_swap_b32 v%d, v%d" % (vT3, vT2))
    a.nop(1)
    a("v_add_f32 v%d, v%d, v%d" % (vT3, vT3, vT2))
    a("v_mul_f32 v%d, v%d, v%d" % (vT3, vT4, vT3))
    a("v_cmp_nge_f32 vcc, s%d, v%d" % (sT1, vT3))
    a("s_cmp_eq_u64 vcc, 0")
    a("s_cbranch_scc1 L_FAST")
    a("s_waitcnt vmcnt(0)")
    a("s_barrier")
    a("s_mov_b32 s%d, 99" % sSkip)
    a("v_mov_b32 v%d, 0xff800000" % vT0)
    a("v_mov_b32 v%d, v%d" % (vT1, vL16))
    a.label("L_MAXLOOP")
    a("ds_read_b128 v[%d:%d], v%d" % (vP, vP + 3, vT1))
    a("v_add_u32 v%d, %d, v%d" % (vT1, KVBLK, vT1))
    a("s_waitcnt lgkmcnt(0)")
    a("%s v[%d:%d], v[%d:%d], v[%d:%d], 0" % (MFMA, vS[0], vS[0] + 15, vP, vP + 3, vQ, vQ + 3))
    a.nop(16)
    for j in range(8):
        a("v_max3_f32 v%d, v%d, v%d, v%d" % (vT0, vS[0] + 2 * j, vS[0] + 2 * j + 1, vT0))
    a("s_add_u32 s%d, s%d, 1" % (sIt, sIt))
    a("s_cmp_lt_u32 s%d, 64" % sIt)
    a("s_cbranch_scc1 L_MAXLOOP")
    a("v_mov_b32 v%d, v%d" % (vT1, vT0))
    a("s_mov_b32 s%d, 0" % sIt)
    a.nop(1)
    a("v_permlane32_swap_b32 v%d, v%d" % (vT0, vT1))
    a.nop(2)
    a("v_max_f32 v%d, v%d, v%d" % (vT0, vT0, vT1))
    for r in range(16):
        a("v_sub_f32 v%d, 0, v%d" % (vC + r, vT0))
    a.label("L_FAST")
    for r in range(12, 16):
        a("v_mov_b32 v%d, 0" % (vS[1] + r))
    a("v_mov_b32 v%d, 0" % (vP + 4))
    a("v_mov_b32 v%d, 0" % (vP + 5))
    a("s_waitcnt lgkmcnt(0)")
    mS(0, 0)
    a.nop(12)
    a.label("L_LOOP")
    inloop[0] = True
    for bb in range(NB):
        p = bb & 1
        off = bb * KVBLK
        if PRIO and bb % 4 == 0:
            a("s_setprio 1")
        if PRIO and bb % 4 == 2:
            a("s_setprio 0")
        E(p, 0)
        E(p, 1)
        C(p ^ 1, 6)
        C(p ^ 1, 7)
        E(p, 2)
        E(p, 3)
        mPV(p ^ 1, 1)
        rdV(p ^ 1, off + KVBLK)
        E(p, 4)
        E(p, 5)
        C(p, 0)
        C(p, 1)
        a("s_waitcnt lgkmcnt(2)")
        mS(p ^ 1, p ^ 1)
        rdK(p, off + 2 * KVBLK)
        E(p, 6)
        E(p, 7)
        E(p, 8)
        E(p, 9)
        C(p, 2)
        C(p, 3)
        E(p, 10)
        E(p, 11)
        mPV(p, 0)
        E(p, 12)
        E(p, 13)
        C(p, 4)
        C(p, 5)
        E(p, 14)
        E(p, 15)
    a("v_add_u32 v%d, %d, v%d" % (vKa, NB * KVBLK, vKa))
    a("v_add_u32 v%d, %d, v%d" % (vVa, NB * KVBLK, vVa))
    a("s_add_u32 s%d, s%d, 1" % (sIt, sIt))
    a("s_cmp_lg_u32 s%d, s%d" % (sIt, sSkip))
    a("s_cbranch_scc1 L_NOBKV")
    a("s_waitcnt vmcnt(0)")
    a("s_barrier")
    stamp("bkv")
    a.label("L_NOBKV")
    a("s_cmp_lt_u32 s%d, %d" % (sIt, 64 // NB))
    a("s_cbranch_scc1 L_LOOP")
    if os.environ.get("REPEAT"):
        inloop[0] = False
        a("s_cmp_eq_u32 s%d, 98" % sSkip)
        a("s_cbranch_scc1 L_RPT_E")
        a("s_mov_b32 s%d, 98" % sSkip)
        a("s_mov_b32 s%d, 0" % sIt)
        a.nop(16)
        for r in range(16):
            a("v_mov_b32 v%d, 0" % (vO + r))
        a("v_subrev_u32 v%d, %d, v%d" % (vKa, 64 * KVBLK, vKa))
        a("v_subrev_u32 v%d, %d, v%d" % (vVa, 64 * KVBLK, vVa))
        a("s_waitcnt lgkmcnt(0)")
        rdK(0, 0)
        rdK(1, KVBLK)
        rdV(0, 0)
        a("s_branch L_FAST")
        a.label("L_RPT_E")
    C(1, 6)
    C(1, 7)
    a.nop(2)
    mPV(1, 1)
    stamp("attn")
    a.nop(13)
    a("v_rcp_f32 v%d, v%d" % (vT0, vO + 8))
    a("v_lshrrev_b32 v%d, 3, v0" % vT4)
    a("v_mul_f32 v%d, v%d, v%d" % (vT0, vT0, vGq))
    for r in range(8):
        a("v_mul_f32 v%d, v%d, v%d" % (vO + r, vO + r, vT0))
    for j in range(4):
        a("v_cvt_pk_bf16_f32 v%d, v%d, v%d" % (vO + 8 + j, vO + 2 * j, vO + 2 * j + 1))
    a("buffer_store_dwordx4 v[%d:%d], v%d, s[%d:%d], s%d offen sc1" % (vO + 8, vO + 11, vL16, SWS, SWS + 3, sOffC))
    a("s_waitcnt lgkmcnt(0)")
    a("s_barrier")
    stamp("b3")
    vR0, vR1, vOo = 8, 9, 10
    a("s_lshl_b32 s%d, s%d, 3" % (sT0, sW))
    a("v_add_u32 v%d, s%d, v%d" % (vT4, sT0, vT4))
    a("v_and_b32 v%d, 15, v%d" % (vT1, vT4))
    a("v_and_b32 v%d, 7, v0" % vT2)
    a("v_lshlrev_b32 v%d, 1, v%d" % (vT3, vT2))
    a("v_xor_b32 v%d, v%d, v%d" % (vT1, vT1, vT3))
    a("v_lshlrev_b32 v%d, 8, v%d" % (vT3, vT4))
    a("v_lshl_add_u32 v%d, v%d, 4, v%d" % (vR0, vT1, vT3))
    a("v_xor_b32 v%d, 16, v%d" % (vR1, vR0))
    a("v_lshlrev_b32 v%d, 10, v%d" % (vT4, vT4))
    a("v_lshl_add_u32 v%d, v%d, 4, v%d" % (vOo, vT2, vT4))
    a("s_lshl_b32 s%d, s%d, 16" % (sT0, sMB))
    a("s_lshl_b32 s%d, s%d, 7" % (sT1, sNB))
    a("s_add_u32 s%d, s%d, s%d" % (sT0, sT0, sT1))
    a("s_barrier")
    stamp("b4")
    FB = 32
    for k_ in range(4):
        a("ds_read_b128 v[%d:%d], v%d offset:%d" % (FB + 8 * k_, FB + 8 * k_ + 3, vR0, k_ * 16384))
        a("ds_read_b128 v[%d:%d], v%d offset:%d" % (FB + 8 * k_ + 4, FB + 8 * k_ + 7, vR1, k_ * 16384))
    for k_ in range(1, 4):
        a("s_waitcnt lgkmcnt(%d)" % (2 * (3 - k_)))
        for r in range(8):
            a("v_add_f32 v%d, v%d, v%d" % (FB + r, FB + r, FB + 8 * k_ + r))
    for j in range(4):
        a("v_cvt_pk_bf16_f32 v%d, v%d, v%d" % (FB + 8 + j, FB + 2 * j, FB + 2 * j + 1))
    a("buffer_store_dwordx4 v[%d:%d], v%d, s[%d:%d], s%d offen" % (FB + 8, FB + 11, vOo, SOUT, SOUT + 3, sT0))
    prof_flush()
    a("s_endpgm")

    role[0] = "H"
    mark1 = len(a.lines)
    vXd0, vXd1 = 2, 3
    vWd = list(range(4, 12))
    vEv = 12
    vPl = 14
    vKX = 32
    vKA = 96
    vGX = 112
    vGW = 120
    a("s_setprio 3")
    a("s_sub_u32 s%d, s%d, 8" % (sH, sW))
    a("s_lshl_b32 s%d, s%d, 12" % (sM0x, sH))
    a("s_lshl_b32 s%d, s%d, 13" % (sM0w, sH))
    a("s_lshl_b32 s%d, s%d, 7" % (sT0, sMT))
    a("s_lshl_b32 s%d, s%d, 5" % (sT1, sH))
    a("s_add_u32 s%d, s%d, s%d" % (sT0, sT0, sT1))
    a("v_lshrrev_b32 v%d, 3, v0" % vT0)
    a("v_add_u32 v%d, s%d, v%d" % (vT0, sT0, vT0))
    a("v_lshlrev_b32 v%d, 10, v%d" % (vT0, vT0))
    a("v_and_b32 v%d, 7, v0" % vT1)
    a("v_lshrrev_b32 v%d, 4, v0" % vT2)
    a("v_xor_b32 v%d, v%d, v%d" % (vT1, vT1, vT2))
    a("v_lshl_add_u32 v%d, v%d, 4, v%d" % (vXd0, vT1, vT0))
    a("v_xor_b32 v%d, 64, v%d" % (vXd1, vXd0))
    a("v_add_u32 v%d, 0x2000, v%d" % (vXd1, vXd1))
    a("s_mul_i32 s%d, s%d, 224" % (sT2, sNT))
    a("s_movk_i32 s%d, 4682" % sT3)
    for j in range(8):
        if j == 4:
            a("s_cmp_eq_u32 s%d, 3" % sH)
            a("s_cbranch_scc1 L_WD_Q")
        a("s_lshl_b32 s%d, s%d, 3" % (sT0, sH))
        a("s_add_u32 s%d, s%d, %d" % (sT0, sT0, j))
        a("s_sub_u32 s%d, s%d, 14" % (sT1, sT0))
        a("s_cmp_ge_u32 s%d, 14" % sT0)
        a("s_cselect_b32 s%d, s%d, s%d" % (sT0, sT1, sT0))
        a("s_cselect_b32 s%d, 6, 0" % sOffA)
        a("s_lshl_b32 s%d, s%d, 6" % (sT0, sT0))
        a("v_add_u32 v%d, s%d, v0" % (vT0, sT0))
        a("v_mul_u32_u24 v%d, s%d, v%d" % (vT1, sT3, vT0))
        a("v_lshrrev_b32 v%d, 16, v%d" % (vT1, vT1))
        a("v_mul_u32_u24 v%d, 14, v%d" % (vT2, vT1))
        a("v_sub_u32 v%d, v%d, v%d" % (vT0, vT0, vT2))
        a("v_add_u32 v%d, s%d, v%d" % (vT0, sOffA, vT0))
        a("v_subrev_u32 v%d, 14, v%d" % (vT2, vT0))
        a("v_min_u32 v%d, v%d, v%d" % (vT0, vT0, vT2))
        a("v_mul_u32_u24 v%d, 0xe00, v%d" % (vT1, vT1))
        a("v_lshl_add_u32 v%d, v%d, 4, v%d" % (vT0, vT0, vT1))
        a("v_add_u32 v%d, s%d, v%d" % (vWd[j], sT2, vT0))
    a("s_mov_b32 s%d, %d" % (sStepB, 64 * 3584))
    a("s_branch L_WD_E")
    a.label("L_WD_Q")
    a("s_lshl_b32 s%d, s%d, 6" % (sT2, sNT))
    a("v_lshrrev_b32 v%d, 2, v0" % vT0)
    a("v_and_b32 v%d, 3, v0" % vT1)
    a("v_lshlrev_b32 v%d, 10, v%d" % (vT0, vT0))
    a("v_lshl_add_u32 v%d, v%d, 4, v%d" % (vT0, vT1, vT0))
    a("v_add_u32 v%d, s%d, v%d" % (vWd[4], sT2, vT0))
    for j in range(5, 8):
        a("v_add_u32 v%d, %d, v%d" % (vWd[j], (j - 4) * 16384, vWd[4]))
    a("s_mov_b32 s%d, 65536" % sStepB)
    a.label("L_WD_E")
    a("s_waitcnt lgkmcnt(0)")
    stamp("karg")
    srd(a, SX, P['x'], P['x'] + 1, 2097152)
    for S, lim, q in ((SA, 2, False), (SB, 2, True), (SC, 1, True)):
        a("s_cmp_lt_u32 s%d, %d" % (sH, lim))
        a("s_cselect_b32 s%d, s%d, s%d" % (S, P['wg'], P['wu']))
        a("s_cselect_b32 s%d, s%d, s%d" % (S + 1, P['wg'] + 1, P['wu'] + 1))
        a("s_mov_b32 s%d, 0x1c0000" % (S + 2))
        if q:
            a("s_cmp_eq_u32 s%d, 3" % sH)
            a("s_cselect_b32 s%d, s%d, s%d" % (S, P['wq'], S))
            a("s_cselect_b32 s%d, s%d, s%d" % (S + 1, P['wq'] + 1, S + 1))
            a("s_cselect_b32 s%d, 0x80000, s%d" % (S + 2, S + 2))
        a("s_mov_b32 s%d, 0x20000" % (S + 3))

    def dma_stage(s):
        b = PB[s % 3]
        a("s_mov_b32 s%d, %d" % (sOffA, s * 64 * 3584))
        a("s_mul_i32 s%d, s%d, %d" % (sOffB, sStepB, s))
        for j in range(8):
            S = SA if j < 4 else (SB if j < 6 else SC)
            a("s_add_u32 m0, s%d, %d" % (sM0w, b + OWG + j * 1024))
            if j % 2 == 0:
                i = j // 2
                a("s_movk_i32 s%d, %d" % (sT0, s * 128 + (i >> 1) * 16384))
            else:
                a("s_nop 0")
            a("buffer_load_dwordx4 v%d, s[%d:%d], s%d offen lds" % (vWd[j], S, S + 3, sOffA if j < 4 else sOffB))
            if j % 2 == 0:
                a("s_add_u32 m0, s%d, %d" % (sM0x, b + OX + i * 1024))
                a("s_nop 0")
                a("buffer_load_dwordx4 v%d, s[%d:%d], s%d offen lds" % (vXd1 if i & 1 else vXd0, SX, SX + 3, sT0))

    def kv_dma(first, n):
        for j in range(n):
            off = (first + 4 * j) * 1024
            a("s_add_u32 m0, s%d, %d" % (sKoff, off))
            a("s_add_u32 s%d, s%d, %d" % (sOffA, sKoff, WS_KV + off))
            a("buffer_load_dwordx4 v%d, s[%d:%d], s%d offen sc1 lds" % (vL16, SWS, SWS + 3, sOffA))

    srd(a, SDBG, P['dbg'], P['dbg'] + 1, 256)
    a("s_cmp_lg_u32 s2, 0")
    a("s_cbranch_scc1 L_NOTAG")
    a("s_cmp_lg_u32 s%d, 3" % sH)
    a("s_cbranch_scc1 L_NOTAG")
    a("s_or_b32 s%d, s88, 1" % sT0)
    a("v_mov_b32 v%d, s%d" % (vT0, sT0))
    a("v_mov_b32 v%d, 0" % vT1)
    a("s_mov_b64 exec, 1")
    a("buffer_store_dword v%d, v%d, s[%d:%d], 0 offen sc1" % (vT0, vT1, SDBG, SDBG + 3))
    a("s_mov_b64 exec, -1")
    a.label("L_NOTAG")
    dma_stage(0)
    stamp("d0")
    dma_stage(1)
    stamp("d1")
    srd(a, SWS, P['ws'], P['ws'] + 1, WS_SIZE)
    a("s_lshl_b32 s%d, s%d, 10" % (sKoff, sH))
    a("s_lshl_b32 s%d, s%d, 4" % (sSlot, sMT))
    a("s_add_u32 s%d, s%d, s%d" % (sSlot, sSlot, sNT))
    a("s_lshl_b32 s%d, s%d, 7" % (sSlot, sSlot))
    a("s_and_b32 s%d, s%d, 3" % (sRB, sNT))
    a("s_lshr_b32 s%d, s%d, 2" % (sT0, sNT))
    a("s_add_u32 s%d, s%d, 1" % (sKV, sT0))
    a("s_cmp_ge_u32 s%d, 8" % sNT)
    a("s_cselect_b32 s%d, 0, s%d" % (sKV, sKV))
    a("s_cmp_eq_u32 s%d, 0" % sH)
    a("s_cselect_b32 s%d, s%d, 0" % (sSkip, sKV))
    a("s_cmp_eq_u32 s%d, 1" % sKV)
    a("s_cselect_b32 s%d, s%d, s%d" % (SE, P['wk'], P['wv']))
    a("s_cselect_b32 s%d, s%d, s%d" % (SE + 1, P['wk'] + 1, P['wv'] + 1))
    a("s_mov_b32 s%d, 16384" % (SE + 2))
    a("s_mov_b32 s%d, 0x20000" % (SE + 3))
    a("v_lshrrev_b32 v%d, 4, v0" % vT0)
    a("v_and_b32 v%d, 15, v0" % vT1)
    a("v_xor_b32 v%d, v%d, v%d" % (vT1, vT1, vT0))
    a("v_lshlrev_b32 v%d, 10, v%d" % (vT0, vT0))
    a("v_lshl_add_u32 v18, v%d, 4, v%d" % (vT1, vT0))
    a("s_lshl_b32 s%d, s%d, 2" % (sT0, sMT))
    a("s_add_u32 s%d, s%d, s%d" % (sT0, sT0, sRB))
    a("s_lshl_b32 s%d, s%d, 15" % (sT0, sT0))
    a("s_lshl_b32 s%d, s%d, 8" % (sT1, sH))
    a("s_add_u32 s%d, s%d, s%d" % (sOffC, sT0, sT1))
    a("s_waitcnt vmcnt(12)")
    stamp("w0")
    a("s_barrier")
    a("v_mov_b32 v%d, 0" % vT0)
    a("buffer_load_dword v%d, v%d, s[%d:%d], 0 offen sc1" % (vEv, vT0, SDBG, SDBG + 3))
    a("s_cmp_eq_u32 s%d, 0" % sKV)
    a("s_cbranch_scc1 L_I0_N")
    a("s_add_u32 m0, s%d, %d" % (sM0x, PB[2] + OX))
    a("s_nop 0")
    for j in range(4):
        a("buffer_load_dwordx4 v%d, s[%d:%d], s%d offen offset:%d lds" % (vL16, SE, SE + 3, sM0x, j * 1024))
    for p_ in range(8):
        a("s_add_u32 m0, s%d, %d" % (sM0w, PB[2] + OWG + p_ * 1024))
        a("v_xor_b32 v%d, %d, v18" % (vT0, (p_ & 3) * 64))
        a("s_add_u32 s%d, s%d, %d" % (sT0, sOffC, p_ * 4096))
        a("buffer_load_dwordx4 v%d, s[%d:%d], s%d offen lds" % (vT0, SX, SX + 3, sT0))
    a("v_lshrrev_b32 v%d, 5, v0" % vT1)
    a("v_bfe_u32 v%d, v0, 2, 2" % vT2)
    a("v_lshl_add_u32 v%d, v%d, 3, v%d" % (vT3, vT1, vT2))
    a("v_and_b32 v%d, 3, v0" % vT2)
    a("v_lshlrev_b32 v%d, 5, v%d" % (vT3, vT3))
    a("v_lshl_add_u32 v%d, v%d, 3, v%d" % (vT3, vT2, vT3))
    a("s_add_u32 s%d, s%d, %d" % (sT0, sM0x, PB[2] + OX))
    a("v_add_u32 v19, s%d, v%d" % (sT0, vT3))
    a("v_and_b32 v%d, 31, v0" % vT2)
    a("v_and_b32 v%d, 15, v0" % vT3)
    a("v_xor_b32 v%d, v%d, v%d" % (vT1, vT1, vT3))
    a("v_lshlrev_b32 v%d, 8, v%d" % (vT2, vT2))
    a("v_lshl_add_u32 v%d, v%d, 4, v%d" % (vT2, vT1, vT2))
    a("s_add_u32 s%d, s%d, %d" % (sT0, sM0w, PB[2] + OWG))
    a("v_add_u32 v20, s%d, v%d" % (sT0, vT2))
    a("v_and_b32 v%d, 16, v0" % vT1)
    a("v_cmp_eq_u32 vcc, 0, v%d" % vT1)
    a("s_waitcnt vmcnt(13)")
    stamp("w1")
    a("s_barrier")
    a("s_waitcnt vmcnt(0)")
    vKW = 128
    for ks in range(8):
        a("v_xor_b32 v%d, %d, v20" % (vT0, ks * 32))
        a("ds_read_b128 v[%d:%d], v%d" % (vKX + 4 * ks, vKX + 4 * ks + 3, vT0))
    for ks in range(8):
        if ks in (3, 6):
            a("s_waitcnt lgkmcnt(8)")
        for u in range(2):
            a("ds_read_b64_tr_b16 v[%d:%d], v19 offset:%d" % (vKW + 4 * ks + 2 * u, vKW + 4 * ks + 2 * u + 1, (16 * ks + 4 * u) * 32))
    a("s_waitcnt lgkmcnt(0)")
    a("s_cmp_eq_u32 s%d, 2" % sKV)
    a("s_cbranch_scc1 L_SJ_V")
    for ks in range(8):
        c = "0" if ks == 0 else "v[%d:%d]" % (vKA, vKA + 15)
        a("%s v[%d:%d], v[%d:%d], v[%d:%d], %s" % (MFMA, vKA, vKA + 15, vKW + 4 * ks, vKW + 4 * ks + 3,
                                                   vKX + 4 * ks, vKX + 4 * ks + 3, c))
    a("s_mov_b64 vcc, -1")
    a("s_branch L_SJ_W")
    a.label("L_SJ_V")
    for ks in range(8):
        c = "0" if ks == 0 else "v[%d:%d]" % (vKA, vKA + 15)
        a("%s v[%d:%d], v[%d:%d], v[%d:%d], %s" % (MFMA, vKA, vKA + 15, vKX + 4 * ks, vKX + 4 * ks + 3,
                                                   vKW + 4 * ks, vKW + 4 * ks + 3, c))
    a.label("L_SJ_W")
    dma_stage(2)
    for r in range(8):
        a("v_cndmask_b32 v%d, v%d, v%d, vcc" % (vKA + r, vKA + 8 + r, vKA + r))
    a("s_lshr_b32 s%d, s%d, 1" % (sT0, sM0x))
    a("s_add_u32 s%d, s%d, %d" % (sT0, sT0, L_TOP))
    a("v_add_u32 v%d, s%d, v%d" % (vT1, sT0, vL16))
    a("ds_write_b128 v%d, v[%d:%d]" % (vT1, vKA, vKA + 3))
    a("ds_write_b128 v%d, v[%d:%d] offset:1024" % (vT1, vKA + 4, vKA + 7))
    a("s_branch L_I1")
    a.label("L_I0_N")
    dma_stage(2)
    a("s_waitcnt vmcnt(13)")
    a("s_barrier")
    a.label("L_I1")
    dma_stage(3)
    a("s_waitcnt vmcnt(12) lgkmcnt(0)")
    stamp("w2")
    a("s_barrier")
    a("s_mov_b32 s%d, 0" % sSpin)
    a.label("L_GE_L")
    a("v_readfirstlane_b32 s%d, v%d" % (sE, vEv))
    a("s_cmp_lg_u32 s%d, 0" % sE)
    a("s_cbranch_scc1 L_GE_E")
    spin_tail("L_GE_E")
    a("v_mov_b32 v%d, 0" % vT0)
    a("buffer_load_dword v%d, v%d, s[%d:%d], 0 offen sc1" % (vEv, vT0, SDBG, SDBG + 3))
    a("s_waitcnt vmcnt(0)")
    a("s_branch L_GE_L")
    a.label("L_GE_E")
    a("s_cmp_eq_u32 s%d, 0" % sSkip)
    a("s_cbranch_scc1 L_I2_N")
    a("v_add_u32 v%d, %d, v%d" % (vT2, L_TOP + 2048, vL16))
    for j in range(3):
        a("ds_read_b128 v[%d:%d], v%d offset:%d" % (vKX + 8 * j, vKX + 8 * j + 3, vT2, j * 2048))
        a("ds_read_b128 v[%d:%d], v%d offset:%d" % (vKX + 8 * j + 4, vKX + 8 * j + 7, vT2, j * 2048 + 1024))
    a("s_lshl_b32 s%d, s%d, 2" % (sT0, sMT))
    a("s_add_u32 s%d, s%d, s%d" % (sT0, sT0, sRB))
    a("s_lshl_b32 s%d, s%d, 11" % (sT1, sT0))
    a("s_waitcnt lgkmcnt(0)")
    for j in range(3):
        for r in range(8):
            a("v_add_f32 v%d, v%d, v%d" % (vKA + r, vKA + r, vKX + 8 * j + r))
    for j in range(4):
        a("v_cvt_pk_bf16_f32 v%d, v%d, v%d" % (vKA + 8 + j, vKA + 2 * j, vKA + 2 * j + 1))
    a("s_cmp_eq_u32 s%d, 2" % sKV)
    a("s_cbranch_scc1 L_KF_V")
    a("buffer_store_dwordx4 v[%d:%d], v%d, s[%d:%d], s%d offen offset:%d sc1" % (vKA + 8, vKA + 11, vL16, SWS, SWS + 3, sT1, WS_KV))
    a("v_mov_b32 v%d, 0" % vT1)
    for j in range(4):
        a("v_dot2_f32_bf16 v%d, v%d, v%d, v%d" % (vT1, vKA + 8 + j, vKA + 8 + j, vT1))
    a.nop(3)
    a("v_mov_b32 v%d, v%d" % (vT2, vT1))
    a.nop(2)
    a("v_permlane32_swap_b32 v%d, v%d" % (vT1, vT2))
    a.nop(2)
    a("v_add_f32 v%d, v%d, v%d" % (vPl, vT1, vT2))
    wave_reduce(a, "v_max_f32", vPl)
    a("s_branch L_I2_X")
    a.label("L_KF_V")
    a("v_bfe_u32 v%d, v0, 4, 1" % vT1)
    a("v_lshrrev_b32 v%d, 5, v0" % vT2)
    a("v_lshl_add_u32 v%d, v%d, 1, v%d" % (vT1, vT1, vT2))
    a("v_and_b32 v%d, 15, v0" % vT2)
    a("v_lshlrev_b32 v%d, 8, v%d" % (vT1, vT1))
    a("v_lshl_add_u32 v%d, v%d, 4, v%d" % (vT1, vT2, vT1))
    a("buffer_store_dwordx4 v[%d:%d], v%d, s[%d:%d], s%d offen offset:%d sc1" % (vKA + 8, vKA + 11, vT1, SWS, SWS + 3, sT1, WS_KV + 1024))
    a("v_max3_f32 v%d, |v%d|, |v%d|, |v%d|" % (vT4, vKA, vKA + 1, vKA + 2))
    a("v_max3_f32 v%d, |v%d|, |v%d|, v%d" % (vT4, vKA + 3, vKA + 4, vT4))
    a("v_max3_f32 v%d, |v%d|, |v%d|, v%d" % (vT4, vKA + 5, vKA + 6, vT4))
    a("v_max_f32 v%d, |v%d|, v%d" % (vT4, vKA + 7, vT4))
    a("s_mov_b32 s%d, 0x%08x" % (sT2, f32bits(2.0 ** 60)))
    a("v_cmp_lt_f32 vcc, s%d, v%d" % (sT2, vT4))
    a.nop(1)
    a("s_cmp_lg_u64 vcc, 0")
    a("s_cselect_b32 s%d, 0x7f800000, 0" % sT2)
    a("v_mov_b32 v%d, s%d" % (vPl, sT2))
    a.label("L_I2_X")
    a.label("L_I2_N")
    dma_stage(4)
    a("s_waitcnt vmcnt(12)")
    a("s_cmp_eq_u32 s%d, 0" % sSkip)
    a("s_cbranch_scc1 L_KG_E")
    a("s_lshl_b32 s%d, s%d, 2" % (sT0, sMT))
    a("s_add_u32 s%d, s%d, s%d" % (sT0, sT0, sRB))
    a("s_lshl_b32 s%d, s%d, 1" % (sT0, sT0))
    a("s_add_u32 s%d, s%d, s%d" % (sT0, sT0, sKV))
    a("s_lshl_b32 s%d, s%d, 7" % (sT0, sT0))
    a("s_add_u32 s%d, s%d, %d" % (sT0, sT0, WS_KFL - 128))
    a("v_mov_b32 v%d, s%d" % (vPl + 1, sE))
    a("v_mov_b32 v%d, 0" % vT2)
    a("s_mov_b32 exec_lo, 0")
    a("s_mov_b32 exec_hi, 0x80000000")
    a("buffer_store_dwordx2 v[%d:%d], v%d, s[%d:%d], s%d offen sc1" % (vPl, vPl + 1, vT2, SWS, SWS + 3, sT0))
    a("s_mov_b64 exec, -1")
    a.label("L_KG_E")
    stamp("w3")
    a("s_barrier")
    a("s_cmp_lg_u32 s%d, 1" % sH)
    a("s_cbranch_scc1 L_I3_N")
    a("v_and_b32 v%d, 7, v0" % vT1)
    a("v_lshlrev_b32 v%d, 2, v%d" % (vT1, vT1))
    a("v_add_u32 v%d, %d, v%d" % (vT1, L_G8, vT1))
    a("ds_read_b32 v%d, v%d" % (vPl, vT1))
    a("v_mov_b32 v%d, s%d" % (vPl + 1, sE))
    a("v_lshlrev_b32 v%d, 3, v0" % vT1)
    a("s_add_u32 s%d, s%d, %d" % (sT0, sSlot, WS_G))
    a("s_waitcnt lgkmcnt(0)")
    a("s_mov_b64 exec, 0xff")
    a("buffer_store_dwordx2 v[%d:%d], v%d, s[%d:%d], s%d offen sc1" % (vPl, vPl + 1, vT1, SWS, SWS + 3, sT0))
    a("s_mov_b64 exec, -1")
    a("s_mov_b32 s%d, 1" % sSkip)
    a.label("L_I3_N")
    dma_stage(5)
    a("s_waitcnt vmcnt(13)")
    a("s_cmp_lg_u32 s%d, 0" % sSkip)
    a("s_cbranch_scc1 L_I3_E")
    a("s_waitcnt vmcnt(12)")
    a.label("L_I3_E")
    stamp("w4")
    a("s_barrier")
    dma_stage(6)
    a("s_waitcnt vmcnt(12)")
    stamp("w5")
    a("s_barrier")
    kvpoll = ["buffer_load_dwordx2 v[%d:%d], v%d, s[%d:%d], s%d offen sc1" % (vPl, vPl + 1, vT4, SWS, SWS + 3, sOffC),
              "buffer_load_dwordx2 v[%d:%d], v%d, s[%d:%d], s%d offen offset:128 sc1" % (vPl + 2, vPl + 3, vT4, SWS, SWS + 3, sOffC)]
    dma_stage(7)
    a("s_waitcnt vmcnt(12)")
    stamp("w6")
    a("s_barrier")
    a("s_cmp_lg_u32 s%d, 2" % sH)
    a("s_cbranch_scc1 L_EC_X")
    a("v_lshlrev_b32 v%d, 8, v0" % vT4)
    a("s_mov_b32 s%d, %d" % (sOffC, WS_KFL))
    a("s_mov_b32 s%d, 0" % sSpin)
    a.label("L_EC_L")
    emit(kvpoll)
    a("s_waitcnt vmcnt(0)")
    a("v_cmp_ne_u32 vcc, s%d, v%d" % (sE, vPl + 1))
    a("v_cmp_ne_u32 s[%d:%d], s%d, v%d" % (sT0, sT1, sE, vPl + 3))
    a("s_or_b64 vcc, vcc, s[%d:%d]" % (sT0, sT1))
    a("s_cbranch_scc0 L_EC_E")
    spin_tail("L_EC_E", 2)
    a("s_branch L_EC_L")
    a.label("L_EC_E")
    a("v_max_f32 v%d, v%d, v%d" % (vT1, vPl, vPl + 2))
    wave_reduce(a, "v_max_f32", vT1)
    a("v_mov_b32 v%d, %d" % (vT2, L_KMAX))
    a("s_mov_b32 exec_lo, 0")
    a("s_mov_b32 exec_hi, 0x80000000")
    a("ds_write_b32 v%d, v%d" % (vT2, vT1))
    a("s_mov_b64 exec, -1")
    a("s_waitcnt lgkmcnt(0)")
    a.label("L_EC_X")
    a("s_cmp_lg_u32 s%d, 3" % sH)
    a("s_cbranch_scc1 L_GP_X")
    gl = ["buffer_load_dwordx2 v[%d:%d], v%d, s[%d:%d], s%d offen sc1" % (vPl, vPl + 1, vT3, SWS, SWS + 3, sOffD),
          "buffer_load_dwordx2 v[%d:%d], v%d, s[%d:%d], s%d offen offset:1024 sc1" % (vPl + 2, vPl + 3, vT3, SWS, SWS + 3, sOffD)]
    a("v_lshrrev_b32 v%d, 3, v0" % vT3)
    a("v_and_b32 v%d, 7, v0" % vT1)
    a("v_lshlrev_b32 v%d, 7, v%d" % (vT3, vT3))
    a("v_lshl_add_u32 v%d, v%d, 3, v%d" % (vT3, vT1, vT3))
    a("s_lshl_b32 s%d, s%d, 11" % (sT1, sMT))
    a("s_add_u32 s%d, s%d, %d" % (sOffD, sT1, WS_G))
    a("s_mov_b32 s%d, 0" % sSpin)
    a.label("L_GP_L")
    emit(gl)
    a("s_waitcnt vmcnt(0)")
    a("v_cmp_ne_u32 vcc, s%d, v%d" % (sE, vPl + 1))
    a("v_cmp_ne_u32 s[%d:%d], s%d, v%d" % (sT0, sT1, sE, vPl + 3))
    a("s_or_b64 vcc, vcc, s[%d:%d]" % (sT0, sT1))
    a("s_cbranch_scc0 L_GP_E")
    spin_tail("L_GP_E")
    a("s_branch L_GP_L")
    a.label("L_GP_E")
    a("v_lshlrev_b32 v%d, 2, v0" % vT1)
    a("v_add_u32 v%d, %d, v%d" % (vT1, L_GROW, vT1))
    a("ds_write_b32 v%d, v%d" % (vT1, vPl))
    a("ds_write_b32 v%d, v%d offset:256" % (vT1, vPl + 2))
    a.label("L_GP_X")
    a("s_waitcnt vmcnt(0) lgkmcnt(0)")
    stamp("w7")
    a("s_barrier")
    kv_dma(0, 12)
    vWs, vB0, vB1, vTr0, vTr1, vPa, vPoll = 2, 3, 4, 5, 6, 7, 8
    vFA = 24
    vFB = 32
    AC2 = 64
    vWo = 128
    for r in range(64):
        a("v_mov_b32 v%d, 0" % (AC2 + r))
    a("v_bfe_u32 v%d, v0, 4, 1" % vT1)
    a("v_and_b32 v%d, 7, v0" % vT2)
    a("v_lshlrev_b32 v%d, 2, v%d" % (vT1, vT1))
    a("v_xor_b32 v%d, v%d, v%d" % (vT1, vT1, vT2))
    a("v_lshrrev_b32 v%d, 3, v0" % vT2)
    a("v_lshlrev_b32 v%d, 10, v%d" % (vT2, vT2))
    a("v_lshl_add_u32 v%d, v%d, 4, v%d" % (vT1, vT1, vT2))
    a("s_lshl_b32 s%d, s%d, 14" % (sT0, sH))
    a("s_lshl_b32 s%d, s%d, 7" % (sT1, sNB))
    a("s_add_u32 s%d, s%d, s%d" % (sT0, sT0, sT1))
    a("v_add_u32 v%d, s%d, v%d" % (vWs, sT0, vT1))
    a("v_lshrrev_b32 v%d, 5, v0" % vT0)
    a("v_bfe_u32 v%d, v0, 2, 2" % vT1)
    a("v_lshl_add_u32 v%d, v%d, 2, v%d" % (vT2, vT0, vT1))
    a("v_lshlrev_b32 v%d, 7, v%d" % (vT2, vT2))
    a("v_bfe_u32 v%d, v0, 3, 1" % vT1)
    a("v_lshl_add_u32 v%d, v%d, 6, v%d" % (vT2, vT1, vT2))
    a("v_bfe_u32 v%d, v0, 4, 1" % vT1)
    a("v_lshl_add_u32 v%d, v%d, 5, v%d" % (vT2, vT1, vT2))
    a("v_and_b32 v%d, 3, v0" % vT1)
    a("v_lshl_add_u32 v%d, v%d, 3, v%d" % (vT2, vT1, vT2))
    a("s_add_u32 s%d, s%d, %d" % (sScr, sM0w, L_SCR))
    a("v_add_u32 v%d, s%d, v%d" % (vTr0, sScr, vT2))
    a("v_xor_b32 v%d, 64, v%d" % (vTr1, vTr0))
    a("s_mul_i32 s%d, s%d, 288" % (sT0, sMB))
    a("s_add_u32 s%d, s%d, s%d" % (sT0, sT0, sH))
    a("s_lshl_b32 s%d, s%d, 10" % (sT0, sT0))
    a("s_add_u32 s%d, s%d, %d" % (sT0, sT0, WS_AF))
    a("v_add_u32 v%d, s%d, v%d" % (vB0, sT0, vL16))
    a("v_add_u32 v%d, %d, v%d" % (vB1, 144 * 1024, vB0))
    a("v_and_b32 v%d, 15, v0" % vPa)
    a("v_lshlrev_b32 v%d, 7, v%d" % (vPa, vPa))
    srd(a, SA, P['wd'], P['wd'] + 1, 0x1c0000)
    srd(a, SB, P['wo'], P['wo'] + 1, 0x80000)
    a("s_waitcnt vmcnt(0)")
    stamp("w8")
    a("s_barrier")
    kv_dma(48, 20)
    a("s_waitcnt vmcnt(0)")
    stamp("w9")
    a("s_barrier")
    stamp("bkv")
    a("s_setprio %d" % HPRIO)
    a("s_cmp_lg_u32 s%d, 0" % sH)
    a("s_cbranch_scc1 L_NOHF")
    a("v_mov_b32 v%d, 0" % vT3)
    a("v_mov_b32 v%d, s%d" % (vT2, sE))
    a("s_add_u32 s%d, s%d, %d" % (sT0, sSlot, WS_HFL))
    a("s_mov_b64 exec, 1")
    a("buffer_store_dword v%d, v%d, s[%d:%d], s%d offen sc1" % (vT2, vT3, SWS, SWS + 3, sT0))
    a("s_mov_b64 exec, -1")
    a.label("L_NOHF")

    def w_dma(S, slot, soff, extra):
        for u in range(2):
            a("s_add_u32 m0, s%d, %d" % (sScr, slot * 2048 + u * 1024))
            if soff is None:
                a("s_mov_b32 s%d, %d" % (sT0, extra + u * 8192))
            else:
                a("s_add_u32 s%d, s%d, %d" % (sT0, soff, extra + u * 8192))
            a("buffer_load_dwordx4 v%d, s[%d:%d], s%d offen lds" % (vWs, S, S + 3, sT0))

    def b_loads(slot, soff, extra):
        a("s_add_u32 s%d, s%d, %d" % (sT0, soff, extra))
        a("buffer_load_dwordx4 v[%d:%d], v%d, s[%d:%d], s%d offen sc1" % (vFB + 8 * slot, vFB + 8 * slot + 3, vB0, SWS, SWS + 3, sT0))
        a("buffer_load_dwordx4 v[%d:%d], v%d, s[%d:%d], s%d offen sc1" % (vFB + 8 * slot + 4, vFB + 8 * slot + 7, vB1, SWS, SWS + 3, sT0))

    def tr_reads(dst, slot):
        for an, ad in enumerate((vTr0, vTr1)):
            for u in range(2):
                a("ds_read_b64_tr_b16 v[%d:%d], v%d offset:%d" % (dst + 4 * an + 2 * u, dst + 4 * an + 2 * u + 1, ad,
                                                                 slot * 2048 + u * 1024))

    def m1(fa, fb, an, i):
        acc = AC2 + (an * 2 + i) * 16
        a("%s v[%d:%d], v[%d:%d], v[%d:%d], v[%d:%d]" % (MFMA, acc, acc + 15, fa + 4 * an, fa + 4 * an + 3,
                                                        fb + 4 * i, fb + 4 * i + 3, acc, acc + 15))

    def mm(fa, fb):
        for an in (0, 1):
            for i in (0, 1):
                m1(fa, fb, an, i)

    for j in range(4):
        w_dma(SB, j, None, j * 65536)
    a("s_waitcnt vmcnt(0)")
    for j in range(4):
        tr_reads(vWo + 8 * j, j)
        a("s_waitcnt lgkmcnt(4)")
    a("s_waitcnt lgkmcnt(0)")
    a("s_lshr_b32 s%d, s%d, 1" % (sT0, sMB))
    a("s_lshl_b32 s%d, s%d, 11" % (sT0, sT0))
    a("s_add_u32 s%d, s%d, %d" % (sOffA, sT0, WS_HFL))
    a("s_mov_b32 s%d, 0" % sSpin)
    a.label("L_HP_L")
    a("buffer_load_dword v%d, v%d, s[%d:%d], s%d offen sc1" % (vPoll, vPa, SWS, SWS + 3, sOffA))
    a("s_waitcnt vmcnt(0)")
    a("v_cmp_ne_u32 vcc, s%d, v%d" % (sE, vPoll))
    a("s_cmp_eq_u64 vcc, 0")
    a("s_cbranch_scc1 L_HP_E")
    spin_tail("L_HP_E", 4)
    a("s_branch L_HP_L")
    a.label("L_HP_E")
    stamp("hpoll")
    a("s_mov_b32 s%d, 0" % sOffB)
    a("s_mov_b32 s%d, %d" % (sOffC, 8 * 4096))
    for j in range(4):
        w_dma(SA, j, sOffB, j * 65536)
        b_loads(j, sOffC, j * 4096)
    a("s_mov_b32 s%d, 0" % sIt)
    a.label("L_FFN")
    for j in range(4):
        a("s_waitcnt vmcnt(12)")
        tr_reads(vFA, j)
        a("s_waitcnt lgkmcnt(0)")
        fb = vFB + 8 * j
        m1(vFA, fb, 0, 0)
        a("s_add_u32 m0, s%d, %d" % (sScr, j * 2048))
        a("s_add_u32 s%d, s%d, %d" % (sT0, sOffB, (4 + j) * 65536))
        a("buffer_load_dwordx4 v%d, s[%d:%d], s%d offen lds" % (vWs, SA, SA + 3, sT0))
        m1(vFA, fb, 1, 0)
        a("s_add_u32 m0, s%d, %d" % (sScr, j * 2048 + 1024))
        a("s_add_u32 s%d, s%d, %d" % (sT0, sOffB, (4 + j) * 65536 + 8192))
        a("buffer_load_dwordx4 v%d, s[%d:%d], s%d offen lds" % (vWs, SA, SA + 3, sT0))
        m1(vFA, fb, 0, 1)
        a("s_add_u32 s%d, s%d, %d" % (sT0, sOffC, (4 + j) * 4096))
        a("buffer_load_dwordx4 v[%d:%d], v%d, s[%d:%d], s%d offen sc1" % (fb, fb + 3, vB0, SWS, SWS + 3, sT0))
        m1(vFA, fb, 1, 1)
        a("buffer_load_dwordx4 v[%d:%d], v%d, s[%d:%d], s%d offen sc1" % (fb + 4, fb + 7, vB1, SWS, SWS + 3, sT0))
    a("s_add_u32 s%d, s%d, %d" % (sOffB, sOffB, 4 * 65536))
    a("s_add_u32 s%d, s%d, %d" % (sOffC, sOffC, 4 * 4096))
    a("s_add_u32 s%d, s%d, 1" % (sIt, sIt))
    a("s_cmp_lt_u32 s%d, %d" % (sIt, int(os.environ.get("NFFN", "7"))))
    a("s_cbranch_scc1 L_FFN")
    a("s_waitcnt vmcnt(0)")
    stamp("ffn")
    for j in range(4):
        w_dma(SB, j, None, (4 + j) * 65536)
    a("v_and_b32 v%d, 31, v0" % vT0)
    a("v_lshrrev_b32 v%d, 5, v0" % vT1)
    a("v_and_b32 v%d, 15, v0" % vT3)
    a("v_xor_b32 v%d, v%d, v%d" % (vT1, vT1, vT3))
    a("v_lshlrev_b32 v%d, 8, v%d" % (vT0, vT0))
    a("v_lshl_add_u32 v%d, v%d, 4, v%d" % (vT0, vT1, vT0))
    a("s_lshl_b32 s%d, s%d, 14" % (sT1, sH))
    a("v_add_u32 v%d, s%d, v%d" % (vT0, sT1, vT0))
    for q in range(8):
        a("v_xor_b32 v%d, %d, v%d" % (9 + q, q * 32, vT0))
    a("s_mov_b32 s%d, 0" % sOffC)
    a("s_waitcnt vmcnt(0)")
    a("s_barrier")
    stamp("b3")
    a("s_setprio 3")
    for j in range(4):
        b_loads(j, sOffC, j * 4096)
    for j in range(8):
        sl = j & 3
        fb = vFB + 8 * sl
        a("s_waitcnt vmcnt(%d)" % (6 if j < 5 else 2 * (7 - j)))
        a("s_mov_b32 s%d, 0" % sSpin)
        a.label("L_OP%d_L" % j)
        a("v_max3_u32 v%d, v%d, v%d, v%d" % (vT0, fb, fb + 1, fb + 2))
        a("v_max3_u32 v%d, v%d, v%d, v%d" % (vT1, fb + 3, fb + 4, fb + 5))
        a("v_max3_u32 v%d, v%d, v%d, v%d" % (vT0, fb + 6, fb + 7, vT0))
        a("v_max_u32 v%d, v%d, v%d" % (vT0, vT0, vT1))
        a("v_cmp_eq_u32 vcc, -1, v%d" % vT0)
        a("s_cmp_eq_u64 vcc, 0")
        a("s_cbranch_scc1 L_OP%d_E" % j)
        spin_tail("L_OP%d_E" % j)
        b_loads(sl, sOffC, j * 4096)
        a("s_waitcnt vmcnt(0)")
        a("s_branch L_OP%d_L" % j)
        a.label("L_OP%d_E" % j)
        if j in (0, 7):
            stamp("op%d" % j)
        if j >= 4:
            a("s_waitcnt lgkmcnt(%d)" % (4 * (7 - j)))
        mm(vWo + 8 * sl, fb)
        if j < 4:
            b_loads(sl, sOffC, (4 + j) * 4096)
            if j == 3:
                a("s_waitcnt lgkmcnt(8)")
            tr_reads(vWo + 8 * sl, sl)
    a.nop(9)
    for an in (0, 1):
        for i in (0, 1):
            if (an, i) != (0, 0):
                a.nop(4)
            for q in range(4):
                acc = AC2 + (an * 2 + i) * 16 + 4 * q
                a("ds_write_b128 v%d, v[%d:%d] offset:%d" % (9 + an * 4 + q, acc, acc + 3, i * 8192))
        a("s_waitcnt lgkmcnt(4)")
    a("s_waitcnt lgkmcnt(0)")
    stamp("pw")
    a("s_barrier")
    prof_flush()
    a.label("L_END")
    a("s_endpgm")
    a.lines = a.lines[:mark0] + a.lines[mark1:] + a.lines[mark0:mark1]
    a.label("L_CODE_END")
    if PROF:
        open("stamps.txt", "w").write(" ".join(stamp_names["M"]) + "\n" + " ".join(stamp_names["H"]))
    kernel_desc(a, name, 168, 102)
    return "; @launch grid=(256,1,1) block=(768,1,1) lds=%d" % LDS_BYTES


def main():
    out = sys.argv[1] if len(sys.argv) > 1 else "cdna_kernels/%s.s" % NAME
    a = Asm()
    a.raw(".amdgcn_target \"amdgcn-amd-amdhsa--gfx950\"")
    launch = gen(a)
    hdr = ["; generated by work/gen5.py (hand-designed kernel, laid out by script)", launch]
    open(out, "w").write("\n".join(hdr) + "\n" + a.text())


if __name__ == "__main__":
    main()
```

```python
import sys, math, os
from gen import Asm, f32bits, kernel_begin, kernel_desc, srd, wave_reduce, MFMA, NAME, QSCALE

PROF = int(os.environ.get("PROF", "0"))
PRIO = int(os.environ.get("PRIO", "1"))
DIAG = int(os.environ.get("DIAG", "0"))
TOUCH = int(os.environ.get("TOUCH", "1"))
PREF = int(os.environ.get("PREF", "1"))
TOUCH2 = int(os.environ.get("TOUCH2", "0"))
DIAG2 = os.environ.get("DIAG2", "")
PFLATE = int(os.environ.get("PFLATE", "1"))
CODEPF = int(os.environ.get("CODEPF", "1"))
HPRIO = int(os.environ.get("HPRIO", "0"))

WS_AF = 2 << 20
WS_KV = 0
WS_G = 0x40000
WS_KFL = 0x50000
WS_HFL = 0x60000
WS_PROF = 32 << 20
WS_SIZE = 268435456
KVBLK = 2048
SPIN_MAX = 1 << 14

BUFSZ = 49152
PB = {2: 0, 0: BUFSZ, 1: 2 * BUFSZ}
OX, OWG, OWU, OWQ = 0, 16384, 30720, 45056
L_TOP = 3 * BUFSZ
L_G8 = L_TOP
L_KMAX = L_TOP + 64
L_GROW = L_TOP + 1024
L_QX = L_TOP + 8192
L_SCR = 131072
LDS_BYTES = 163840
NBKV = 3


def gen(a):
    name = NAME + "_kernel"
    kernel_begin(a, name)
    sW, sMT, sNT = 3, 4, 5
    sT0, sT1, sT2, sT3 = 6, 7, 8, 9
    sStepA, sKV, sRB, sE = 10, 11, 12, 13
    sMB, sNB = 14, 15
    P = dict(x=16, wq=18, wk=20, wv=22, wo=24, wg=28, wu=30, wd=32, gw=34, out=36, dbg=38, ws=40)
    SX, SA, SB, SWS, SE, SDBG, SC = 44, 48, 52, 56, 60, 64, 68
    SOUT = 44
    sH = 72
    sM0x, sM0w, sScr = 73, 74, 75
    sVm = 76
    sOffA, sOffB = 78, 79
    sStepB = 80
    sIt, sSkip = 82, 83
    sSpin, sKoff = 26, 27
    sSlot = 42
    sOffC, sOffD = 86, 87
    stamp_names = {"M": [], "H": []}
    role = ["M"]

    def stamp(label):
        if (DIAG or DIAG2) and role[0] == "M" and label in ("bar0", "Bq", "b3"):
            a("s_memrealtime s[84:85]")
            a("s_waitcnt lgkmcnt(0)")
            a("s_mov_b32 s%d, s84" % {"bar0": 90, "Bq": 91, "b3": 92}[label])
        if not PROF:
            return
        lst = stamp_names[role[0]]
        idx = len(lst)
        lst.append(str(label))
        a("s_memtime s[84:85]")
        if label in ("bar0", "Bq", "b3") and role[0] == "M":
            a("s_memrealtime s[98:99]")
        a("s_waitcnt lgkmcnt(0)")
        a("v_writelane_b32 v167, s84, %d" % idx)
        if label in ("bar0", "Bq", "b3") and role[0] == "M":
            a("v_writelane_b32 v167, s98, %d" % {"bar0": 59, "Bq": 60, "b3": 61}[label])

    def prof_flush():
        if DIAG2 and role[0] == "M":
            hi, lo, mul = {"total": (84, 88, 1), "bar0": (90, 88, 4), "g1": (91, 90, 2), "attn": (92, 91, 1), "tail": (84, 92, 4)}[DIAG2]
            a("s_waitcnt vmcnt(0)")
            a("s_memrealtime s[84:85]")
            a("s_waitcnt lgkmcnt(0)")
            a("s_sub_u32 s93, s%d, s%d" % (hi, lo))
            a("s_mul_i32 s93, s93, %d" % mul)
            a("s_min_u32 s93, s93, 20000")
            a.label("L_DG")
            a("s_memrealtime s[94:95]")
            a("s_waitcnt lgkmcnt(0)")
            a("s_sub_u32 s94, s94, s84")
            a("s_cmp_lt_u32 s94, s93")
            a("s_cbranch_scc1 L_DG")
        if DIAG and role[0] == "M":
            a("s_waitcnt vmcnt(0)")
            a("s_memrealtime s[84:85]")
            srd(a, SDBG, P['dbg'], P['dbg'] + 1, 256)
            a("s_waitcnt lgkmcnt(0)")
            a("s_cmp_lg_u32 s%d, 7" % sW)
            a("s_cbranch_scc1 L_END")
            a("s_cmp_lt_u32 s2, 248")
            a("s_cbranch_scc1 L_END")
            a("s_and_b32 s93, s2, 7")
            a("s_lshl_b32 s93, s93, 2")
            a("v_mov_b32 v2, 0")
            a("s_mov_b64 exec, 1")
            a("s_sub_u32 s94, s84, s88")
            a("s_and_b32 s95, s88, 0xffff")
            a("s_lshl_b32 s94, s94, 16")
            a("s_or_b32 s94, s94, s95")
            a("v_mov_b32 v3, s94")
            a("buffer_store_dword v3, v2, s[%d:%d], s93 offen offset:32" % (SDBG, SDBG + 3))
            a("s_cmp_lg_u32 s2, 253")
            a("s_cbranch_scc1 L_END")
            for i, sreg in enumerate((90, 91, 92, 84)):
                a("s_sub_u32 s94, s%d, s88" % sreg)
                a("v_mov_b32 v3, s94")
                a("buffer_store_dword v3, v2, s[%d:%d], 0 offen offset:%d" % (SDBG, SDBG + 3, 4 + 4 * i))
                a("s_nop 1")
        if not PROF:
            return
        a("s_waitcnt vmcnt(0)")
        stamp("end")
        a("s_memrealtime s[98:99]")
        a("s_waitcnt lgkmcnt(0)")
        a("v_writelane_b32 v167, s98, 62")
        a("v_writelane_b32 v167, s88, 63")
        a("s_mul_i32 s82, s2, 12")
        a("s_add_u32 s82, s82, s%d" % sW)
        a("s_lshl_b32 s82, s82, 8")
        a("s_add_u32 s82, s82, %d" % WS_PROF)
        a("v_lshlrev_b32 v2, 2, v0")
        a("buffer_store_dword v167, v2, s[%d:%d], s82 offen" % (SWS, SWS + 3))

    def emit(lst):
        for ins in lst:
            a(ins)

    def spin_tail(lbl_end, sleep=1):
        a("s_add_u32 s%d, s%d, 1" % (sSpin, sSpin))
        a("s_cmp_ge_u32 s%d, %d" % (sSpin, SPIN_MAX))
        a("s_cbranch_scc1 %s" % lbl_end)
        a("s_sleep %d" % sleep)

    vL16 = 1
    vT0, vT1, vT2, vT3, vT4 = 21, 22, 23, 24, 25

    a("s_cmp_ge_u32 s2, 256")
    a("s_cbranch_scc1 L_END")
    a("s_load_dwordx16 s[16:31], s[0:1], 0")
    a("s_load_dwordx8 s[32:39], s[0:1], 64")
    a("s_load_dwordx2 s[40:41], s[0:1], 96")
    a("s_memrealtime s[88:89]")
    if PROF:
        a("s_memtime s[84:85]")
        a("s_waitcnt lgkmcnt(0)")
        a("v_writelane_b32 v167, s84, 0")
        stamp_names["M"].append("start")
        stamp_names["H"].append("start")
    a("v_lshrrev_b32 v1, 6, v0")
    a("v_and_b32 v0, 63, v0")
    a("v_readfirstlane_b32 s%d, v1" % sW)
    a("s_and_b32 s%d, s2, 7" % sT0)
    a("s_lshr_b32 s%d, s2, 3" % sT1)
    a("s_and_b32 s%d, s%d, 1" % (sMT, sT0))
    a("s_lshl_b32 s%d, s%d, 3" % (sMT, sMT))
    a("s_and_b32 s%d, s%d, 7" % (sT2, sT1))
    a("s_add_u32 s%d, s%d, s%d" % (sMT, sMT, sT2))
    a("s_lshr_b32 s%d, s%d, 1" % (sNT, sT0))
    a("s_lshl_b32 s%d, s%d, 2" % (sNT, sNT))
    a("s_lshr_b32 s%d, s%d, 3" % (sT2, sT1))
    a("s_add_u32 s%d, s%d, s%d" % (sNT, sNT, sT2))
    a("s_lshl_b32 s%d, s%d, 2" % (sMB, sT0))
    a("s_and_b32 s%d, s%d, 3" % (sT2, sT1))
    a("s_add_u32 s%d, s%d, s%d" % (sMB, sMB, sT2))
    a("s_lshr_b32 s%d, s%d, 2" % (sNB, sT1))
    a("v_lshlrev_b32 v%d, 4, v0" % vL16)
    a("s_cmp_ge_u32 s%d, 8" % sW)
    a("s_cbranch_scc1 L_HELPER")
    if TOUCH:
        a("s_cmp_ge_u32 s%d, 4" % sW)
        a("s_cbranch_scc1 L_NOTOUCH")
        a("s_waitcnt lgkmcnt(0)")
        a("s_mov_b32 s%d, s%d" % (SE, P['x']))
        a("s_mov_b32 s%d, s%d" % (SE + 1, P['x'] + 1))
        for k, pp in ((1, P['wg']), (2, P['wu']), (3, P['wq'])):
            a("s_cmp_eq_u32 s%d, %d" % (sW, k))
            a("s_cselect_b32 s%d, s%d, s%d" % (SE, pp, SE))
            a("s_cselect_b32 s%d, s%d, s%d" % (SE + 1, pp + 1, SE + 1))
        a("s_mov_b32 s%d, 1024" % (SE + 2))
        a("s_mov_b32 s%d, 0x20000" % (SE + 3))
        a("v_mov_b32 v2, 0")
        a("s_mov_b64 exec, 1")
        a("buffer_load_dword v160, v2, s[%d:%d], 0 offen" % (SE, SE + 3))
        a("s_mov_b64 exec, -1")
        a.label("L_NOTOUCH")
    if PREF:
        a("s_waitcnt lgkmcnt(0)")
        a("s_mov_b32 s%d, 0x20000" % (SE + 3))
        a("s_lshl_b32 s%d, s2, 3" % sT0)
        a("s_add_u32 s%d, s%d, s%d" % (sT0, sT0, sW))
        a("s_lshl_b32 s%d, s%d, 10" % (sT0, sT0))
        a("s_mov_b32 s%d, s%d" % (SE, P['x']))
        a("s_mov_b32 s%d, s%d" % (SE + 1, P['x'] + 1))
        a("s_mov_b32 s%d, 0x200000" % (SE + 2))
        a("buffer_load_dwordx4 v[160:163], v%d, s[%d:%d], s%d offen" % (vL16, SE, SE + 3, sT0))
        a("s_cmp_eq_u32 s%d, 7" % sW)
        a("s_cbranch_scc1 L_PF7")
        a("s_mul_i32 s%d, s2, 7" % sT0)
        a("s_add_u32 s%d, s%d, s%d" % (sT0, sT0, sW))
        a("s_lshl_b32 s%d, s%d, 10" % (sT0, sT0))
        a("s_mov_b32 s%d, 0x1c0000" % (SE + 2))
        for nm in (('wg', 'wu') if PFLATE else ('wg', 'wu', 'wd')):
            a("s_mov_b32 s%d, s%d" % (SE, P[nm]))
            a("s_mov_b32 s%d, s%d" % (SE + 1, P[nm] + 1))
            a("buffer_load_dwordx4 v[160:163], v%d, s[%d:%d], s%d offen" % (vL16, SE, SE + 3, sT0))
        a("s_branch L_PFE")
        a.label("L_PF7")
        a("s_lshl_b32 s%d, s2, 11" % sT0)
        a("s_mov_b32 s%d, 0x80000" % (SE + 2))
        if CODEPF:
            a("s_getpc_b64 s[90:91]")
            a.label("L_PC")
            a("s_sub_u32 s90, s90, L_PC-%s" % name)
            a("s_subb_u32 s91, s91, 0")
            a("s_lshr_b32 s%d, s2, 3" % sT1)
            a("s_lshl_b32 s%d, s%d, 10" % (sT1, sT1))
            a("v_add_u32 v2, s%d, v%d" % (sT1, vL16))
            a("v_cmp_gt_u32 vcc, L_CODE_END-%s-16, v2" % name)
            a("s_and_saveexec_b64 s[92:93], vcc")
            a("s_cbranch_execz L_PCX")
            a("global_load_dwordx4 v[160:163], v2, s[90:91]")
            a.label("L_PCX")
            a("s_mov_b64 exec, -1")
        for nm in (('wq',) if PFLATE else ('wq', 'wo')):
            a("s_mov_b32 s%d, s%d" % (SE, P[nm]))
            a("s_mov_b32 s%d, s%d" % (SE + 1, P[nm] + 1))
            a("buffer_load_dwordx4 v[160:163], v%d, s[%d:%d], s%d offen" % (vL16, SE, SE + 3, sT0))
            a("buffer_load_dwordx4 v[160:163], v%d, s[%d:%d], s%d offen offset:1024" % (vL16, SE, SE + 3, sT0))
        a.label("L_PFE")
    if TOUCH2:
        a("s_mov_b32 s%d, 0x20000" % (SE + 3))
        a("s_mov_b32 s%d, 4" % (SE + 2))
        a("s_mov_b32 s%d, s%d" % (SE, P['ws']))
        a("s_mov_b32 s%d, s%d" % (SE + 1, P['ws'] + 1))
        a("s_mov_b32 s%d, 0" % sT0)
        for k, pp in enumerate((P['wk'], P['wv'], P['dbg'], P['out'], P['wd'])):
            a("s_cmp_eq_u32 s%d, %d" % (sW, k))
            a("s_cselect_b32 s%d, s%d, s%d" % (SE, pp, SE))
            a("s_cselect_b32 s%d, s%d, s%d" % (SE + 1, pp + 1, SE + 1))
        a("s_mul_i32 s%d, s%d, %d" % (sT1, sMT, 4 * 144 * 1024))
        a("s_add_u32 s%d, s%d, %d" % (sT1, sT1, WS_AF + 288 * 1024))
        a("s_cmp_eq_u32 s%d, 6" % sW)
        a("s_cselect_b32 s%d, s%d, s%d" % (sT0, sT1, sT0))
        a("s_mul_i32 s%d, s%d, %d" % (sT1, sMB, 2 * 144 * 1024))
        a("s_add_u32 s%d, s%d, %d" % (sT1, sT1, WS_AF + 144 * 1024))
        a("s_cmp_eq_u32 s%d, 7" % sW)
        a("s_cselect_b32 s%d, s%d, s%d" % (sT0, sT1, sT0))
        a("s_add_u32 s%d, s%d, s%d" % (SE, SE, sT0))
        a("s_addc_u32 s%d, s%d, 0" % (SE + 1, SE + 1))
        a("v_mov_b32 v2, 0")
        a("s_mov_b64 exec, 1")
        a("buffer_load_dword v160, v2, s[%d:%d], 0 offen sc1" % (SE, SE + 3))
        a("s_mov_b64 exec, -1")
    a("s_branch L_MAIN")
    a.label("L_HELPER")
    mark0 = len(a.lines)
    a.label("L_MAIN")

    vXr = [8, 9, 10, 11]
    vW0 = 12
    vW1 = list(range(13, 21))
    vGq = 26
    vGm = [28, 30]
    FR = [32, 48]
    ACC = 64
    vKa, vVa = 2, 3
    vQ = 4
    vKF = [8, 12]
    vS = [32, 48]
    vVF = [64, 72]
    vP = 80
    vO = 128
    vC = 144
    NB = int(os.environ.get("NB", "8"))
    b0 = PB[0]
    a("s_lshr_b32 s%d, s%d, 2" % (sT0, sW))
    a("s_lshl_b32 s%d, s%d, 13" % (sT0, sT0))
    a("s_add_u32 s%d, s%d, %d" % (sT0, sT0, b0 + OX))
    a("v_and_b32 v%d, 31, v0" % vT0)
    a("v_lshlrev_b32 v%d, 7, v%d" % (vT0, vT0))
    a("v_lshrrev_b32 v%d, 5, v0" % vT1)
    a("v_bfe_u32 v%d, v0, 1, 3" % vT3)
    a("v_xor_b32 v%d, v%d, v%d" % (vT3, vT3, vT1))
    a("v_lshl_add_u32 v%d, v%d, 4, v%d" % (vT0, vT3, vT0))
    for ks in range(4):
        a("v_xor_b32 v%d, %d, v%d" % (vT2, ks * 32, vT0))
        a("v_add_u32 v%d, s%d, v%d" % (vXr[ks], sT0, vT2))
    a("v_bfe_u32 v%d, v0, 2, 2" % vT2)
    a("v_lshl_add_u32 v%d, v%d, 3, v%d" % (vT3, vT1, vT2))
    a("v_and_b32 v%d, 3, v0" % vT2)
    a("v_bfe_u32 v%d, v0, 4, 1" % vT4)
    a("v_mul_u32_u24 v%d, 0xe0, v%d" % (vT0, vT3))
    a("v_lshl_add_u32 v%d, v%d, 3, v%d" % (vT0, vT2, vT0))
    a("s_and_b32 s%d, s%d, 3" % (sT1, sW))
    a("s_lshl_b32 s%d, s%d, 6" % (sT0, sT1))
    a("s_add_u32 s%d, s%d, %d" % (sT0, sT0, b0 + OWG))
    a("s_movk_i32 s%d, %d" % (sT2, OWU - OWG - 96))
    a("s_cmp_lt_u32 s%d, 2" % sT1)
    a("s_cselect_b32 s%d, %d, s%d" % (sT3, OWU - OWG + 128, sT2))
    a("v_mul_u32_u24 v%d, s%d, v%d" % (vT1, sT3, vT4))
    a("v_add3_u32 v%d, v%d, v%d, s%d" % (vW0, vT0, vT1, sT0))
    a("s_cmp_eq_u32 s%d, 3" % sT1)
    a("s_cbranch_scc1 L_W1_Q")
    a("s_cmp_lt_u32 s%d, 1" % sT1)
    a("s_cselect_b32 s%d, %d, s%d" % (sT3, OWU - OWG + 128, sT2))
    a("v_mul_u32_u24 v%d, s%d, v%d" % (vT1, sT3, vT4))
    a("v_add3_u32 v%d, v%d, v%d, s%d" % (vT0, vT0, vT1, sT0))
    for q in range(8):
        ks, u = q >> 1, q & 1
        a("v_add_u32 v%d, %d, v%d" % (vW1[q], 32 + (16 * ks + 4 * u) * 224, vT0))
    a("s_branch L_W1_E")
    a.label("L_W1_Q")
    a("v_lshlrev_b32 v%d, 6, v%d" % (vT0, vT3))
    a("v_lshl_add_u32 v%d, v%d, 3, v%d" % (vT0, vT2, vT0))
    a("v_lshl_add_u32 v%d, v%d, 5, v%d" % (vT0, vT4, vT0))
    for q in range(8):
        ks, u = q >> 1, q & 1
        a("v_add_u32 v%d, %d, v%d" % (vW1[q], b0 + OWQ + (16 * ks + 4 * u) * 64, vT0))
    a.label("L_W1_E")
    for r in list(range(vC, vC + 16)) + list(range(vO, vO + 16)):
        a("v_mov_b32 v%d, 0" % r)
    a("v_mov_b32 v%d, v%d" % (vKa, vL16))
    a("v_lshrrev_b32 v%d, 5, v0" % vT0)
    a("v_and_b32 v%d, 15, v0" % vT1)
    a("v_lshlrev_b32 v%d, 8, v%d" % (vT2, vT0))
    a("v_lshl_add_u32 v%d, v%d, 4, v%d" % (vT2, vT1, vT2))
    a("v_add_u32 v%d, 1024, v%d" % (vVa, vT2))
    a("v_and_b32 v%d, 27, v0" % vT0)
    a("v_cmp_eq_u32 vcc, 16, v%d" % vT0)
    a("v_mov_b32 v%d, 0x3f803f80" % vT0)
    a("s_mov_b32 s%d, 0x0000ffff" % sVm)
    a("s_mov_b32 s%d, 0x0000ffff" % (sVm + 1))
    a("v_cndmask_b32 v27, 0, v%d, vcc" % vT0)
    a("v_and_b32 v%d, 31, v0" % vT0)
    a("s_lshr_b32 s%d, s%d, 2" % (sT0, sW))
    a("s_lshl_b32 s%d, s%d, 8" % (sT0, sT0))
    a("s_add_u32 s%d, s%d, %d" % (sT0, sT0, L_GROW))
    a("v_lshl_add_u32 v4, v%d, 2, s%d" % (vT0, sT0))
    a("s_lshl_b32 s%d, s%d, 10" % (sT0, sW))
    a("s_add_u32 s%d, s%d, %d" % (sT0, sT0, L_QX))
    a("v_add_u32 v5, s%d, v%d" % (sT0, vL16))
    a("v_mov_b32 v6, %d" % L_KMAX)
    a("s_lshr_b32 s%d, s%d, 2" % (sT0, sW))
    a("s_lshl_b32 s%d, s%d, 1" % (sT0, sT0))
    a("s_lshl_b32 s%d, s%d, 2" % (sT1, sMT))
    a("s_add_u32 s%d, s%d, s%d" % (sT0, sT0, sT1))
    a("s_mul_i32 s%d, s%d, 144" % (sT0, sT0))
    a("s_mul_i32 s%d, s%d, 7" % (sT1, sNT))
    a("s_add_u32 s%d, s%d, s%d" % (sT0, sT0, sT1))
    a("s_and_b32 s%d, s%d, 3" % (sT2, sW))
    a("s_lshl_b32 s%d, s%d, 1" % (sT1, sT2))
    a("s_add_u32 s%d, s%d, s%d" % (sT0, sT0, sT1))
    a("s_lshl_b32 s%d, s%d, 10" % (sT0, sT0))
    a("s_add_u32 s%d, s%d, %d" % (sOffA, sT0, WS_AF + 32 * 1024))
    a("s_add_u32 s%d, s%d, %d" % (sOffB, sOffA, 144 * 1024))
    a("s_lshr_b32 s%d, s%d, 1" % (sT0, sW))
    a("s_lshl_b32 s%d, s%d, 2" % (sT1, sMT))
    a("s_add_u32 s%d, s%d, s%d" % (sT0, sT0, sT1))
    a("s_mul_i32 s%d, s%d, 144" % (sT0, sT0))
    a("s_lshl_b32 s%d, s%d, 1" % (sT1, sNT))
    a("s_add_u32 s%d, s%d, s%d" % (sT0, sT0, sT1))
    a("s_and_b32 s%d, s%d, 1" % (sT1, sW))
    a("s_add_u32 s%d, s%d, s%d" % (sT0, sT0, sT1))
    a("s_lshl_b32 s%d, s%d, 10" % (sT0, sT0))
    a("s_add_u32 s%d, s%d, %d" % (sOffC, sT0, WS_AF))
    a("s_waitcnt lgkmcnt(0)")
    srd(a, SWS, P['ws'], P['ws'] + 1, WS_SIZE)
    srd(a, SOUT, P['out'], P['out'] + 1, 2097152)
    SXm = 48
    mGX, mGW = 128, 132
    srd(a, SXm, P['x'], P['x'] + 1, 2097152)
    srd(a, SE, P['gw'], P['gw'] + 1, 1024)
    a("s_lshl_b32 s%d, s%d, 4" % (sT0, sMT))
    a("s_add_u32 s%d, s%d, s%d" % (sT0, sT0, sNT))
    a("s_lshl_b32 s%d, s%d, 3" % (sT0, sT0))
    a("s_add_u32 s%d, s%d, s%d" % (sT0, sT0, sW))
    a("s_lshl_b32 s%d, s%d, 10" % (sT0, sT0))
    a("s_lshl_b32 s%d, s%d, 2" % (sT1, sW))
    a("s_add_u32 s%d, s%d, %d" % (sT1, sT1, L_G8))
    a("v_mov_b32 v%d, s%d" % (vGq, sT1))

    def g_loads():
        a("buffer_load_dwordx4 v[%d:%d], v%d, s[%d:%d], s%d offen" % (mGX, mGX + 3, vL16, SXm, SXm + 3, sT0))
        a("buffer_load_dwordx4 v[%d:%d], v%d, s[%d:%d], 0 offen" % (mGW, mGW + 3, vL16, SE, SE + 3))

    def g_job():
        a("s_waitcnt vmcnt(0)")
        if PREF and PFLATE:
            a("s_cmp_eq_u32 s%d, 7" % sW)
            a("s_cselect_b32 s%d, s%d, s%d" % (SE, P['wo'], P['wd']))
            a("s_cselect_b32 s%d, s%d, s%d" % (SE + 1, P['wo'] + 1, P['wd'] + 1))
            a("s_mov_b32 s%d, 0x1c0000" % (SE + 2))
            a("s_cselect_b32 s%d, 0x80000, s%d" % (SE + 2, SE + 2))
            a("s_mul_i32 s%d, s2, 7" % sT0)
            a("s_add_u32 s%d, s%d, s%d" % (sT0, sT0, sW))
            a("s_lshl_b32 s%d, s2, 1" % sT1)
            a("s_cmp_eq_u32 s%d, 7" % sW)
            a("s_cselect_b32 s%d, s%d, s%d" % (sT0, sT1, sT0))
            a("s_lshl_b32 s%d, s%d, 10" % (sT0, sT0))
            a("buffer_load_dwordx4 v[160:163], v%d, s[%d:%d], s%d offen" % (vL16, SE, SE + 3, sT0))
            a("s_cbranch_scc0 L_PFL") if False else None
            a("s_cmp_lg_u32 s%d, 7" % sW)
            a("s_cbranch_scc1 L_PFL")
            a("buffer_load_dwordx4 v[160:163], v%d, s[%d:%d], s%d offen offset:1024" % (vL16, SE, SE + 3, sT0))
            a.label("L_PFL")
        a("v_mov_b32 v%d, 0" % vT0)
        for j in range(4):
            a("v_dot2_f32_bf16 v%d, v%d, v%d, v%d" % (vT0, mGX + j, mGW + j, vT0))
        for r in range(8):
            a("v_mov_b32 v%d, 0" % (vO + r))
        a("v_mov_b32 v%d, v%d" % (vT1, vT0))
        wave_reduce(a, "v_add_f32", vT1)
        a("v_mul_f32 v%d, 0x%08x, v%d" % (vT1, f32bits(-math.log2(math.e)), vT1))
        a("v_exp_f32 v%d, v%d" % (vT1, vT1))
        a.nop(1)
        a("v_add_f32 v%d, 1.0, v%d" % (vT1, vT1))
        a("v_rcp_f32 v%d, v%d" % (vT1, vT1))
        a("s_mov_b32 exec_lo, 0")
        a("s_mov_b32 exec_hi, 0x80000000")
        a("ds_write_b32 v%d, v%d" % (vGq, vT1))
        a("s_mov_b64 exec, -1")

    def rd_list(ks, fs):
        f = FR[fs]
        return [
            "ds_read_b128 v[%d:%d], v%d" % (f, f + 3, vXr[ks]),
            "ds_read_b64_tr_b16 v[%d:%d], v%d offset:%d" % (f + 8, f + 9, vW0, (16 * ks) * 224),
            "ds_read_b64_tr_b16 v[%d:%d], v%d offset:%d" % (f + 10, f + 11, vW0, (16 * ks + 4) * 224),
            "ds_read_b128 v[%d:%d], v%d offset:4096" % (f + 4, f + 7, vXr[ks]),
            "ds_read_b64_tr_b16 v[%d:%d], v%d" % (f + 12, f + 13, vW1[2 * ks]),
            "ds_read_b64_tr_b16 v[%d:%d], v%d" % (f + 14, f + 15, vW1[2 * ks + 1]),
        ]

    def mfmas(fs, first):
        f = FR[fs]
        out = []
        for an in (0, 1):
            for i in (0, 1):
                acc = ACC + (an * 2 + i) * 16
                c = "0" if first else "v[%d:%d]" % (acc, acc + 15)
                out.append("%s v[%d:%d], v[%d:%d], v[%d:%d], %s" % (MFMA, acc, acc + 15, f + 8 + an * 4, f + 11 + an * 4,
                                                                   f + i * 4, f + i * 4 + 3, c))
        return out

    def adv(s, regs):
        d = PB[(s + 1) % 3] - PB[s % 3]
        return ["v_add_u32 v%d, %d, v%d" % (r, d, r) if d >= 0 else "v_subrev_u32 v%d, %d, v%d" % (r, -d, r) for r in regs]

    g_loads()
    stamp("pro")
    a("s_barrier")
    stamp("bar0")
    emit(rd_list(0, 0))
    fs = 0
    for s in range(8):
        for ks in range(4):
            ms = mfmas(fs, s == 0 and ks == 0)
            if ks < 3:
                nxt = rd_list(ks + 1, fs ^ 1)
                for q in range(4):
                    if q < 3:
                        a("s_waitcnt lgkmcnt(%d)" % (3 if q == 0 else 4))
                    a(ms[q])
                    emit(nxt[2 * q:2 * q + 2])
                    if s < 7 and q == 3:
                        regs = [vXr[ks], vW1[2 * ks], vW1[2 * ks + 1]]
                        if ks == 2:
                            regs += [vXr[3], vW1[6], vW1[7], vW0]
                        emit(adv(s, regs))
            else:
                if s < 7:
                    a("s_waitcnt lgkmcnt(3)")
                    a(ms[0])
                    a("s_waitcnt lgkmcnt(0)")
                    stamp("s%dv" % s)
                    a("s_barrier")
                    stamp("s%db" % s)
                    nxt = rd_list(0, fs ^ 1)
                    emit(nxt[0:3])
                    a(ms[1])
                    emit(nxt[3:6])
                    a(ms[2])
                    a(ms[3])
                    if s == 1:
                        g_job()
                else:
                    a("ds_read_b32 v%d, v4" % vGm[0])
                    a("ds_read_b32 v%d, v4 offset:128" % vGm[1])
                    a("s_waitcnt lgkmcnt(5)")
                    a(ms[0])
                    a("s_waitcnt lgkmcnt(2)")
                    emit(ms[1:])
            fs ^= 1
    stamp("g1end")
    a("s_bitcmp1_b32 s%d, 1" % sW)
    a("s_cselect_b64 vcc, -1, 0")
    a("v_mov_b32 v8, -1")
    a("v_mov_b32 v9, -1")
    a("v_mov_b32 v10, -1")
    a("v_mov_b32 v11, -1")
    a("s_waitcnt lgkmcnt(0)")
    a("buffer_store_dwordx4 v[8:11], v%d, s[%d:%d], s%d offen sc1" % (vL16, SWS, SWS + 3, sOffC))
    a("v_cndmask_b32 v%d, v%d, v%d, vcc" % (vGq, vGm[0], vGm[1]))
    a("v_sub_f32 v%d, 1.0, v%d" % (vGm[0], vGm[0]))
    a("v_sub_f32 v%d, 1.0, v%d" % (vGm[1], vGm[1]))
    a("v_mov_b32 v%d, v%d" % (vGm[0] + 1, vGm[0]))
    a("v_mov_b32 v%d, v%d" % (vGm[1] + 1, vGm[1]))

    def h_tile(an, i, d):
        t = ACC + (an * 2 + i) * 16
        for r in range(0, 8, 2):
            a("v_pk_mul_f32 v[%d:%d], v[%d:%d], v[%d:%d]" % (t + r, t + r + 1, t + r, t + r + 1, t + 8 + r, t + 9 + r))
        for r in range(0, 8, 2):
            a("v_pk_mul_f32 v[%d:%d], v[%d:%d], v[%d:%d]" % (t + r, t + r + 1, t + r, t + r + 1, vGm[i], vGm[i] + 1))
        for j in range(4):
            a("v_cvt_pk_bf16_f32 v%d, v%d, v%d" % (d + j, t + 2 * j, t + 2 * j + 1))
        a("buffer_store_dwordx4 v[%d:%d], v%d, s[%d:%d], s%d offen offset:%d sc1" % (d, d + 3, vL16, SWS, SWS + 3,
                                                                                    sOffA if i == 0 else sOffB, an * 1024))

    a("s_cmp_eq_u32 s%d, 3" % sT2)
    a("s_cbranch_scc1 L_EPI_Q")
    h_tile(1, 0, ACC + 40)
    h_tile(1, 1, ACC + 56)
    a("s_branch L_EPI_C")
    a.label("L_EPI_Q")
    a("v_mov_b32 v24, 0x%08x" % f32bits(QSCALE))
    a("v_mov_b32 v25, 0x%08x" % f32bits(QSCALE))
    a("s_lshr_b32 s%d, s%d, 2" % (sT2, sW))
    a("s_lshl_b32 s%d, s%d, 12" % (sT2, sT2))
    a("s_add_u32 s%d, s%d, %d" % (sT2, sT2, L_QX))
    a("v_add_u32 v%d, s%d, v%d" % (vT0, sT2, vL16))
    for i in (0, 1):
        t = ACC + (2 + i) * 16
        for r in range(0, 16, 2):
            a("v_pk_mul_f32 v[%d:%d], v[%d:%d], v[24:25]" % (t + r, t + r + 1, t + r, t + r + 1))
        d = FR[0] + 8 * i
        for j in range(8):
            a("v_cvt_pk_bf16_f32 v%d, v%d, v%d" % (d + j, t + 2 * j, t + 2 * j + 1))
        a("ds_write_b128 v%d, v[%d:%d] offset:%d" % (vT0, d, d + 3, i * 2048))
        a("ds_write_b128 v%d, v[%d:%d] offset:%d" % (vT0, d + 4, d + 7, i * 2048 + 1024))
    a.label("L_EPI_C")
    h_tile(0, 0, ACC + 44)
    h_tile(0, 1, ACC + 60)
    for r in range(16):
        a("v_mov_b32 v%d, v27" % (vVF[0] + r))
    a("v_mov_b32 v%d, v5" % vT0)
    a("v_mov_b32 v%d, v6" % vT1)
    a("s_waitcnt lgkmcnt(0)")
    a("s_barrier")
    stamp("Bq")
    a("ds_read_b128 v[%d:%d], v%d" % (vQ, vQ + 3, vT0))
    a("ds_read_b32 v%d, v%d" % (vT4, vT1))

    inloop = [False]

    def rdK(buf, off):
        if inloop[0] and "nolds" in os.environ.get("X", ""):
            return
        a("ds_read_b128 v[%d:%d], v%d offset:%d" % (vKF[buf], vKF[buf] + 3, vKa, off))

    def rdV(buf, off):
        if inloop[0] and ("nolds" in os.environ.get("X", "") or "nov" in os.environ.get("X", "")):
            return
        ne = "noexec" in os.environ.get("X", "")
        if not ne:
            a("s_mov_b64 exec, s[%d:%d]" % (sVm, sVm + 1))
        a("ds_read_b128 v[%d:%d], v%d offset:%d" % (vVF[buf], vVF[buf] + 3, vVa, off))
        a("ds_read_b128 v[%d:%d], v%d offset:%d" % (vVF[buf] + 4, vVF[buf] + 7, vVa, off + 512))
        if not ne:
            a("s_mov_b64 exec, -1")

    X = os.environ.get("X", "")

    def mS(sbuf, kbuf):
        if "czero" in X:
            a("%s v[%d:%d], v[%d:%d], v[%d:%d], 0" % (MFMA, vS[sbuf], vS[sbuf] + 15, vKF[kbuf], vKF[kbuf] + 3, vQ, vQ + 3))
            return
        a("%s v[%d:%d], v[%d:%d], v[%d:%d], v[%d:%d]" % (MFMA, vS[sbuf], vS[sbuf] + 15, vKF[kbuf], vKF[kbuf] + 3,
                                                        vQ, vQ + 3, vC, vC + 15))

    def mPV(vbuf, t):
        if "nopv" in X:
            return
        if "pv16" in X:
            a("v_mfma_f32_16x16x32_bf16 v[%d:%d], v[%d:%d], v[%d:%d], v[%d:%d]" % (vO + 4 * t, vO + 4 * t + 3, vKF[0], vKF[0] + 3,
                                                        vP + 4 * t, vP + 4 * t + 3, vO + 4 * t, vO + 4 * t + 3))
            return
        a("%s v[%d:%d], v[%d:%d], v[%d:%d], v[%d:%d]" % (MFMA, vO, vO + 15, vVF[vbuf] + 4 * t, vVF[vbuf] + 4 * t + 3,
                                                        vP + 4 * t, vP + 4 * t + 3, vO, vO + 15))

    def E(sb, r):
        a("v_exp_f32 v%d, v%d" % (vS[sb] + r, vS[sb] + r))

    def C(sb, j):
        a("v_cvt_pk_bf16_f32 v%d, v%d, v%d" % (vP + j, vS[sb] + 2 * j, vS[sb] + 2 * j + 1))

    rdK(0, 0)
    rdK(1, KVBLK)
    rdV(0, 0)
    a("s_waitcnt lgkmcnt(4)")
    a("v_mov_b32 v%d, 0" % vT3)
    for j in range(4):
        a("v_dot2_f32_bf16 v%d, v%d, v%d, v%d" % (vT3, vQ + j, vQ + j, vT3))
    a("s_mov_b32 s%d, 0x%08x" % (sT1, f32bits(900.0)))
    a("s_mov_b32 s%d, %d" % (sSkip, 12 // NB if NB == 4 else 2))
    a("s_mov_b32 s%d, 0" % sIt)
    a.nop(1)
    a("v_mov_b32 v%d, v%d" % (vT2, vT3))
    a.nop(2)
    a("v_permlane32_swap_b32 v%d, v%d" % (vT3, vT2))
    a.nop(1)
    a("v_add_f32 v%d, v%d, v%d" % (vT3, vT3, vT2))
    a("v_mul_f32 v%d, v%d, v%d" % (vT3, vT4, vT3))
    a("v_cmp_nge_f32 vcc, s%d, v%d" % (sT1, vT3))
    a("s_cmp_eq_u64 vcc, 0")
    a("s_cbranch_scc1 L_FAST")
    a("s_waitcnt vmcnt(0)")
    a("s_barrier")
    a("s_mov_b32 s%d, 99" % sSkip)
    a("v_mov_b32 v%d, 0xff800000" % vT0)
    a("v_mov_b32 v%d, v%d" % (vT1, vL16))
    a.label("L_MAXLOOP")
    a("ds_read_b128 v[%d:%d], v%d" % (vP, vP + 3, vT1))
    a("v_add_u32 v%d, %d, v%d" % (vT1, KVBLK, vT1))
    a("s_waitcnt lgkmcnt(0)")
    a("%s v[%d:%d], v[%d:%d], v[%d:%d], 0" % (MFMA, vS[0], vS[0] + 15, vP, vP + 3, vQ, vQ + 3))
    a.nop(16)
    for j in range(8):
        a("v_max3_f32 v%d, v%d, v%d, v%d" % (vT0, vS[0] + 2 * j, vS[0] + 2 * j + 1, vT0))
    a("s_add_u32 s%d, s%d, 1" % (sIt, sIt))
    a("s_cmp_lt_u32 s%d, 64" % sIt)
    a("s_cbranch_scc1 L_MAXLOOP")
    a("v_mov_b32 v%d, v%d" % (vT1, vT0))
    a("s_mov_b32 s%d, 0" % sIt)
    a.nop(1)
    a("v_permlane32_swap_b32 v%d, v%d" % (vT0, vT1))
    a.nop(2)
    a("v_max_f32 v%d, v%d, v%d" % (vT0, vT0, vT1))
    for r in range(16):
        a("v_sub_f32 v%d, 0, v%d" % (vC + r, vT0))
    a.label("L_FAST")
    for r in range(12, 16):
        a("v_mov_b32 v%d, 0" % (vS[1] + r))
    a("v_mov_b32 v%d, 0" % (vP + 4))
    a("v_mov_b32 v%d, 0" % (vP + 5))
    a("s_waitcnt lgkmcnt(0)")
    mS(0, 0)
    a.nop(12)
    a.label("L_LOOP")
    inloop[0] = True
    for bb in range(NB):
        p = bb & 1
        off = bb * KVBLK
        if PRIO and bb % 4 == 0:
            a("s_setprio 1")
        if PRIO and bb % 4 == 2:
            a("s_setprio 0")
        E(p, 0)
        E(p, 1)
        C(p ^ 1, 6)
        C(p ^ 1, 7)
        E(p, 2)
        E(p, 3)
        mPV(p ^ 1, 1)
        rdV(p ^ 1, off + KVBLK)
        E(p, 4)
        E(p, 5)
        C(p, 0)
        C(p, 1)
        a("s_waitcnt lgkmcnt(2)")
        mS(p ^ 1, p ^ 1)
        rdK(p, off + 2 * KVBLK)
        E(p, 6)
        E(p, 7)
        E(p, 8)
        E(p, 9)
        C(p, 2)
        C(p, 3)
        E(p, 10)
        E(p, 11)
        mPV(p, 0)
        E(p, 12)
        E(p, 13)
        C(p, 4)
        C(p, 5)
        E(p, 14)
        E(p, 15)
    a("v_add_u32 v%d, %d, v%d" % (vKa, NB * KVBLK, vKa))
    a("v_add_u32 v%d, %d, v%d" % (vVa, NB * KVBLK, vVa))
    a("s_add_u32 s%d, s%d, 1" % (sIt, sIt))
    a("s_cmp_lg_u32 s%d, s%d" % (sIt, sSkip))
    a("s_cbranch_scc1 L_NOBKV")
    a("s_waitcnt vmcnt(0)")
    a("s_barrier")
    stamp("bkv")
    a.label("L_NOBKV")
    a("s_cmp_lt_u32 s%d, %d" % (sIt, 64 // NB))
    a("s_cbranch_scc1 L_LOOP")
    if os.environ.get("REPEAT"):
        inloop[0] = False
        a("s_cmp_eq_u32 s%d, 98" % sSkip)
        a("s_cbranch_scc1 L_RPT_E")
        a("s_mov_b32 s%d, 98" % sSkip)
        a("s_mov_b32 s%d, 0" % sIt)
        a.nop(16)
        for r in range(16):
            a("v_mov_b32 v%d, 0" % (vO + r))
        a("v_subrev_u32 v%d, %d, v%d" % (vKa, 64 * KVBLK, vKa))
        a("v_subrev_u32 v%d, %d, v%d" % (vVa, 64 * KVBLK, vVa))
        a("s_waitcnt lgkmcnt(0)")
        rdK(0, 0)
        rdK(1, KVBLK)
        rdV(0, 0)
        a("s_branch L_FAST")
        a.label("L_RPT_E")
    C(1, 6)
    C(1, 7)
    a.nop(2)
    mPV(1, 1)
    stamp("attn")
    a.nop(13)
    a("v_rcp_f32 v%d, v%d" % (vT0, vO + 8))
    a("v_lshrrev_b32 v%d, 3, v0" % vT4)
    a("v_mul_f32 v%d, v%d, v%d" % (vT0, vT0, vGq))
    for r in range(8):
        a("v_mul_f32 v%d, v%d, v%d" % (vO + r, vO + r, vT0))
    for j in range(4):
        a("v_cvt_pk_bf16_f32 v%d, v%d, v%d" % (vO + 8 + j, vO + 2 * j, vO + 2 * j + 1))
    a("buffer_store_dwordx4 v[%d:%d], v%d, s[%d:%d], s%d offen sc1" % (vO + 8, vO + 11, vL16, SWS, SWS + 3, sOffC))
    a("s_waitcnt lgkmcnt(0)")
    a("s_barrier")
    stamp("b3")
    vR0, vR1, vOo = 8, 9, 10
    a("s_lshl_b32 s%d, s%d, 3" % (sT0, sW))
    a("v_add_u32 v%d, s%d, v%d" % (vT4, sT0, vT4))
    a("v_and_b32 v%d, 15, v%d" % (vT1, vT4))
    a("v_and_b32 v%d, 7, v0" % vT2)
    a("v_lshlrev_b32 v%d, 1, v%d" % (vT3, vT2))
    a("v_xor_b32 v%d, v%d, v%d" % (vT1, vT1, vT3))
    a("v_lshlrev_b32 v%d, 8, v%d" % (vT3, vT4))
    a("v_lshl_add_u32 v%d, v%d, 4, v%d" % (vR0, vT1, vT3))
    a("v_xor_b32 v%d, 16, v%d" % (vR1, vR0))
    a("v_lshlrev_b32 v%d, 10, v%d" % (vT4, vT4))
    a("v_lshl_add_u32 v%d, v%d, 4, v%d" % (vOo, vT2, vT4))
    a("s_lshl_b32 s%d, s%d, 16" % (sT0, sMB))
    a("s_lshl_b32 s%d, s%d, 7" % (sT1, sNB))
    a("s_add_u32 s%d, s%d, s%d" % (sT0, sT0, sT1))
    a("s_barrier")
    stamp("b4")
    FB = 32
    for k_ in range(4):
        a("ds_read_b128 v[%d:%d], v%d offset:%d" % (FB + 8 * k_, FB + 8 * k_ + 3, vR0, k_ * 16384))
        a("ds_read_b128 v[%d:%d], v%d offset:%d" % (FB + 8 * k_ + 4, FB + 8 * k_ + 7, vR1, k_ * 16384))
    for k_ in range(1, 4):
        a("s_waitcnt lgkmcnt(%d)" % (2 * (3 - k_)))
        for r in range(8):
            a("v_add_f32 v%d, v%d, v%d" % (FB + r, FB + r, FB + 8 * k_ + r))
    for j in range(4):
        a("v_cvt_pk_bf16_f32 v%d, v%d, v%d" % (FB + 8 + j, FB + 2 * j, FB + 2 * j + 1))
    a("buffer_store_dwordx4 v[%d:%d], v%d, s[%d:%d], s%d offen" % (FB + 8, FB + 11, vOo, SOUT, SOUT + 3, sT0))
    prof_flush()
    a("s_endpgm")

    role[0] = "H"
    mark1 = len(a.lines)
    vXd0, vXd1 = 2, 3
    vWd = list(range(4, 12))
    vEv = 12
    vPl = 14
    vKX = 32
    vKA = 96
    vGX = 112
    vGW = 120
    a("s_setprio 3")
    a("s_sub_u32 s%d, s%d, 8" % (sH, sW))
    a("s_lshl_b32 s%d, s%d, 12" % (sM0x, sH))
    a("s_lshl_b32 s%d, s%d, 13" % (sM0w, sH))
    a("s_lshl_b32 s%d, s%d, 7" % (sT0, sMT))
    a("s_lshl_b32 s%d, s%d, 5" % (sT1, sH))
    a("s_add_u32 s%d, s%d, s%d" % (sT0, sT0, sT1))
    a("v_lshrrev_b32 v%d, 3, v0" % vT0)
    a("v_add_u32 v%d, s%d, v%d" % (vT0, sT0, vT0))
    a("v_lshlrev_b32 v%d, 10, v%d" % (vT0, vT0))
    a("v_and_b32 v%d, 7, v0" % vT1)
    a("v_lshrrev_b32 v%d, 4, v0" % vT2)
    a("v_xor_b32 v%d, v%d, v%d" % (vT1, vT1, vT2))
    a("v_lshl_add_u32 v%d, v%d, 4, v%d" % (vXd0, vT1, vT0))
    a("v_xor_b32 v%d, 64, v%d" % (vXd1, vXd0))
    a("v_add_u32 v%d, 0x2000, v%d" % (vXd1, vXd1))
    a("s_mul_i32 s%d, s%d, 224" % (sT2, sNT))
    a("s_movk_i32 s%d, 4682" % sT3)
    for j in range(8):
        if j == 4:
            a("s_cmp_eq_u32 s%d, 3" % sH)
            a("s_cbranch_scc1 L_WD_Q")
        a("s_lshl_b32 s%d, s%d, 3" % (sT0, sH))
        a("s_add_u32 s%d, s%d, %d" % (sT0, sT0, j))
        a("s_sub_u32 s%d, s%d, 14" % (sT1, sT0))
        a("s_cmp_ge_u32 s%d, 14" % sT0)
        a("s_cselect_b32 s%d, s%d, s%d" % (sT0, sT1, sT0))
        a("s_cselect_b32 s%d, 6, 0" % sOffA)
        a("s_lshl_b32 s%d, s%d, 6" % (sT0, sT0))
        a("v_add_u32 v%d, s%d, v0" % (vT0, sT0))
        a("v_mul_u32_u24 v%d, s%d, v%d" % (vT1, sT3, vT0))
        a("v_lshrrev_b32 v%d, 16, v%d" % (vT1, vT1))
        a("v_mul_u32_u24 v%d, 14, v%d" % (vT2, vT1))
        a("v_sub_u32 v%d, v%d, v%d" % (vT0, vT0, vT2))
        a("v_add_u32 v%d, s%d, v%d" % (vT0, sOffA, vT0))
        a("v_subrev_u32 v%d, 14, v%d" % (vT2, vT0))
        a("v_min_u32 v%d, v%d, v%d" % (vT0, vT0, vT2))
        a("v_mul_u32_u24 v%d, 0xe00, v%d" % (vT1, vT1))
        a("v_lshl_add_u32 v%d, v%d, 4, v%d" % (vT0, vT0, vT1))
        a("v_add_u32 v%d, s%d, v%d" % (vWd[j], sT2, vT0))
    a("s_mov_b32 s%d, %d" % (sStepB, 64 * 3584))
    a("s_branch L_WD_E")
    a.label("L_WD_Q")
    a("s_lshl_b32 s%d, s%d, 6" % (sT2, sNT))
    a("v_lshrrev_b32 v%d, 2, v0" % vT0)
    a("v_and_b32 v%d, 3, v0" % vT1)
    a("v_lshlrev_b32 v%d, 10, v%d" % (vT0, vT0))
    a("v_lshl_add_u32 v%d, v%d, 4, v%d" % (vT0, vT1, vT0))
    a("v_add_u32 v%d, s%d, v%d" % (vWd[4], sT2, vT0))
    for j in range(5, 8):
        a("v_add_u32 v%d, %d, v%d" % (vWd[j], (j - 4) * 16384, vWd[4]))
    a("s_mov_b32 s%d, 65536" % sStepB)
    a.label("L_WD_E")
    a("s_waitcnt lgkmcnt(0)")
    stamp("karg")
    srd(a, SX, P['x'], P['x'] + 1, 2097152)
    for S, lim, q in ((SA, 2, False), (SB, 2, True), (SC, 1, True)):
        a("s_cmp_lt_u32 s%d, %d" % (sH, lim))
        a("s_cselect_b32 s%d, s%d, s%d" % (S, P['wg'], P['wu']))
        a("s_cselect_b32 s%d, s%d, s%d" % (S + 1, P['wg'] + 1, P['wu'] + 1))
        a("s_mov_b32 s%d, 0x1c0000" % (S + 2))
        if q:
            a("s_cmp_eq_u32 s%d, 3" % sH)
            a("s_cselect_b32 s%d, s%d, s%d" % (S, P['wq'], S))
            a("s_cselect_b32 s%d, s%d, s%d" % (S + 1, P['wq'] + 1, S + 1))
            a("s_cselect_b32 s%d, 0x80000, s%d" % (S + 2, S + 2))
        a("s_mov_b32 s%d, 0x20000" % (S + 3))

    def dma_stage(s):
        b = PB[s % 3]
        a("s_mov_b32 s%d, %d" % (sOffA, s * 64 * 3584))
        a("s_mul_i32 s%d, s%d, %d" % (sOffB, sStepB, s))
        for j in range(8):
            S = SA if j < 4 else (SB if j < 6 else SC)
            a("s_add_u32 m0, s%d, %d" % (sM0w, b + OWG + j * 1024))
            if j % 2 == 0:
                i = j // 2
                a("s_movk_i32 s%d, %d" % (sT0, s * 128 + (i >> 1) * 16384))
            else:
                a("s_nop 0")
            a("buffer_load_dwordx4 v%d, s[%d:%d], s%d offen lds" % (vWd[j], S, S + 3, sOffA if j < 4 else sOffB))
            if j % 2 == 0:
                a("s_add_u32 m0, s%d, %d" % (sM0x, b + OX + i * 1024))
                a("s_nop 0")
                a("buffer_load_dwordx4 v%d, s[%d:%d], s%d offen lds" % (vXd1 if i & 1 else vXd0, SX, SX + 3, sT0))

    def kv_dma(first, n):
        for j in range(n):
            off = (first + 4 * j) * 1024
            a("s_add_u32 m0, s%d, %d" % (sKoff, off))
            a("s_add_u32 s%d, s%d, %d" % (sOffA, sKoff, WS_KV + off))
            a("buffer_load_dwordx4 v%d, s[%d:%d], s%d offen sc1 lds" % (vL16, SWS, SWS + 3, sOffA))

    srd(a, SDBG, P['dbg'], P['dbg'] + 1, 256)
    a("s_cmp_lg_u32 s2, 0")
    a("s_cbranch_scc1 L_NOTAG")
    a("s_cmp_lg_u32 s%d, 3" % sH)
    a("s_cbranch_scc1 L_NOTAG")
    a("s_or_b32 s%d, s88, 1" % sT0)
    a("v_mov_b32 v%d, s%d" % (vT0, sT0))
    a("v_mov_b32 v%d, 0" % vT1)
    a("s_mov_b64 exec, 1")
    a("buffer_store_dword v%d, v%d, s[%d:%d], 0 offen sc1" % (vT0, vT1, SDBG, SDBG + 3))
    a("s_mov_b64 exec, -1")
    a.label("L_NOTAG")
    dma_stage(0)
    stamp("d0")
    dma_stage(1)
    stamp("d1")
    srd(a, SWS, P['ws'], P['ws'] + 1, WS_SIZE)
    a("s_lshl_b32 s%d, s%d, 10" % (sKoff, sH))
    a("s_lshl_b32 s%d, s%d, 4" % (sSlot, sMT))
    a("s_add_u32 s%d, s%d, s%d" % (sSlot, sSlot, sNT))
    a("s_lshl_b32 s%d, s%d, 7" % (sSlot, sSlot))
    a("s_and_b32 s%d, s%d, 3" % (sRB, sNT))
    a("s_lshr_b32 s%d, s%d, 2" % (sT0, sNT))
    a("s_add_u32 s%d, s%d, 1" % (sKV, sT0))
    a("s_cmp_ge_u32 s%d, 8" % sNT)
    a("s_cselect_b32 s%d, 0, s%d" % (sKV, sKV))
    a("s_cmp_eq_u32 s%d, 0" % sH)
    a("s_cselect_b32 s%d, s%d, 0" % (sSkip, sKV))
    a("s_cmp_eq_u32 s%d, 1" % sKV)
    a("s_cselect_b32 s%d, s%d, s%d" % (SE, P['wk'], P['wv']))
    a("s_cselect_b32 s%d, s%d, s%d" % (SE + 1, P['wk'] + 1, P['wv'] + 1))
    a("s_mov_b32 s%d, 16384" % (SE + 2))
    a("s_mov_b32 s%d, 0x20000" % (SE + 3))
    a("v_lshrrev_b32 v%d, 4, v0" % vT0)
    a("v_and_b32 v%d, 15, v0" % vT1)
    a("v_xor_b32 v%d, v%d, v%d" % (vT1, vT1, vT0))
    a("v_lshlrev_b32 v%d, 10, v%d" % (vT0, vT0))
    a("v_lshl_add_u32 v18, v%d, 4, v%d" % (vT1, vT0))
    a("s_lshl_b32 s%d, s%d, 2" % (sT0, sMT))
    a("s_add_u32 s%d, s%d, s%d" % (sT0, sT0, sRB))
    a("s_lshl_b32 s%d, s%d, 15" % (sT0, sT0))
    a("s_lshl_b32 s%d, s%d, 8" % (sT1, sH))
    a("s_add_u32 s%d, s%d, s%d" % (sOffC, sT0, sT1))
    a("s_waitcnt vmcnt(12)")
    stamp("w0")
    a("s_barrier")
    a("v_mov_b32 v%d, 0" % vT0)
    a("buffer_load_dword v%d, v%d, s[%d:%d], 0 offen sc1" % (vEv, vT0, SDBG, SDBG + 3))
    a("s_cmp_eq_u32 s%d, 0" % sKV)
    a("s_cbranch_scc1 L_I0_N")
    a("s_add_u32 m0, s%d, %d" % (sM0x, PB[2] + OX))
    a("s_nop 0")
    for j in range(4):
        a("buffer_load_dwordx4 v%d, s[%d:%d], s%d offen offset:%d lds" % (vL16, SE, SE + 3, sM0x, j * 1024))
    for p_ in range(8):
        a("s_add_u32 m0, s%d, %d" % (sM0w, PB[2] + OWG + p_ * 1024))
        a("v_xor_b32 v%d, %d, v18" % (vT0, (p_ & 3) * 64))
        a("s_add_u32 s%d, s%d, %d" % (sT0, sOffC, p_ * 4096))
        a("buffer_load_dwordx4 v%d, s[%d:%d], s%d offen lds" % (vT0, SX, SX + 3, sT0))
    a("v_lshrrev_b32 v%d, 5, v0" % vT1)
    a("v_bfe_u32 v%d, v0, 2, 2" % vT2)
    a("v_lshl_add_u32 v%d, v%d, 3, v%d" % (vT3, vT1, vT2))
    a("v_and_b32 v%d, 3, v0" % vT2)
    a("v_lshlrev_b32 v%d, 5, v%d" % (vT3, vT3))
    a("v_lshl_add_u32 v%d, v%d, 3, v%d" % (vT3, vT2, vT3))
    a("s_add_u32 s%d, s%d, %d" % (sT0, sM0x, PB[2] + OX))
    a("v_add_u32 v19, s%d, v%d" % (sT0, vT3))
    a("v_and_b32 v%d, 31, v0" % vT2)
    a("v_and_b32 v%d, 15, v0" % vT3)
    a("v_xor_b32 v%d, v%d, v%d" % (vT1, vT1, vT3))
    a("v_lshlrev_b32 v%d, 8, v%d" % (vT2, vT2))
    a("v_lshl_add_u32 v%d, v%d, 4, v%d" % (vT2, vT1, vT2))
    a("s_add_u32 s%d, s%d, %d" % (sT0, sM0w, PB[2] + OWG))
    a("v_add_u32 v20, s%d, v%d" % (sT0, vT2))
    a("v_and_b32 v%d, 16, v0" % vT1)
    a("v_cmp_eq_u32 vcc, 0, v%d" % vT1)
    a("s_waitcnt vmcnt(13)")
    stamp("w1")
    a("s_barrier")
    a("s_waitcnt vmcnt(0)")
    vKW = 128
    for ks in range(8):
        a("v_xor_b32 v%d, %d, v20" % (vT0, ks * 32))
        a("ds_read_b128 v[%d:%d], v%d" % (vKX + 4 * ks, vKX + 4 * ks + 3, vT0))
    for ks in range(8):
        if ks in (3, 6):
            a("s_waitcnt lgkmcnt(8)")
        for u in range(2):
            a("ds_read_b64_tr_b16 v[%d:%d], v19 offset:%d" % (vKW + 4 * ks + 2 * u, vKW + 4 * ks + 2 * u + 1, (16 * ks + 4 * u) * 32))
    a("s_waitcnt lgkmcnt(0)")
    a("s_cmp_eq_u32 s%d, 2" % sKV)
    a("s_cbranch_scc1 L_SJ_V")
    for ks in range(8):
        c = "0" if ks == 0 else "v[%d:%d]" % (vKA, vKA + 15)
        a("%s v[%d:%d], v[%d:%d], v[%d:%d], %s" % (MFMA, vKA, vKA + 15, vKW + 4 * ks, vKW + 4 * ks + 3,
                                                   vKX + 4 * ks, vKX + 4 * ks + 3, c))
    a("s_mov_b64 vcc, -1")
    a("s_branch L_SJ_W")
    a.label("L_SJ_V")
    for ks in range(8):
        c = "0" if ks == 0 else "v[%d:%d]" % (vKA, vKA + 15)
        a("%s v[%d:%d], v[%d:%d], v[%d:%d], %s" % (MFMA, vKA, vKA + 15, vKX + 4 * ks, vKX + 4 * ks + 3,
                                                   vKW + 4 * ks, vKW + 4 * ks + 3, c))
    a.label("L_SJ_W")
    dma_stage(2)
    for r in range(8):
        a("v_cndmask_b32 v%d, v%d, v%d, vcc" % (vKA + r, vKA + 8 + r, vKA + r))
    a("s_lshr_b32 s%d, s%d, 1" % (sT0, sM0x))
    a("s_add_u32 s%d, s%d, %d" % (sT0, sT0, L_TOP))
    a("v_add_u32 v%d, s%d, v%d" % (vT1, sT0, vL16))
    a("ds_write_b128 v%d, v[%d:%d]" % (vT1, vKA, vKA + 3))
    a("ds_write_b128 v%d, v[%d:%d] offset:1024" % (vT1, vKA + 4, vKA + 7))
    a("s_branch L_I1")
    a.label("L_I0_N")
    dma_stage(2)
    a("s_waitcnt vmcnt(13)")
    a("s_barrier")
    a.label("L_I1")
    dma_stage(3)
    a("s_waitcnt vmcnt(12) lgkmcnt(0)")
    stamp("w2")
    a("s_barrier")
    a("s_mov_b32 s%d, 0" % sSpin)
    a.label("L_GE_L")
    a("v_readfirstlane_b32 s%d, v%d" % (sE, vEv))
    a("s_cmp_lg_u32 s%d, 0" % sE)
    a("s_cbranch_scc1 L_GE_E")
    spin_tail("L_GE_E")
    a("v_mov_b32 v%d, 0" % vT0)
    a("buffer_load_dword v%d, v%d, s[%d:%d], 0 offen sc1" % (vEv, vT0, SDBG, SDBG + 3))
    a("s_waitcnt vmcnt(0)")
    a("s_branch L_GE_L")
    a.label("L_GE_E")
    a("s_cmp_eq_u32 s%d, 0" % sSkip)
    a("s_cbranch_scc1 L_I2_N")
    a("v_add_u32 v%d, %d, v%d" % (vT2, L_TOP + 2048, vL16))
    for j in range(3):
        a("ds_read_b128 v[%d:%d], v%d offset:%d" % (vKX + 8 * j, vKX + 8 * j + 3, vT2, j * 2048))
        a("ds_read_b128 v[%d:%d], v%d offset:%d" % (vKX + 8 * j + 4, vKX + 8 * j + 7, vT2, j * 2048 + 1024))
    a("s_lshl_b32 s%d, s%d, 2" % (sT0, sMT))
    a("s_add_u32 s%d, s%d, s%d" % (sT0, sT0, sRB))
    a("s_lshl_b32 s%d, s%d, 11" % (sT1, sT0))
    a("s_waitcnt lgkmcnt(0)")
    for j in range(3):
        for r in range(8):
            a("v_add_f32 v%d, v%d, v%d" % (vKA + r, vKA + r, vKX + 8 * j + r))
    for j in range(4):
        a("v_cvt_pk_bf16_f32 v%d, v%d, v%d" % (vKA + 8 + j, vKA + 2 * j, vKA + 2 * j + 1))
    a("s_cmp_eq_u32 s%d, 2" % sKV)
    a("s_cbranch_scc1 L_KF_V")
    a("buffer_store_dwordx4 v[%d:%d], v%d, s[%d:%d], s%d offen offset:%d sc1" % (vKA + 8, vKA + 11, vL16, SWS, SWS + 3, sT1, WS_KV))
    a("v_mov_b32 v%d, 0" % vT1)
    for j in range(4):
        a("v_dot2_f32_bf16 v%d, v%d, v%d, v%d" % (vT1, vKA + 8 + j, vKA + 8 + j, vT1))
    a.nop(3)
    a("v_mov_b32 v%d, v%d" % (vT2, vT1))
    a.nop(2)
    a("v_permlane32_swap_b32 v%d, v%d" % (vT1, vT2))
    a.nop(2)
    a("v_add_f32 v%d, v%d, v%d" % (vPl, vT1, vT2))
    wave_reduce(a, "v_max_f32", vPl)
    a("s_branch L_I2_X")
    a.label("L_KF_V")
    a("v_bfe_u32 v%d, v0, 4, 1" % vT1)
    a("v_lshrrev_b32 v%d, 5, v0" % vT2)
    a("v_lshl_add_u32 v%d, v%d, 1, v%d" % (vT1, vT1, vT2))
    a("v_and_b32 v%d, 15, v0" % vT2)
    a("v_lshlrev_b32 v%d, 8, v%d" % (vT1, vT1))
    a("v_lshl_add_u32 v%d, v%d, 4, v%d" % (vT1, vT2, vT1))
    a("buffer_store_dwordx4 v[%d:%d], v%d, s[%d:%d], s%d offen offset:%d sc1" % (vKA + 8, vKA + 11, vT1, SWS, SWS + 3, sT1, WS_KV + 1024))
    a("v_max3_f32 v%d, |v%d|, |v%d|, |v%d|" % (vT4, vKA, vKA + 1, vKA + 2))
    a("v_max3_f32 v%d, |v%d|, |v%d|, v%d" % (vT4, vKA + 3, vKA + 4, vT4))
    a("v_max3_f32 v%d, |v%d|, |v%d|, v%d" % (vT4, vKA + 5, vKA + 6, vT4))
    a("v_max_f32 v%d, |v%d|, v%d" % (vT4, vKA + 7, vT4))
    a("s_mov_b32 s%d, 0x%08x" % (sT2, f32bits(2.0 ** 60)))
    a("v_cmp_lt_f32 vcc, s%d, v%d" % (sT2, vT4))
    a.nop(1)
    a("s_cmp_lg_u64 vcc, 0")
    a("s_cselect_b32 s%d, 0x7f800000, 0" % sT2)
    a("v_mov_b32 v%d, s%d" % (vPl, sT2))
    a.label("L_I2_X")
    a.label("L_I2_N")
    dma_stage(4)
    a("s_waitcnt vmcnt(12)")
    a("s_cmp_eq_u32 s%d, 0" % sSkip)
    a("s_cbranch_scc1 L_KG_E")
    a("s_lshl_b32 s%d, s%d, 2" % (sT0, sMT))
    a("s_add_u32 s%d, s%d, s%d" % (sT0, sT0, sRB))
    a("s_lshl_b32 s%d, s%d, 1" % (sT0, sT0))
    a("s_add_u32 s%d, s%d, s%d" % (sT0, sT0, sKV))
    a("s_lshl_b32 s%d, s%d, 7" % (sT0, sT0))
    a("s_add_u32 s%d, s%d, %d" % (sT0, sT0, WS_KFL - 128))
    a("v_mov_b32 v%d, s%d" % (vPl + 1, sE))
    a("v_mov_b32 v%d, 0" % vT2)
    a("s_mov_b32 exec_lo, 0")
    a("s_mov_b32 exec_hi, 0x80000000")
    a("buffer_store_dwordx2 v[%d:%d], v%d, s[%d:%d], s%d offen sc1" % (vPl, vPl + 1, vT2, SWS, SWS + 3, sT0))
    a("s_mov_b64 exec, -1")
    a.label("L_KG_E")
    stamp("w3")
    a("s_barrier")
    a("s_cmp_lg_u32 s%d, 1" % sH)
    a("s_cbranch_scc1 L_I3_N")
    a("v_and_b32 v%d, 7, v0" % vT1)
    a("v_lshlrev_b32 v%d, 2, v%d" % (vT1, vT1))
    a("v_add_u32 v%d, %d, v%d" % (vT1, L_G8, vT1))
    a("ds_read_b32 v%d, v%d" % (vPl, vT1))
    a("v_mov_b32 v%d, s%d" % (vPl + 1, sE))
    a("v_lshlrev_b32 v%d, 3, v0" % vT1)
    a("s_add_u32 s%d, s%d, %d" % (sT0, sSlot, WS_G))
    a("s_waitcnt lgkmcnt(0)")
    a("s_mov_b64 exec, 0xff")
    a("buffer_store_dwordx2 v[%d:%d], v%d, s[%d:%d], s%d offen sc1" % (vPl, vPl + 1, vT1, SWS, SWS + 3, sT0))
    a("s_mov_b64 exec, -1")
    a("s_mov_b32 s%d, 1" % sSkip)
    a.label("L_I3_N")
    dma_stage(5)
    a("s_waitcnt vmcnt(13)")
    a("s_cmp_lg_u32 s%d, 0" % sSkip)
    a("s_cbranch_scc1 L_I3_E")
    a("s_waitcnt vmcnt(12)")
    a.label("L_I3_E")
    stamp("w4")
    a("s_barrier")
    dma_stage(6)
    a("s_waitcnt vmcnt(12)")
    stamp("w5")
    a("s_barrier")
    kvpoll = ["buffer_load_dwordx2 v[%d:%d], v%d, s[%d:%d], s%d offen sc1" % (vPl, vPl + 1, vT4, SWS, SWS + 3, sOffC),
              "buffer_load_dwordx2 v[%d:%d], v%d, s[%d:%d], s%d offen offset:128 sc1" % (vPl + 2, vPl + 3, vT4, SWS, SWS + 3, sOffC)]
    dma_stage(7)
    a("s_waitcnt vmcnt(12)")
    stamp("w6")
    a("s_barrier")
    a("s_cmp_lg_u32 s%d, 2" % sH)
    a("s_cbranch_scc1 L_EC_X")
    a("v_lshlrev_b32 v%d, 8, v0" % vT4)
    a("s_mov_b32 s%d, %d" % (sOffC, WS_KFL))
    a("s_mov_b32 s%d, 0" % sSpin)
    a.label("L_EC_L")
    emit(kvpoll)
    a("s_waitcnt vmcnt(0)")
    a("v_cmp_ne_u32 vcc, s%d, v%d" % (sE, vPl + 1))
    a("v_cmp_ne_u32 s[%d:%d], s%d, v%d" % (sT0, sT1, sE, vPl + 3))
    a("s_or_b64 vcc, vcc, s[%d:%d]" % (sT0, sT1))
    a("s_cbranch_scc0 L_EC_E")
    spin_tail("L_EC_E", 2)
    a("s_branch L_EC_L")
    a.label("L_EC_E")
    a("v_max_f32 v%d, v%d, v%d" % (vT1, vPl, vPl + 2))
    wave_reduce(a, "v_max_f32", vT1)
    a("v_mov_b32 v%d, %d" % (vT2, L_KMAX))
    a("s_mov_b32 exec_lo, 0")
    a("s_mov_b32 exec_hi, 0x80000000")
    a("ds_write_b32 v%d, v%d" % (vT2, vT1))
    a("s_mov_b64 exec, -1")
    a("s_waitcnt lgkmcnt(0)")
    a.label("L_EC_X")
    a("s_cmp_lg_u32 s%d, 3" % sH)
    a("s_cbranch_scc1 L_GP_X")
    gl = ["buffer_load_dwordx2 v[%d:%d], v%d, s[%d:%d], s%d offen sc1" % (vPl, vPl + 1, vT3, SWS, SWS + 3, sOffD),
          "buffer_load_dwordx2 v[%d:%d], v%d, s[%d:%d], s%d offen offset:1024 sc1" % (vPl + 2, vPl + 3, vT3, SWS, SWS + 3, sOffD)]
    a("v_lshrrev_b32 v%d, 3, v0" % vT3)
    a("v_and_b32 v%d, 7, v0" % vT1)
    a("v_lshlrev_b32 v%d, 7, v%d" % (vT3, vT3))
    a("v_lshl_add_u32 v%d, v%d, 3, v%d" % (vT3, vT1, vT3))
    a("s_lshl_b32 s%d, s%d, 11" % (sT1, sMT))
    a("s_add_u32 s%d, s%d, %d" % (sOffD, sT1, WS_G))
    a("s_mov_b32 s%d, 0" % sSpin)
    a.label("L_GP_L")
    emit(gl)
    a("s_waitcnt vmcnt(0)")
    a("v_cmp_ne_u32 vcc, s%d, v%d" % (sE, vPl + 1))
    a("v_cmp_ne_u32 s[%d:%d], s%d, v%d" % (sT0, sT1, sE, vPl + 3))
    a("s_or_b64 vcc, vcc, s[%d:%d]" % (sT0, sT1))
    a("s_cbranch_scc0 L_GP_E")
    spin_tail("L_GP_E")
    a("s_branch L_GP_L")
    a.label("L_GP_E")
    a("v_lshlrev_b32 v%d, 2, v0" % vT1)
    a("v_add_u32 v%d, %d, v%d" % (vT1, L_GROW, vT1))
    a("ds_write_b32 v%d, v%d" % (vT1, vPl))
    a("ds_write_b32 v%d, v%d offset:256" % (vT1, vPl + 2))
    a.label("L_GP_X")
    a("s_waitcnt vmcnt(0) lgkmcnt(0)")
    stamp("w7")
    a("s_barrier")
    kv_dma(0, 12)
    vWs, vB0, vB1, vTr0, vTr1, vPa, vPoll = 2, 3, 4, 5, 6, 7, 8
    vFA = 24
    vFB = 32
    AC2 = 64
    vWo = 128
    for r in range(64):
        a("v_mov_b32 v%d, 0" % (AC2 + r))
    a("v_bfe_u32 v%d, v0, 4, 1" % vT1)
    a("v_and_b32 v%d, 7, v0" % vT2)
    a("v_lshlrev_b32 v%d, 2, v%d" % (vT1, vT1))
    a("v_xor_b32 v%d, v%d, v%d" % (vT1, vT1, vT2))
    a("v_lshrrev_b32 v%d, 3, v0" % vT2)
    a("v_lshlrev_b32 v%d, 10, v%d" % (vT2, vT2))
    a("v_lshl_add_u32 v%d, v%d, 4, v%d" % (vT1, vT1, vT2))
    a("s_lshl_b32 s%d, s%d, 14" % (sT0, sH))
    a("s_lshl_b32 s%d, s%d, 7" % (sT1, sNB))
    a("s_add_u32 s%d, s%d, s%d" % (sT0, sT0, sT1))
    a("v_add_u32 v%d, s%d, v%d" % (vWs, sT0, vT1))
    a("v_lshrrev_b32 v%d, 5, v0" % vT0)
    a("v_bfe_u32 v%d, v0, 2, 2" % vT1)
    a("v_lshl_add_u32 v%d, v%d, 2, v%d" % (vT2, vT0, vT1))
    a("v_lshlrev_b32 v%d, 7, v%d" % (vT2, vT2))
    a("v_bfe_u32 v%d, v0, 3, 1" % vT1)
    a("v_lshl_add_u32 v%d, v%d, 6, v%d" % (vT2, vT1, vT2))
    a("v_bfe_u32 v%d, v0, 4, 1" % vT1)
    a("v_lshl_add_u32 v%d, v%d, 5, v%d" % (vT2, vT1, vT2))
    a("v_and_b32 v%d, 3, v0" % vT1)
    a("v_lshl_add_u32 v%d, v%d, 3, v%d" % (vT2, vT1, vT2))
    a("s_add_u32 s%d, s%d, %d" % (sScr, sM0w, L_SCR))
    a("v_add_u32 v%d, s%d, v%d" % (vTr0, sScr, vT2))
    a("v_xor_b32 v%d, 64, v%d" % (vTr1, vTr0))
    a("s_mul_i32 s%d, s%d, 288" % (sT0, sMB))
    a("s_add_u32 s%d, s%d, s%d" % (sT0, sT0, sH))
    a("s_lshl_b32 s%d, s%d, 10" % (sT0, sT0))
    a("s_add_u32 s%d, s%d, %d" % (sT0, sT0, WS_AF))
    a("v_add_u32 v%d, s%d, v%d" % (vB0, sT0, vL16))
    a("v_add_u32 v%d, %d, v%d" % (vB1, 144 * 1024, vB0))
    a("v_and_b32 v%d, 15, v0" % vPa)
    a("v_lshlrev_b32 v%d, 7, v%d" % (vPa, vPa))
    srd(a, SA, P['wd'], P['wd'] + 1, 0x1c0000)
    srd(a, SB, P['wo'], P['wo'] + 1, 0x80000)
    a("s_waitcnt vmcnt(0)")
    stamp("w8")
    a("s_barrier")
    kv_dma(48, 20)
    a("s_waitcnt vmcnt(0)")
    stamp("w9")
    a("s_barrier")
    stamp("bkv")
    a("s_setprio %d" % HPRIO)
    a("s_cmp_lg_u32 s%d, 0" % sH)
    a("s_cbranch_scc1 L_NOHF")
    a("v_mov_b32 v%d, 0" % vT3)
    a("v_mov_b32 v%d, s%d" % (vT2, sE))
    a("s_add_u32 s%d, s%d, %d" % (sT0, sSlot, WS_HFL))
    a("s_mov_b64 exec, 1")
    a("buffer_store_dword v%d, v%d, s[%d:%d], s%d offen sc1" % (vT2, vT3, SWS, SWS + 3, sT0))
    a("s_mov_b64 exec, -1")
    a.label("L_NOHF")

    def w_dma(S, slot, soff, extra):
        for u in range(2):
            a("s_add_u32 m0, s%d, %d" % (sScr, slot * 2048 + u * 1024))
            if soff is None:
                a("s_mov_b32 s%d, %d" % (sT0, extra + u * 8192))
            else:
                a("s_add_u32 s%d, s%d, %d" % (sT0, soff, extra + u * 8192))
            a("buffer_load_dwordx4 v%d, s[%d:%d], s%d offen lds" % (vWs, S, S + 3, sT0))

    def b_loads(slot, soff, extra):
        a("s_add_u32 s%d, s%d, %d" % (sT0, soff, extra))
        a("buffer_load_dwordx4 v[%d:%d], v%d, s[%d:%d], s%d offen sc1" % (vFB + 8 * slot, vFB + 8 * slot + 3, vB0, SWS, SWS + 3, sT0))
        a("buffer_load_dwordx4 v[%d:%d], v%d, s[%d:%d], s%d offen sc1" % (vFB + 8 * slot + 4, vFB + 8 * slot + 7, vB1, SWS, SWS + 3, sT0))

    def tr_reads(dst, slot):
        for an, ad in enumerate((vTr0, vTr1)):
            for u in range(2):
                a("ds_read_b64_tr_b16 v[%d:%d], v%d offset:%d" % (dst + 4 * an + 2 * u, dst + 4 * an + 2 * u + 1, ad,
                                                                 slot * 2048 + u * 1024))

    def m1(fa, fb, an, i):
        acc = AC2 + (an * 2 + i) * 16
        a("%s v[%d:%d], v[%d:%d], v[%d:%d], v[%d:%d]" % (MFMA, acc, acc + 15, fa + 4 * an, fa + 4 * an + 3,
                                                        fb + 4 * i, fb + 4 * i + 3, acc, acc + 15))

    def mm(fa, fb):
        for an in (0, 1):
            for i in (0, 1):
                m1(fa, fb, an, i)

    for j in range(4):
        w_dma(SB, j, None, j * 65536)
    a("s_waitcnt vmcnt(0)")
    for j in range(4):
        tr_reads(vWo + 8 * j, j)
        a("s_waitcnt lgkmcnt(4)")
    a("s_waitcnt lgkmcnt(0)")
    a("s_lshr_b32 s%d, s%d, 1" % (sT0, sMB))
    a("s_lshl_b32 s%d, s%d, 11" % (sT0, sT0))
    a("s_add_u32 s%d, s%d, %d" % (sOffA, sT0, WS_HFL))
    a("s_mov_b32 s%d, 0" % sSpin)
    a.label("L_HP_L")
    a("buffer_load_dword v%d, v%d, s[%d:%d], s%d offen sc1" % (vPoll, vPa, SWS, SWS + 3, sOffA))
    a("s_waitcnt vmcnt(0)")
    a("v_cmp_ne_u32 vcc, s%d, v%d" % (sE, vPoll))
    a("s_cmp_eq_u64 vcc, 0")
    a("s_cbranch_scc1 L_HP_E")
    spin_tail("L_HP_E", 4)
    a("s_branch L_HP_L")
    a.label("L_HP_E")
    stamp("hpoll")
    a("s_mov_b32 s%d, 0" % sOffB)
    a("s_mov_b32 s%d, %d" % (sOffC, 8 * 4096))
    for j in range(4):
        w_dma(SA, j, sOffB, j * 65536)
        b_loads(j, sOffC, j * 4096)
    a("s_mov_b32 s%d, 0" % sIt)
    a.label("L_FFN")
    for j in range(4):
        a("s_waitcnt vmcnt(12)")
        tr_reads(vFA, j)
        a("s_waitcnt lgkmcnt(0)")
        fb = vFB + 8 * j
        m1(vFA, fb, 0, 0)
        a("s_add_u32 m0, s%d, %d" % (sScr, j * 2048))
        a("s_add_u32 s%d, s%d, %d" % (sT0, sOffB, (4 + j) * 65536))
        a("buffer_load_dwordx4 v%d, s[%d:%d], s%d offen lds" % (vWs, SA, SA + 3, sT0))
        m1(vFA, fb, 1, 0)
        a("s_add_u32 m0, s%d, %d" % (sScr, j * 2048 + 1024))
        a("s_add_u32 s%d, s%d, %d" % (sT0, sOffB, (4 + j) * 65536 + 8192))
        a("buffer_load_dwordx4 v%d, s[%d:%d], s%d offen lds" % (vWs, SA, SA + 3, sT0))
        m1(vFA, fb, 0, 1)
        a("s_add_u32 s%d, s%d, %d" % (sT0, sOffC, (4 + j) * 4096))
        a("buffer_load_dwordx4 v[%d:%d], v%d, s[%d:%d], s%d offen sc1" % (fb, fb + 3, vB0, SWS, SWS + 3, sT0))
        m1(vFA, fb, 1, 1)
        a("buffer_load_dwordx4 v[%d:%d], v%d, s[%d:%d], s%d offen sc1" % (fb + 4, fb + 7, vB1, SWS, SWS + 3, sT0))
    a("s_add_u32 s%d, s%d, %d" % (sOffB, sOffB, 4 * 65536))
    a("s_add_u32 s%d, s%d, %d" % (sOffC, sOffC, 4 * 4096))
    a("s_add_u32 s%d, s%d, 1" % (sIt, sIt))
    a("s_cmp_lt_u32 s%d, %d" % (sIt, int(os.environ.get("NFFN", "7"))))
    a("s_cbranch_scc1 L_FFN")
    a("s_waitcnt vmcnt(0)")
    stamp("ffn")
    for j in range(4):
        w_dma(SB, j, None, (4 + j) * 65536)
    a("v_and_b32 v%d, 31, v0" % vT0)
    a("v_lshrrev_b32 v%d, 5, v0" % vT1)
    a("v_and_b32 v%d, 15, v0" % vT3)
    a("v_xor_b32 v%d, v%d, v%d" % (vT1, vT1, vT3))
    a("v_lshlrev_b32 v%d, 8, v%d" % (vT0, vT0))
    a("v_lshl_add_u32 v%d, v%d, 4, v%d" % (vT0, vT1, vT0))
    a("s_lshl_b32 s%d, s%d, 14" % (sT1, sH))
    a("v_add_u32 v%d, s%d, v%d" % (vT0, sT1, vT0))
    for q in range(8):
        a("v_xor_b32 v%d, %d, v%d" % (9 + q, q * 32, vT0))
    a("s_mov_b32 s%d, 0" % sOffC)
    a("s_waitcnt vmcnt(0)")
    a("s_barrier")
    stamp("b3")
    a("s_setprio 3")
    for j in range(4):
        b_loads(j, sOffC, j * 4096)
    for j in range(8):
        sl = j & 3
        fb = vFB + 8 * sl
        a("s_waitcnt vmcnt(%d)" % (6 if j < 5 else 2 * (7 - j)))
        a("s_mov_b32 s%d, 0" % sSpin)
        a.label("L_OP%d_L" % j)
        a("v_max3_u32 v%d, v%d, v%d, v%d" % (vT0, fb, fb + 1, fb + 2))
        a("v_max3_u32 v%d, v%d, v%d, v%d" % (vT1, fb + 3, fb + 4, fb + 5))
        a("v_max3_u32 v%d, v%d, v%d, v%d" % (vT0, fb + 6, fb + 7, vT0))
        a("v_max_u32 v%d, v%d, v%d" % (vT0, vT0, vT1))
        a("v_cmp_eq_u32 vcc, -1, v%d" % vT0)
        a("s_cmp_eq_u64 vcc, 0")
        a("s_cbranch_scc1 L_OP%d_E" % j)
        spin_tail("L_OP%d_E" % j)
        b_loads(sl, sOffC, j * 4096)
        a("s_waitcnt vmcnt(0)")
        a("s_branch L_OP%d_L" % j)
        a.label("L_OP%d_E" % j)
        if j in (0, 7):
            stamp("op%d" % j)
        if j >= 4:
            a("s_waitcnt lgkmcnt(%d)" % (4 * (7 - j)))
        mm(vWo + 8 * sl, fb)
        if j < 4:
            b_loads(sl, sOffC, (4 + j) * 4096)
            if j == 3:
                a("s_waitcnt lgkmcnt(8)")
            tr_reads(vWo + 8 * sl, sl)
    a.nop(9)
    for an in (0, 1):
        for i in (0, 1):
            if (an, i) != (0, 0):
                a.nop(4)
            for q in range(4):
                acc = AC2 + (an * 2 + i) * 16 + 4 * q
                a("ds_write_b128 v%d, v[%d:%d] offset:%d" % (9 + an * 4 + q, acc, acc + 3, i * 8192))
        a("s_waitcnt lgkmcnt(4)")
    a("s_waitcnt lgkmcnt(0)")
    stamp("pw")
    a("s_barrier")
    prof_flush()
    a.label("L_END")
    a("s_endpgm")
    a.lines = a.lines[:mark0] + a.lines[mark1:] + a.lines[mark0:mark1]
    a.label("L_CODE_END")
    if PROF:
        open("stamps.txt", "w").write(" ".join(stamp_names["M"]) + "\n" + " ".join(stamp_names["H"]))
    kernel_desc(a, name, 168, 102)
    return "; @launch grid=(256,1,1) block=(768,1,1) lds=%d" % LDS_BYTES


def main():
    out = sys.argv[1] if len(sys.argv) > 1 else "cdna_kernels/%s.s" % NAME
    a = Asm()
    a.raw(".amdgcn_target \"amdgcn-amd-amdhsa--gfx950\"")
    launch = gen(a)
    hdr = ["; generated by work/gen5.py (hand-designed kernel, laid out by script)", launch]
    open(out, "w").write("\n".join(hdr) + "\n" + a.text())


if __name__ == "__main__":
    main()
```

```python
import sys, math, os
from gen import Asm, f32bits, kernel_begin, kernel_desc, srd, wave_reduce, MFMA, NAME, QSCALE

PROF = int(os.environ.get("PROF", "0"))
PRIO = int(os.environ.get("PRIO", "1"))
DIAG = int(os.environ.get("DIAG", "0"))
TOUCH = int(os.environ.get("TOUCH", "1"))
PREF = int(os.environ.get("PREF", "1"))
OSLEEP = int(os.environ.get("OSLEEP", "1"))
DKPOS = int(os.environ.get("DKPOS", "1"))
GOEARLY = int(os.environ.get("GOEARLY", "1"))
TOUCH2 = int(os.environ.get("TOUCH2", "0"))
DIAG2 = os.environ.get("DIAG2", "")
PFLATE = int(os.environ.get("PFLATE", "1"))
CODEPF = int(os.environ.get("CODEPF", "1"))
HPRIO = int(os.environ.get("HPRIO", "0"))

WS_AF = 2 << 20
WS_KV = 0
WS_G = 0x40000
WS_KFL = 0x50000
WS_HFL = 0x60000
WS_PROF = 32 << 20
WS_SIZE = 268435456
KVBLK = 2048
SPIN_MAX = 1 << 14

BUFSZ = 49152
PB = {2: 0, 0: BUFSZ, 1: 2 * BUFSZ}
OX, OWG, OWU, OWQ = 0, 16384, 30720, 45056
L_TOP = 3 * BUFSZ
L_G8 = L_TOP
L_KMAX = L_TOP + 64
L_GROW = L_TOP + 1024
L_QX = L_TOP + 8192
L_SCR = 131072
LDS_BYTES = 163840
L_GO = L_SCR + 8192 * 4 - 4
NBKV = 3


def gen(a):
    name = NAME + "_kernel"
    kernel_begin(a, name)
    sW, sMT, sNT = 3, 4, 5
    sT0, sT1, sT2, sT3 = 6, 7, 8, 9
    sStepA, sKV, sRB, sE = 10, 11, 12, 13
    sMB, sNB = 14, 15
    P = dict(x=16, wq=18, wk=20, wv=22, wo=24, wg=28, wu=30, wd=32, gw=34, out=36, dbg=38, ws=40)
    SX, SA, SB, SWS, SE, SDBG, SC = 44, 48, 52, 56, 60, 64, 68
    SOUT = 44
    sH = 72
    sM0x, sM0w, sScr = 73, 74, 75
    sVm = 76
    sOffA, sOffB = 78, 79
    sStepB = 80
    sIt, sSkip = 82, 83
    sSpin, sKoff = 26, 27
    sSlot = 42
    sOffC, sOffD = 86, 87
    stamp_names = {"M": [], "H": []}
    role = ["M"]

    def stamp(label):
        if (DIAG or DIAG2) and role[0] == "M" and label in ("bar0", "Bq", "b3"):
            a("s_memrealtime s[84:85]")
            a("s_waitcnt lgkmcnt(0)")
            a("s_mov_b32 s%d, s84" % {"bar0": 90, "Bq": 91, "b3": 92}[label])
        if not PROF:
            return
        lst = stamp_names[role[0]]
        idx = len(lst)
        lst.append(str(label))
        a("s_memtime s[84:85]")
        if (label in ("bar0", "Bq", "b3", "attn") and role[0] == "M") or label == "op7":
            a("s_memrealtime s[98:99]")
        a("s_waitcnt lgkmcnt(0)")
        a("v_writelane_b32 v167, s84, %d" % idx)
        if (label in ("bar0", "Bq", "b3", "attn") and role[0] == "M") or label == "op7":
            a("v_writelane_b32 v167, s98, %d" % {"bar0": 59, "Bq": 60, "b3": 61, "attn": 58, "op7": 58}[label])

    def prof_flush():
        if DIAG2 and role[0] == "M":
            hi, lo, mul = {"total": (84, 88, 1), "bar0": (90, 88, 4), "g1": (91, 90, 2), "attn": (92, 91, 1), "tail": (84, 92, 4)}[DIAG2]
            a("s_waitcnt vmcnt(0)")
            a("s_memrealtime s[84:85]")
            a("s_waitcnt lgkmcnt(0)")
            a("s_sub_u32 s93, s%d, s%d" % (hi, lo))
            a("s_mul_i32 s93, s93, %d" % mul)
            a("s_min_u32 s93, s93, 20000")
            a.label("L_DG")
            a("s_memrealtime s[94:95]")
            a("s_waitcnt lgkmcnt(0)")
            a("s_sub_u32 s94, s94, s84")
            a("s_cmp_lt_u32 s94, s93")
            a("s_cbranch_scc1 L_DG")
        if DIAG and role[0] == "M":
            a("s_waitcnt vmcnt(0)")
            a("s_memrealtime s[84:85]")
            srd(a, SDBG, P['dbg'], P['dbg'] + 1, 256)
            a("s_waitcnt lgkmcnt(0)")
            a("s_cmp_lg_u32 s%d, 7" % sW)
            a("s_cbranch_scc1 L_END")
            a("s_cmp_lt_u32 s2, 248")
            a("s_cbranch_scc1 L_END")
            a("s_and_b32 s93, s2, 7")
            a("s_lshl_b32 s93, s93, 2")
            a("v_mov_b32 v2, 0")
            a("s_mov_b64 exec, 1")
            a("s_sub_u32 s94, s84, s88")
            a("s_and_b32 s95, s88, 0xffff")
            a("s_lshl_b32 s94, s94, 16")
            a("s_or_b32 s94, s94, s95")
            a("v_mov_b32 v3, s94")
            a("buffer_store_dword v3, v2, s[%d:%d], s93 offen offset:32" % (SDBG, SDBG + 3))
            a("s_cmp_lg_u32 s2, 253")
            a("s_cbranch_scc1 L_END")
            for i, sreg in enumerate((90, 91, 92, 84)):
                a("s_sub_u32 s94, s%d, s88" % sreg)
                a("v_mov_b32 v3, s94")
                a("buffer_store_dword v3, v2, s[%d:%d], 0 offen offset:%d" % (SDBG, SDBG + 3, 4 + 4 * i))
                a("s_nop 1")
        if not PROF:
            return
        a("s_waitcnt vmcnt(0)")
        stamp("end")
        a("s_memrealtime s[98:99]")
        a("s_waitcnt lgkmcnt(0)")
        a("v_writelane_b32 v167, s98, 62")
        a("v_writelane_b32 v167, s88, 63")
        a("s_mul_i32 s82, s2, 12")
        a("s_add_u32 s82, s82, s%d" % sW)
        a("s_lshl_b32 s82, s82, 8")
        a("s_add_u32 s82, s82, %d" % WS_PROF)
        a("v_lshlrev_b32 v2, 2, v0")
        a("buffer_store_dword v167, v2, s[%d:%d], s82 offen" % (SWS, SWS + 3))

    def emit(lst):
        for ins in lst:
            a(ins)

    def spin_tail(lbl_end, sleep=1):
        a("s_add_u32 s%d, s%d, 1" % (sSpin, sSpin))
        a("s_cmp_ge_u32 s%d, %d" % (sSpin, SPIN_MAX))
        a("s_cbranch_scc1 %s" % lbl_end)
        a("s_sleep %d" % sleep)

    vL16 = 1
    vT0, vT1, vT2, vT3, vT4 = 21, 22, 23, 24, 25

    a("s_cmp_ge_u32 s2, 256")
    a("s_cbranch_scc1 L_END")
    a("s_load_dwordx16 s[16:31], s[0:1], 0")
    a("s_load_dwordx8 s[32:39], s[0:1], 64")
    a("s_load_dwordx2 s[40:41], s[0:1], 96")
    a("s_memrealtime s[88:89]")
    if PROF:
        a("s_memtime s[84:85]")
        a("s_waitcnt lgkmcnt(0)")
        a("v_writelane_b32 v167, s84, 0")
        stamp_names["M"].append("start")
        stamp_names["H"].append("start")
    a("v_lshrrev_b32 v1, 6, v0")
    a("v_and_b32 v0, 63, v0")
    a("v_readfirstlane_b32 s%d, v1" % sW)
    a("s_and_b32 s%d, s2, 7" % sT0)
    a("s_lshr_b32 s%d, s2, 3" % sT1)
    a("s_and_b32 s%d, s%d, 1" % (sMT, sT0))
    a("s_lshl_b32 s%d, s%d, 3" % (sMT, sMT))
    a("s_and_b32 s%d, s%d, 7" % (sT2, sT1))
    a("s_add_u32 s%d, s%d, s%d" % (sMT, sMT, sT2))
    a("s_lshr_b32 s%d, s%d, 1" % (sNT, sT0))
    a("s_lshl_b32 s%d, s%d, 2" % (sNT, sNT))
    a("s_lshr_b32 s%d, s%d, 3" % (sT2, sT1))
    a("s_add_u32 s%d, s%d, s%d" % (sNT, sNT, sT2))
    a("s_lshl_b32 s%d, s%d, 2" % (sMB, sT0))
    a("s_and_b32 s%d, s%d, 3" % (sT2, sT1))
    a("s_add_u32 s%d, s%d, s%d" % (sMB, sMB, sT2))
    a("s_lshr_b32 s%d, s%d, 2" % (sNB, sT1))
    a("v_lshlrev_b32 v%d, 4, v0" % vL16)
    a("s_cmp_ge_u32 s%d, 8" % sW)
    a("s_cbranch_scc1 L_HELPER")
    if TOUCH:
        a("s_cmp_ge_u32 s%d, 4" % sW)
        a("s_cbranch_scc1 L_NOTOUCH")
        a("s_waitcnt lgkmcnt(0)")
        a("s_mov_b32 s%d, s%d" % (SE, P['x']))
        a("s_mov_b32 s%d, s%d" % (SE + 1, P['x'] + 1))
        for k, pp in ((1, P['wg']), (2, P['wu']), (3, P['wq'])):
            a("s_cmp_eq_u32 s%d, %d" % (sW, k))
            a("s_cselect_b32 s%d, s%d, s%d" % (SE, pp, SE))
            a("s_cselect_b32 s%d, s%d, s%d" % (SE + 1, pp + 1, SE + 1))
        a("s_mov_b32 s%d, 1024" % (SE + 2))
        a("s_mov_b32 s%d, 0x20000" % (SE + 3))
        a("v_mov_b32 v2, 0")
        a("s_mov_b64 exec, 1")
        a("buffer_load_dword v160, v2, s[%d:%d], 0 offen" % (SE, SE + 3))
        a("s_mov_b64 exec, -1")
        a.label("L_NOTOUCH")
    if PREF:
        a("s_waitcnt lgkmcnt(0)")
        a("s_mov_b32 s%d, 0x20000" % (SE + 3))
        a("s_lshl_b32 s%d, s2, 3" % sT0)
        a("s_add_u32 s%d, s%d, s%d" % (sT0, sT0, sW))
        a("s_lshl_b32 s%d, s%d, 10" % (sT0, sT0))
        a("s_mov_b32 s%d, s%d" % (SE, P['x']))
        a("s_mov_b32 s%d, s%d" % (SE + 1, P['x'] + 1))
        a("s_mov_b32 s%d, 0x200000" % (SE + 2))
        a("buffer_load_dwordx4 v[160:163], v%d, s[%d:%d], s%d offen" % (vL16, SE, SE + 3, sT0))
        a("s_cmp_eq_u32 s%d, 7" % sW)
        a("s_cbranch_scc1 L_PF7")
        a("s_mul_i32 s%d, s2, 7" % sT0)
        a("s_add_u32 s%d, s%d, s%d" % (sT0, sT0, sW))
        a("s_lshl_b32 s%d, s%d, 10" % (sT0, sT0))
        a("s_mov_b32 s%d, 0x1c0000" % (SE + 2))
        for nm in (('wg', 'wu') if PFLATE else ('wg', 'wu', 'wd')):
            a("s_mov_b32 s%d, s%d" % (SE, P[nm]))
            a("s_mov_b32 s%d, s%d" % (SE + 1, P[nm] + 1))
            a("buffer_load_dwordx4 v[160:163], v%d, s[%d:%d], s%d offen" % (vL16, SE, SE + 3, sT0))
        a("s_branch L_PFE")
        a.label("L_PF7")
        a("s_lshl_b32 s%d, s2, 11" % sT0)
        a("s_mov_b32 s%d, 0x80000" % (SE + 2))
        if CODEPF:
            a("s_getpc_b64 s[90:91]")
            a.label("L_PC")
            a("s_sub_u32 s90, s90, L_PC-%s" % name)
            a("s_subb_u32 s91, s91, 0")
            a("s_lshr_b32 s%d, s2, 3" % sT1)
            a("s_lshl_b32 s%d, s%d, 10" % (sT1, sT1))
            a("v_add_u32 v2, s%d, v%d" % (sT1, vL16))
            a("v_cmp_gt_u32 vcc, L_CODE_END-%s-16, v2" % name)
            a("s_and_saveexec_b64 s[92:93], vcc")
            a("s_cbranch_execz L_PCX")
            a("global_load_dwordx4 v[160:163], v2, s[90:91]")
            a.label("L_PCX")
            a("s_mov_b64 exec, -1")
        for nm in (('wq',) if PFLATE else ('wq', 'wo')):
            a("s_mov_b32 s%d, s%d" % (SE, P[nm]))
            a("s_mov_b32 s%d, s%d" % (SE + 1, P[nm] + 1))
            a("buffer_load_dwordx4 v[160:163], v%d, s[%d:%d], s%d offen" % (vL16, SE, SE + 3, sT0))
            a("buffer_load_dwordx4 v[160:163], v%d, s[%d:%d], s%d offen offset:1024" % (vL16, SE, SE + 3, sT0))
        a.label("L_PFE")
    if TOUCH2:
        a("s_mov_b32 s%d, 0x20000" % (SE + 3))
        a("s_mov_b32 s%d, 4" % (SE + 2))
        a("s_mov_b32 s%d, s%d" % (SE, P['ws']))
        a("s_mov_b32 s%d, s%d" % (SE + 1, P['ws'] + 1))
        a("s_mov_b32 s%d, 0" % sT0)
        for k, pp in enumerate((P['wk'], P['wv'], P['dbg'], P['out'], P['wd'])):
            a("s_cmp_eq_u32 s%d, %d" % (sW, k))
            a("s_cselect_b32 s%d, s%d, s%d" % (SE, pp, SE))
            a("s_cselect_b32 s%d, s%d, s%d" % (SE + 1, pp + 1, SE + 1))
        a("s_mul_i32 s%d, s%d, %d" % (sT1, sMT, 4 * 144 * 1024))
        a("s_add_u32 s%d, s%d, %d" % (sT1, sT1, WS_AF + 288 * 1024))
        a("s_cmp_eq_u32 s%d, 6" % sW)
        a("s_cselect_b32 s%d, s%d, s%d" % (sT0, sT1, sT0))
        a("s_mul_i32 s%d, s%d, %d" % (sT1, sMB, 2 * 144 * 1024))
        a("s_add_u32 s%d, s%d, %d" % (sT1, sT1, WS_AF + 144 * 1024))
        a("s_cmp_eq_u32 s%d, 7" % sW)
        a("s_cselect_b32 s%d, s%d, s%d" % (sT0, sT1, sT0))
        a("s_add_u32 s%d, s%d, s%d" % (SE, SE, sT0))
        a("s_addc_u32 s%d, s%d, 0" % (SE + 1, SE + 1))
        a("v_mov_b32 v2, 0")
        a("s_mov_b64 exec, 1")
        a("buffer_load_dword v160, v2, s[%d:%d], 0 offen sc1" % (SE, SE + 3))
        a("s_mov_b64 exec, -1")
    a("s_branch L_MAIN")
    a.label("L_HELPER")
    mark0 = len(a.lines)
    a.label("L_MAIN")

    vXr = [8, 9, 10, 11]
    vW0 = 12
    vW1 = list(range(13, 21))
    vGq = 26
    vGm = [28, 30]
    FR = [32, 48]
    ACC = 64
    vKa, vVa = 2, 3
    vQ = 4
    vKF = [8, 12]
    vS = [32, 48]
    vVF = [64, 72]
    vP = 80
    vO = 128
    vC = 144
    NB = int(os.environ.get("NB", "8"))
    b0 = PB[0]
    a("s_lshr_b32 s%d, s%d, 2" % (sT0, sW))
    a("s_lshl_b32 s%d, s%d, 13" % (sT0, sT0))
    a("s_add_u32 s%d, s%d, %d" % (sT0, sT0, b0 + OX))
    a("v_and_b32 v%d, 31, v0" % vT0)
    a("v_lshlrev_b32 v%d, 7, v%d" % (vT0, vT0))
    a("v_lshrrev_b32 v%d, 5, v0" % vT1)
    a("v_bfe_u32 v%d, v0, 1, 3" % vT3)
    a("v_xor_b32 v%d, v%d, v%d" % (vT3, vT3, vT1))
    a("v_lshl_add_u32 v%d, v%d, 4, v%d" % (vT0, vT3, vT0))
    for ks in range(4):
        a("v_xor_b32 v%d, %d, v%d" % (vT2, ks * 32, vT0))
        a("v_add_u32 v%d, s%d, v%d" % (vXr[ks], sT0, vT2))
    a("v_bfe_u32 v%d, v0, 2, 2" % vT2)
    a("v_lshl_add_u32 v%d, v%d, 3, v%d" % (vT3, vT1, vT2))
    a("v_and_b32 v%d, 3, v0" % vT2)
    a("v_bfe_u32 v%d, v0, 4, 1" % vT4)
    a("v_mul_u32_u24 v%d, 0xe0, v%d" % (vT0, vT3))
    a("v_lshl_add_u32 v%d, v%d, 3, v%d" % (vT0, vT2, vT0))
    a("s_and_b32 s%d, s%d, 3" % (sT1, sW))
    a("s_lshl_b32 s%d, s%d, 6" % (sT0, sT1))
    a("s_add_u32 s%d, s%d, %d" % (sT0, sT0, b0 + OWG))
    a("s_movk_i32 s%d, %d" % (sT2, OWU - OWG - 96))
    a("s_cmp_lt_u32 s%d, 2" % sT1)
    a("s_cselect_b32 s%d, %d, s%d" % (sT3, OWU - OWG + 128, sT2))
    a("v_mul_u32_u24 v%d, s%d, v%d" % (vT1, sT3, vT4))
    a("v_add3_u32 v%d, v%d, v%d, s%d" % (vW0, vT0, vT1, sT0))
    a("s_cmp_eq_u32 s%d, 3" % sT1)
    a("s_cbranch_scc1 L_W1_Q")
    a("s_cmp_lt_u32 s%d, 1" % sT1)
    a("s_cselect_b32 s%d, %d, s%d" % (sT3, OWU - OWG + 128, sT2))
    a("v_mul_u32_u24 v%d, s%d, v%d" % (vT1, sT3, vT4))
    a("v_add3_u32 v%d, v%d, v%d, s%d" % (vT0, vT0, vT1, sT0))
    for q in range(8):
        ks, u = q >> 1, q & 1
        a("v_add_u32 v%d, %d, v%d" % (vW1[q], 32 + (16 * ks + 4 * u) * 224, vT0))
    a("s_branch L_W1_E")
    a.label("L_W1_Q")
    a("v_lshlrev_b32 v%d, 6, v%d" % (vT0, vT3))
    a("v_lshl_add_u32 v%d, v%d, 3, v%d" % (vT0, vT2, vT0))
    a("v_lshl_add_u32 v%d, v%d, 5, v%d" % (vT0, vT4, vT0))
    for q in range(8):
        ks, u = q >> 1, q & 1
        a("v_add_u32 v%d, %d, v%d" % (vW1[q], b0 + OWQ + (16 * ks + 4 * u) * 64, vT0))
    a.label("L_W1_E")
    for r in list(range(vC, vC + 16)) + list(range(vO, vO + 16)):
        a("v_mov_b32 v%d, 0" % r)
    a("v_mov_b32 v%d, v%d" % (vKa, vL16))
    a("v_lshrrev_b32 v%d, 5, v0" % vT0)
    a("v_and_b32 v%d, 15, v0" % vT1)
    a("v_lshlrev_b32 v%d, 8, v%d" % (vT2, vT0))
    a("v_lshl_add_u32 v%d, v%d, 4, v%d" % (vT2, vT1, vT2))
    a("v_add_u32 v%d, 1024, v%d" % (vVa, vT2))
    a("v_and_b32 v%d, 27, v0" % vT0)
    a("v_cmp_eq_u32 vcc, 16, v%d" % vT0)
    a("v_mov_b32 v%d, 0x3f803f80" % vT0)
    a("s_mov_b32 s%d, 0x0000ffff" % sVm)
    a("s_mov_b32 s%d, 0x0000ffff" % (sVm + 1))
    a("v_cndmask_b32 v27, 0, v%d, vcc" % vT0)
    a("v_and_b32 v%d, 31, v0" % vT0)
    a("s_lshr_b32 s%d, s%d, 2" % (sT0, sW))
    a("s_lshl_b32 s%d, s%d, 8" % (sT0, sT0))
    a("s_add_u32 s%d, s%d, %d" % (sT0, sT0, L_GROW))
    a("v_lshl_add_u32 v4, v%d, 2, s%d" % (vT0, sT0))
    a("s_and_b32 s%d, s%d, 3" % (sT0, sW))
    a("s_lshl_b32 s%d, s%d, 1" % (sT0, sT0))
    a("s_lshr_b32 s%d, s%d, 2" % (sT1, sW))
    a("s_add_u32 s%d, s%d, s%d" % (sT0, sT0, sT1))
    a("s_lshl_b32 s%d, s%d, 10" % (sT0, sT0))
    a("s_add_u32 s%d, s%d, %d" % (sT0, sT0, L_QX))
    a("v_add_u32 v5, s%d, v%d" % (sT0, vL16))
    a("v_mov_b32 v6, %d" % L_KMAX)
    a("s_lshr_b32 s%d, s%d, 2" % (sT0, sW))
    a("s_lshl_b32 s%d, s%d, 1" % (sT0, sT0))
    a("s_lshl_b32 s%d, s%d, 2" % (sT1, sMT))
    a("s_add_u32 s%d, s%d, s%d" % (sT0, sT0, sT1))
    a("s_mul_i32 s%d, s%d, 144" % (sT0, sT0))
    a("s_mul_i32 s%d, s%d, 7" % (sT1, sNT))
    a("s_add_u32 s%d, s%d, s%d" % (sT0, sT0, sT1))
    a("s_and_b32 s%d, s%d, 3" % (sT2, sW))
    a("s_lshl_b32 s%d, s%d, 1" % (sT1, sT2))
    a("s_add_u32 s%d, s%d, s%d" % (sT0, sT0, sT1))
    a("s_lshl_b32 s%d, s%d, 10" % (sT0, sT0))
    a("s_add_u32 s%d, s%d, %d" % (sOffA, sT0, WS_AF + 32 * 1024))
    a("s_add_u32 s%d, s%d, %d" % (sOffB, sOffA, 144 * 1024))
    a("s_and_b32 s%d, s%d, 3" % (sT0, sW))
    a("s_lshl_b32 s%d, s%d, 2" % (sT1, sMT))
    a("s_add_u32 s%d, s%d, s%d" % (sT0, sT0, sT1))
    a("s_mul_i32 s%d, s%d, 144" % (sT0, sT0))
    a("s_lshl_b32 s%d, s%d, 1" % (sT1, sNT))
    a("s_add_u32 s%d, s%d, s%d" % (sT0, sT0, sT1))
    a("s_lshr_b32 s%d, s%d, 2" % (sT1, sW))
    a("s_add_u32 s%d, s%d, s%d" % (sT0, sT0, sT1))
    a("s_lshl_b32 s%d, s%d, 10" % (sT0, sT0))
    a("s_add_u32 s%d, s%d, %d" % (sOffC, sT0, WS_AF))
    a("s_and_b32 s%d, s%d, 3" % (sT0, sW))
    a("s_lshl_b32 s%d, s%d, 7" % (sT0, sT0))
    a("s_add_u32 s%d, s%d, %d" % (sT0, sT0, L_GROW))
    a("v_lshl_add_u32 v7, v%d, 2, s%d" % (vT0, sT0))
    a("s_waitcnt lgkmcnt(0)")
    srd(a, SWS, P['ws'], P['ws'] + 1, WS_SIZE)
    srd(a, SOUT, P['out'], P['out'] + 1, 2097152)
    SXm = 48
    mGX, mGW = 128, 132
    srd(a, SXm, P['x'], P['x'] + 1, 2097152)
    srd(a, SE, P['gw'], P['gw'] + 1, 1024)
    a("s_lshl_b32 s%d, s%d, 4" % (sT0, sMT))
    a("s_add_u32 s%d, s%d, s%d" % (sT0, sT0, sNT))
    a("s_lshl_b32 s%d, s%d, 3" % (sT0, sT0))
    a("s_add_u32 s%d, s%d, s%d" % (sT0, sT0, sW))
    a("s_lshl_b32 s%d, s%d, 10" % (sT0, sT0))
    a("s_lshl_b32 s%d, s%d, 2" % (sT1, sW))
    a("s_add_u32 s%d, s%d, %d" % (sT1, sT1, L_G8))
    a("v_mov_b32 v%d, s%d" % (vGq, sT1))

    def g_loads():
        a("buffer_load_dwordx4 v[%d:%d], v%d, s[%d:%d], s%d offen" % (mGX, mGX + 3, vL16, SXm, SXm + 3, sT0))
        a("buffer_load_dwordx4 v[%d:%d], v%d, s[%d:%d], 0 offen" % (mGW, mGW + 3, vL16, SE, SE + 3))

    def g_job():
        a("s_waitcnt vmcnt(0)")
        a("v_mov_b32 v%d, 0" % vT0)
        for j in range(4):
            a("v_dot2_f32_bf16 v%d, v%d, v%d, v%d" % (vT0, mGX + j, mGW + j, vT0))
        for r in range(8):
            a("v_mov_b32 v%d, 0" % (vO + r))
        a("v_mov_b32 v%d, v%d" % (vT1, vT0))
        wave_reduce(a, "v_add_f32", vT1)
        a("v_mul_f32 v%d, 0x%08x, v%d" % (vT1, f32bits(-math.log2(math.e)), vT1))
        a("v_exp_f32 v%d, v%d" % (vT1, vT1))
        a.nop(1)
        a("v_add_f32 v%d, 1.0, v%d" % (vT1, vT1))
        a("v_rcp_f32 v%d, v%d" % (vT1, vT1))
        a("s_mov_b32 exec_lo, 0")
        a("s_mov_b32 exec_hi, 0x80000000")
        a("ds_write_b32 v%d, v%d" % (vGq, vT1))
        a("s_mov_b64 exec, -1")

    def rd_list(ks, fs):
        f = FR[fs]
        return [
            "ds_read_b128 v[%d:%d], v%d" % (f, f + 3, vXr[ks]),
            "ds_read_b64_tr_b16 v[%d:%d], v%d offset:%d" % (f + 8, f + 9, vW0, (16 * ks) * 224),
            "ds_read_b64_tr_b16 v[%d:%d], v%d offset:%d" % (f + 10, f + 11, vW0, (16 * ks + 4) * 224),
            "ds_read_b128 v[%d:%d], v%d offset:4096" % (f + 4, f + 7, vXr[ks]),
            "ds_read_b64_tr_b16 v[%d:%d], v%d" % (f + 12, f + 13, vW1[2 * ks]),
            "ds_read_b64_tr_b16 v[%d:%d], v%d" % (f + 14, f + 15, vW1[2 * ks + 1]),
        ]

    def mfmas(fs, first):
        f = FR[fs]
        out = []
        for an in (0, 1):
            for i in (0, 1):
                acc = ACC + (an * 2 + i) * 16
                c = "0" if first else "v[%d:%d]" % (acc, acc + 15)
                out.append("%s v[%d:%d], v[%d:%d], v[%d:%d], %s" % (MFMA, acc, acc + 15, f + 8 + an * 4, f + 11 + an * 4,
                                                                   f + i * 4, f + i * 4 + 3, c))
        return out

    def adv(s, regs):
        d = PB[(s + 1) % 3] - PB[s % 3]
        return ["v_add_u32 v%d, %d, v%d" % (r, d, r) if d >= 0 else "v_subrev_u32 v%d, %d, v%d" % (r, -d, r) for r in regs]

    g_loads()
    stamp("pro")
    a("s_barrier")
    stamp("bar0")
    emit(rd_list(0, 0))
    fs = 0
    for s in range(8):
        for ks in range(4):
            ms = mfmas(fs, s == 0 and ks == 0)
            if ks < 3:
                nxt = rd_list(ks + 1, fs ^ 1)
                for q in range(4):
                    if q < 3:
                        a("s_waitcnt lgkmcnt(%d)" % (3 if q == 0 else 4))
                    a(ms[q])
                    emit(nxt[2 * q:2 * q + 2])
                    if s < 7 and q == 3:
                        regs = [vXr[ks], vW1[2 * ks], vW1[2 * ks + 1]]
                        if ks == 2:
                            regs += [vXr[3], vW1[6], vW1[7], vW0]
                        emit(adv(s, regs))
            else:
                if s < 7:
                    a("s_waitcnt lgkmcnt(3)")
                    a(ms[0])
                    a("s_waitcnt lgkmcnt(0)")
                    stamp("s%dv" % s)
                    a("s_barrier")
                    stamp("s%db" % s)
                    nxt = rd_list(0, fs ^ 1)
                    emit(nxt[0:3])
                    a(ms[1])
                    emit(nxt[3:6])
                    a(ms[2])
                    a(ms[3])
                    if s == 1:
                        g_job()
                else:
                    a("ds_read_b32 v%d, v4" % vGm[0])
                    a("ds_read_b32 v%d, v4 offset:128" % vGm[1])
                    a("ds_read_b32 v%d, v7" % vGq)
                    a("s_waitcnt lgkmcnt(6)")
                    a(ms[0])
                    a("s_waitcnt lgkmcnt(3)")
                    emit(ms[1:])
            fs ^= 1
    stamp("g1end")
    a("s_bitcmp1_b32 s%d, 1" % sW)
    a("s_cselect_b64 vcc, -1, 0")
    a("v_mov_b32 v8, -1")
    a("v_mov_b32 v9, -1")
    a("v_mov_b32 v10, -1")
    a("v_mov_b32 v11, -1")
    a("s_waitcnt lgkmcnt(0)")
    a("buffer_store_dwordx4 v[8:11], v%d, s[%d:%d], s%d offen sc1" % (vL16, SWS, SWS + 3, sOffC))
    a("v_sub_f32 v%d, 1.0, v%d" % (vGm[0], vGm[0]))
    a("v_sub_f32 v%d, 1.0, v%d" % (vGm[1], vGm[1]))
    a("v_mov_b32 v%d, v%d" % (vGm[0] + 1, vGm[0]))
    a("v_mov_b32 v%d, v%d" % (vGm[1] + 1, vGm[1]))

    def h_tile(an, i, d):
        t = ACC + (an * 2 + i) * 16
        for r in range(0, 8, 2):
            a("v_pk_mul_f32 v[%d:%d], v[%d:%d], v[%d:%d]" % (t + r, t + r + 1, t + r, t + r + 1, t + 8 + r, t + 9 + r))
        for r in range(0, 8, 2):
            a("v_pk_mul_f32 v[%d:%d], v[%d:%d], v[%d:%d]" % (t + r, t + r + 1, t + r, t + r + 1, vGm[i], vGm[i] + 1))
        for j in range(4):
            a("v_cvt_pk_bf16_f32 v%d, v%d, v%d" % (d + j, t + 2 * j, t + 2 * j + 1))
        a("buffer_store_dwordx4 v[%d:%d], v%d, s[%d:%d], s%d offen offset:%d sc1" % (d, d + 3, vL16, SWS, SWS + 3,
                                                                                    sOffA if i == 0 else sOffB, an * 1024))

    a("s_cmp_eq_u32 s%d, 3" % sT2)
    a("s_cbranch_scc1 L_EPI_Q")
    h_tile(1, 0, ACC + 40)
    h_tile(1, 1, ACC + 56)
    a("s_branch L_EPI_C")
    a.label("L_EPI_Q")
    a("v_mov_b32 v24, 0x%08x" % f32bits(QSCALE))
    a("v_mov_b32 v25, 0x%08x" % f32bits(QSCALE))
    a("s_lshr_b32 s%d, s%d, 2" % (sT2, sW))
    a("s_lshl_b32 s%d, s%d, 12" % (sT2, sT2))
    a("s_add_u32 s%d, s%d, %d" % (sT2, sT2, L_QX))
    a("v_add_u32 v%d, s%d, v%d" % (vT0, sT2, vL16))
    for i in (0, 1):
        t = ACC + (2 + i) * 16
        for r in range(0, 16, 2):
            a("v_pk_mul_f32 v[%d:%d], v[%d:%d], v[24:25]" % (t + r, t + r + 1, t + r, t + r + 1))
        d = FR[0] + 8 * i
        for j in range(8):
            a("v_cvt_pk_bf16_f32 v%d, v%d, v%d" % (d + j, t + 2 * j, t + 2 * j + 1))
        a("ds_write_b128 v%d, v[%d:%d] offset:%d" % (vT0, d, d + 3, i * 2048))
        a("ds_write_b128 v%d, v[%d:%d] offset:%d" % (vT0, d + 4, d + 7, i * 2048 + 1024))
    a.label("L_EPI_C")
    h_tile(0, 0, ACC + 44)
    h_tile(0, 1, ACC + 60)
    for r in range(16):
        a("v_mov_b32 v%d, v27" % (vVF[0] + r))
    a("v_mov_b32 v%d, v5" % vT0)
    a("v_mov_b32 v%d, v6" % vT1)
    a("s_waitcnt lgkmcnt(0)")
    a("s_barrier")
    stamp("Bq")
    a("ds_read_b128 v[%d:%d], v%d" % (vQ, vQ + 3, vT0))
    a("ds_read_b32 v%d, v%d" % (vT4, vT1))

    inloop = [False]

    def rdK(buf, off):
        if inloop[0] and "nolds" in os.environ.get("X", ""):
            return
        a("ds_read_b128 v[%d:%d], v%d offset:%d" % (vKF[buf], vKF[buf] + 3, vKa, off))

    def rdV(buf, off):
        if inloop[0] and ("nolds" in os.environ.get("X", "") or "nov" in os.environ.get("X", "")):
            return
        ne = "noexec" in os.environ.get("X", "")
        if not ne:
            a("s_mov_b64 exec, s[%d:%d]" % (sVm, sVm + 1))
        a("ds_read_b128 v[%d:%d], v%d offset:%d" % (vVF[buf], vVF[buf] + 3, vVa, off))
        a("ds_read_b128 v[%d:%d], v%d offset:%d" % (vVF[buf] + 4, vVF[buf] + 7, vVa, off + 512))
        if not ne:
            a("s_mov_b64 exec, -1")

    X = os.environ.get("X", "")

    def mS(sbuf, kbuf):
        if "czero" in X:
            a("%s v[%d:%d], v[%d:%d], v[%d:%d], 0" % (MFMA, vS[sbuf], vS[sbuf] + 15, vKF[kbuf], vKF[kbuf] + 3, vQ, vQ + 3))
            return
        a("%s v[%d:%d], v[%d:%d], v[%d:%d], v[%d:%d]" % (MFMA, vS[sbuf], vS[sbuf] + 15, vKF[kbuf], vKF[kbuf] + 3,
                                                        vQ, vQ + 3, vC, vC + 15))

    def mPV(vbuf, t):
        if "nopv" in X:
            return
        if "pv16" in X:
            a("v_mfma_f32_16x16x32_bf16 v[%d:%d], v[%d:%d], v[%d:%d], v[%d:%d]" % (vO + 4 * t, vO + 4 * t + 3, vKF[0], vKF[0] + 3,
                                                        vP + 4 * t, vP + 4 * t + 3, vO + 4 * t, vO + 4 * t + 3))
            return
        a("%s v[%d:%d], v[%d:%d], v[%d:%d], v[%d:%d]" % (MFMA, vO, vO + 15, vVF[vbuf] + 4 * t, vVF[vbuf] + 4 * t + 3,
                                                        vP + 4 * t, vP + 4 * t + 3, vO, vO + 15))

    def E(sb, r):
        a("v_exp_f32 v%d, v%d" % (vS[sb] + r, vS[sb] + r))

    def C(sb, j):
        a("v_cvt_pk_bf16_f32 v%d, v%d, v%d" % (vP + j, vS[sb] + 2 * j, vS[sb] + 2 * j + 1))

    rdK(0, 0)
    rdK(1, KVBLK)
    rdV(0, 0)
    a("s_waitcnt lgkmcnt(4)")
    a("v_mov_b32 v%d, 0" % vT3)
    for j in range(4):
        a("v_dot2_f32_bf16 v%d, v%d, v%d, v%d" % (vT3, vQ + j, vQ + j, vT3))
    a("s_mov_b32 s%d, 0x%08x" % (sT1, f32bits(900.0)))
    a("s_mov_b32 s%d, %d" % (sSkip, 12 // NB if NB == 4 else 2))
    a("s_mov_b32 s%d, 0" % sIt)
    a.nop(1)
    a("v_mov_b32 v%d, v%d" % (vT2, vT3))
    a.nop(2)
    a("v_permlane32_swap_b32 v%d, v%d" % (vT3, vT2))
    a.nop(1)
    a("v_add_f32 v%d, v%d, v%d" % (vT3, vT3, vT2))
    a("v_mul_f32 v%d, v%d, v%d" % (vT3, vT4, vT3))
    a("v_cmp_nge_f32 vcc, s%d, v%d" % (sT1, vT3))
    a("s_cmp_eq_u64 vcc, 0")
    a("s_cbranch_scc1 L_FAST")
    a("s_waitcnt vmcnt(0)")
    a("s_barrier")
    a("s_mov_b32 s%d, 99" % sSkip)
    a("v_mov_b32 v%d, 0xff800000" % vT0)
    a("v_mov_b32 v%d, v%d" % (vT1, vL16))
    a.label("L_MAXLOOP")
    a("ds_read_b128 v[%d:%d], v%d" % (vP, vP + 3, vT1))
    a("v_add_u32 v%d, %d, v%d" % (vT1, KVBLK, vT1))
    a("s_waitcnt lgkmcnt(0)")
    a("%s v[%d:%d], v[%d:%d], v[%d:%d], 0" % (MFMA, vS[0], vS[0] + 15, vP, vP + 3, vQ, vQ + 3))
    a.nop(16)
    for j in range(8):
        a("v_max3_f32 v%d, v%d, v%d, v%d" % (vT0, vS[0] + 2 * j, vS[0] + 2 * j + 1, vT0))
    a("s_add_u32 s%d, s%d, 1" % (sIt, sIt))
    a("s_cmp_lt_u32 s%d, 64" % sIt)
    a("s_cbranch_scc1 L_MAXLOOP")
    a("v_mov_b32 v%d, v%d" % (vT1, vT0))
    a("s_mov_b32 s%d, 0" % sIt)
    a.nop(1)
    a("v_permlane32_swap_b32 v%d, v%d" % (vT0, vT1))
    a.nop(2)
    a("v_max_f32 v%d, v%d, v%d" % (vT0, vT0, vT1))
    for r in range(16):
        a("v_sub_f32 v%d, 0, v%d" % (vC + r, vT0))
    a.label("L_FAST")
    a("s_setprio 1")
    a("s_cmp_lt_u32 s%d, 4" % sW)
    a("s_cbranch_scc0 L_NOPRIO")
    a("s_setprio 2")
    a.label("L_NOPRIO")
    for r in range(12, 16):
        a("v_mov_b32 v%d, 0" % (vS[1] + r))
    a("v_mov_b32 v%d, 0" % (vP + 4))
    a("v_mov_b32 v%d, 0" % (vP + 5))
    a("s_waitcnt lgkmcnt(0)")
    mS(0, 0)
    a.nop(12)
    a.label("L_LOOP")
    inloop[0] = True
    for bb in range(NB):
        p = bb & 1
        off = bb * KVBLK
        E(p, 0)
        E(p, 1)
        C(p ^ 1, 6)
        C(p ^ 1, 7)
        E(p, 2)
        E(p, 3)
        mPV(p ^ 1, 1)
        rdV(p ^ 1, off + KVBLK)
        E(p, 4)
        E(p, 5)
        C(p, 0)
        C(p, 1)
        a("s_waitcnt lgkmcnt(2)")
        mS(p ^ 1, p ^ 1)
        rdK(p, off + 2 * KVBLK)
        E(p, 6)
        E(p, 7)
        E(p, 8)
        E(p, 9)
        C(p, 2)
        C(p, 3)
        E(p, 10)
        E(p, 11)
        mPV(p, 0)
        E(p, 12)
        E(p, 13)
        C(p, 4)
        C(p, 5)
        E(p, 14)
        E(p, 15)
    a("v_add_u32 v%d, %d, v%d" % (vKa, NB * KVBLK, vKa))
    a("v_add_u32 v%d, %d, v%d" % (vVa, NB * KVBLK, vVa))
    a("s_add_u32 s%d, s%d, 1" % (sIt, sIt))
    a("s_cmp_lg_u32 s%d, s%d" % (sIt, sSkip))
    a("s_cbranch_scc1 L_NOBKV")
    a("s_waitcnt vmcnt(0)")
    a("s_barrier")
    stamp("bkv")
    a.label("L_NOBKV")
    a("s_cmp_lt_u32 s%d, %d" % (sIt, 64 // NB))
    a("s_cbranch_scc1 L_LOOP")
    if os.environ.get("REPEAT"):
        inloop[0] = False
        a("s_cmp_eq_u32 s%d, 98" % sSkip)
        a("s_cbranch_scc1 L_RPT_E")
        a("s_mov_b32 s%d, 98" % sSkip)
        a("s_mov_b32 s%d, 0" % sIt)
        a.nop(16)
        for r in range(16):
            a("v_mov_b32 v%d, 0" % (vO + r))
        a("v_subrev_u32 v%d, %d, v%d" % (vKa, 64 * KVBLK, vKa))
        a("v_subrev_u32 v%d, %d, v%d" % (vVa, 64 * KVBLK, vVa))
        a("s_waitcnt lgkmcnt(0)")
        rdK(0, 0)
        rdK(1, KVBLK)
        rdV(0, 0)
        a("s_branch L_FAST")
        a.label("L_RPT_E")
    C(1, 6)
    C(1, 7)
    a.nop(2)
    mPV(1, 1)
    stamp("attn")
    a.nop(13)
    a("v_rcp_f32 v%d, v%d" % (vT0, vO + 8))
    a("v_lshrrev_b32 v%d, 3, v0" % vT4)
    a("v_mul_f32 v%d, v%d, v%d" % (vT0, vT0, vGq))
    for r in range(8):
        a("v_mul_f32 v%d, v%d, v%d" % (vO + r, vO + r, vT0))
    for j in range(4):
        a("v_cvt_pk_bf16_f32 v%d, v%d, v%d" % (vO + 8 + j, vO + 2 * j, vO + 2 * j + 1))
    a("buffer_store_dwordx4 v[%d:%d], v%d, s[%d:%d], s%d offen sc1" % (vO + 8, vO + 11, vL16, SWS, SWS + 3, sOffC))
    a("s_waitcnt lgkmcnt(0)")
    a("s_barrier")
    stamp("b3")
    vR0, vR1, vOo = 8, 9, 10
    a("s_lshl_b32 s%d, s%d, 3" % (sT0, sW))
    a("v_add_u32 v%d, s%d, v%d" % (vT4, sT0, vT4))
    a("v_and_b32 v%d, 15, v%d" % (vT1, vT4))
    a("v_and_b32 v%d, 7, v0" % vT2)
    a("v_lshlrev_b32 v%d, 1, v%d" % (vT3, vT2))
    a("v_xor_b32 v%d, v%d, v%d" % (vT1, vT1, vT3))
    a("v_lshlrev_b32 v%d, 8, v%d" % (vT3, vT4))
    a("v_lshl_add_u32 v%d, v%d, 4, v%d" % (vR0, vT1, vT3))
    a("v_xor_b32 v%d, 16, v%d" % (vR1, vR0))
    a("v_lshlrev_b32 v%d, 10, v%d" % (vT4, vT4))
    a("v_lshl_add_u32 v%d, v%d, 4, v%d" % (vOo, vT2, vT4))
    a("s_lshl_b32 s%d, s%d, 16" % (sT0, sMB))
    a("s_lshl_b32 s%d, s%d, 7" % (sT1, sNB))
    a("s_add_u32 s%d, s%d, s%d" % (sT0, sT0, sT1))
    a("s_barrier")
    stamp("b4")
    FB = 32
    for k_ in range(4):
        a("ds_read_b128 v[%d:%d], v%d offset:%d" % (FB + 8 * k_, FB + 8 * k_ + 3, vR0, k_ * 16384))
        a("ds_read_b128 v[%d:%d], v%d offset:%d" % (FB + 8 * k_ + 4, FB + 8 * k_ + 7, vR1, k_ * 16384))
    for k_ in range(1, 4):
        a("s_waitcnt lgkmcnt(%d)" % (2 * (3 - k_)))
        for r in range(8):
            a("v_add_f32 v%d, v%d, v%d" % (FB + r, FB + r, FB + 8 * k_ + r))
    for j in range(4):
        a("v_cvt_pk_bf16_f32 v%d, v%d, v%d" % (FB + 8 + j, FB + 2 * j, FB + 2 * j + 1))
    a("buffer_store_dwordx4 v[%d:%d], v%d, s[%d:%d], s%d offen" % (FB + 8, FB + 11, vOo, SOUT, SOUT + 3, sT0))
    prof_flush()
    a("s_endpgm")

    role[0] = "H"
    mark1 = len(a.lines)
    vXd0, vXd1 = 2, 3
    vWd = list(range(4, 12))
    vEv = 12
    vPl = 14
    vKX = 32
    vKA = 96
    vGX = 112
    vGW = 120
    a("s_setprio 3")
    a("s_sub_u32 s%d, s%d, 8" % (sH, sW))
    a("s_lshl_b32 s%d, s%d, 12" % (sM0x, sH))
    a("s_lshl_b32 s%d, s%d, 13" % (sM0w, sH))
    a("s_lshl_b32 s%d, s%d, 7" % (sT0, sMT))
    a("s_lshl_b32 s%d, s%d, 5" % (sT1, sH))
    a("s_add_u32 s%d, s%d, s%d" % (sT0, sT0, sT1))
    a("v_lshrrev_b32 v%d, 3, v0" % vT0)
    a("v_add_u32 v%d, s%d, v%d" % (vT0, sT0, vT0))
    a("v_lshlrev_b32 v%d, 10, v%d" % (vT0, vT0))
    a("v_and_b32 v%d, 7, v0" % vT1)
    a("v_lshrrev_b32 v%d, 4, v0" % vT2)
    a("v_xor_b32 v%d, v%d, v%d" % (vT1, vT1, vT2))
    a("v_lshl_add_u32 v%d, v%d, 4, v%d" % (vXd0, vT1, vT0))
    a("v_xor_b32 v%d, 64, v%d" % (vXd1, vXd0))
    a("v_add_u32 v%d, 0x2000, v%d" % (vXd1, vXd1))
    a("s_mul_i32 s%d, s%d, 224" % (sT2, sNT))
    a("s_movk_i32 s%d, 4682" % sT3)
    for j in range(8):
        if j == 4:
            a("s_cmp_eq_u32 s%d, 3" % sH)
            a("s_cbranch_scc1 L_WD_Q")
        a("s_lshl_b32 s%d, s%d, 3" % (sT0, sH))
        a("s_add_u32 s%d, s%d, %d" % (sT0, sT0, j))
        a("s_sub_u32 s%d, s%d, 14" % (sT1, sT0))
        a("s_cmp_ge_u32 s%d, 14" % sT0)
        a("s_cselect_b32 s%d, s%d, s%d" % (sT0, sT1, sT0))
        a("s_cselect_b32 s%d, 6, 0" % sOffA)
        a("s_lshl_b32 s%d, s%d, 6" % (sT0, sT0))
        a("v_add_u32 v%d, s%d, v0" % (vT0, sT0))
        a("v_mul_u32_u24 v%d, s%d, v%d" % (vT1, sT3, vT0))
        a("v_lshrrev_b32 v%d, 16, v%d" % (vT1, vT1))
        a("v_mul_u32_u24 v%d, 14, v%d" % (vT2, vT1))
        a("v_sub_u32 v%d, v%d, v%d" % (vT0, vT0, vT2))
        a("v_add_u32 v%d, s%d, v%d" % (vT0, sOffA, vT0))
        a("v_subrev_u32 v%d, 14, v%d" % (vT2, vT0))
        a("v_min_u32 v%d, v%d, v%d" % (vT0, vT0, vT2))
        a("v_mul_u32_u24 v%d, 0xe00, v%d" % (vT1, vT1))
        a("v_lshl_add_u32 v%d, v%d, 4, v%d" % (vT0, vT0, vT1))
        a("v_add_u32 v%d, s%d, v%d" % (vWd[j], sT2, vT0))
    a("s_mov_b32 s%d, %d" % (sStepB, 64 * 3584))
    a("s_branch L_WD_E")
    a.label("L_WD_Q")
    a("s_lshl_b32 s%d, s%d, 6" % (sT2, sNT))
    a("v_lshrrev_b32 v%d, 2, v0" % vT0)
    a("v_and_b32 v%d, 3, v0" % vT1)
    a("v_lshlrev_b32 v%d, 10, v%d" % (vT0, vT0))
    a("v_lshl_add_u32 v%d, v%d, 4, v%d" % (vT0, vT1, vT0))
    a("v_add_u32 v%d, s%d, v%d" % (vWd[4], sT2, vT0))
    for j in range(5, 8):
        a("v_add_u32 v%d, %d, v%d" % (vWd[j], (j - 4) * 16384, vWd[4]))
    a("s_mov_b32 s%d, 65536" % sStepB)
    a.label("L_WD_E")
    a("s_waitcnt lgkmcnt(0)")
    stamp("karg")
    srd(a, SX, P['x'], P['x'] + 1, 2097152)
    for S, lim, q in ((SA, 2, False), (SB, 2, True), (SC, 1, True)):
        a("s_cmp_lt_u32 s%d, %d" % (sH, lim))
        a("s_cselect_b32 s%d, s%d, s%d" % (S, P['wg'], P['wu']))
        a("s_cselect_b32 s%d, s%d, s%d" % (S + 1, P['wg'] + 1, P['wu'] + 1))
        a("s_mov_b32 s%d, 0x1c0000" % (S + 2))
        if q:
            a("s_cmp_eq_u32 s%d, 3" % sH)
            a("s_cselect_b32 s%d, s%d, s%d" % (S, P['wq'], S))
            a("s_cselect_b32 s%d, s%d, s%d" % (S + 1, P['wq'] + 1, S + 1))
            a("s_cselect_b32 s%d, 0x80000, s%d" % (S + 2, S + 2))
        a("s_mov_b32 s%d, 0x20000" % (S + 3))

    def dma_stage(s):
        b = PB[s % 3]
        a("s_mov_b32 s%d, %d" % (sOffA, s * 64 * 3584))
        a("s_mul_i32 s%d, s%d, %d" % (sOffB, sStepB, s))
        for j in range(8):
            S = SA if j < 4 else (SB if j < 6 else SC)
            a("s_add_u32 m0, s%d, %d" % (sM0w, b + OWG + j * 1024))
            if j % 2 == 0:
                i = j // 2
                a("s_movk_i32 s%d, %d" % (sT0, s * 128 + (i >> 1) * 16384))
            else:
                a("s_nop 0")
            a("buffer_load_dwordx4 v%d, s[%d:%d], s%d offen lds" % (vWd[j], S, S + 3, sOffA if j < 4 else sOffB))
            if j % 2 == 0:
                a("s_add_u32 m0, s%d, %d" % (sM0x, b + OX + i * 1024))
                a("s_nop 0")
                a("buffer_load_dwordx4 v%d, s[%d:%d], s%d offen lds" % (vXd1 if i & 1 else vXd0, SX, SX + 3, sT0))

    def kv_dma(first, n):
        for j in range(n):
            off = (first + 4 * j) * 1024
            a("s_add_u32 m0, s%d, %d" % (sKoff, off))
            a("s_add_u32 s%d, s%d, %d" % (sOffA, sKoff, WS_KV + off))
            a("buffer_load_dwordx4 v%d, s[%d:%d], s%d offen sc1 lds" % (vL16, SWS, SWS + 3, sOffA))

    srd(a, SDBG, P['dbg'], P['dbg'] + 1, 256)
    a("s_cmp_lg_u32 s2, 0")
    a("s_cbranch_scc1 L_NOTAG")
    a("s_cmp_lg_u32 s%d, 3" % sH)
    a("s_cbranch_scc1 L_NOTAG")
    a("s_or_b32 s%d, s88, 1" % sT0)
    a("v_mov_b32 v%d, s%d" % (vT0, sT0))
    a("v_mov_b32 v%d, 0" % vT1)
    a("s_mov_b64 exec, 1")
    a("buffer_store_dword v%d, v%d, s[%d:%d], 0 offen sc1" % (vT0, vT1, SDBG, SDBG + 3))
    a("s_mov_b64 exec, -1")
    a.label("L_NOTAG")
    a("s_and_b32 s%d, s%d, 3" % (sRB, sNT))
    a("s_lshr_b32 s%d, s%d, 2" % (sT0, sNT))
    a("s_add_u32 s%d, s%d, 1" % (sKV, sT0))
    a("s_cmp_ge_u32 s%d, 8" % sNT)
    a("s_cselect_b32 s%d, 0, s%d" % (sKV, sKV))
    a("s_cmp_eq_u32 s%d, 1" % sKV)
    a("s_cselect_b32 s%d, s%d, s%d" % (SE, P['wk'], P['wv']))
    a("s_cselect_b32 s%d, s%d, s%d" % (SE + 1, P['wk'] + 1, P['wv'] + 1))
    a("s_mov_b32 s%d, 16384" % (SE + 2))
    a("s_mov_b32 s%d, 0x20000" % (SE + 3))
    a("v_lshrrev_b32 v%d, 4, v0" % vT0)
    a("v_and_b32 v%d, 15, v0" % vT1)
    a("v_xor_b32 v%d, v%d, v%d" % (vT1, vT1, vT0))
    a("v_lshlrev_b32 v%d, 10, v%d" % (vT0, vT0))
    a("v_lshl_add_u32 v18, v%d, 4, v%d" % (vT1, vT0))
    a("s_lshl_b32 s%d, s%d, 2" % (sT0, sMT))
    a("s_add_u32 s%d, s%d, s%d" % (sT0, sT0, sRB))
    a("s_lshl_b32 s%d, s%d, 15" % (sT0, sT0))
    a("s_lshl_b32 s%d, s%d, 8" % (sT1, sH))
    a("s_add_u32 s%d, s%d, s%d" % (sOffC, sT0, sT1))

    def dk():
        for p_ in range(8):
            a("s_add_u32 m0, s%d, %d" % (sM0w, PB[2] + OWG + p_ * 1024))
            a("v_xor_b32 v%d, %d, v18" % (vT0, (p_ & 3) * 64))
            a("s_add_u32 s%d, s%d, %d" % (sT0, sOffC, p_ * 4096))
            a("buffer_load_dwordx4 v%d, s[%d:%d], s%d offen lds" % (vT0, SX, SX + 3, sT0))
        a("s_add_u32 m0, s%d, %d" % (sM0x, PB[2] + OX))
        a("s_nop 0")
        for j in range(4):
            a("buffer_load_dwordx4 v%d, s[%d:%d], s%d offen offset:%d lds" % (vL16, SE, SE + 3, sM0x, j * 1024))
    if DKPOS == 0:
        a("s_cmp_eq_u32 s%d, 0" % sKV)
        a("s_cbranch_scc1 L_NODK")
        dk()
        a.label("L_NODK")
    dma_stage(0)
    stamp("d0")
    if DKPOS == 1:
        a("s_cmp_eq_u32 s%d, 0" % sKV)
        a("s_cbranch_scc1 L_NODK1")
        dk()
        a.label("L_NODK1")
    dma_stage(1)
    stamp("d1")
    srd(a, SWS, P['ws'], P['ws'] + 1, WS_SIZE)
    a("s_lshl_b32 s%d, s%d, 10" % (sKoff, sH))
    a("s_lshl_b32 s%d, s%d, 4" % (sSlot, sMT))
    a("s_add_u32 s%d, s%d, s%d" % (sSlot, sSlot, sNT))
    a("s_lshl_b32 s%d, s%d, 7" % (sSlot, sSlot))
    a("s_cmp_eq_u32 s%d, 0" % sH)
    a("s_cselect_b32 s%d, s%d, 0" % (sSkip, sKV))
    a("s_waitcnt vmcnt(12)")
    stamp("w0")
    a("s_barrier")
    a("v_mov_b32 v%d, 0" % vT0)
    a("buffer_load_dword v%d, v%d, s[%d:%d], 0 offen sc1" % (vEv, vT0, SDBG, SDBG + 3))
    a("s_cmp_eq_u32 s%d, 0" % sKV)
    a("s_cbranch_scc1 L_I0_N")
    a("v_lshrrev_b32 v%d, 5, v0" % vT1)
    a("v_bfe_u32 v%d, v0, 2, 2" % vT2)
    a("v_lshl_add_u32 v%d, v%d, 3, v%d" % (vT3, vT1, vT2))
    a("v_and_b32 v%d, 3, v0" % vT2)
    a("v_lshlrev_b32 v%d, 5, v%d" % (vT3, vT3))
    a("v_lshl_add_u32 v%d, v%d, 3, v%d" % (vT3, vT2, vT3))
    a("s_add_u32 s%d, s%d, %d" % (sT0, sM0x, PB[2] + OX))
    a("v_add_u32 v19, s%d, v%d" % (sT0, vT3))
    a("v_and_b32 v%d, 31, v0" % vT2)
    a("v_and_b32 v%d, 15, v0" % vT3)
    a("v_xor_b32 v%d, v%d, v%d" % (vT1, vT1, vT3))
    a("v_lshlrev_b32 v%d, 8, v%d" % (vT2, vT2))
    a("v_lshl_add_u32 v%d, v%d, 4, v%d" % (vT2, vT1, vT2))
    a("s_add_u32 s%d, s%d, %d" % (sT0, sM0w, PB[2] + OWG))
    a("v_add_u32 v20, s%d, v%d" % (sT0, vT2))
    a("v_and_b32 v%d, 16, v0" % vT1)
    a("v_cmp_eq_u32 vcc, 0, v%d" % vT1)
    vKW = 128
    for ks in range(8):
        a("v_xor_b32 v%d, %d, v20" % (vT0, ks * 32))
        a("ds_read_b128 v[%d:%d], v%d" % (vKX + 4 * ks, vKX + 4 * ks + 3, vT0))
    for ks in range(8):
        if ks in (3, 6):
            a("s_waitcnt lgkmcnt(8)")
        for u in range(2):
            a("ds_read_b64_tr_b16 v[%d:%d], v19 offset:%d" % (vKW + 4 * ks + 2 * u, vKW + 4 * ks + 2 * u + 1, (16 * ks + 4 * u) * 32))
    a("s_waitcnt lgkmcnt(0)")
    dma_stage(2)
    a("s_cmp_eq_u32 s%d, 2" % sKV)
    a("s_cbranch_scc1 L_SJ_V")
    for ks in range(8):
        c = "0" if ks == 0 else "v[%d:%d]" % (vKA, vKA + 15)
        a("%s v[%d:%d], v[%d:%d], v[%d:%d], %s" % (MFMA, vKA, vKA + 15, vKW + 4 * ks, vKW + 4 * ks + 3,
                                                   vKX + 4 * ks, vKX + 4 * ks + 3, c))
    a("s_mov_b64 vcc, -1")
    a("s_branch L_SJ_W")
    a.label("L_SJ_V")
    for ks in range(8):
        c = "0" if ks == 0 else "v[%d:%d]" % (vKA, vKA + 15)
        a("%s v[%d:%d], v[%d:%d], v[%d:%d], %s" % (MFMA, vKA, vKA + 15, vKX + 4 * ks, vKX + 4 * ks + 3,
                                                   vKW + 4 * ks, vKW + 4 * ks + 3, c))
    a.label("L_SJ_W")
    a("s_waitcnt vmcnt(13)")
    a("s_barrier")
    a.nop(10)
    for r in range(8):
        a("v_cndmask_b32 v%d, v%d, v%d, vcc" % (vKA + r, vKA + 8 + r, vKA + r))
    a("s_lshr_b32 s%d, s%d, 1" % (sT0, sM0x))
    a("s_add_u32 s%d, s%d, %d" % (sT0, sT0, L_TOP))
    a("v_add_u32 v%d, s%d, v%d" % (vT1, sT0, vL16))
    a("ds_write_b128 v%d, v[%d:%d]" % (vT1, vKA, vKA + 3))
    a("ds_write_b128 v%d, v[%d:%d] offset:1024" % (vT1, vKA + 4, vKA + 7))
    a("s_branch L_I1")
    a.label("L_I0_N")
    dma_stage(2)
    a("s_waitcnt vmcnt(13)")
    a("s_barrier")
    a.label("L_I1")
    dma_stage(3)
    a("s_waitcnt vmcnt(12) lgkmcnt(0)")
    stamp("w2")
    a("s_barrier")
    a("s_mov_b32 s%d, 0" % sSpin)
    a.label("L_GE_L")
    a("v_readfirstlane_b32 s%d, v%d" % (sE, vEv))
    a("s_cmp_lg_u32 s%d, 0" % sE)
    a("s_cbranch_scc1 L_GE_E")
    spin_tail("L_GE_E")
    a("v_mov_b32 v%d, 0" % vT0)
    a("buffer_load_dword v%d, v%d, s[%d:%d], 0 offen sc1" % (vEv, vT0, SDBG, SDBG + 3))
    a("s_waitcnt vmcnt(0)")
    a("s_branch L_GE_L")
    a.label("L_GE_E")
    a("s_cmp_eq_u32 s%d, 0" % sSkip)
    a("s_cbranch_scc1 L_I2_N")
    a("v_add_u32 v%d, %d, v%d" % (vT2, L_TOP + 2048, vL16))
    for j in range(3):
        a("ds_read_b128 v[%d:%d], v%d offset:%d" % (vKX + 8 * j, vKX + 8 * j + 3, vT2, j * 2048))
        a("ds_read_b128 v[%d:%d], v%d offset:%d" % (vKX + 8 * j + 4, vKX + 8 * j + 7, vT2, j * 2048 + 1024))
    a("s_lshl_b32 s%d, s%d, 2" % (sT0, sMT))
    a("s_add_u32 s%d, s%d, s%d" % (sT0, sT0, sRB))
    a("s_lshl_b32 s%d, s%d, 11" % (sT1, sT0))
    a("s_waitcnt lgkmcnt(0)")
    for j in range(3):
        for r in range(8):
            a("v_add_f32 v%d, v%d, v%d" % (vKA + r, vKA + r, vKX + 8 * j + r))
    for j in range(4):
        a("v_cvt_pk_bf16_f32 v%d, v%d, v%d" % (vKA + 8 + j, vKA + 2 * j, vKA + 2 * j + 1))
    a("s_cmp_eq_u32 s%d, 2" % sKV)
    a("s_cbranch_scc1 L_KF_V")
    a("buffer_store_dwordx4 v[%d:%d], v%d, s[%d:%d], s%d offen offset:%d sc1" % (vKA + 8, vKA + 11, vL16, SWS, SWS + 3, sT1, WS_KV))
    a("v_mov_b32 v%d, 0" % vT1)
    for j in range(4):
        a("v_dot2_f32_bf16 v%d, v%d, v%d, v%d" % (vT1, vKA + 8 + j, vKA + 8 + j, vT1))
    a.nop(3)
    a("v_mov_b32 v%d, v%d" % (vT2, vT1))
    a.nop(2)
    a("v_permlane32_swap_b32 v%d, v%d" % (vT1, vT2))
    a.nop(2)
    a("v_add_f32 v%d, v%d, v%d" % (vPl, vT1, vT2))
    wave_reduce(a, "v_max_f32", vPl)
    a("s_branch L_I2_X")
    a.label("L_KF_V")
    a("v_bfe_u32 v%d, v0, 4, 1" % vT1)
    a("v_lshrrev_b32 v%d, 5, v0" % vT2)
    a("v_lshl_add_u32 v%d, v%d, 1, v%d" % (vT1, vT1, vT2))
    a("v_and_b32 v%d, 15, v0" % vT2)
    a("v_lshlrev_b32 v%d, 8, v%d" % (vT1, vT1))
    a("v_lshl_add_u32 v%d, v%d, 4, v%d" % (vT1, vT2, vT1))
    a("buffer_store_dwordx4 v[%d:%d], v%d, s[%d:%d], s%d offen offset:%d sc1" % (vKA + 8, vKA + 11, vT1, SWS, SWS + 3, sT1, WS_KV + 1024))
    a("v_max3_f32 v%d, |v%d|, |v%d|, |v%d|" % (vT4, vKA, vKA + 1, vKA + 2))
    a("v_max3_f32 v%d, |v%d|, |v%d|, v%d" % (vT4, vKA + 3, vKA + 4, vT4))
    a("v_max3_f32 v%d, |v%d|, |v%d|, v%d" % (vT4, vKA + 5, vKA + 6, vT4))
    a("v_max_f32 v%d, |v%d|, v%d" % (vT4, vKA + 7, vT4))
    a("s_mov_b32 s%d, 0x%08x" % (sT2, f32bits(2.0 ** 60)))
    a("v_cmp_lt_f32 vcc, s%d, v%d" % (sT2, vT4))
    a.nop(1)
    a("s_cmp_lg_u64 vcc, 0")
    a("s_cselect_b32 s%d, 0x7f800000, 0" % sT2)
    a("v_mov_b32 v%d, s%d" % (vPl, sT2))
    a.label("L_I2_X")
    a.label("L_I2_N")
    dma_stage(4)
    a("s_waitcnt vmcnt(12)")
    a("s_cmp_eq_u32 s%d, 0" % sSkip)
    a("s_cbranch_scc1 L_KG_E")
    a("s_lshl_b32 s%d, s%d, 2" % (sT0, sMT))
    a("s_add_u32 s%d, s%d, s%d" % (sT0, sT0, sRB))
    a("s_lshl_b32 s%d, s%d, 1" % (sT0, sT0))
    a("s_add_u32 s%d, s%d, s%d" % (sT0, sT0, sKV))
    a("s_lshl_b32 s%d, s%d, 7" % (sT0, sT0))
    a("s_add_u32 s%d, s%d, %d" % (sT0, sT0, WS_KFL - 128))
    a("v_mov_b32 v%d, s%d" % (vPl + 1, sE))
    a("v_mov_b32 v%d, 0" % vT2)
    a("s_mov_b32 exec_lo, 0")
    a("s_mov_b32 exec_hi, 0x80000000")
    a("buffer_store_dwordx2 v[%d:%d], v%d, s[%d:%d], s%d offen sc1" % (vPl, vPl + 1, vT2, SWS, SWS + 3, sT0))
    a("s_mov_b64 exec, -1")
    a.label("L_KG_E")
    stamp("w3")
    a("s_barrier")
    a("s_cmp_lg_u32 s%d, 1" % sH)
    a("s_cbranch_scc1 L_I3_N")
    a("v_and_b32 v%d, 7, v0" % vT1)
    a("v_lshlrev_b32 v%d, 2, v%d" % (vT1, vT1))
    a("v_add_u32 v%d, %d, v%d" % (vT1, L_G8, vT1))
    a("ds_read_b32 v%d, v%d" % (vPl, vT1))
    a("v_mov_b32 v%d, s%d" % (vPl + 1, sE))
    a("v_lshlrev_b32 v%d, 3, v0" % vT1)
    a("s_add_u32 s%d, s%d, %d" % (sT0, sSlot, WS_G))
    a("s_waitcnt lgkmcnt(0)")
    a("s_mov_b64 exec, 0xff")
    a("buffer_store_dwordx2 v[%d:%d], v%d, s[%d:%d], s%d offen sc1" % (vPl, vPl + 1, vT1, SWS, SWS + 3, sT0))
    a("s_mov_b64 exec, -1")
    a("s_mov_b32 s%d, 1" % sSkip)
    a.label("L_I3_N")
    dma_stage(5)
    a("s_waitcnt vmcnt(13)")
    a("s_cmp_lg_u32 s%d, 0" % sSkip)
    a("s_cbranch_scc1 L_I3_E")
    a("s_waitcnt vmcnt(12)")
    a.label("L_I3_E")
    stamp("w4")
    a("s_barrier")
    dma_stage(6)
    a("s_waitcnt vmcnt(12)")
    stamp("w5")
    a("s_barrier")
    kvpoll = ["buffer_load_dwordx2 v[%d:%d], v%d, s[%d:%d], s%d offen sc1" % (vPl, vPl + 1, vT4, SWS, SWS + 3, sOffC),
              "buffer_load_dwordx2 v[%d:%d], v%d, s[%d:%d], s%d offen offset:128 sc1" % (vPl + 2, vPl + 3, vT4, SWS, SWS + 3, sOffC)]
    dma_stage(7)
    a("s_waitcnt vmcnt(12)")
    stamp("w6")
    a("s_barrier")
    a("s_cmp_lg_u32 s%d, 2" % sH)
    a("s_cbranch_scc1 L_EC_X")
    a("v_lshlrev_b32 v%d, 8, v0" % vT4)
    a("s_mov_b32 s%d, %d" % (sOffC, WS_KFL))
    a("s_mov_b32 s%d, 0" % sSpin)
    a.label("L_EC_L")
    emit(kvpoll)
    a("s_waitcnt vmcnt(0)")
    a("v_cmp_ne_u32 vcc, s%d, v%d" % (sE, vPl + 1))
    a("v_cmp_ne_u32 s[%d:%d], s%d, v%d" % (sT0, sT1, sE, vPl + 3))
    a("s_or_b64 vcc, vcc, s[%d:%d]" % (sT0, sT1))
    a("s_cbranch_scc0 L_EC_E")
    spin_tail("L_EC_E", 2)
    a("s_branch L_EC_L")
    a.label("L_EC_E")
    a("v_max_f32 v%d, v%d, v%d" % (vT1, vPl, vPl + 2))
    wave_reduce(a, "v_max_f32", vT1)
    a("v_mov_b32 v%d, %d" % (vT2, L_KMAX))
    a("s_mov_b32 exec_lo, 0")
    a("s_mov_b32 exec_hi, 0x80000000")
    a("ds_write_b32 v%d, v%d" % (vT2, vT1))
    a("s_mov_b64 exec, -1")
    a("s_waitcnt lgkmcnt(0)")
    a.label("L_EC_X")
    a("s_cmp_lg_u32 s%d, 3" % sH)
    a("s_cbranch_scc1 L_GP_X")
    gl = ["buffer_load_dwordx2 v[%d:%d], v%d, s[%d:%d], s%d offen sc1" % (vPl, vPl + 1, vT3, SWS, SWS + 3, sOffD),
          "buffer_load_dwordx2 v[%d:%d], v%d, s[%d:%d], s%d offen offset:1024 sc1" % (vPl + 2, vPl + 3, vT3, SWS, SWS + 3, sOffD)]
    a("v_lshrrev_b32 v%d, 3, v0" % vT3)
    a("v_and_b32 v%d, 7, v0" % vT1)
    a("v_lshlrev_b32 v%d, 7, v%d" % (vT3, vT3))
    a("v_lshl_add_u32 v%d, v%d, 3, v%d" % (vT3, vT1, vT3))
    a("s_lshl_b32 s%d, s%d, 11" % (sT1, sMT))
    a("s_add_u32 s%d, s%d, %d" % (sOffD, sT1, WS_G))
    a("s_mov_b32 s%d, 0" % sSpin)
    a.label("L_GP_L")
    emit(gl)
    a("s_waitcnt vmcnt(0)")
    a("v_cmp_ne_u32 vcc, s%d, v%d" % (sE, vPl + 1))
    a("v_cmp_ne_u32 s[%d:%d], s%d, v%d" % (sT0, sT1, sE, vPl + 3))
    a("s_or_b64 vcc, vcc, s[%d:%d]" % (sT0, sT1))
    a("s_cbranch_scc0 L_GP_E")
    spin_tail("L_GP_E")
    a("s_branch L_GP_L")
    a.label("L_GP_E")
    a("v_lshlrev_b32 v%d, 2, v0" % vT1)
    a("v_add_u32 v%d, %d, v%d" % (vT1, L_GROW, vT1))
    a("ds_write_b32 v%d, v%d" % (vT1, vPl))
    a("ds_write_b32 v%d, v%d offset:256" % (vT1, vPl + 2))
    a.label("L_GP_X")
    a("s_waitcnt vmcnt(0) lgkmcnt(0)")
    stamp("w7")
    a("s_barrier")
    kv_dma(0, 12)
    vWs, vB0, vB1, vTr0, vTr1, vPa, vPoll = 2, 3, 4, 5, 6, 7, 8
    vFA = 24
    vFB = 32
    AC2 = 64
    vWo = 128
    for r in range(64):
        a("v_mov_b32 v%d, 0" % (AC2 + r))
    a("v_bfe_u32 v%d, v0, 4, 1" % vT1)
    a("v_and_b32 v%d, 7, v0" % vT2)
    a("v_lshlrev_b32 v%d, 2, v%d" % (vT1, vT1))
    a("v_xor_b32 v%d, v%d, v%d" % (vT1, vT1, vT2))
    a("v_lshrrev_b32 v%d, 3, v0" % vT2)
    a("v_lshlrev_b32 v%d, 10, v%d" % (vT2, vT2))
    a("v_lshl_add_u32 v%d, v%d, 4, v%d" % (vT1, vT1, vT2))
    a("s_lshl_b32 s%d, s%d, 14" % (sT0, sH))
    a("s_lshl_b32 s%d, s%d, 7" % (sT1, sNB))
    a("s_add_u32 s%d, s%d, s%d" % (sT0, sT0, sT1))
    a("v_add_u32 v%d, s%d, v%d" % (vWs, sT0, vT1))
    a("v_lshrrev_b32 v%d, 5, v0" % vT0)
    a("v_bfe_u32 v%d, v0, 2, 2" % vT1)
    a("v_lshl_add_u32 v%d, v%d, 2, v%d" % (vT2, vT0, vT1))
    a("v_lshlrev_b32 v%d, 7, v%d" % (vT2, vT2))
    a("v_bfe_u32 v%d, v0, 3, 1" % vT1)
    a("v_lshl_add_u32 v%d, v%d, 6, v%d" % (vT2, vT1, vT2))
    a("v_bfe_u32 v%d, v0, 4, 1" % vT1)
    a("v_lshl_add_u32 v%d, v%d, 5, v%d" % (vT2, vT1, vT2))
    a("v_and_b32 v%d, 3, v0" % vT1)
    a("v_lshl_add_u32 v%d, v%d, 3, v%d" % (vT2, vT1, vT2))
    a("s_add_u32 s%d, s%d, %d" % (sScr, sM0w, L_SCR))
    a("v_add_u32 v%d, s%d, v%d" % (vTr0, sScr, vT2))
    a("v_xor_b32 v%d, 64, v%d" % (vTr1, vTr0))
    a("s_mul_i32 s%d, s%d, 288" % (sT0, sMB))
    a("s_add_u32 s%d, s%d, s%d" % (sT0, sT0, sH))
    a("s_lshl_b32 s%d, s%d, 10" % (sT0, sT0))
    a("s_add_u32 s%d, s%d, %d" % (sT0, sT0, WS_AF))
    a("v_add_u32 v%d, s%d, v%d" % (vB0, sT0, vL16))
    a("v_add_u32 v%d, %d, v%d" % (vB1, 144 * 1024, vB0))
    a("v_and_b32 v%d, 15, v0" % vPa)
    a("v_lshlrev_b32 v%d, 7, v%d" % (vPa, vPa))
    srd(a, SA, P['wd'], P['wd'] + 1, 0x1c0000)
    srd(a, SB, P['wo'], P['wo'] + 1, 0x80000)
    a("s_waitcnt vmcnt(0)")
    stamp("w8")
    a("s_barrier")
    kv_dma(48, 20)
    if PREF:
        a("s_mul_i32 s%d, s2, 7168" % sT0)
        a("s_lshl_b32 s%d, s%d, 11" % (sT1, sH))
        a("s_add_u32 s%d, s%d, s%d" % (sT0, sT0, sT1))
        a("buffer_load_dwordx4 v[160:163], v%d, s[%d:%d], s%d offen" % (vL16, SA, SA + 3, sT0))
        a("buffer_load_dwordx4 v[160:163], v%d, s[%d:%d], s%d offen offset:1024" % (vL16, SA, SA + 3, sT0))
        a("s_lshl_b32 s%d, s2, 11" % sT0)
        a("s_lshl_b32 s%d, s%d, 9" % (sT1, sH))
        a("s_add_u32 s%d, s%d, s%d" % (sT0, sT0, sT1))
        a("s_mov_b64 exec, 0xffffffff")
        a("buffer_load_dwordx4 v[160:163], v%d, s[%d:%d], s%d offen" % (vL16, SB, SB + 3, sT0))
        a("s_mov_b64 exec, -1")
    a("s_waitcnt vmcnt(0)")
    stamp("w9")
    a("s_barrier")
    stamp("bkv")
    a("s_setprio %d" % HPRIO)
    a("s_cmp_lg_u32 s%d, 0" % sH)
    a("s_cbranch_scc1 L_NOHF")
    a("v_mov_b32 v%d, 0" % vT3)
    a("v_mov_b32 v%d, s%d" % (vT2, sE))
    a("s_add_u32 s%d, s%d, %d" % (sT0, sSlot, WS_HFL))
    a("s_mov_b64 exec, 1")
    a("buffer_store_dword v%d, v%d, s[%d:%d], s%d offen sc1" % (vT2, vT3, SWS, SWS + 3, sT0))
    a("s_mov_b64 exec, -1")
    a.label("L_NOHF")

    def w_dma(S, slot, soff, extra):
        for u in range(2):
            a("s_add_u32 m0, s%d, %d" % (sScr, slot * 2048 + u * 1024))
            if soff is None:
                a("s_mov_b32 s%d, %d" % (sT0, extra + u * 8192))
            else:
                a("s_add_u32 s%d, s%d, %d" % (sT0, soff, extra + u * 8192))
            a("buffer_load_dwordx4 v%d, s[%d:%d], s%d offen lds" % (vWs, S, S + 3, sT0))

    def b_loads(slot, soff, extra):
        a("s_add_u32 s%d, s%d, %d" % (sT0, soff, extra))
        a("buffer_load_dwordx4 v[%d:%d], v%d, s[%d:%d], s%d offen sc1" % (vFB + 8 * slot, vFB + 8 * slot + 3, vB0, SWS, SWS + 3, sT0))
        a("buffer_load_dwordx4 v[%d:%d], v%d, s[%d:%d], s%d offen sc1" % (vFB + 8 * slot + 4, vFB + 8 * slot + 7, vB1, SWS, SWS + 3, sT0))

    def tr_reads(dst, slot):
        for an, ad in enumerate((vTr0, vTr1)):
            for u in range(2):
                a("ds_read_b64_tr_b16 v[%d:%d], v%d offset:%d" % (dst + 4 * an + 2 * u, dst + 4 * an + 2 * u + 1, ad,
                                                                 slot * 2048 + u * 1024))

    def m1(fa, fb, an, i):
        acc = AC2 + (an * 2 + i) * 16
        a("%s v[%d:%d], v[%d:%d], v[%d:%d], v[%d:%d]" % (MFMA, acc, acc + 15, fa + 4 * an, fa + 4 * an + 3,
                                                        fb + 4 * i, fb + 4 * i + 3, acc, acc + 15))

    def mm(fa, fb):
        for an in (0, 1):
            for i in (0, 1):
                m1(fa, fb, an, i)

    a("s_lshl_b32 s%d, s%d, 14" % (sOffD, sH))
    for j in range(4):
        w_dma(SB, j, sOffD, j * 131072)
    a("s_waitcnt vmcnt(0)")
    for j in range(4):
        tr_reads(vWo + 8 * j, j)
        a("s_waitcnt lgkmcnt(4)")
    a("s_waitcnt lgkmcnt(0)")
    a("s_lshr_b32 s%d, s%d, 1" % (sT0, sMB))
    a("s_lshl_b32 s%d, s%d, 11" % (sT0, sT0))
    a("s_add_u32 s%d, s%d, %d" % (sOffA, sT0, WS_HFL))
    a("s_mov_b32 s%d, 0" % sSpin)
    a.label("L_HP_L")
    a("buffer_load_dword v%d, v%d, s[%d:%d], s%d offen sc1" % (vPoll, vPa, SWS, SWS + 3, sOffA))
    a("s_waitcnt vmcnt(0)")
    a("v_cmp_ne_u32 vcc, s%d, v%d" % (sE, vPoll))
    a("s_cmp_eq_u64 vcc, 0")
    a("s_cbranch_scc1 L_HP_E")
    spin_tail("L_HP_E", 4)
    a("s_branch L_HP_L")
    a.label("L_HP_E")
    stamp("hpoll")
    a("s_mov_b32 s%d, 0" % sOffB)
    a("s_mov_b32 s%d, %d" % (sOffC, 8 * 4096))
    for j in range(4):
        w_dma(SA, j, sOffB, j * 65536)
        b_loads(j, sOffC, j * 4096)
    a("s_mov_b32 s%d, 0" % sIt)
    a.label("L_FFN")
    for j in range(4):
        a("s_waitcnt vmcnt(12)")
        tr_reads(vFA, j)
        a("s_waitcnt lgkmcnt(0)")
        fb = vFB + 8 * j
        m1(vFA, fb, 0, 0)
        a("s_add_u32 m0, s%d, %d" % (sScr, j * 2048))
        a("s_add_u32 s%d, s%d, %d" % (sT0, sOffB, (4 + j) * 65536))
        a("buffer_load_dwordx4 v%d, s[%d:%d], s%d offen lds" % (vWs, SA, SA + 3, sT0))
        m1(vFA, fb, 1, 0)
        a("s_add_u32 m0, s%d, %d" % (sScr, j * 2048 + 1024))
        a("s_add_u32 s%d, s%d, %d" % (sT0, sOffB, (4 + j) * 65536 + 8192))
        a("buffer_load_dwordx4 v%d, s[%d:%d], s%d offen lds" % (vWs, SA, SA + 3, sT0))
        m1(vFA, fb, 0, 1)
        a("s_add_u32 s%d, s%d, %d" % (sT0, sOffC, (4 + j) * 4096))
        a("buffer_load_dwordx4 v[%d:%d], v%d, s[%d:%d], s%d offen sc1" % (fb, fb + 3, vB0, SWS, SWS + 3, sT0))
        m1(vFA, fb, 1, 1)
        a("buffer_load_dwordx4 v[%d:%d], v%d, s[%d:%d], s%d offen sc1" % (fb + 4, fb + 7, vB1, SWS, SWS + 3, sT0))
    a("s_add_u32 s%d, s%d, %d" % (sOffB, sOffB, 4 * 65536))
    a("s_add_u32 s%d, s%d, %d" % (sOffC, sOffC, 4 * 4096))
    a("s_add_u32 s%d, s%d, 1" % (sIt, sIt))
    a("s_cmp_lt_u32 s%d, %d" % (sIt, int(os.environ.get("NFFN", "7"))))
    a("s_cbranch_scc1 L_FFN")
    a("s_waitcnt vmcnt(0)")
    stamp("ffn")
    for j in range(4):
        w_dma(SB, j, sOffD, j * 131072 + 16384)
    a("v_and_b32 v%d, 31, v0" % vT0)
    a("v_lshrrev_b32 v%d, 5, v0" % vT1)
    a("v_and_b32 v%d, 15, v0" % vT3)
    a("v_xor_b32 v%d, v%d, v%d" % (vT1, vT1, vT3))
    a("v_lshlrev_b32 v%d, 8, v%d" % (vT0, vT0))
    a("v_lshl_add_u32 v%d, v%d, 4, v%d" % (vT0, vT1, vT0))
    a("s_lshl_b32 s%d, s%d, 14" % (sT1, sH))
    a("v_add_u32 v%d, s%d, v%d" % (vT0, sT1, vT0))
    for q in range(8):
        a("v_xor_b32 v%d, %d, v%d" % (9 + q, q * 32, vT0))
    a("s_lshl_b32 s%d, s%d, 10" % (sOffC, sH))
    for e in range(2):
        if e == 1:
            a("s_setprio 3")
            a("s_barrier")
            stamp("b3")
        a("s_mov_b32 s%d, 0" % sSpin)
        a.label("L_OP%d_L" % e)
        for j in range(4):
            b_loads(j, sOffC, j * 8192 + e * 1024)
        a("s_waitcnt vmcnt(0)")
        a("v_max3_u32 v%d, v%d, v%d, v%d" % (vT0, vFB, vFB + 1, vFB + 2))
        a("v_max3_u32 v%d, v%d, v%d, v%d" % (vT1, vFB + 3, vFB + 4, vFB + 5))
        for r in range(6, 30, 4):
            a("v_max3_u32 v%d, v%d, v%d, v%d" % (vT0, vFB + r, vFB + r + 1, vT0))
            a("v_max3_u32 v%d, v%d, v%d, v%d" % (vT1, vFB + r + 2, vFB + r + 3, vT1))
        a("v_max3_u32 v%d, v%d, v%d, v%d" % (vT0, vFB + 30, vFB + 31, vT0))
        a("v_max_u32 v%d, v%d, v%d" % (vT0, vT0, vT1))
        a("v_cmp_eq_u32 vcc, -1, v%d" % vT0)
        a("s_cmp_eq_u64 vcc, 0")
        a("s_cbranch_scc1 L_OP%d_E" % e)
        spin_tail("L_OP%d_E" % e, 32 if e == 0 else OSLEEP)
        a("s_branch L_OP%d_L" % e)
        a.label("L_OP%d_E" % e)
        stamp("op%d" % (0 if e == 0 else 7))
        if e == 0:
            for j in range(4):
                mm(vWo + 8 * j, vFB + 8 * j)
            for j in range(4):
                tr_reads(vWo + 8 * j, j)
                a("s_waitcnt lgkmcnt(4)")
            a("s_waitcnt lgkmcnt(0)")
    tiles = [(0, 0), (0, 1), (1, 0), (1, 1)]

    def wr(an, i):
        for q in range(4):
            acc = AC2 + (an * 2 + i) * 16 + 4 * q
            a("ds_write_b128 v%d, v[%d:%d] offset:%d" % (9 + an * 4 + q, acc, acc + 3, i * 8192))
    for t, (an, i) in enumerate(tiles):
        for j in range(4):
            m1(vWo + 8 * j, vFB + 8 * j, an, i)
        if t > 0:
            a.nop(9)
            wr(*tiles[t - 1])
    a.nop(9)
    a("s_waitcnt lgkmcnt(8)")
    wr(*tiles[3])
    a("s_waitcnt lgkmcnt(0)")
    stamp("pw")
    a("s_barrier")
    prof_flush()
    a.label("L_END")
    a("s_endpgm")
    a.lines = a.lines[:mark0] + a.lines[mark1:] + a.lines[mark0:mark1]
    a.label("L_CODE_END")
    if PROF:
        open("stamps.txt", "w").write(" ".join(stamp_names["M"]) + "\n" + " ".join(stamp_names["H"]))
    kernel_desc(a, name, 168, 102)
    return "; @launch grid=(256,1,1) block=(768,1,1) lds=%d" % LDS_BYTES


def main():
    out = sys.argv[1] if len(sys.argv) > 1 else "cdna_kernels/%s.s" % NAME
    a = Asm()
    a.raw(".amdgcn_target \"amdgcn-amd-amdhsa--gfx950\"")
    launch = gen(a)
    hdr = ["; generated by work/gen5.py (hand-designed kernel, laid out by script)", launch]
    open(out, "w").write("\n".join(hdr) + "\n" + a.text())


if __name__ == "__main__":
    main()
```

```python
import sys, math, os
from gen import Asm, f32bits, kernel_begin, kernel_desc, srd, wave_reduce, MFMA, NAME, QSCALE

PROF = int(os.environ.get("PROF", "0"))
PRIO = int(os.environ.get("PRIO", "1"))
DIAG = int(os.environ.get("DIAG", "0"))
TOUCH = int(os.environ.get("TOUCH", "1"))
PREF = int(os.environ.get("PREF", "1"))
OSLEEP = int(os.environ.get("OSLEEP", "1"))
DKPOS = 1
D1LATE = int(os.environ.get("D1LATE", "0"))
PFSPLIT = int(os.environ.get("PFSPLIT", "0"))
GOEARLY = int(os.environ.get("GOEARLY", "1"))
TOUCH2 = int(os.environ.get("TOUCH2", "0"))
DIAG2 = os.environ.get("DIAG2", "")
PFLATE = int(os.environ.get("PFLATE", "1"))
CODEPF = int(os.environ.get("CODEPF", "1"))
HPRIO = int(os.environ.get("HPRIO", "0"))

WS_AF = 2 << 20
WS_KV = 0
WS_G = 0x40000
WS_KFL = 0x50000
WS_HFL = 0x60000
WS_PROF = 32 << 20
WS_SIZE = 268435456
KVBLK = 2048
SPIN_MAX = 1 << 14

BUFSZ = 49152
PB = {2: 0, 0: BUFSZ, 1: 2 * BUFSZ}
OX, OWG, OWU, OWQ = 0, 16384, 30720, 45056
L_TOP = 3 * BUFSZ
L_G8 = L_TOP
L_KMAX = L_TOP + 64
L_GROW = L_TOP + 1024
L_QX = L_TOP + 8192
L_SCR = 131072
LDS_BYTES = 163840
L_GO = L_SCR + 8192 * 4 - 4
NBKV = 3


def gen(a):
    name = NAME + "_kernel"
    kernel_begin(a, name)
    sW, sMT, sNT = 3, 4, 5
    sT0, sT1, sT2, sT3 = 6, 7, 8, 9
    sStepA, sKV, sRB, sE = 10, 11, 12, 13
    sMB, sNB = 14, 15
    P = dict(x=16, wq=18, wk=20, wv=22, wo=24, wg=28, wu=30, wd=32, gw=34, out=36, dbg=38, ws=40)
    SX, SA, SB, SWS, SE, SDBG, SC = 44, 48, 52, 56, 60, 64, 68
    SOUT = 44
    sH = 72
    sM0x, sM0w, sScr = 73, 74, 75
    sVm = 76
    sOffA, sOffB = 78, 79
    sStepB = 80
    sIt, sSkip = 82, 83
    sSpin, sKoff = 26, 27
    sSlot = 42
    sOffC, sOffD = 86, 87
    stamp_names = {"M": [], "H": []}
    role = ["M"]

    def stamp(label):
        if (DIAG or DIAG2) and role[0] == "M" and label in ("bar0", "Bq", "b3"):
            a("s_memrealtime s[84:85]")
            a("s_waitcnt lgkmcnt(0)")
            a("s_mov_b32 s%d, s84" % {"bar0": 90, "Bq": 91, "b3": 92}[label])
        if not PROF:
            return
        lst = stamp_names[role[0]]
        idx = len(lst)
        lst.append(str(label))
        a("s_memtime s[84:85]")
        if (label in ("bar0", "Bq", "b3", "attn") and role[0] == "M") or label == "op7":
            a("s_memrealtime s[98:99]")
        a("s_waitcnt lgkmcnt(0)")
        a("v_writelane_b32 v167, s84, %d" % idx)
        if (label in ("bar0", "Bq", "b3", "attn") and role[0] == "M") or label == "op7":
            a("v_writelane_b32 v167, s98, %d" % {"bar0": 59, "Bq": 60, "b3": 61, "attn": 58, "op7": 58}[label])

    def prof_flush():
        if DIAG2 and role[0] == "M":
            hi, lo, mul = {"total": (84, 88, 1), "bar0": (90, 88, 4), "g1": (91, 90, 2), "attn": (92, 91, 1), "tail": (84, 92, 4)}[DIAG2]
            a("s_waitcnt vmcnt(0)")
            a("s_memrealtime s[84:85]")
            a("s_waitcnt lgkmcnt(0)")
            a("s_sub_u32 s93, s%d, s%d" % (hi, lo))
            a("s_mul_i32 s93, s93, %d" % mul)
            a("s_min_u32 s93, s93, 20000")
            a.label("L_DG")
            a("s_memrealtime s[94:95]")
            a("s_waitcnt lgkmcnt(0)")
            a("s_sub_u32 s94, s94, s84")
            a("s_cmp_lt_u32 s94, s93")
            a("s_cbranch_scc1 L_DG")
        if DIAG and role[0] == "M":
            a("s_waitcnt vmcnt(0)")
            a("s_memrealtime s[84:85]")
            srd(a, SDBG, P['dbg'], P['dbg'] + 1, 256)
            a("s_waitcnt lgkmcnt(0)")
            a("s_cmp_lg_u32 s%d, 7" % sW)
            a("s_cbranch_scc1 L_END")
            a("s_cmp_lt_u32 s2, 248")
            a("s_cbranch_scc1 L_END")
            a("s_and_b32 s93, s2, 7")
            a("s_lshl_b32 s93, s93, 2")
            a("v_mov_b32 v2, 0")
            a("s_mov_b64 exec, 1")
            a("s_sub_u32 s94, s84, s88")
            a("s_and_b32 s95, s88, 0xffff")
            a("s_lshl_b32 s94, s94, 16")
            a("s_or_b32 s94, s94, s95")
            a("v_mov_b32 v3, s94")
            a("buffer_store_dword v3, v2, s[%d:%d], s93 offen offset:32" % (SDBG, SDBG + 3))
            a("s_cmp_lg_u32 s2, 253")
            a("s_cbranch_scc1 L_END")
            for i, sreg in enumerate((90, 91, 92, 84)):
                a("s_sub_u32 s94, s%d, s88" % sreg)
                a("v_mov_b32 v3, s94")
                a("buffer_store_dword v3, v2, s[%d:%d], 0 offen offset:%d" % (SDBG, SDBG + 3, 4 + 4 * i))
                a("s_nop 1")
        if not PROF:
            return
        a("s_waitcnt vmcnt(0)")
        stamp("end")
        a("s_memrealtime s[98:99]")
        a("s_waitcnt lgkmcnt(0)")
        a("v_writelane_b32 v167, s98, 62")
        a("v_writelane_b32 v167, s88, 63")
        a("s_mul_i32 s82, s2, 12")
        a("s_add_u32 s82, s82, s%d" % sW)
        a("s_lshl_b32 s82, s82, 8")
        a("s_add_u32 s82, s82, %d" % WS_PROF)
        a("v_lshlrev_b32 v2, 2, v0")
        a("buffer_store_dword v167, v2, s[%d:%d], s82 offen" % (SWS, SWS + 3))

    def emit(lst):
        for ins in lst:
            a(ins)

    def spin_tail(lbl_end, sleep=1):
        a("s_add_u32 s%d, s%d, 1" % (sSpin, sSpin))
        a("s_cmp_ge_u32 s%d, %d" % (sSpin, SPIN_MAX))
        a("s_cbranch_scc1 %s" % lbl_end)
        a("s_sleep %d" % sleep)

    vL16 = 1
    vT0, vT1, vT2, vT3, vT4 = 21, 22, 23, 24, 25

    a("s_cmp_ge_u32 s2, 256")
    a("s_cbranch_scc1 L_END")
    a("s_load_dwordx16 s[16:31], s[0:1], 0")
    a("s_load_dwordx8 s[32:39], s[0:1], 64")
    a("s_load_dwordx2 s[40:41], s[0:1], 96")
    a("s_memrealtime s[88:89]")
    if PROF:
        a("s_memtime s[84:85]")
        a("s_waitcnt lgkmcnt(0)")
        a("v_writelane_b32 v167, s84, 0")
        stamp_names["M"].append("start")
        stamp_names["H"].append("start")
    a("v_lshrrev_b32 v1, 6, v0")
    a("v_and_b32 v0, 63, v0")
    a("v_readfirstlane_b32 s%d, v1" % sW)
    a("s_and_b32 s%d, s2, 7" % sT0)
    a("s_lshr_b32 s%d, s2, 3" % sT1)
    a("s_and_b32 s%d, s%d, 1" % (sMT, sT0))
    a("s_lshl_b32 s%d, s%d, 3" % (sMT, sMT))
    a("s_and_b32 s%d, s%d, 7" % (sT2, sT1))
    a("s_add_u32 s%d, s%d, s%d" % (sMT, sMT, sT2))
    a("s_lshr_b32 s%d, s%d, 1" % (sNT, sT0))
    a("s_lshl_b32 s%d, s%d, 2" % (sNT, sNT))
    a("s_lshr_b32 s%d, s%d, 3" % (sT2, sT1))
    a("s_add_u32 s%d, s%d, s%d" % (sNT, sNT, sT2))
    a("s_lshl_b32 s%d, s%d, 2" % (sMB, sT0))
    a("s_and_b32 s%d, s%d, 3" % (sT2, sT1))
    a("s_add_u32 s%d, s%d, s%d" % (sMB, sMB, sT2))
    a("s_lshr_b32 s%d, s%d, 2" % (sNB, sT1))
    a("v_lshlrev_b32 v%d, 4, v0" % vL16)
    a("s_cmp_ge_u32 s%d, 8" % sW)
    a("s_cbranch_scc1 L_HELPER")
    if TOUCH:
        a("s_cmp_ge_u32 s%d, 4" % sW)
        a("s_cbranch_scc1 L_NOTOUCH")
        a("s_waitcnt lgkmcnt(0)")
        a("s_mov_b32 s%d, s%d" % (SE, P['x']))
        a("s_mov_b32 s%d, s%d" % (SE + 1, P['x'] + 1))
        for k, pp in ((1, P['wg']), (2, P['wu']), (3, P['wq'])):
            a("s_cmp_eq_u32 s%d, %d" % (sW, k))
            a("s_cselect_b32 s%d, s%d, s%d" % (SE, pp, SE))
            a("s_cselect_b32 s%d, s%d, s%d" % (SE + 1, pp + 1, SE + 1))
        a("s_mov_b32 s%d, 1024" % (SE + 2))
        a("s_mov_b32 s%d, 0x20000" % (SE + 3))
        a("v_mov_b32 v2, 0")
        a("s_mov_b64 exec, 1")
        a("buffer_load_dword v160, v2, s[%d:%d], 0 offen" % (SE, SE + 3))
        a("s_mov_b64 exec, -1")
        a.label("L_NOTOUCH")
    if PREF:
        a("s_waitcnt lgkmcnt(0)")
        a("s_mov_b32 s%d, 0x20000" % (SE + 3))
        a("s_lshl_b32 s%d, s%d, 4" % (sT0, sMT))
        a("s_add_u32 s%d, s%d, s%d" % (sT0, sT0, sNT))
        a("s_lshl_b32 s%d, s%d, 3" % (sT0, sT0))
        a("s_add_u32 s%d, s%d, s%d" % (sT0, sT0, sW))
        a("s_lshl_b32 s%d, s%d, 10" % (sT0, sT0))
        a("s_mov_b32 s%d, s%d" % (SE, P['x']))
        a("s_mov_b32 s%d, s%d" % (SE + 1, P['x'] + 1))
        a("s_mov_b32 s%d, 0x200000" % (SE + 2))
        a("buffer_load_dwordx4 v[128:131], v%d, s[%d:%d], s%d offen" % (vL16, SE, SE + 3, sT0))
        a("s_cmp_eq_u32 s%d, 7" % sW)
        a("s_cbranch_scc1 L_PF7")
        def wpf():
            a("s_mul_i32 s%d, s2, 7" % sT0)
            a("s_add_u32 s%d, s%d, s%d" % (sT0, sT0, sW))
            a("s_lshl_b32 s%d, s%d, 10" % (sT0, sT0))
            a("s_mov_b32 s%d, 0x1c0000" % (SE + 2))
            a("s_mov_b32 s%d, 0x20000" % (SE + 3))
            for nm in ('wg', 'wu'):
                a("s_mov_b32 s%d, s%d" % (SE, P[nm]))
                a("s_mov_b32 s%d, s%d" % (SE + 1, P[nm] + 1))
                a("buffer_load_dwordx4 v[160:163], v%d, s[%d:%d], s%d offen" % (vL16, SE, SE + 3, sT0))
        if PFSPLIT:
            a("s_cmp_ge_u32 s2, %d" % PFSPLIT)
            a("s_cbranch_scc1 L_PFE")
        wpf()
        a("s_branch L_PFE")
        a.label("L_PF7")
        a("s_lshl_b32 s%d, s2, 11" % sT0)
        a("s_mov_b32 s%d, 0x80000" % (SE + 2))
        if CODEPF:
            a("s_getpc_b64 s[90:91]")
            a.label("L_PC")
            a("s_sub_u32 s90, s90, L_PC-%s" % name)
            a("s_subb_u32 s91, s91, 0")
            a("s_lshr_b32 s%d, s2, 3" % sT1)
            a("s_lshl_b32 s%d, s%d, 10" % (sT1, sT1))
            a("v_add_u32 v2, s%d, v%d" % (sT1, vL16))
            a("v_cmp_gt_u32 vcc, L_CODE_END-%s-16, v2" % name)
            a("s_and_saveexec_b64 s[92:93], vcc")
            a("s_cbranch_execz L_PCX")
            a("global_load_dwordx4 v[160:163], v2, s[90:91]")
            a.label("L_PCX")
            a("s_mov_b64 exec, -1")
        for nm in (('wq',) if PFLATE else ('wq', 'wo')):
            a("s_mov_b32 s%d, s%d" % (SE, P[nm]))
            a("s_mov_b32 s%d, s%d" % (SE + 1, P[nm] + 1))
            a("buffer_load_dwordx4 v[160:163], v%d, s[%d:%d], s%d offen" % (vL16, SE, SE + 3, sT0))
            a("buffer_load_dwordx4 v[160:163], v%d, s[%d:%d], s%d offen offset:1024" % (vL16, SE, SE + 3, sT0))
        a.label("L_PFE")
        a("s_mov_b32 s%d, s%d" % (SE, P['gw']))
        a("s_mov_b32 s%d, s%d" % (SE + 1, P['gw'] + 1))
        a("s_mov_b32 s%d, 1024" % (SE + 2))
        a("buffer_load_dwordx4 v[132:135], v%d, s[%d:%d], 0 offen" % (vL16, SE, SE + 3))
    if TOUCH2:
        a("s_mov_b32 s%d, 0x20000" % (SE + 3))
        a("s_mov_b32 s%d, 4" % (SE + 2))
        a("s_mov_b32 s%d, s%d" % (SE, P['ws']))
        a("s_mov_b32 s%d, s%d" % (SE + 1, P['ws'] + 1))
        a("s_mov_b32 s%d, 0" % sT0)
        for k, pp in enumerate((P['wk'], P['wv'], P['dbg'], P['out'], P['wd'])):
            a("s_cmp_eq_u32 s%d, %d" % (sW, k))
            a("s_cselect_b32 s%d, s%d, s%d" % (SE, pp, SE))
            a("s_cselect_b32 s%d, s%d, s%d" % (SE + 1, pp + 1, SE + 1))
        a("s_mul_i32 s%d, s%d, %d" % (sT1, sMT, 4 * 144 * 1024))
        a("s_add_u32 s%d, s%d, %d" % (sT1, sT1, WS_AF + 288 * 1024))
        a("s_cmp_eq_u32 s%d, 6" % sW)
        a("s_cselect_b32 s%d, s%d, s%d" % (sT0, sT1, sT0))
        a("s_mul_i32 s%d, s%d, %d" % (sT1, sMB, 2 * 144 * 1024))
        a("s_add_u32 s%d, s%d, %d" % (sT1, sT1, WS_AF + 144 * 1024))
        a("s_cmp_eq_u32 s%d, 7" % sW)
        a("s_cselect_b32 s%d, s%d, s%d" % (sT0, sT1, sT0))
        a("s_add_u32 s%d, s%d, s%d" % (SE, SE, sT0))
        a("s_addc_u32 s%d, s%d, 0" % (SE + 1, SE + 1))
        a("v_mov_b32 v2, 0")
        a("s_mov_b64 exec, 1")
        a("buffer_load_dword v160, v2, s[%d:%d], 0 offen sc1" % (SE, SE + 3))
        a("s_mov_b64 exec, -1")
    a("s_branch L_MAIN")
    a.label("L_HELPER")
    mark0 = len(a.lines)
    a.label("L_MAIN")

    vXr = [8, 9, 10, 11]
    vW0 = 12
    vW1 = list(range(13, 21))
    vGq = 26
    vGm = [28, 30]
    FR = [32, 48]
    ACC = 64
    vKa, vVa = 2, 3
    vQ = 4
    vKF = [8, 12]
    vS = [32, 48]
    vVF = [64, 72]
    vP = 80
    vO = 128
    vC = 144
    NB = int(os.environ.get("NB", "8"))
    b0 = PB[0]
    a("s_lshr_b32 s%d, s%d, 2" % (sT0, sW))
    a("s_lshl_b32 s%d, s%d, 13" % (sT0, sT0))
    a("s_add_u32 s%d, s%d, %d" % (sT0, sT0, b0 + OX))
    a("v_and_b32 v%d, 31, v0" % vT0)
    a("v_lshlrev_b32 v%d, 7, v%d" % (vT0, vT0))
    a("v_lshrrev_b32 v%d, 5, v0" % vT1)
    a("v_bfe_u32 v%d, v0, 1, 3" % vT3)
    a("v_xor_b32 v%d, v%d, v%d" % (vT3, vT3, vT1))
    a("v_lshl_add_u32 v%d, v%d, 4, v%d" % (vT0, vT3, vT0))
    for ks in range(4):
        a("v_xor_b32 v%d, %d, v%d" % (vT2, ks * 32, vT0))
        a("v_add_u32 v%d, s%d, v%d" % (vXr[ks], sT0, vT2))
    a("v_bfe_u32 v%d, v0, 2, 2" % vT2)
    a("v_lshl_add_u32 v%d, v%d, 3, v%d" % (vT3, vT1, vT2))
    a("v_and_b32 v%d, 3, v0" % vT2)
    a("v_bfe_u32 v%d, v0, 4, 1" % vT4)
    a("v_mul_u32_u24 v%d, 0xe0, v%d" % (vT0, vT3))
    a("v_lshl_add_u32 v%d, v%d, 3, v%d" % (vT0, vT2, vT0))
    a("s_and_b32 s%d, s%d, 3" % (sT1, sW))
    a("s_lshl_b32 s%d, s%d, 6" % (sT0, sT1))
    a("s_add_u32 s%d, s%d, %d" % (sT0, sT0, b0 + OWG))
    a("s_movk_i32 s%d, %d" % (sT2, OWU - OWG - 96))
    a("s_cmp_lt_u32 s%d, 2" % sT1)
    a("s_cselect_b32 s%d, %d, s%d" % (sT3, OWU - OWG + 128, sT2))
    a("v_mul_u32_u24 v%d, s%d, v%d" % (vT1, sT3, vT4))
    a("v_add3_u32 v%d, v%d, v%d, s%d" % (vW0, vT0, vT1, sT0))
    a("s_cmp_eq_u32 s%d, 3" % sT1)
    a("s_cbranch_scc1 L_W1_Q")
    a("s_cmp_lt_u32 s%d, 1" % sT1)
    a("s_cselect_b32 s%d, %d, s%d" % (sT3, OWU - OWG + 128, sT2))
    a("v_mul_u32_u24 v%d, s%d, v%d" % (vT1, sT3, vT4))
    a("v_add3_u32 v%d, v%d, v%d, s%d" % (vT0, vT0, vT1, sT0))
    for q in range(8):
        ks, u = q >> 1, q & 1
        a("v_add_u32 v%d, %d, v%d" % (vW1[q], 32 + (16 * ks + 4 * u) * 224, vT0))
    a("s_branch L_W1_E")
    a.label("L_W1_Q")
    a("v_lshlrev_b32 v%d, 6, v%d" % (vT0, vT3))
    a("v_lshl_add_u32 v%d, v%d, 3, v%d" % (vT0, vT2, vT0))
    a("v_lshl_add_u32 v%d, v%d, 5, v%d" % (vT0, vT4, vT0))
    for q in range(8):
        ks, u = q >> 1, q & 1
        a("v_add_u32 v%d, %d, v%d" % (vW1[q], b0 + OWQ + (16 * ks + 4 * u) * 64, vT0))
    a.label("L_W1_E")
    for r in list(range(vC, vC + 16)) + list(range(vO + 8, vO + 16)):
        a("v_mov_b32 v%d, 0" % r)
    a("v_mov_b32 v%d, v%d" % (vKa, vL16))
    a("v_lshrrev_b32 v%d, 5, v0" % vT0)
    a("v_and_b32 v%d, 15, v0" % vT1)
    a("v_lshlrev_b32 v%d, 8, v%d" % (vT2, vT0))
    a("v_lshl_add_u32 v%d, v%d, 4, v%d" % (vT2, vT1, vT2))
    a("v_add_u32 v%d, 1024, v%d" % (vVa, vT2))
    a("v_and_b32 v%d, 27, v0" % vT0)
    a("v_cmp_eq_u32 vcc, 16, v%d" % vT0)
    a("v_mov_b32 v%d, 0x3f803f80" % vT0)
    a("s_mov_b32 s%d, 0x0000ffff" % sVm)
    a("s_mov_b32 s%d, 0x0000ffff" % (sVm + 1))
    a("v_cndmask_b32 v27, 0, v%d, vcc" % vT0)
    a("v_and_b32 v%d, 31, v0" % vT0)
    a("s_lshr_b32 s%d, s%d, 2" % (sT0, sW))
    a("s_lshl_b32 s%d, s%d, 8" % (sT0, sT0))
    a("s_add_u32 s%d, s%d, %d" % (sT0, sT0, L_GROW))
    a("v_lshl_add_u32 v4, v%d, 2, s%d" % (vT0, sT0))
    a("s_and_b32 s%d, s%d, 3" % (sT0, sW))
    a("s_lshl_b32 s%d, s%d, 1" % (sT0, sT0))
    a("s_lshr_b32 s%d, s%d, 2" % (sT1, sW))
    a("s_add_u32 s%d, s%d, s%d" % (sT0, sT0, sT1))
    a("s_lshl_b32 s%d, s%d, 10" % (sT0, sT0))
    a("s_add_u32 s%d, s%d, %d" % (sT0, sT0, L_QX))
    a("v_add_u32 v5, s%d, v%d" % (sT0, vL16))
    a("v_mov_b32 v6, %d" % L_KMAX)
    a("s_lshr_b32 s%d, s%d, 2" % (sT0, sW))
    a("s_lshl_b32 s%d, s%d, 1" % (sT0, sT0))
    a("s_lshl_b32 s%d, s%d, 2" % (sT1, sMT))
    a("s_add_u32 s%d, s%d, s%d" % (sT0, sT0, sT1))
    a("s_mul_i32 s%d, s%d, 144" % (sT0, sT0))
    a("s_mul_i32 s%d, s%d, 7" % (sT1, sNT))
    a("s_add_u32 s%d, s%d, s%d" % (sT0, sT0, sT1))
    a("s_and_b32 s%d, s%d, 3" % (sT2, sW))
    a("s_lshl_b32 s%d, s%d, 1" % (sT1, sT2))
    a("s_add_u32 s%d, s%d, s%d" % (sT0, sT0, sT1))
    a("s_lshl_b32 s%d, s%d, 10" % (sT0, sT0))
    a("s_add_u32 s%d, s%d, %d" % (sOffA, sT0, WS_AF + 32 * 1024))
    a("s_add_u32 s%d, s%d, %d" % (sOffB, sOffA, 144 * 1024))
    a("s_and_b32 s%d, s%d, 3" % (sT0, sW))
    a("s_lshl_b32 s%d, s%d, 2" % (sT1, sMT))
    a("s_add_u32 s%d, s%d, s%d" % (sT0, sT0, sT1))
    a("s_mul_i32 s%d, s%d, 144" % (sT0, sT0))
    a("s_lshl_b32 s%d, s%d, 1" % (sT1, sNT))
    a("s_add_u32 s%d, s%d, s%d" % (sT0, sT0, sT1))
    a("s_lshr_b32 s%d, s%d, 2" % (sT1, sW))
    a("s_add_u32 s%d, s%d, s%d" % (sT0, sT0, sT1))
    a("s_lshl_b32 s%d, s%d, 10" % (sT0, sT0))
    a("s_add_u32 s%d, s%d, %d" % (sOffC, sT0, WS_AF))
    a("s_and_b32 s%d, s%d, 3" % (sT0, sW))
    a("s_lshl_b32 s%d, s%d, 7" % (sT0, sT0))
    a("s_add_u32 s%d, s%d, %d" % (sT0, sT0, L_GROW))
    a("v_lshl_add_u32 v7, v%d, 2, s%d" % (vT0, sT0))
    a("s_waitcnt lgkmcnt(0)")
    srd(a, SWS, P['ws'], P['ws'] + 1, WS_SIZE)
    srd(a, SOUT, P['out'], P['out'] + 1, 2097152)
    SXm = 48
    mGX, mGW = 128, 132
    srd(a, SXm, P['x'], P['x'] + 1, 2097152)
    srd(a, SE, P['gw'], P['gw'] + 1, 1024)
    a("s_lshl_b32 s%d, s%d, 4" % (sT0, sMT))
    a("s_add_u32 s%d, s%d, s%d" % (sT0, sT0, sNT))
    a("s_lshl_b32 s%d, s%d, 3" % (sT0, sT0))
    a("s_add_u32 s%d, s%d, s%d" % (sT0, sT0, sW))
    a("s_lshl_b32 s%d, s%d, 10" % (sT0, sT0))
    a("s_lshl_b32 s%d, s%d, 2" % (sT1, sW))
    a("s_add_u32 s%d, s%d, %d" % (sT1, sT1, L_G8))
    a("v_mov_b32 v%d, s%d" % (vGq, sT1))

    def g_loads():
        a("buffer_load_dwordx4 v[%d:%d], v%d, s[%d:%d], s%d offen" % (mGX, mGX + 3, vL16, SXm, SXm + 3, sT0))
        a("buffer_load_dwordx4 v[%d:%d], v%d, s[%d:%d], 0 offen" % (mGW, mGW + 3, vL16, SE, SE + 3))

    def g_job():
        a("s_waitcnt vmcnt(0)")
        a("v_mov_b32 v%d, 0" % vT0)
        for j in range(4):
            a("v_dot2_f32_bf16 v%d, v%d, v%d, v%d" % (vT0, mGX + j, mGW + j, vT0))
        for r in range(8):
            a("v_mov_b32 v%d, 0" % (vO + r))
        a("v_mov_b32 v%d, v%d" % (vT1, vT0))
        wave_reduce(a, "v_add_f32", vT1)
        a("v_mul_f32 v%d, 0x%08x, v%d" % (vT1, f32bits(-math.log2(math.e)), vT1))
        a("v_exp_f32 v%d, v%d" % (vT1, vT1))
        a.nop(1)
        a("v_add_f32 v%d, 1.0, v%d" % (vT1, vT1))
        a("v_rcp_f32 v%d, v%d" % (vT1, vT1))
        a("s_mov_b32 exec_lo, 0")
        a("s_mov_b32 exec_hi, 0x80000000")
        a("ds_write_b32 v%d, v%d" % (vGq, vT1))
        a("s_mov_b64 exec, -1")

    def rd_list(ks, fs):
        f = FR[fs]
        return [
            "ds_read_b128 v[%d:%d], v%d" % (f, f + 3, vXr[ks]),
            "ds_read_b64_tr_b16 v[%d:%d], v%d offset:%d" % (f + 8, f + 9, vW0, (16 * ks) * 224),
            "ds_read_b64_tr_b16 v[%d:%d], v%d offset:%d" % (f + 10, f + 11, vW0, (16 * ks + 4) * 224),
            "ds_read_b128 v[%d:%d], v%d offset:4096" % (f + 4, f + 7, vXr[ks]),
            "ds_read_b64_tr_b16 v[%d:%d], v%d" % (f + 12, f + 13, vW1[2 * ks]),
            "ds_read_b64_tr_b16 v[%d:%d], v%d" % (f + 14, f + 15, vW1[2 * ks + 1]),
        ]

    def mfmas(fs, first):
        f = FR[fs]
        out = []
        for an in (0, 1):
            for i in (0, 1):
                acc = ACC + (an * 2 + i) * 16
                c = "0" if first else "v[%d:%d]" % (acc, acc + 15)
                out.append("%s v[%d:%d], v[%d:%d], v[%d:%d], %s" % (MFMA, acc, acc + 15, f + 8 + an * 4, f + 11 + an * 4,
                                                                   f + i * 4, f + i * 4 + 3, c))
        return out

    def adv(s, regs):
        d = PB[(s + 1) % 3] - PB[s % 3]
        return ["v_add_u32 v%d, %d, v%d" % (r, d, r) if d >= 0 else "v_subrev_u32 v%d, %d, v%d" % (r, -d, r) for r in regs]

    if PFSPLIT:
        a("s_cmp_lt_u32 s2, %d" % PFSPLIT)
        a("s_cbranch_scc1 L_PF2E")
        a("s_cmp_eq_u32 s%d, 7" % sW)
        a("s_cbranch_scc1 L_PF2E")
        wpf()
        a.label("L_PF2E")
    stamp("pro")
    a("s_barrier")
    stamp("bar0")
    emit(rd_list(0, 0))
    fs = 0
    for s in range(8):
        for ks in range(4):
            ms = mfmas(fs, s == 0 and ks == 0)
            if ks < 3:
                nxt = rd_list(ks + 1, fs ^ 1)
                for q in range(4):
                    if q < 3:
                        a("s_waitcnt lgkmcnt(%d)" % (3 if q == 0 else 4))
                    a(ms[q])
                    emit(nxt[2 * q:2 * q + 2])
                    if s < 7 and q == 3:
                        regs = [vXr[ks], vW1[2 * ks], vW1[2 * ks + 1]]
                        if ks == 2:
                            regs += [vXr[3], vW1[6], vW1[7], vW0]
                        emit(adv(s, regs))
            else:
                if s < 7:
                    a("s_waitcnt lgkmcnt(3)")
                    a(ms[0])
                    a("s_waitcnt lgkmcnt(0)")
                    stamp("s%dv" % s)
                    a("s_barrier")
                    stamp("s%db" % s)
                    nxt = rd_list(0, fs ^ 1)
                    emit(nxt[0:3])
                    a(ms[1])
                    emit(nxt[3:6])
                    a(ms[2])
                    a(ms[3])
                    if s == 1:
                        g_job()
                else:
                    a("ds_read_b32 v%d, v4" % vGm[0])
                    a("ds_read_b32 v%d, v4 offset:128" % vGm[1])
                    a("ds_read_b32 v%d, v7" % vGq)
                    a("s_waitcnt lgkmcnt(6)")
                    a(ms[0])
                    a("s_waitcnt lgkmcnt(3)")
                    emit(ms[1:])
            fs ^= 1
    stamp("g1end")
    a("s_bitcmp1_b32 s%d, 1" % sW)
    a("s_cselect_b64 vcc, -1, 0")
    a("v_mov_b32 v8, -1")
    a("v_mov_b32 v9, -1")
    a("v_mov_b32 v10, -1")
    a("v_mov_b32 v11, -1")
    a("s_waitcnt lgkmcnt(0)")
    a("buffer_store_dwordx4 v[8:11], v%d, s[%d:%d], s%d offen sc1" % (vL16, SWS, SWS + 3, sOffC))
    a("v_sub_f32 v%d, 1.0, v%d" % (vGm[0], vGm[0]))
    a("v_sub_f32 v%d, 1.0, v%d" % (vGm[1], vGm[1]))
    a("v_mov_b32 v%d, v%d" % (vGm[0] + 1, vGm[0]))
    a("v_mov_b32 v%d, v%d" % (vGm[1] + 1, vGm[1]))

    def h_tile(an, i, d):
        t = ACC + (an * 2 + i) * 16
        for r in range(0, 8, 2):
            a("v_pk_mul_f32 v[%d:%d], v[%d:%d], v[%d:%d]" % (t + r, t + r + 1, t + r, t + r + 1, t + 8 + r, t + 9 + r))
        for r in range(0, 8, 2):
            a("v_pk_mul_f32 v[%d:%d], v[%d:%d], v[%d:%d]" % (t + r, t + r + 1, t + r, t + r + 1, vGm[i], vGm[i] + 1))
        for j in range(4):
            a("v_cvt_pk_bf16_f32 v%d, v%d, v%d" % (d + j, t + 2 * j, t + 2 * j + 1))
        a("buffer_store_dwordx4 v[%d:%d], v%d, s[%d:%d], s%d offen offset:%d sc1" % (d, d + 3, vL16, SWS, SWS + 3,
                                                                                    sOffA if i == 0 else sOffB, an * 1024))

    a("s_cmp_eq_u32 s%d, 3" % sT2)
    a("s_cbranch_scc1 L_EPI_Q")
    h_tile(1, 0, ACC + 40)
    h_tile(1, 1, ACC + 56)
    a("s_branch L_EPI_C")
    a.label("L_EPI_Q")
    a("v_mov_b32 v24, 0x%08x" % f32bits(QSCALE))
    a("v_mov_b32 v25, 0x%08x" % f32bits(QSCALE))
    a("s_lshr_b32 s%d, s%d, 2" % (sT2, sW))
    a("s_lshl_b32 s%d, s%d, 12" % (sT2, sT2))
    a("s_add_u32 s%d, s%d, %d" % (sT2, sT2, L_QX))
    a("v_add_u32 v%d, s%d, v%d" % (vT0, sT2, vL16))
    for i in (0, 1):
        t = ACC + (2 + i) * 16
        for r in range(0, 16, 2):
            a("v_pk_mul_f32 v[%d:%d], v[%d:%d], v[24:25]" % (t + r, t + r + 1, t + r, t + r + 1))
        d = FR[0] + 8 * i
        for j in range(8):
            a("v_cvt_pk_bf16_f32 v%d, v%d, v%d" % (d + j, t + 2 * j, t + 2 * j + 1))
        a("ds_write_b128 v%d, v[%d:%d] offset:%d" % (vT0, d, d + 3, i * 2048))
        a("ds_write_b128 v%d, v[%d:%d] offset:%d" % (vT0, d + 4, d + 7, i * 2048 + 1024))
    a.label("L_EPI_C")
    h_tile(0, 0, ACC + 44)
    h_tile(0, 1, ACC + 60)
    for r in range(16):
        a("v_mov_b32 v%d, v27" % (vVF[0] + r))
    a("v_mov_b32 v%d, v5" % vT0)
    a("v_mov_b32 v%d, v6" % vT1)
    a("s_waitcnt lgkmcnt(0)")
    a("s_barrier")
    stamp("Bq")
    a("ds_read_b128 v[%d:%d], v%d" % (vQ, vQ + 3, vT0))
    a("ds_read_b32 v%d, v%d" % (vT4, vT1))

    inloop = [False]

    def rdK(buf, off):
        if inloop[0] and "nolds" in os.environ.get("X", ""):
            return
        a("ds_read_b128 v[%d:%d], v%d offset:%d" % (vKF[buf], vKF[buf] + 3, vKa, off))

    def rdV(buf, off):
        if inloop[0] and ("nolds" in os.environ.get("X", "") or "nov" in os.environ.get("X", "")):
            return
        ne = "noexec" in os.environ.get("X", "")
        if not ne:
            a("s_mov_b64 exec, s[%d:%d]" % (sVm, sVm + 1))
        a("ds_read_b128 v[%d:%d], v%d offset:%d" % (vVF[buf], vVF[buf] + 3, vVa, off))
        a("ds_read_b128 v[%d:%d], v%d offset:%d" % (vVF[buf] + 4, vVF[buf] + 7, vVa, off + 512))
        if not ne:
            a("s_mov_b64 exec, -1")

    X = os.environ.get("X", "")

    def mS(sbuf, kbuf):
        if "czero" in X:
            a("%s v[%d:%d], v[%d:%d], v[%d:%d], 0" % (MFMA, vS[sbuf], vS[sbuf] + 15, vKF[kbuf], vKF[kbuf] + 3, vQ, vQ + 3))
            return
        a("%s v[%d:%d], v[%d:%d], v[%d:%d], v[%d:%d]" % (MFMA, vS[sbuf], vS[sbuf] + 15, vKF[kbuf], vKF[kbuf] + 3,
                                                        vQ, vQ + 3, vC, vC + 15))

    def mPV(vbuf, t):
        if "nopv" in X:
            return
        if "pv16" in X:
            a("v_mfma_f32_16x16x32_bf16 v[%d:%d], v[%d:%d], v[%d:%d], v[%d:%d]" % (vO + 4 * t, vO + 4 * t + 3, vKF[0], vKF[0] + 3,
                                                        vP + 4 * t, vP + 4 * t + 3, vO + 4 * t, vO + 4 * t + 3))
            return
        a("%s v[%d:%d], v[%d:%d], v[%d:%d], v[%d:%d]" % (MFMA, vO, vO + 15, vVF[vbuf] + 4 * t, vVF[vbuf] + 4 * t + 3,
                                                        vP + 4 * t, vP + 4 * t + 3, vO, vO + 15))

    def E(sb, r):
        a("v_exp_f32 v%d, v%d" % (vS[sb] + r, vS[sb] + r))

    def C(sb, j):
        a("v_cvt_pk_bf16_f32 v%d, v%d, v%d" % (vP + j, vS[sb] + 2 * j, vS[sb] + 2 * j + 1))

    rdK(0, 0)
    rdK(1, KVBLK)
    rdV(0, 0)
    a("s_waitcnt lgkmcnt(4)")
    a("v_mov_b32 v%d, 0" % vT3)
    for j in range(4):
        a("v_dot2_f32_bf16 v%d, v%d, v%d, v%d" % (vT3, vQ + j, vQ + j, vT3))
    a("s_mov_b32 s%d, 0x%08x" % (sT1, f32bits(900.0)))
    a("s_mov_b32 s%d, %d" % (sSkip, {4: 3, 8: 2, 16: 1}[NB]))
    a("s_mov_b32 s%d, 0" % sIt)
    a.nop(1)
    a("v_mov_b32 v%d, v%d" % (vT2, vT3))
    a.nop(2)
    a("v_permlane32_swap_b32 v%d, v%d" % (vT3, vT2))
    a.nop(1)
    a("v_add_f32 v%d, v%d, v%d" % (vT3, vT3, vT2))
    a("v_mul_f32 v%d, v%d, v%d" % (vT3, vT4, vT3))
    a("v_cmp_nge_f32 vcc, s%d, v%d" % (sT1, vT3))
    a("s_cmp_eq_u64 vcc, 0")
    a("s_cbranch_scc1 L_FAST")
    a("s_waitcnt vmcnt(0)")
    a("s_barrier")
    a("s_mov_b32 s%d, 99" % sSkip)
    a("v_mov_b32 v%d, 0xff800000" % vT0)
    a("v_mov_b32 v%d, v%d" % (vT1, vL16))
    a.label("L_MAXLOOP")
    a("ds_read_b128 v[%d:%d], v%d" % (vP, vP + 3, vT1))
    a("v_add_u32 v%d, %d, v%d" % (vT1, KVBLK, vT1))
    a("s_waitcnt lgkmcnt(0)")
    a("%s v[%d:%d], v[%d:%d], v[%d:%d], 0" % (MFMA, vS[0], vS[0] + 15, vP, vP + 3, vQ, vQ + 3))
    a.nop(16)
    for j in range(8):
        a("v_max3_f32 v%d, v%d, v%d, v%d" % (vT0, vS[0] + 2 * j, vS[0] + 2 * j + 1, vT0))
    a("s_add_u32 s%d, s%d, 1" % (sIt, sIt))
    a("s_cmp_lt_u32 s%d, 64" % sIt)
    a("s_cbranch_scc1 L_MAXLOOP")
    a("v_mov_b32 v%d, v%d" % (vT1, vT0))
    a("s_mov_b32 s%d, 0" % sIt)
    a.nop(1)
    a("v_permlane32_swap_b32 v%d, v%d" % (vT0, vT1))
    a.nop(2)
    a("v_max_f32 v%d, v%d, v%d" % (vT0, vT0, vT1))
    for r in range(16):
        a("v_sub_f32 v%d, 0, v%d" % (vC + r, vT0))
    a.label("L_FAST")
    a("s_setprio 1")
    a("s_cmp_lt_u32 s%d, 4" % sW)
    a("s_cbranch_scc0 L_NOPRIO")
    a("s_setprio 2")
    a.label("L_NOPRIO")
    for r in range(12, 16):
        a("v_mov_b32 v%d, 0" % (vS[1] + r))
    a("v_mov_b32 v%d, 0" % (vP + 4))
    a("v_mov_b32 v%d, 0" % (vP + 5))
    a("s_waitcnt lgkmcnt(0)")
    mS(0, 0)
    a.nop(12)
    a.label("L_LOOP")
    inloop[0] = True
    for bb in range(NB):
        p = bb & 1
        off = bb * KVBLK
        E(p, 0)
        E(p, 1)
        C(p ^ 1, 6)
        C(p ^ 1, 7)
        E(p, 2)
        E(p, 3)
        mPV(p ^ 1, 1)
        rdV(p ^ 1, off + KVBLK)
        E(p, 4)
        E(p, 5)
        C(p, 0)
        C(p, 1)
        a("s_waitcnt lgkmcnt(2)")
        mS(p ^ 1, p ^ 1)
        rdK(p, off + 2 * KVBLK)
        E(p, 6)
        E(p, 7)
        E(p, 8)
        E(p, 9)
        C(p, 2)
        C(p, 3)
        E(p, 10)
        E(p, 11)
        mPV(p, 0)
        E(p, 12)
        E(p, 13)
        C(p, 4)
        C(p, 5)
        E(p, 14)
        E(p, 15)
    a("v_add_u32 v%d, %d, v%d" % (vKa, NB * KVBLK, vKa))
    a("v_add_u32 v%d, %d, v%d" % (vVa, NB * KVBLK, vVa))
    a("s_add_u32 s%d, s%d, 1" % (sIt, sIt))
    a("s_cmp_lg_u32 s%d, s%d" % (sIt, sSkip))
    a("s_cbranch_scc1 L_NOBKV")
    a("s_waitcnt vmcnt(0)")
    a("s_barrier")
    stamp("bkv")
    a.label("L_NOBKV")
    a("s_cmp_lt_u32 s%d, %d" % (sIt, 64 // NB))
    a("s_cbranch_scc1 L_LOOP")
    if os.environ.get("REPEAT"):
        inloop[0] = False
        a("s_cmp_eq_u32 s%d, 98" % sSkip)
        a("s_cbranch_scc1 L_RPT_E")
        a("s_mov_b32 s%d, 98" % sSkip)
        a("s_mov_b32 s%d, 0" % sIt)
        a.nop(16)
        for r in range(16):
            a("v_mov_b32 v%d, 0" % (vO + r))
        a("v_subrev_u32 v%d, %d, v%d" % (vKa, 64 * KVBLK, vKa))
        a("v_subrev_u32 v%d, %d, v%d" % (vVa, 64 * KVBLK, vVa))
        a("s_waitcnt lgkmcnt(0)")
        rdK(0, 0)
        rdK(1, KVBLK)
        rdV(0, 0)
        a("s_branch L_FAST")
        a.label("L_RPT_E")
    C(1, 6)
    C(1, 7)
    a.nop(2)
    mPV(1, 1)
    stamp("attn")
    a.nop(13)
    a("v_rcp_f32 v%d, v%d" % (vT0, vO + 8))
    a("v_lshrrev_b32 v%d, 3, v0" % vT4)
    a("v_mul_f32 v%d, v%d, v%d" % (vT0, vT0, vGq))
    for r in range(8):
        a("v_mul_f32 v%d, v%d, v%d" % (vO + r, vO + r, vT0))
    for j in range(4):
        a("v_cvt_pk_bf16_f32 v%d, v%d, v%d" % (vO + 8 + j, vO + 2 * j, vO + 2 * j + 1))
    a("buffer_store_dwordx4 v[%d:%d], v%d, s[%d:%d], s%d offen sc1" % (vO + 8, vO + 11, vL16, SWS, SWS + 3, sOffC))
    a("s_waitcnt lgkmcnt(0)")
    a("s_barrier")
    stamp("b3")
    vR0, vR1, vOo = 8, 9, 10
    a("s_lshl_b32 s%d, s%d, 3" % (sT0, sW))
    a("v_add_u32 v%d, s%d, v%d" % (vT4, sT0, vT4))
    a("v_and_b32 v%d, 15, v%d" % (vT1, vT4))
    a("v_and_b32 v%d, 7, v0" % vT2)
    a("v_lshlrev_b32 v%d, 1, v%d" % (vT3, vT2))
    a("v_xor_b32 v%d, v%d, v%d" % (vT1, vT1, vT3))
    a("v_lshlrev_b32 v%d, 8, v%d" % (vT3, vT4))
    a("v_lshl_add_u32 v%d, v%d, 4, v%d" % (vR0, vT1, vT3))
    a("v_xor_b32 v%d, 16, v%d" % (vR1, vR0))
    a("v_lshlrev_b32 v%d, 10, v%d" % (vT4, vT4))
    a("v_lshl_add_u32 v%d, v%d, 4, v%d" % (vOo, vT2, vT4))
    a("s_lshl_b32 s%d, s%d, 16" % (sT0, sMB))
    a("s_lshl_b32 s%d, s%d, 7" % (sT1, sNB))
    a("s_add_u32 s%d, s%d, s%d" % (sT0, sT0, sT1))
    a("s_barrier")
    stamp("b4")
    FB = 32
    for k_ in range(4):
        a("ds_read_b128 v[%d:%d], v%d offset:%d" % (FB + 8 * k_, FB + 8 * k_ + 3, vR0, k_ * 16384))
        a("ds_read_b128 v[%d:%d], v%d offset:%d" % (FB + 8 * k_ + 4, FB + 8 * k_ + 7, vR1, k_ * 16384))
    for k_ in range(1, 4):
        a("s_waitcnt lgkmcnt(%d)" % (2 * (3 - k_)))
        for r in range(8):
            a("v_add_f32 v%d, v%d, v%d" % (FB + r, FB + r, FB + 8 * k_ + r))
    for j in range(4):
        a("v_cvt_pk_bf16_f32 v%d, v%d, v%d" % (FB + 8 + j, FB + 2 * j, FB + 2 * j + 1))
    a("buffer_store_dwordx4 v[%d:%d], v%d, s[%d:%d], s%d offen%s" % (FB + 8, FB + 11, vOo, SOUT, SOUT + 3, sT0, os.environ.get("OUTF", "")))
    prof_flush()
    a("s_endpgm")

    role[0] = "H"
    mark1 = len(a.lines)
    vXd0, vXd1 = 2, 3
    vWd = list(range(4, 12))
    vEv = 12
    vPl = 14
    vKX = 32
    vKA = 96
    vGX = 112
    vGW = 120
    a("s_setprio 3")
    a("s_sub_u32 s%d, s%d, 8" % (sH, sW))
    a("s_lshl_b32 s%d, s%d, 12" % (sM0x, sH))
    a("s_lshl_b32 s%d, s%d, 13" % (sM0w, sH))
    a("s_lshl_b32 s%d, s%d, 7" % (sT0, sMT))
    a("s_lshl_b32 s%d, s%d, 5" % (sT1, sH))
    a("s_add_u32 s%d, s%d, s%d" % (sT0, sT0, sT1))
    a("v_lshrrev_b32 v%d, 3, v0" % vT0)
    a("v_add_u32 v%d, s%d, v%d" % (vT0, sT0, vT0))
    a("v_lshlrev_b32 v%d, 10, v%d" % (vT0, vT0))
    a("v_and_b32 v%d, 7, v0" % vT1)
    a("v_lshrrev_b32 v%d, 4, v0" % vT2)
    a("v_xor_b32 v%d, v%d, v%d" % (vT1, vT1, vT2))
    a("v_lshl_add_u32 v%d, v%d, 4, v%d" % (vXd0, vT1, vT0))
    a("v_xor_b32 v%d, 64, v%d" % (vXd1, vXd0))
    a("v_add_u32 v%d, 0x2000, v%d" % (vXd1, vXd1))
    a("s_waitcnt lgkmcnt(0)")
    stamp("karg")
    srd(a, SX, P['x'], P['x'] + 1, 2097152)
    for S, lim, q in ((SA, 2, False), (SB, 2, True), (SC, 1, True)):
        a("s_cmp_lt_u32 s%d, %d" % (sH, lim))
        a("s_cselect_b32 s%d, s%d, s%d" % (S, P['wg'], P['wu']))
        a("s_cselect_b32 s%d, s%d, s%d" % (S + 1, P['wg'] + 1, P['wu'] + 1))
        a("s_mov_b32 s%d, 0x1c0000" % (S + 2))
        if q:
            a("s_cmp_eq_u32 s%d, 3" % sH)
            a("s_cselect_b32 s%d, s%d, s%d" % (S, P['wq'], S))
            a("s_cselect_b32 s%d, s%d, s%d" % (S + 1, P['wq'] + 1, S + 1))
            a("s_cselect_b32 s%d, 0x80000, s%d" % (S + 2, S + 2))
        a("s_mov_b32 s%d, 0x20000" % (S + 3))

    for i in range(4):
        a("s_add_u32 m0, s%d, %d" % (sM0x, PB[0] + OX + i * 1024))
        a("s_movk_i32 s%d, %d" % (sT0, (i >> 1) * 16384))
        a("buffer_load_dwordx4 v%d, s[%d:%d], s%d offen lds" % (vXd1 if i & 1 else vXd0, SX, SX + 3, sT0))

    def w0(j):
        S = SA if j < 4 else (SB if j < 6 else SC)
        a("s_add_u32 m0, s%d, %d" % (sM0w, PB[0] + OWG + j * 1024))
        a("s_nop 0")
        a("buffer_load_dwordx4 v%d, s[%d:%d], 0 offen lds" % (vWd[j], S, S + 3))
    a("s_mul_i32 s%d, s%d, 224" % (sT2, sNT))
    a("s_movk_i32 s%d, 4682" % sT3)
    for j in range(8):
        if j == 4:
            a("s_cmp_eq_u32 s%d, 3" % sH)
            a("s_cbranch_scc1 L_WD_Q")
        a("s_lshl_b32 s%d, s%d, 3" % (sT0, sH))
        a("s_add_u32 s%d, s%d, %d" % (sT0, sT0, j))
        a("s_sub_u32 s%d, s%d, 14" % (sT1, sT0))
        a("s_cmp_ge_u32 s%d, 14" % sT0)
        a("s_cselect_b32 s%d, s%d, s%d" % (sT0, sT1, sT0))
        a("s_cselect_b32 s%d, 6, 0" % sOffA)
        a("s_lshl_b32 s%d, s%d, 6" % (sT0, sT0))
        a("v_add_u32 v%d, s%d, v0" % (vT0, sT0))
        a("v_mul_u32_u24 v%d, s%d, v%d" % (vT1, sT3, vT0))
        a("v_lshrrev_b32 v%d, 16, v%d" % (vT1, vT1))
        a("v_mul_u32_u24 v%d, 14, v%d" % (vT2, vT1))
        a("v_sub_u32 v%d, v%d, v%d" % (vT0, vT0, vT2))
        a("v_add_u32 v%d, s%d, v%d" % (vT0, sOffA, vT0))
        a("v_subrev_u32 v%d, 14, v%d" % (vT2, vT0))
        a("v_min_u32 v%d, v%d, v%d" % (vT0, vT0, vT2))
        a("v_mul_u32_u24 v%d, 0xe00, v%d" % (vT1, vT1))
        a("v_lshl_add_u32 v%d, v%d, 4, v%d" % (vT0, vT0, vT1))
        a("v_add_u32 v%d, s%d, v%d" % (vWd[j], sT2, vT0))
        w0(j)
    a("s_mov_b32 s%d, %d" % (sStepB, 64 * 3584))
    a("s_branch L_WD_E")
    a.label("L_WD_Q")
    a("s_lshl_b32 s%d, s%d, 6" % (sT2, sNT))
    a("v_lshrrev_b32 v%d, 2, v0" % vT0)
    a("v_and_b32 v%d, 3, v0" % vT1)
    a("v_lshlrev_b32 v%d, 10, v%d" % (vT0, vT0))
    a("v_lshl_add_u32 v%d, v%d, 4, v%d" % (vT0, vT1, vT0))
    a("v_add_u32 v%d, s%d, v%d" % (vWd[4], sT2, vT0))
    for j in range(5, 8):
        a("v_add_u32 v%d, %d, v%d" % (vWd[j], (j - 4) * 16384, vWd[4]))
    for j in range(4, 8):
        w0(j)
    a("s_mov_b32 s%d, 65536" % sStepB)
    a.label("L_WD_E")
    def dma_stage(s):
        b = PB[s % 3]
        a("s_mov_b32 s%d, %d" % (sOffA, s * 64 * 3584))
        a("s_mul_i32 s%d, s%d, %d" % (sOffB, sStepB, s))
        for j in range(8):
            S = SA if j < 4 else (SB if j < 6 else SC)
            a("s_add_u32 m0, s%d, %d" % (sM0w, b + OWG + j * 1024))
            if j % 2 == 0:
                i = j // 2
                a("s_movk_i32 s%d, %d" % (sT0, s * 128 + (i >> 1) * 16384))
            else:
                a("s_nop 0")
            a("buffer_load_dwordx4 v%d, s[%d:%d], s%d offen lds" % (vWd[j], S, S + 3, sOffA if j < 4 else sOffB))
            if j % 2 == 0:
                a("s_add_u32 m0, s%d, %d" % (sM0x, b + OX + i * 1024))
                a("s_nop 0")
                a("buffer_load_dwordx4 v%d, s[%d:%d], s%d offen lds" % (vXd1 if i & 1 else vXd0, SX, SX + 3, sT0))

    def kv_dma(first, n):
        for j in range(n):
            off = (first + 4 * j) * 1024
            a("s_add_u32 m0, s%d, %d" % (sKoff, off))
            a("s_add_u32 s%d, s%d, %d" % (sOffA, sKoff, WS_KV + off))
            a("buffer_load_dwordx4 v%d, s[%d:%d], s%d offen sc1 lds" % (vL16, SWS, SWS + 3, sOffA))

    srd(a, SDBG, P['dbg'], P['dbg'] + 1, 256)
    a("s_cmp_lg_u32 s2, 0")
    a("s_cbranch_scc1 L_NOTAG")
    a("s_cmp_lg_u32 s%d, 3" % sH)
    a("s_cbranch_scc1 L_NOTAG")
    a("s_or_b32 s%d, s88, 1" % sT0)
    a("v_mov_b32 v%d, s%d" % (vT0, sT0))
    a("v_mov_b32 v%d, 0" % vT1)
    a("s_mov_b64 exec, 1")
    a("buffer_store_dword v%d, v%d, s[%d:%d], 0 offen sc1" % (vT0, vT1, SDBG, SDBG + 3))
    a("s_mov_b64 exec, -1")
    a.label("L_NOTAG")
    a("s_and_b32 s%d, s%d, 3" % (sRB, sNT))
    a("s_lshr_b32 s%d, s%d, 2" % (sT0, sNT))
    a("s_add_u32 s%d, s%d, 1" % (sKV, sT0))
    a("s_cmp_ge_u32 s%d, 8" % sNT)
    a("s_cselect_b32 s%d, 0, s%d" % (sKV, sKV))
    a("s_cmp_eq_u32 s%d, 1" % sKV)
    a("s_cselect_b32 s%d, s%d, s%d" % (SE, P['wk'], P['wv']))
    a("s_cselect_b32 s%d, s%d, s%d" % (SE + 1, P['wk'] + 1, P['wv'] + 1))
    a("s_mov_b32 s%d, 16384" % (SE + 2))
    a("s_mov_b32 s%d, 0x20000" % (SE + 3))
    a("v_lshrrev_b32 v%d, 4, v0" % vT0)
    a("v_and_b32 v%d, 15, v0" % vT1)
    a("v_xor_b32 v%d, v%d, v%d" % (vT1, vT1, vT0))
    a("v_lshlrev_b32 v%d, 10, v%d" % (vT0, vT0))
    a("v_lshl_add_u32 v18, v%d, 4, v%d" % (vT1, vT0))
    a("s_lshl_b32 s%d, s%d, 2" % (sT0, sMT))
    a("s_add_u32 s%d, s%d, s%d" % (sT0, sT0, sRB))
    a("s_lshl_b32 s%d, s%d, 15" % (sT0, sT0))
    a("s_lshl_b32 s%d, s%d, 8" % (sT1, sH))
    a("s_add_u32 s%d, s%d, s%d" % (sOffC, sT0, sT1))

    def dk():
        for p_ in range(8):
            a("s_add_u32 m0, s%d, %d" % (sM0w, PB[2] + OWG + p_ * 1024))
            a("v_xor_b32 v%d, %d, v18" % (vT0, (p_ & 3) * 64))
            a("s_add_u32 s%d, s%d, %d" % (sT0, sOffC, p_ * 4096))
            a("buffer_load_dwordx4 v%d, s[%d:%d], s%d offen lds" % (vT0, SX, SX + 3, sT0))
        a("s_add_u32 m0, s%d, %d" % (sM0x, PB[2] + OX))
        a("s_nop 0")
        for j in range(4):
            a("buffer_load_dwordx4 v%d, s[%d:%d], s%d offen offset:%d lds" % (vL16, SE, SE + 3, sM0x, j * 1024))
    if DKPOS == 0:
        a("s_cmp_eq_u32 s%d, 0" % sKV)
        a("s_cbranch_scc1 L_NODK")
        dk()
        a.label("L_NODK")
    stamp("d0")
    def dk_d1():
        a("s_cmp_eq_u32 s%d, 0" % sKV)
        a("s_cbranch_scc1 L_NODK1")
        dk()
        a.label("L_NODK1")
        dma_stage(1)
    if not D1LATE:
        dk_d1()
    stamp("d1")
    srd(a, SWS, P['ws'], P['ws'] + 1, WS_SIZE)
    a("s_lshl_b32 s%d, s%d, 10" % (sKoff, sH))
    a("s_lshl_b32 s%d, s%d, 4" % (sSlot, sMT))
    a("s_add_u32 s%d, s%d, s%d" % (sSlot, sSlot, sNT))
    a("s_lshl_b32 s%d, s%d, 7" % (sSlot, sSlot))
    a("s_cmp_eq_u32 s%d, 0" % sH)
    a("s_cselect_b32 s%d, s%d, 0" % (sSkip, sKV))
    a("s_waitcnt vmcnt(%d)" % (0 if D1LATE else 12))
    stamp("w0")
    a("s_barrier")
    if D1LATE:
        dk_d1()
        a("s_waitcnt vmcnt(12)")
    a("v_mov_b32 v%d, 0" % vT0)
    a("buffer_load_dword v%d, v%d, s[%d:%d], 0 offen sc1" % (vEv, vT0, SDBG, SDBG + 3))
    a("s_cmp_eq_u32 s%d, 0" % sKV)
    a("s_cbranch_scc1 L_I0_N")
    a("v_lshrrev_b32 v%d, 5, v0" % vT1)
    a("v_bfe_u32 v%d, v0, 2, 2" % vT2)
    a("v_lshl_add_u32 v%d, v%d, 3, v%d" % (vT3, vT1, vT2))
    a("v_and_b32 v%d, 3, v0" % vT2)
    a("v_lshlrev_b32 v%d, 5, v%d" % (vT3, vT3))
    a("v_lshl_add_u32 v%d, v%d, 3, v%d" % (vT3, vT2, vT3))
    a("s_add_u32 s%d, s%d, %d" % (sT0, sM0x, PB[2] + OX))
    a("v_add_u32 v19, s%d, v%d" % (sT0, vT3))
    a("v_and_b32 v%d, 31, v0" % vT2)
    a("v_and_b32 v%d, 15, v0" % vT3)
    a("v_xor_b32 v%d, v%d, v%d" % (vT1, vT1, vT3))
    a("v_lshlrev_b32 v%d, 8, v%d" % (vT2, vT2))
    a("v_lshl_add_u32 v%d, v%d, 4, v%d" % (vT2, vT1, vT2))
    a("s_add_u32 s%d, s%d, %d" % (sT0, sM0w, PB[2] + OWG))
    a("v_add_u32 v20, s%d, v%d" % (sT0, vT2))
    a("v_and_b32 v%d, 16, v0" % vT1)
    a("v_cmp_eq_u32 vcc, 0, v%d" % vT1)
    vKW = 128
    for ks in range(8):
        a("v_xor_b32 v%d, %d, v20" % (vT0, ks * 32))
        a("ds_read_b128 v[%d:%d], v%d" % (vKX + 4 * ks, vKX + 4 * ks + 3, vT0))
    for ks in range(8):
        if ks in (3, 6):
            a("s_waitcnt lgkmcnt(8)")
        for u in range(2):
            a("ds_read_b64_tr_b16 v[%d:%d], v19 offset:%d" % (vKW + 4 * ks + 2 * u, vKW + 4 * ks + 2 * u + 1, (16 * ks + 4 * u) * 32))
    a("s_waitcnt lgkmcnt(0)")
    dma_stage(2)
    a("s_cmp_eq_u32 s%d, 2" % sKV)
    a("s_cbranch_scc1 L_SJ_V")
    for ks in range(8):
        c = "0" if ks == 0 else "v[%d:%d]" % (vKA, vKA + 15)
        a("%s v[%d:%d], v[%d:%d], v[%d:%d], %s" % (MFMA, vKA, vKA + 15, vKW + 4 * ks, vKW + 4 * ks + 3,
                                                   vKX + 4 * ks, vKX + 4 * ks + 3, c))
    a("s_mov_b64 vcc, -1")
    a("s_branch L_SJ_W")
    a.label("L_SJ_V")
    for ks in range(8):
        c = "0" if ks == 0 else "v[%d:%d]" % (vKA, vKA + 15)
        a("%s v[%d:%d], v[%d:%d], v[%d:%d], %s" % (MFMA, vKA, vKA + 15, vKX + 4 * ks, vKX + 4 * ks + 3,
                                                   vKW + 4 * ks, vKW + 4 * ks + 3, c))
    a.label("L_SJ_W")
    a("s_waitcnt vmcnt(13)")
    a("s_barrier")
    a.nop(10)
    for r in range(8):
        a("v_cndmask_b32 v%d, v%d, v%d, vcc" % (vKA + r, vKA + 8 + r, vKA + r))
    a("s_lshr_b32 s%d, s%d, 1" % (sT0, sM0x))
    a("s_add_u32 s%d, s%d, %d" % (sT0, sT0, L_TOP))
    a("v_add_u32 v%d, s%d, v%d" % (vT1, sT0, vL16))
    a("ds_write_b128 v%d, v[%d:%d]" % (vT1, vKA, vKA + 3))
    a("ds_write_b128 v%d, v[%d:%d] offset:1024" % (vT1, vKA + 4, vKA + 7))
    a("s_branch L_I1")
    a.label("L_I0_N")
    dma_stage(2)
    a("s_waitcnt vmcnt(13)")
    a("s_barrier")
    a.label("L_I1")
    dma_stage(3)
    a("s_waitcnt vmcnt(12) lgkmcnt(0)")
    stamp("w2")
    a("s_barrier")
    a("s_mov_b32 s%d, 0" % sSpin)
    a.label("L_GE_L")
    a("v_readfirstlane_b32 s%d, v%d" % (sE, vEv))
    a("s_cmp_lg_u32 s%d, 0" % sE)
    a("s_cbranch_scc1 L_GE_E")
    spin_tail("L_GE_E")
    a("v_mov_b32 v%d, 0" % vT0)
    a("buffer_load_dword v%d, v%d, s[%d:%d], 0 offen sc1" % (vEv, vT0, SDBG, SDBG + 3))
    a("s_waitcnt vmcnt(0)")
    a("s_branch L_GE_L")
    a.label("L_GE_E")
    a("s_cmp_eq_u32 s%d, 0" % sSkip)
    a("s_cbranch_scc1 L_I2_N")
    a("v_add_u32 v%d, %d, v%d" % (vT2, L_TOP + 2048, vL16))
    for j in range(3):
        a("ds_read_b128 v[%d:%d], v%d offset:%d" % (vKX + 8 * j, vKX + 8 * j + 3, vT2, j * 2048))
        a("ds_read_b128 v[%d:%d], v%d offset:%d" % (vKX + 8 * j + 4, vKX + 8 * j + 7, vT2, j * 2048 + 1024))
    a("s_lshl_b32 s%d, s%d, 2" % (sT0, sMT))
    a("s_add_u32 s%d, s%d, s%d" % (sT0, sT0, sRB))
    a("s_lshl_b32 s%d, s%d, 11" % (sT1, sT0))
    a("s_waitcnt lgkmcnt(0)")
    for j in range(3):
        for r in range(8):
            a("v_add_f32 v%d, v%d, v%d" % (vKA + r, vKA + r, vKX + 8 * j + r))
    for j in range(4):
        a("v_cvt_pk_bf16_f32 v%d, v%d, v%d" % (vKA + 8 + j, vKA + 2 * j, vKA + 2 * j + 1))
    a("s_cmp_eq_u32 s%d, 2" % sKV)
    a("s_cbranch_scc1 L_KF_V")
    a("buffer_store_dwordx4 v[%d:%d], v%d, s[%d:%d], s%d offen offset:%d sc1" % (vKA + 8, vKA + 11, vL16, SWS, SWS + 3, sT1, WS_KV))
    a("v_mov_b32 v%d, 0" % vT1)
    for j in range(4):
        a("v_dot2_f32_bf16 v%d, v%d, v%d, v%d" % (vT1, vKA + 8 + j, vKA + 8 + j, vT1))
    a.nop(3)
    a("v_mov_b32 v%d, v%d" % (vT2, vT1))
    a.nop(2)
    a("v_permlane32_swap_b32 v%d, v%d" % (vT1, vT2))
    a.nop(2)
    a("v_add_f32 v%d, v%d, v%d" % (vPl, vT1, vT2))
    wave_reduce(a, "v_max_f32", vPl)
    a("s_branch L_I2_X")
    a.label("L_KF_V")
    a("v_bfe_u32 v%d, v0, 4, 1" % vT1)
    a("v_lshrrev_b32 v%d, 5, v0" % vT2)
    a("v_lshl_add_u32 v%d, v%d, 1, v%d" % (vT1, vT1, vT2))
    a("v_and_b32 v%d, 15, v0" % vT2)
    a("v_lshlrev_b32 v%d, 8, v%d" % (vT1, vT1))
    a("v_lshl_add_u32 v%d, v%d, 4, v%d" % (vT1, vT2, vT1))
    a("buffer_store_dwordx4 v[%d:%d], v%d, s[%d:%d], s%d offen offset:%d sc1" % (vKA + 8, vKA + 11, vT1, SWS, SWS + 3, sT1, WS_KV + 1024))
    a("v_max3_f32 v%d, |v%d|, |v%d|, |v%d|" % (vT4, vKA, vKA + 1, vKA + 2))
    a("v_max3_f32 v%d, |v%d|, |v%d|, v%d" % (vT4, vKA + 3, vKA + 4, vT4))
    a("v_max3_f32 v%d, |v%d|, |v%d|, v%d" % (vT4, vKA + 5, vKA + 6, vT4))
    a("v_max_f32 v%d, |v%d|, v%d" % (vT4, vKA + 7, vT4))
    a("s_mov_b32 s%d, 0x%08x" % (sT2, f32bits(2.0 ** 60)))
    a("v_cmp_lt_f32 vcc, s%d, v%d" % (sT2, vT4))
    a.nop(1)
    a("s_cmp_lg_u64 vcc, 0")
    a("s_cselect_b32 s%d, 0x7f800000, 0" % sT2)
    a("v_mov_b32 v%d, s%d" % (vPl, sT2))
    a.label("L_I2_X")
    a.label("L_I2_N")
    dma_stage(4)
    a("s_waitcnt vmcnt(12)")
    a("s_cmp_eq_u32 s%d, 0" % sSkip)
    a("s_cbranch_scc1 L_KG_E")
    a("s_lshl_b32 s%d, s%d, 2" % (sT0, sMT))
    a("s_add_u32 s%d, s%d, s%d" % (sT0, sT0, sRB))
    a("s_lshl_b32 s%d, s%d, 1" % (sT0, sT0))
    a("s_add_u32 s%d, s%d, s%d" % (sT0, sT0, sKV))
    a("s_lshl_b32 s%d, s%d, 7" % (sT0, sT0))
    a("s_add_u32 s%d, s%d, %d" % (sT0, sT0, WS_KFL - 128))
    a("v_mov_b32 v%d, s%d" % (vPl + 1, sE))
    a("v_mov_b32 v%d, 0" % vT2)
    a("s_mov_b32 exec_lo, 0")
    a("s_mov_b32 exec_hi, 0x80000000")
    a("buffer_store_dwordx2 v[%d:%d], v%d, s[%d:%d], s%d offen sc1" % (vPl, vPl + 1, vT2, SWS, SWS + 3, sT0))
    a("s_mov_b64 exec, -1")
    a.label("L_KG_E")
    stamp("w3")
    a("s_barrier")
    a("s_cmp_lg_u32 s%d, 1" % sH)
    a("s_cbranch_scc1 L_I3_N")
    a("v_and_b32 v%d, 7, v0" % vT1)
    a("v_lshlrev_b32 v%d, 2, v%d" % (vT1, vT1))
    a("v_add_u32 v%d, %d, v%d" % (vT1, L_G8, vT1))
    a("ds_read_b32 v%d, v%d" % (vPl, vT1))
    a("v_mov_b32 v%d, s%d" % (vPl + 1, sE))
    a("v_lshlrev_b32 v%d, 3, v0" % vT1)
    a("s_add_u32 s%d, s%d, %d" % (sT0, sSlot, WS_G))
    a("s_waitcnt lgkmcnt(0)")
    a("s_mov_b64 exec, 0xff")
    a("buffer_store_dwordx2 v[%d:%d], v%d, s[%d:%d], s%d offen sc1" % (vPl, vPl + 1, vT1, SWS, SWS + 3, sT0))
    a("s_mov_b64 exec, -1")
    a("s_mov_b32 s%d, 1" % sSkip)
    a.label("L_I3_N")
    dma_stage(5)
    a("s_waitcnt vmcnt(13)")
    a("s_cmp_lg_u32 s%d, 0" % sSkip)
    a("s_cbranch_scc1 L_I3_E")
    a("s_waitcnt vmcnt(12)")
    a.label("L_I3_E")
    stamp("w4")
    a("s_barrier")
    dma_stage(6)
    a("s_waitcnt vmcnt(12)")
    stamp("w5")
    a("s_barrier")
    kvpoll = ["buffer_load_dwordx2 v[%d:%d], v%d, s[%d:%d], s%d offen sc1" % (vPl, vPl + 1, vT4, SWS, SWS + 3, sOffC),
              "buffer_load_dwordx2 v[%d:%d], v%d, s[%d:%d], s%d offen offset:128 sc1" % (vPl + 2, vPl + 3, vT4, SWS, SWS + 3, sOffC)]
    dma_stage(7)
    a("s_waitcnt vmcnt(12)")
    stamp("w6")
    a("s_barrier")
    a("s_cmp_lg_u32 s%d, 2" % sH)
    a("s_cbranch_scc1 L_EC_X")
    a("v_lshlrev_b32 v%d, 8, v0" % vT4)
    a("s_mov_b32 s%d, %d" % (sOffC, WS_KFL))
    a("s_mov_b32 s%d, 0" % sSpin)
    a.label("L_EC_L")
    emit(kvpoll)
    a("s_waitcnt vmcnt(0)")
    a("v_cmp_ne_u32 vcc, s%d, v%d" % (sE, vPl + 1))
    a("v_cmp_ne_u32 s[%d:%d], s%d, v%d" % (sT0, sT1, sE, vPl + 3))
    a("s_or_b64 vcc, vcc, s[%d:%d]" % (sT0, sT1))
    a("s_cbranch_scc0 L_EC_E")
    spin_tail("L_EC_E", 2)
    a("s_branch L_EC_L")
    a.label("L_EC_E")
    a("v_max_f32 v%d, v%d, v%d" % (vT1, vPl, vPl + 2))
    wave_reduce(a, "v_max_f32", vT1)
    a("v_mov_b32 v%d, %d" % (vT2, L_KMAX))
    a("s_mov_b32 exec_lo, 0")
    a("s_mov_b32 exec_hi, 0x80000000")
    a("ds_write_b32 v%d, v%d" % (vT2, vT1))
    a("s_mov_b64 exec, -1")
    a("s_waitcnt lgkmcnt(0)")
    a.label("L_EC_X")
    a("s_cmp_lg_u32 s%d, 3" % sH)
    a("s_cbranch_scc1 L_GP_X")
    gl = ["buffer_load_dwordx2 v[%d:%d], v%d, s[%d:%d], s%d offen sc1" % (vPl, vPl + 1, vT3, SWS, SWS + 3, sOffD),
          "buffer_load_dwordx2 v[%d:%d], v%d, s[%d:%d], s%d offen offset:1024 sc1" % (vPl + 2, vPl + 3, vT3, SWS, SWS + 3, sOffD)]
    a("v_lshrrev_b32 v%d, 3, v0" % vT3)
    a("v_and_b32 v%d, 7, v0" % vT1)
    a("v_lshlrev_b32 v%d, 7, v%d" % (vT3, vT3))
    a("v_lshl_add_u32 v%d, v%d, 3, v%d" % (vT3, vT1, vT3))
    a("s_lshl_b32 s%d, s%d, 11" % (sT1, sMT))
    a("s_add_u32 s%d, s%d, %d" % (sOffD, sT1, WS_G))
    a("s_mov_b32 s%d, 0" % sSpin)
    a.label("L_GP_L")
    emit(gl)
    a("s_waitcnt vmcnt(0)")
    a("v_cmp_ne_u32 vcc, s%d, v%d" % (sE, vPl + 1))
    a("v_cmp_ne_u32 s[%d:%d], s%d, v%d" % (sT0, sT1, sE, vPl + 3))
    a("s_or_b64 vcc, vcc, s[%d:%d]" % (sT0, sT1))
    a("s_cbranch_scc0 L_GP_E")
    spin_tail("L_GP_E")
    a("s_branch L_GP_L")
    a.label("L_GP_E")
    a("v_lshlrev_b32 v%d, 2, v0" % vT1)
    a("v_add_u32 v%d, %d, v%d" % (vT1, L_GROW, vT1))
    a("ds_write_b32 v%d, v%d" % (vT1, vPl))
    a("ds_write_b32 v%d, v%d offset:256" % (vT1, vPl + 2))
    a.label("L_GP_X")
    a("s_waitcnt vmcnt(0) lgkmcnt(0)")
    stamp("w7")
    a("s_barrier")
    kv_dma(0, 12)
    vWs, vB0, vB1, vTr0, vTr1, vPa, vPoll = 2, 3, 4, 5, 6, 7, 8
    vFA = 24
    vFB = 32
    AC2 = 64
    vWo = 128
    for r in range(64):
        a("v_mov_b32 v%d, 0" % (AC2 + r))
    a("v_bfe_u32 v%d, v0, 4, 1" % vT1)
    a("v_and_b32 v%d, 7, v0" % vT2)
    a("v_lshlrev_b32 v%d, 2, v%d" % (vT1, vT1))
    a("v_xor_b32 v%d, v%d, v%d" % (vT1, vT1, vT2))
    a("v_lshrrev_b32 v%d, 3, v0" % vT2)
    a("v_lshlrev_b32 v%d, 10, v%d" % (vT2, vT2))
    a("v_lshl_add_u32 v%d, v%d, 4, v%d" % (vT1, vT1, vT2))
    a("s_lshl_b32 s%d, s%d, 14" % (sT0, sH))
    a("s_lshl_b32 s%d, s%d, 7" % (sT1, sNB))
    a("s_add_u32 s%d, s%d, s%d" % (sT0, sT0, sT1))
    a("v_add_u32 v%d, s%d, v%d" % (vWs, sT0, vT1))
    a("v_lshrrev_b32 v%d, 5, v0" % vT0)
    a("v_bfe_u32 v%d, v0, 2, 2" % vT1)
    a("v_lshl_add_u32 v%d, v%d, 2, v%d" % (vT2, vT0, vT1))
    a("v_lshlrev_b32 v%d, 7, v%d" % (vT2, vT2))
    a("v_bfe_u32 v%d, v0, 3, 1" % vT1)
    a("v_lshl_add_u32 v%d, v%d, 6, v%d" % (vT2, vT1, vT2))
    a("v_bfe_u32 v%d, v0, 4, 1" % vT1)
    a("v_lshl_add_u32 v%d, v%d, 5, v%d" % (vT2, vT1, vT2))
    a("v_and_b32 v%d, 3, v0" % vT1)
    a("v_lshl_add_u32 v%d, v%d, 3, v%d" % (vT2, vT1, vT2))
    a("s_add_u32 s%d, s%d, %d" % (sScr, sM0w, L_SCR))
    a("v_add_u32 v%d, s%d, v%d" % (vTr0, sScr, vT2))
    a("v_xor_b32 v%d, 64, v%d" % (vTr1, vTr0))
    a("s_mul_i32 s%d, s%d, 288" % (sT0, sMB))
    a("s_add_u32 s%d, s%d, s%d" % (sT0, sT0, sH))
    a("s_lshl_b32 s%d, s%d, 10" % (sT0, sT0))
    a("s_add_u32 s%d, s%d, %d" % (sT0, sT0, WS_AF))
    a("v_add_u32 v%d, s%d, v%d" % (vB0, sT0, vL16))
    a("v_add_u32 v%d, %d, v%d" % (vB1, 144 * 1024, vB0))
    a("v_and_b32 v%d, 15, v0" % vPa)
    a("v_lshlrev_b32 v%d, 7, v%d" % (vPa, vPa))
    srd(a, SA, P['wd'], P['wd'] + 1, 0x1c0000)
    srd(a, SB, P['wo'], P['wo'] + 1, 0x80000)
    a("s_waitcnt vmcnt(0)")
    stamp("w8")
    a("s_barrier")
    kv_dma(48, 20)
    if PREF:
        a("s_mul_i32 s%d, s2, 7168" % sT0)
        a("s_lshl_b32 s%d, s%d, 11" % (sT1, sH))
        a("s_add_u32 s%d, s%d, s%d" % (sT0, sT0, sT1))
        a("buffer_load_dwordx4 v[160:163], v%d, s[%d:%d], s%d offen" % (vL16, SA, SA + 3, sT0))
        a("buffer_load_dwordx4 v[160:163], v%d, s[%d:%d], s%d offen offset:1024" % (vL16, SA, SA + 3, sT0))
        a("s_lshl_b32 s%d, s2, 11" % sT0)
        a("s_lshl_b32 s%d, s%d, 9" % (sT1, sH))
        a("s_add_u32 s%d, s%d, s%d" % (sT0, sT0, sT1))
        a("s_mov_b64 exec, 0xffffffff")
        a("buffer_load_dwordx4 v[160:163], v%d, s[%d:%d], s%d offen" % (vL16, SB, SB + 3, sT0))
        a("s_mov_b64 exec, -1")
    a("s_waitcnt vmcnt(0)")
    stamp("w9")
    a("s_barrier")
    stamp("bkv")
    a("s_setprio %d" % HPRIO)
    a("s_cmp_lg_u32 s%d, 0" % sH)
    a("s_cbranch_scc1 L_NOHF")
    a("v_mov_b32 v%d, 0" % vT3)
    a("v_mov_b32 v%d, s%d" % (vT2, sE))
    a("s_add_u32 s%d, s%d, %d" % (sT0, sSlot, WS_HFL))
    a("s_mov_b64 exec, 1")
    a("buffer_store_dword v%d, v%d, s[%d:%d], s%d offen sc1" % (vT2, vT3, SWS, SWS + 3, sT0))
    a("s_mov_b64 exec, -1")
    a.label("L_NOHF")

    def w_dma(S, slot, soff, extra):
        for u in range(2):
            a("s_add_u32 m0, s%d, %d" % (sScr, slot * 2048 + u * 1024))
            if soff is None:
                a("s_mov_b32 s%d, %d" % (sT0, extra + u * 8192))
            else:
                a("s_add_u32 s%d, s%d, %d" % (sT0, soff, extra + u * 8192))
            a("buffer_load_dwordx4 v%d, s[%d:%d], s%d offen lds" % (vWs, S, S + 3, sT0))

    def b_loads(slot, soff, extra):
        a("s_add_u32 s%d, s%d, %d" % (sT0, soff, extra))
        a("buffer_load_dwordx4 v[%d:%d], v%d, s[%d:%d], s%d offen sc1" % (vFB + 8 * slot, vFB + 8 * slot + 3, vB0, SWS, SWS + 3, sT0))
        a("buffer_load_dwordx4 v[%d:%d], v%d, s[%d:%d], s%d offen sc1" % (vFB + 8 * slot + 4, vFB + 8 * slot + 7, vB1, SWS, SWS + 3, sT0))

    def tr_reads(dst, slot):
        for an, ad in enumerate((vTr0, vTr1)):
            for u in range(2):
                a("ds_read_b64_tr_b16 v[%d:%d], v%d offset:%d" % (dst + 4 * an + 2 * u, dst + 4 * an + 2 * u + 1, ad,
                                                                 slot * 2048 + u * 1024))

    def m1(fa, fb, an, i):
        acc = AC2 + (an * 2 + i) * 16
        a("%s v[%d:%d], v[%d:%d], v[%d:%d], v[%d:%d]" % (MFMA, acc, acc + 15, fa + 4 * an, fa + 4 * an + 3,
                                                        fb + 4 * i, fb + 4 * i + 3, acc, acc + 15))

    def mm(fa, fb):
        for an in (0, 1):
            for i in (0, 1):
                m1(fa, fb, an, i)

    a("s_lshl_b32 s%d, s%d, 14" % (sOffD, sH))
    for j in range(4):
        w_dma(SB, j, sOffD, j * 131072)
    a("s_waitcnt vmcnt(0)")
    for j in range(4):
        tr_reads(vWo + 8 * j, j)
        a("s_waitcnt lgkmcnt(4)")
    a("s_waitcnt lgkmcnt(0)")
    a("s_lshr_b32 s%d, s%d, 1" % (sT0, sMB))
    a("s_lshl_b32 s%d, s%d, 11" % (sT0, sT0))
    a("s_add_u32 s%d, s%d, %d" % (sOffA, sT0, WS_HFL))
    a("s_mov_b32 s%d, 0" % sSpin)
    a.label("L_HP_L")
    a("buffer_load_dword v%d, v%d, s[%d:%d], s%d offen sc1" % (vPoll, vPa, SWS, SWS + 3, sOffA))
    a("s_waitcnt vmcnt(0)")
    a("v_cmp_ne_u32 vcc, s%d, v%d" % (sE, vPoll))
    a("s_cmp_eq_u64 vcc, 0")
    a("s_cbranch_scc1 L_HP_E")
    spin_tail("L_HP_E", 4)
    a("s_branch L_HP_L")
    a.label("L_HP_E")
    stamp("hpoll")
    a("s_mov_b32 s%d, 0" % sOffB)
    a("s_mov_b32 s%d, %d" % (sOffC, 8 * 4096))
    for j in range(4):
        w_dma(SA, j, sOffB, j * 65536)
        b_loads(j, sOffC, j * 4096)
    a("s_mov_b32 s%d, 0" % sIt)
    a.label("L_FFN")
    for j in range(4):
        a("s_waitcnt vmcnt(12)")
        tr_reads(vFA, j)
        a("s_waitcnt lgkmcnt(0)")
        fb = vFB + 8 * j
        m1(vFA, fb, 0, 0)
        a("s_add_u32 m0, s%d, %d" % (sScr, j * 2048))
        a("s_add_u32 s%d, s%d, %d" % (sT0, sOffB, (4 + j) * 65536))
        a("buffer_load_dwordx4 v%d, s[%d:%d], s%d offen lds" % (vWs, SA, SA + 3, sT0))
        m1(vFA, fb, 1, 0)
        a("s_add_u32 m0, s%d, %d" % (sScr, j * 2048 + 1024))
        a("s_add_u32 s%d, s%d, %d" % (sT0, sOffB, (4 + j) * 65536 + 8192))
        a("buffer_load_dwordx4 v%d, s[%d:%d], s%d offen lds" % (vWs, SA, SA + 3, sT0))
        m1(vFA, fb, 0, 1)
        a("s_add_u32 s%d, s%d, %d" % (sT0, sOffC, (4 + j) * 4096))
        a("buffer_load_dwordx4 v[%d:%d], v%d, s[%d:%d], s%d offen sc1" % (fb, fb + 3, vB0, SWS, SWS + 3, sT0))
        m1(vFA, fb, 1, 1)
        a("buffer_load_dwordx4 v[%d:%d], v%d, s[%d:%d], s%d offen sc1" % (fb + 4, fb + 7, vB1, SWS, SWS + 3, sT0))
    a("s_add_u32 s%d, s%d, %d" % (sOffB, sOffB, 4 * 65536))
    a("s_add_u32 s%d, s%d, %d" % (sOffC, sOffC, 4 * 4096))
    a("s_add_u32 s%d, s%d, 1" % (sIt, sIt))
    a("s_cmp_lt_u32 s%d, %d" % (sIt, int(os.environ.get("NFFN", "7"))))
    a("s_cbranch_scc1 L_FFN")
    a("s_waitcnt vmcnt(0)")
    stamp("ffn")
    for j in range(4):
        w_dma(SB, j, sOffD, j * 131072 + 16384)
    a("v_and_b32 v%d, 31, v0" % vT0)
    a("v_lshrrev_b32 v%d, 5, v0" % vT1)
    a("v_and_b32 v%d, 15, v0" % vT3)
    a("v_xor_b32 v%d, v%d, v%d" % (vT1, vT1, vT3))
    a("v_lshlrev_b32 v%d, 8, v%d" % (vT0, vT0))
    a("v_lshl_add_u32 v%d, v%d, 4, v%d" % (vT0, vT1, vT0))
    a("s_lshl_b32 s%d, s%d, 14" % (sT1, sH))
    a("v_add_u32 v%d, s%d, v%d" % (vT0, sT1, vT0))
    for q in range(8):
        a("v_xor_b32 v%d, %d, v%d" % (9 + q, q * 32, vT0))
    a("s_lshl_b32 s%d, s%d, 10" % (sOffC, sH))
    for e in range(2):
        if e == 1:
            a("s_setprio 3")
            a("s_barrier")
            stamp("b3")
        a("s_mov_b32 s%d, 0" % sSpin)
        a.label("L_OP%d_L" % e)
        for j in range(4):
            b_loads(j, sOffC, j * 8192 + e * 1024)
        a("s_waitcnt vmcnt(0)")
        a("v_max3_u32 v%d, v%d, v%d, v%d" % (vT0, vFB, vFB + 1, vFB + 2))
        a("v_max3_u32 v%d, v%d, v%d, v%d" % (vT1, vFB + 3, vFB + 4, vFB + 5))
        for r in range(6, 30, 4):
            a("v_max3_u32 v%d, v%d, v%d, v%d" % (vT0, vFB + r, vFB + r + 1, vT0))
            a("v_max3_u32 v%d, v%d, v%d, v%d" % (vT1, vFB + r + 2, vFB + r + 3, vT1))
        a("v_max3_u32 v%d, v%d, v%d, v%d" % (vT0, vFB + 30, vFB + 31, vT0))
        a("v_max_u32 v%d, v%d, v%d" % (vT0, vT0, vT1))
        a("v_cmp_eq_u32 vcc, -1, v%d" % vT0)
        a("s_cmp_eq_u64 vcc, 0")
        a("s_cbranch_scc1 L_OP%d_E" % e)
        spin_tail("L_OP%d_E" % e, int(os.environ.get("ASLEEP", "32")) if e == 0 else OSLEEP)
        a("s_branch L_OP%d_L" % e)
        a.label("L_OP%d_E" % e)
        stamp("op%d" % (0 if e == 0 else 7))
        if e == 0:
            for j in range(4):
                mm(vWo + 8 * j, vFB + 8 * j)
            for j in range(4):
                tr_reads(vWo + 8 * j, j)
                a("s_waitcnt lgkmcnt(4)")
            a("s_waitcnt lgkmcnt(0)")
    tiles = [(0, 0), (0, 1), (1, 0), (1, 1)]

    def wr(an, i):
        for q in range(4):
            acc = AC2 + (an * 2 + i) * 16 + 4 * q
            a("ds_write_b128 v%d, v[%d:%d] offset:%d" % (9 + an * 4 + q, acc, acc + 3, i * 8192))
    for t, (an, i) in enumerate(tiles):
        for j in range(4):
            m1(vWo + 8 * j, vFB + 8 * j, an, i)
        if t > 0:
            a.nop(9)
            wr(*tiles[t - 1])
    a.nop(9)
    a("s_waitcnt lgkmcnt(8)")
    wr(*tiles[3])
    a("s_waitcnt lgkmcnt(0)")
    stamp("pw")
    a("s_barrier")
    prof_flush()
    a.label("L_END")
    a("s_endpgm")
    a.lines = a.lines[:mark0] + a.lines[mark1:] + a.lines[mark0:mark1]
    a.label("L_CODE_END")
    if PROF:
        open("stamps.txt", "w").write(" ".join(stamp_names["M"]) + "\n" + " ".join(stamp_names["H"]))
    kernel_desc(a, name, 168, 102)
    return "; @launch grid=(256,1,1) block=(768,1,1) lds=%d" % LDS_BYTES


def main():
    out = sys.argv[1] if len(sys.argv) > 1 else "cdna_kernels/%s.s" % NAME
    a = Asm()
    a.raw(".amdgcn_target \"amdgcn-amd-amdhsa--gfx950\"")
    launch = gen(a)
    hdr = ["; generated by work/gen5.py (hand-designed kernel, laid out by script)", launch]
    open(out, "w").write("\n".join(hdr) + "\n" + a.text())


if __name__ == "__main__":
    main()
```

```python
import sys, math, os
from gen import Asm, f32bits, kernel_begin, kernel_desc, srd, wave_reduce, MFMA, NAME, QSCALE

PROF = int(os.environ.get("PROF", "0"))
PRIO = int(os.environ.get("PRIO", "1"))
DIAG = int(os.environ.get("DIAG", "0"))
TOUCH = int(os.environ.get("TOUCH", "1"))
PREF = int(os.environ.get("PREF", "1"))
OSLEEP = int(os.environ.get("OSLEEP", "1"))
DKPOS = 1
D1LATE = int(os.environ.get("D1LATE", "0"))
PFSPLIT = int(os.environ.get("PFSPLIT", "0"))
GOEARLY = int(os.environ.get("GOEARLY", "1"))
TOUCH2 = int(os.environ.get("TOUCH2", "0"))
DIAG2 = os.environ.get("DIAG2", "")
PFLATE = int(os.environ.get("PFLATE", "1"))
CODEPF = int(os.environ.get("CODEPF", "1"))
HPRIO = int(os.environ.get("HPRIO", "0"))

WS_AF = 2 << 20
WS_KV = 0
WS_G = 0x40000
WS_KFL = 0x50000
WS_HFL = 0x60000
WS_PROF = 32 << 20
WS_SIZE = 268435456
KVBLK = 2048
SPIN_MAX = 1 << 14

BUFSZ = 49152
PB = {2: 0, 0: BUFSZ, 1: 2 * BUFSZ}
OX, OWG, OWU, OWQ = 0, 16384, 30720, 45056
L_TOP = 3 * BUFSZ
L_G8 = L_TOP
L_KMAX = L_TOP + 64
L_GROW = L_TOP + 1024
L_QX = L_TOP + 8192
L_SCR = 131072
LDS_BYTES = 163840
L_GO = L_SCR + 8192 * 4 - 4
NBKV = 3


def gen(a):
    name = NAME + "_kernel"
    kernel_begin(a, name)
    sW, sMT, sNT = 3, 4, 5
    sT0, sT1, sT2, sT3 = 6, 7, 8, 9
    sStepA, sKV, sRB, sE = 10, 11, 12, 13
    sMB, sNB = 14, 15
    P = dict(x=16, wq=18, wk=20, wv=22, wo=24, wg=28, wu=30, wd=32, gw=34, out=36, dbg=38, ws=40)
    SX, SA, SB, SWS, SE, SDBG, SC = 44, 48, 52, 56, 60, 64, 68
    SOUT = 44
    sH = 72
    sM0x, sM0w, sScr = 73, 74, 75
    sVm = 76
    sOffA, sOffB = 78, 79
    sStepB = 80
    sIt, sSkip = 82, 83
    sSpin, sKoff = 26, 27
    sSlot = 42
    sOffC, sOffD = 86, 87
    stamp_names = {"M": [], "H": []}
    role = ["M"]

    def stamp(label):
        if (DIAG or DIAG2) and role[0] == "M" and label in ("bar0", "Bq", "b3"):
            a("s_memrealtime s[84:85]")
            a("s_waitcnt lgkmcnt(0)")
            a("s_mov_b32 s%d, s84" % {"bar0": 90, "Bq": 91, "b3": 92}[label])
        if not PROF:
            return
        lst = stamp_names[role[0]]
        idx = len(lst)
        lst.append(str(label))
        a("s_memtime s[84:85]")
        if (label in ("bar0", "Bq", "b3", "attn") and role[0] == "M") or label == "op7":
            a("s_memrealtime s[98:99]")
        a("s_waitcnt lgkmcnt(0)")
        a("v_writelane_b32 v167, s84, %d" % idx)
        if (label in ("bar0", "Bq", "b3", "attn") and role[0] == "M") or label == "op7":
            a("v_writelane_b32 v167, s98, %d" % {"bar0": 59, "Bq": 60, "b3": 61, "attn": 58, "op7": 58}[label])

    def prof_flush():
        if DIAG2 and role[0] == "M":
            hi, lo, mul = {"total": (84, 88, 1), "bar0": (90, 88, 4), "g1": (91, 90, 2), "attn": (92, 91, 1), "tail": (84, 92, 4), "fix10": (84, 88, 0), "fix30": (84, 88, 0)}[DIAG2]
            a("s_waitcnt vmcnt(0)")
            a("s_memrealtime s[84:85]")
            a("s_waitcnt lgkmcnt(0)")
            a("s_sub_u32 s93, s%d, s%d" % (hi, lo))
            a("s_mul_i32 s93, s93, %d" % mul)
            a("s_min_u32 s93, s93, 20000")
            if DIAG2.startswith("fix"):
                a("s_mov_b32 s93, %d" % (int(DIAG2[3:]) * 100))
            a.label("L_DG")
            a("s_memrealtime s[94:95]")
            a("s_waitcnt lgkmcnt(0)")
            a("s_sub_u32 s94, s94, s84")
            a("s_cmp_lt_u32 s94, s93")
            a("s_cbranch_scc1 L_DG")
        if DIAG and role[0] == "M":
            a("s_waitcnt vmcnt(0)")
            a("s_memrealtime s[84:85]")
            srd(a, SDBG, P['dbg'], P['dbg'] + 1, 256)
            a("s_waitcnt lgkmcnt(0)")
            a("s_cmp_lg_u32 s%d, 7" % sW)
            a("s_cbranch_scc1 L_END")
            a("s_cmp_lt_u32 s2, 248")
            a("s_cbranch_scc1 L_END")
            a("s_and_b32 s93, s2, 7")
            a("s_lshl_b32 s93, s93, 2")
            a("v_mov_b32 v2, 0")
            a("s_mov_b64 exec, 1")
            a("s_sub_u32 s94, s84, s88")
            a("s_and_b32 s95, s88, 0xffff")
            a("s_lshl_b32 s94, s94, 16")
            a("s_or_b32 s94, s94, s95")
            a("v_mov_b32 v3, s94")
            a("buffer_store_dword v3, v2, s[%d:%d], s93 offen offset:32" % (SDBG, SDBG + 3))
            a("s_cmp_lg_u32 s2, 253")
            a("s_cbranch_scc1 L_END")
            for i, sreg in enumerate((90, 91, 92, 84)):
                a("s_sub_u32 s94, s%d, s88" % sreg)
                a("v_mov_b32 v3, s94")
                a("buffer_store_dword v3, v2, s[%d:%d], 0 offen offset:%d" % (SDBG, SDBG + 3, 4 + 4 * i))
                a("s_nop 1")
        if not PROF:
            return
        a("s_waitcnt vmcnt(0)")
        stamp("end")
        a("s_memrealtime s[98:99]")
        a("s_waitcnt lgkmcnt(0)")
        a("v_writelane_b32 v167, s98, 62")
        a("v_writelane_b32 v167, s88, 63")
        a("s_mul_i32 s82, s2, 12")
        a("s_add_u32 s82, s82, s%d" % sW)
        a("s_lshl_b32 s82, s82, 8")
        a("s_add_u32 s82, s82, %d" % WS_PROF)
        a("v_lshlrev_b32 v2, 2, v0")
        a("buffer_store_dword v167, v2, s[%d:%d], s82 offen" % (SWS, SWS + 3))

    def emit(lst):
        for ins in lst:
            a(ins)

    def spin_tail(lbl_end, sleep=1):
        a("s_add_u32 s%d, s%d, 1" % (sSpin, sSpin))
        a("s_cmp_ge_u32 s%d, %d" % (sSpin, SPIN_MAX))
        a("s_cbranch_scc1 %s" % lbl_end)
        a("s_sleep %d" % sleep)

    vL16 = 1
    vT0, vT1, vT2, vT3, vT4 = 21, 22, 23, 24, 25

    a("s_cmp_ge_u32 s2, 256")
    a("s_cbranch_scc1 L_END")
    a("s_load_dwordx16 s[16:31], s[0:1], 0")
    a("s_load_dwordx8 s[32:39], s[0:1], 64")
    a("s_load_dwordx2 s[40:41], s[0:1], 96")
    a("s_memrealtime s[88:89]")
    if PROF:
        a("s_memtime s[84:85]")
        a("s_waitcnt lgkmcnt(0)")
        a("v_writelane_b32 v167, s84, 0")
        stamp_names["M"].append("start")
        stamp_names["H"].append("start")
    a("v_lshrrev_b32 v1, 6, v0")
    a("v_and_b32 v0, 63, v0")
    a("v_readfirstlane_b32 s%d, v1" % sW)
    a("s_and_b32 s%d, s2, 7" % sT0)
    a("s_lshr_b32 s%d, s2, 3" % sT1)
    a("s_and_b32 s%d, s%d, 1" % (sMT, sT0))
    a("s_lshl_b32 s%d, s%d, 3" % (sMT, sMT))
    a("s_and_b32 s%d, s%d, 7" % (sT2, sT1))
    a("s_add_u32 s%d, s%d, s%d" % (sMT, sMT, sT2))
    a("s_lshr_b32 s%d, s%d, 1" % (sNT, sT0))
    a("s_lshl_b32 s%d, s%d, 2" % (sNT, sNT))
    a("s_lshr_b32 s%d, s%d, 3" % (sT2, sT1))
    a("s_add_u32 s%d, s%d, s%d" % (sNT, sNT, sT2))
    a("s_lshl_b32 s%d, s%d, 2" % (sMB, sT0))
    a("s_and_b32 s%d, s%d, 3" % (sT2, sT1))
    a("s_add_u32 s%d, s%d, s%d" % (sMB, sMB, sT2))
    a("s_lshr_b32 s%d, s%d, 2" % (sNB, sT1))
    a("v_lshlrev_b32 v%d, 4, v0" % vL16)
    a("s_cmp_ge_u32 s%d, 8" % sW)
    a("s_cbranch_scc1 L_HELPER")
    if TOUCH:
        a("s_cmp_ge_u32 s%d, 4" % sW)
        a("s_cbranch_scc1 L_NOTOUCH")
        a("s_waitcnt lgkmcnt(0)")
        a("s_mov_b32 s%d, s%d" % (SE, P['x']))
        a("s_mov_b32 s%d, s%d" % (SE + 1, P['x'] + 1))
        for k, pp in ((1, P['wg']), (2, P['wu']), (3, P['wq'])):
            a("s_cmp_eq_u32 s%d, %d" % (sW, k))
            a("s_cselect_b32 s%d, s%d, s%d" % (SE, pp, SE))
            a("s_cselect_b32 s%d, s%d, s%d" % (SE + 1, pp + 1, SE + 1))
        a("s_mov_b32 s%d, 1024" % (SE + 2))
        a("s_mov_b32 s%d, 0x20000" % (SE + 3))
        a("v_mov_b32 v2, 0")
        a("s_mov_b64 exec, 1")
        a("buffer_load_dword v160, v2, s[%d:%d], 0 offen" % (SE, SE + 3))
        a("s_mov_b64 exec, -1")
        a.label("L_NOTOUCH")
    if PREF:
        a("s_waitcnt lgkmcnt(0)")
        a("s_mov_b32 s%d, 0x20000" % (SE + 3))
        a("s_lshl_b32 s%d, s%d, 4" % (sT0, sMT))
        a("s_add_u32 s%d, s%d, s%d" % (sT0, sT0, sNT))
        a("s_lshl_b32 s%d, s%d, 3" % (sT0, sT0))
        a("s_add_u32 s%d, s%d, s%d" % (sT0, sT0, sW))
        a("s_lshl_b32 s%d, s%d, 10" % (sT0, sT0))
        a("s_mov_b32 s%d, s%d" % (SE, P['x']))
        a("s_mov_b32 s%d, s%d" % (SE + 1, P['x'] + 1))
        a("s_mov_b32 s%d, 0x200000" % (SE + 2))
        a("buffer_load_dwordx4 v[128:131], v%d, s[%d:%d], s%d offen" % (vL16, SE, SE + 3, sT0))
        a("s_cmp_eq_u32 s%d, 7" % sW)
        a("s_cbranch_scc1 L_PF7")
        def wpf():
            a("s_mul_i32 s%d, s2, 7" % sT0)
            a("s_add_u32 s%d, s%d, s%d" % (sT0, sT0, sW))
            a("s_lshl_b32 s%d, s%d, 10" % (sT0, sT0))
            a("s_mov_b32 s%d, 0x1c0000" % (SE + 2))
            a("s_mov_b32 s%d, 0x20000" % (SE + 3))
            for nm in ('wg', 'wu'):
                a("s_mov_b32 s%d, s%d" % (SE, P[nm]))
                a("s_mov_b32 s%d, s%d" % (SE + 1, P[nm] + 1))
                a("buffer_load_dwordx4 v[160:163], v%d, s[%d:%d], s%d offen" % (vL16, SE, SE + 3, sT0))
        if PFSPLIT:
            a("s_cmp_ge_u32 s2, %d" % PFSPLIT)
            a("s_cbranch_scc1 L_PFE")
        wpf()
        a("s_branch L_PFE")
        a.label("L_PF7")
        a("s_lshl_b32 s%d, s2, 11" % sT0)
        a("s_mov_b32 s%d, 0x80000" % (SE + 2))
        if CODEPF:
            a("s_getpc_b64 s[90:91]")
            a.label("L_PC")
            a("s_sub_u32 s90, s90, L_PC-%s" % name)
            a("s_subb_u32 s91, s91, 0")
            a("s_lshr_b32 s%d, s2, 3" % sT1)
            a("s_lshl_b32 s%d, s%d, 10" % (sT1, sT1))
            a("v_add_u32 v2, s%d, v%d" % (sT1, vL16))
            a("v_cmp_gt_u32 vcc, L_CODE_END-%s-16, v2" % name)
            a("s_and_saveexec_b64 s[92:93], vcc")
            a("s_cbranch_execz L_PCX")
            a("global_load_dwordx4 v[160:163], v2, s[90:91]")
            a.label("L_PCX")
            a("s_mov_b64 exec, -1")
        for nm in (('wq',) if PFLATE else ('wq', 'wo')):
            a("s_mov_b32 s%d, s%d" % (SE, P[nm]))
            a("s_mov_b32 s%d, s%d" % (SE + 1, P[nm] + 1))
            a("buffer_load_dwordx4 v[160:163], v%d, s[%d:%d], s%d offen" % (vL16, SE, SE + 3, sT0))
            a("buffer_load_dwordx4 v[160:163], v%d, s[%d:%d], s%d offen offset:1024" % (vL16, SE, SE + 3, sT0))
        a.label("L_PFE")
        a("s_mov_b32 s%d, s%d" % (SE, P['gw']))
        a("s_mov_b32 s%d, s%d" % (SE + 1, P['gw'] + 1))
        a("s_mov_b32 s%d, 1024" % (SE + 2))
        a("buffer_load_dwordx4 v[132:135], v%d, s[%d:%d], 0 offen" % (vL16, SE, SE + 3))
    if TOUCH2:
        a("s_mov_b32 s%d, 0x20000" % (SE + 3))
        a("s_mov_b32 s%d, 4" % (SE + 2))
        a("s_mov_b32 s%d, s%d" % (SE, P['ws']))
        a("s_mov_b32 s%d, s%d" % (SE + 1, P['ws'] + 1))
        a("s_mov_b32 s%d, 0" % sT0)
        for k, pp in enumerate((P['wk'], P['wv'], P['dbg'], P['out'], P['wd'])):
            a("s_cmp_eq_u32 s%d, %d" % (sW, k))
            a("s_cselect_b32 s%d, s%d, s%d" % (SE, pp, SE))
            a("s_cselect_b32 s%d, s%d, s%d" % (SE + 1, pp + 1, SE + 1))
        a("s_mul_i32 s%d, s%d, %d" % (sT1, sMT, 4 * 144 * 1024))
        a("s_add_u32 s%d, s%d, %d" % (sT1, sT1, WS_AF + 288 * 1024))
        a("s_cmp_eq_u32 s%d, 6" % sW)
        a("s_cselect_b32 s%d, s%d, s%d" % (sT0, sT1, sT0))
        a("s_mul_i32 s%d, s%d, %d" % (sT1, sMB, 2 * 144 * 1024))
        a("s_add_u32 s%d, s%d, %d" % (sT1, sT1, WS_AF + 144 * 1024))
        a("s_cmp_eq_u32 s%d, 7" % sW)
        a("s_cselect_b32 s%d, s%d, s%d" % (sT0, sT1, sT0))
        a("s_add_u32 s%d, s%d, s%d" % (SE, SE, sT0))
        a("s_addc_u32 s%d, s%d, 0" % (SE + 1, SE + 1))
        a("v_mov_b32 v2, 0")
        a("s_mov_b64 exec, 1")
        a("buffer_load_dword v160, v2, s[%d:%d], 0 offen sc1" % (SE, SE + 3))
        a("s_mov_b64 exec, -1")
    a("s_branch L_MAIN")
    a.label("L_HELPER")
    mark0 = len(a.lines)
    a.label("L_MAIN")

    vXr = [8, 9, 10, 11]
    vW0 = 12
    vW1 = list(range(13, 21))
    vGq = 26
    vGm = [28, 30]
    FR = [32, 48]
    ACC = 64
    vKa, vVa = 2, 3
    vQ = 4
    vKF = [8, 12]
    vS = [32, 48]
    vVF = [64, 72]
    vP = 80
    vO = 128
    vC = 144
    NB = int(os.environ.get("NB", "8"))
    b0 = PB[0]
    a("s_lshr_b32 s%d, s%d, 2" % (sT0, sW))
    a("s_lshl_b32 s%d, s%d, 13" % (sT0, sT0))
    a("s_add_u32 s%d, s%d, %d" % (sT0, sT0, b0 + OX))
    a("v_and_b32 v%d, 31, v0" % vT0)
    a("v_lshlrev_b32 v%d, 7, v%d" % (vT0, vT0))
    a("v_lshrrev_b32 v%d, 5, v0" % vT1)
    a("v_bfe_u32 v%d, v0, 1, 3" % vT3)
    a("v_xor_b32 v%d, v%d, v%d" % (vT3, vT3, vT1))
    a("v_lshl_add_u32 v%d, v%d, 4, v%d" % (vT0, vT3, vT0))
    for ks in range(4):
        a("v_xor_b32 v%d, %d, v%d" % (vT2, ks * 32, vT0))
        a("v_add_u32 v%d, s%d, v%d" % (vXr[ks], sT0, vT2))
    a("v_bfe_u32 v%d, v0, 2, 2" % vT2)
    a("v_lshl_add_u32 v%d, v%d, 3, v%d" % (vT3, vT1, vT2))
    a("v_and_b32 v%d, 3, v0" % vT2)
    a("v_bfe_u32 v%d, v0, 4, 1" % vT4)
    a("v_mul_u32_u24 v%d, 0xe0, v%d" % (vT0, vT3))
    a("v_lshl_add_u32 v%d, v%d, 3, v%d" % (vT0, vT2, vT0))
    a("s_and_b32 s%d, s%d, 3" % (sT1, sW))
    a("s_lshl_b32 s%d, s%d, 6" % (sT0, sT1))
    a("s_add_u32 s%d, s%d, %d" % (sT0, sT0, b0 + OWG))
    a("s_movk_i32 s%d, %d" % (sT2, OWU - OWG - 96))
    a("s_cmp_lt_u32 s%d, 2" % sT1)
    a("s_cselect_b32 s%d, %d, s%d" % (sT3, OWU - OWG + 128, sT2))
    a("v_mul_u32_u24 v%d, s%d, v%d" % (vT1, sT3, vT4))
    a("v_add3_u32 v%d, v%d, v%d, s%d" % (vW0, vT0, vT1, sT0))
    a("s_cmp_eq_u32 s%d, 3" % sT1)
    a("s_cbranch_scc1 L_W1_Q")
    a("s_cmp_lt_u32 s%d, 1" % sT1)
    a("s_cselect_b32 s%d, %d, s%d" % (sT3, OWU - OWG + 128, sT2))
    a("v_mul_u32_u24 v%d, s%d, v%d" % (vT1, sT3, vT4))
    a("v_add3_u32 v%d, v%d, v%d, s%d" % (vT0, vT0, vT1, sT0))
    for q in range(8):
        ks, u = q >> 1, q & 1
        a("v_add_u32 v%d, %d, v%d" % (vW1[q], 32 + (16 * ks + 4 * u) * 224, vT0))
    a("s_branch L_W1_E")
    a.label("L_W1_Q")
    a("v_lshlrev_b32 v%d, 6, v%d" % (vT0, vT3))
    a("v_lshl_add_u32 v%d, v%d, 3, v%d" % (vT0, vT2, vT0))
    a("v_lshl_add_u32 v%d, v%d, 5, v%d" % (vT0, vT4, vT0))
    for q in range(8):
        ks, u = q >> 1, q & 1
        a("v_add_u32 v%d, %d, v%d" % (vW1[q], b0 + OWQ + (16 * ks + 4 * u) * 64, vT0))
    a.label("L_W1_E")
    for r in list(range(vC, vC + 16)) + list(range(vO + 8, vO + 16)):
        a("v_mov_b32 v%d, 0" % r)
    a("v_mov_b32 v%d, v%d" % (vKa, vL16))
    a("v_lshrrev_b32 v%d, 5, v0" % vT0)
    a("v_and_b32 v%d, 15, v0" % vT1)
    a("v_lshlrev_b32 v%d, 8, v%d" % (vT2, vT0))
    a("v_lshl_add_u32 v%d, v%d, 4, v%d" % (vT2, vT1, vT2))
    a("v_add_u32 v%d, 1024, v%d" % (vVa, vT2))
    a("v_and_b32 v%d, 27, v0" % vT0)
    a("v_cmp_eq_u32 vcc, 16, v%d" % vT0)
    a("v_mov_b32 v%d, 0x3f803f80" % vT0)
    a("s_mov_b32 s%d, 0x0000ffff" % sVm)
    a("s_mov_b32 s%d, 0x0000ffff" % (sVm + 1))
    a("v_cndmask_b32 v27, 0, v%d, vcc" % vT0)
    a("v_and_b32 v%d, 31, v0" % vT0)
    a("s_lshr_b32 s%d, s%d, 2" % (sT0, sW))
    a("s_lshl_b32 s%d, s%d, 8" % (sT0, sT0))
    a("s_add_u32 s%d, s%d, %d" % (sT0, sT0, L_GROW))
    a("v_lshl_add_u32 v4, v%d, 2, s%d" % (vT0, sT0))
    a("s_and_b32 s%d, s%d, 3" % (sT0, sW))
    a("s_lshl_b32 s%d, s%d, 1" % (sT0, sT0))
    a("s_lshr_b32 s%d, s%d, 2" % (sT1, sW))
    a("s_add_u32 s%d, s%d, s%d" % (sT0, sT0, sT1))
    a("s_lshl_b32 s%d, s%d, 10" % (sT0, sT0))
    a("s_add_u32 s%d, s%d, %d" % (sT0, sT0, L_QX))
    a("v_add_u32 v5, s%d, v%d" % (sT0, vL16))
    a("v_mov_b32 v6, %d" % L_KMAX)
    a("s_lshr_b32 s%d, s%d, 2" % (sT0, sW))
    a("s_lshl_b32 s%d, s%d, 1" % (sT0, sT0))
    a("s_lshl_b32 s%d, s%d, 2" % (sT1, sMT))
    a("s_add_u32 s%d, s%d, s%d" % (sT0, sT0, sT1))
    a("s_mul_i32 s%d, s%d, 144" % (sT0, sT0))
    a("s_mul_i32 s%d, s%d, 7" % (sT1, sNT))
    a("s_add_u32 s%d, s%d, s%d" % (sT0, sT0, sT1))
    a("s_and_b32 s%d, s%d, 3" % (sT2, sW))
    a("s_lshl_b32 s%d, s%d, 1" % (sT1, sT2))
    a("s_add_u32 s%d, s%d, s%d" % (sT0, sT0, sT1))
    a("s_lshl_b32 s%d, s%d, 10" % (sT0, sT0))
    a("s_add_u32 s%d, s%d, %d" % (sOffA, sT0, WS_AF + 32 * 1024))
    a("s_add_u32 s%d, s%d, %d" % (sOffB, sOffA, 144 * 1024))
    a("s_and_b32 s%d, s%d, 3" % (sT0, sW))
    a("s_lshl_b32 s%d, s%d, 2" % (sT1, sMT))
    a("s_add_u32 s%d, s%d, s%d" % (sT0, sT0, sT1))
    a("s_mul_i32 s%d, s%d, 144" % (sT0, sT0))
    a("s_lshl_b32 s%d, s%d, 1" % (sT1, sNT))
    a("s_add_u32 s%d, s%d, s%d" % (sT0, sT0, sT1))
    a("s_lshr_b32 s%d, s%d, 2" % (sT1, sW))
    a("s_add_u32 s%d, s%d, s%d" % (sT0, sT0, sT1))
    a("s_lshl_b32 s%d, s%d, 10" % (sT0, sT0))
    a("s_add_u32 s%d, s%d, %d" % (sOffC, sT0, WS_AF))
    a("s_and_b32 s%d, s%d, 3" % (sT0, sW))
    a("s_lshl_b32 s%d, s%d, 7" % (sT0, sT0))
    a("s_add_u32 s%d, s%d, %d" % (sT0, sT0, L_GROW))
    a("v_lshl_add_u32 v7, v%d, 2, s%d" % (vT0, sT0))
    a("s_waitcnt lgkmcnt(0)")
    srd(a, SWS, P['ws'], P['ws'] + 1, WS_SIZE)
    srd(a, SOUT, P['out'], P['out'] + 1, 2097152)
    SXm = 48
    mGX, mGW = 128, 132
    srd(a, SXm, P['x'], P['x'] + 1, 2097152)
    srd(a, SE, P['gw'], P['gw'] + 1, 1024)
    a("s_lshl_b32 s%d, s%d, 4" % (sT0, sMT))
    a("s_add_u32 s%d, s%d, s%d" % (sT0, sT0, sNT))
    a("s_lshl_b32 s%d, s%d, 3" % (sT0, sT0))
    a("s_add_u32 s%d, s%d, s%d" % (sT0, sT0, sW))
    a("s_lshl_b32 s%d, s%d, 10" % (sT0, sT0))
    a("s_lshl_b32 s%d, s%d, 2" % (sT1, sW))
    a("s_add_u32 s%d, s%d, %d" % (sT1, sT1, L_G8))
    a("v_mov_b32 v%d, s%d" % (vGq, sT1))

    def g_loads():
        a("buffer_load_dwordx4 v[%d:%d], v%d, s[%d:%d], s%d offen" % (mGX, mGX + 3, vL16, SXm, SXm + 3, sT0))
        a("buffer_load_dwordx4 v[%d:%d], v%d, s[%d:%d], 0 offen" % (mGW, mGW + 3, vL16, SE, SE + 3))

    def g_job():
        a("s_waitcnt vmcnt(0)")
        a("v_mov_b32 v%d, 0" % vT0)
        for j in range(4):
            a("v_dot2_f32_bf16 v%d, v%d, v%d, v%d" % (vT0, mGX + j, mGW + j, vT0))
        for r in range(8):
            a("v_mov_b32 v%d, 0" % (vO + r))
        a("v_mov_b32 v%d, v%d" % (vT1, vT0))
        wave_reduce(a, "v_add_f32", vT1)
        a("v_mul_f32 v%d, 0x%08x, v%d" % (vT1, f32bits(-math.log2(math.e)), vT1))
        a("v_exp_f32 v%d, v%d" % (vT1, vT1))
        a.nop(1)
        a("v_add_f32 v%d, 1.0, v%d" % (vT1, vT1))
        a("v_rcp_f32 v%d, v%d" % (vT1, vT1))
        a("s_mov_b32 exec_lo, 0")
        a("s_mov_b32 exec_hi, 0x80000000")
        a("ds_write_b32 v%d, v%d" % (vGq, vT1))
        a("s_mov_b64 exec, -1")

    def rd_list(ks, fs):
        f = FR[fs]
        return [
            "ds_read_b128 v[%d:%d], v%d" % (f, f + 3, vXr[ks]),
            "ds_read_b64_tr_b16 v[%d:%d], v%d offset:%d" % (f + 8, f + 9, vW0, (16 * ks) * 224),
            "ds_read_b64_tr_b16 v[%d:%d], v%d offset:%d" % (f + 10, f + 11, vW0, (16 * ks + 4) * 224),
            "ds_read_b128 v[%d:%d], v%d offset:4096" % (f + 4, f + 7, vXr[ks]),
            "ds_read_b64_tr_b16 v[%d:%d], v%d" % (f + 12, f + 13, vW1[2 * ks]),
            "ds_read_b64_tr_b16 v[%d:%d], v%d" % (f + 14, f + 15, vW1[2 * ks + 1]),
        ]

    def mfmas(fs, first):
        f = FR[fs]
        out = []
        for an in (0, 1):
            for i in (0, 1):
                acc = ACC + (an * 2 + i) * 16
                c = "0" if first else "v[%d:%d]" % (acc, acc + 15)
                if os.environ.get("M16"):
                    o = acc + 8 * fs
                    out.append("v_mfma_f32_16x16x32_bf16 v[%d:%d], v[%d:%d], v[%d:%d], v[%d:%d]\n    v_mfma_f32_16x16x32_bf16 v[%d:%d], v[%d:%d], v[%d:%d], v[%d:%d]" % (
                        o, o + 3, f + 8 + an * 4, f + 11 + an * 4, f + i * 4, f + i * 4 + 3, o, o + 3,
                        o + 4, o + 7, f + 8 + an * 4, f + 11 + an * 4, f + (i ^ 1) * 4, f + (i ^ 1) * 4 + 3, o + 4, o + 7))
                    continue
                out.append("%s v[%d:%d], v[%d:%d], v[%d:%d], %s" % (MFMA, acc, acc + 15, f + 8 + an * 4, f + 11 + an * 4,
                                                                   f + i * 4, f + i * 4 + 3, c))
        return out

    def adv(s, regs):
        d = PB[(s + 1) % 3] - PB[s % 3]
        return ["v_add_u32 v%d, %d, v%d" % (r, d, r) if d >= 0 else "v_subrev_u32 v%d, %d, v%d" % (r, -d, r) for r in regs]

    if PFSPLIT:
        a("s_cmp_lt_u32 s2, %d" % PFSPLIT)
        a("s_cbranch_scc1 L_PF2E")
        a("s_cmp_eq_u32 s%d, 7" % sW)
        a("s_cbranch_scc1 L_PF2E")
        wpf()
        a.label("L_PF2E")
    if os.environ.get("M16"):
        for r in range(64):
            a("v_mov_b32 v%d, 0" % (ACC + r))
    stamp("pro")
    a("s_barrier")
    stamp("bar0")
    emit(rd_list(0, 0))
    fs = 0
    for s in range(8):
        for ks in range(4):
            ms = mfmas(fs, s == 0 and ks == 0)
            if ks < 3:
                nxt = rd_list(ks + 1, fs ^ 1)
                for q in range(4):
                    if q < 3:
                        a("s_waitcnt lgkmcnt(%d)" % (3 if q == 0 else 4))
                    a(ms[q])
                    emit(nxt[2 * q:2 * q + 2])
                    if s < 7 and q == 3:
                        regs = [vXr[ks], vW1[2 * ks], vW1[2 * ks + 1]]
                        if ks == 2:
                            regs += [vXr[3], vW1[6], vW1[7], vW0]
                        emit(adv(s, regs))
            else:
                if s < 7:
                    a("s_waitcnt lgkmcnt(3)")
                    a(ms[0])
                    a("s_waitcnt lgkmcnt(0)")
                    stamp("s%dv" % s)
                    a("s_barrier")
                    stamp("s%db" % s)
                    nxt = rd_list(0, fs ^ 1)
                    emit(nxt[0:3])
                    a(ms[1])
                    emit(nxt[3:6])
                    a(ms[2])
                    a(ms[3])
                    if s == 1:
                        g_job()
                else:
                    a("ds_read_b32 v%d, v4" % vGm[0])
                    a("ds_read_b32 v%d, v4 offset:128" % vGm[1])
                    a("ds_read_b32 v%d, v7" % vGq)
                    a("s_waitcnt lgkmcnt(6)")
                    a(ms[0])
                    a("s_waitcnt lgkmcnt(3)")
                    emit(ms[1:])
            fs ^= 1
    stamp("g1end")
    a("s_bitcmp1_b32 s%d, 1" % sW)
    a("s_cselect_b64 vcc, -1, 0")
    a("v_mov_b32 v8, -1")
    a("v_mov_b32 v9, -1")
    a("v_mov_b32 v10, -1")
    a("v_mov_b32 v11, -1")
    a("s_waitcnt lgkmcnt(0)")
    a("buffer_store_dwordx4 v[8:11], v%d, s[%d:%d], s%d offen sc1" % (vL16, SWS, SWS + 3, sOffC))
    a("v_sub_f32 v%d, 1.0, v%d" % (vGm[0], vGm[0]))
    a("v_sub_f32 v%d, 1.0, v%d" % (vGm[1], vGm[1]))
    a("v_mov_b32 v%d, v%d" % (vGm[0] + 1, vGm[0]))
    a("v_mov_b32 v%d, v%d" % (vGm[1] + 1, vGm[1]))

    def h_tile(an, i, d):
        t = ACC + (an * 2 + i) * 16
        for r in range(0, 8, 2):
            a("v_pk_mul_f32 v[%d:%d], v[%d:%d], v[%d:%d]" % (t + r, t + r + 1, t + r, t + r + 1, t + 8 + r, t + 9 + r))
        for r in range(0, 8, 2):
            a("v_pk_mul_f32 v[%d:%d], v[%d:%d], v[%d:%d]" % (t + r, t + r + 1, t + r, t + r + 1, vGm[i], vGm[i] + 1))
        for j in range(4):
            a("v_cvt_pk_bf16_f32 v%d, v%d, v%d" % (d + j, t + 2 * j, t + 2 * j + 1))
        a("buffer_store_dwordx4 v[%d:%d], v%d, s[%d:%d], s%d offen offset:%d sc1" % (d, d + 3, vL16, SWS, SWS + 3,
                                                                                    sOffA if i == 0 else sOffB, an * 1024))

    a("s_cmp_eq_u32 s%d, 3" % sT2)
    a("s_cbranch_scc1 L_EPI_Q")
    h_tile(1, 0, ACC + 40)
    h_tile(1, 1, ACC + 56)
    a("s_branch L_EPI_C")
    a.label("L_EPI_Q")
    a("v_mov_b32 v24, 0x%08x" % f32bits(QSCALE))
    a("v_mov_b32 v25, 0x%08x" % f32bits(QSCALE))
    a("s_lshr_b32 s%d, s%d, 2" % (sT2, sW))
    a("s_lshl_b32 s%d, s%d, 12" % (sT2, sT2))
    a("s_add_u32 s%d, s%d, %d" % (sT2, sT2, L_QX))
    a("v_add_u32 v%d, s%d, v%d" % (vT0, sT2, vL16))
    for i in (0, 1):
        t = ACC + (2 + i) * 16
        for r in range(0, 16, 2):
            a("v_pk_mul_f32 v[%d:%d], v[%d:%d], v[24:25]" % (t + r, t + r + 1, t + r, t + r + 1))
        d = FR[0] + 8 * i
        for j in range(8):
            a("v_cvt_pk_bf16_f32 v%d, v%d, v%d" % (d + j, t + 2 * j, t + 2 * j + 1))
        a("ds_write_b128 v%d, v[%d:%d] offset:%d" % (vT0, d, d + 3, i * 2048))
        a("ds_write_b128 v%d, v[%d:%d] offset:%d" % (vT0, d + 4, d + 7, i * 2048 + 1024))
    a.label("L_EPI_C")
    h_tile(0, 0, ACC + 44)
    h_tile(0, 1, ACC + 60)
    for r in range(16):
        a("v_mov_b32 v%d, v27" % (vVF[0] + r))
    a("v_mov_b32 v%d, v5" % vT0)
    a("v_mov_b32 v%d, v6" % vT1)
    a("s_waitcnt lgkmcnt(0)")
    a("s_barrier")
    stamp("Bq")
    a("ds_read_b128 v[%d:%d], v%d" % (vQ, vQ + 3, vT0))
    a("ds_read_b32 v%d, v%d" % (vT4, vT1))

    inloop = [False]

    def rdK(buf, off):
        if inloop[0] and "nolds" in os.environ.get("X", ""):
            return
        a("ds_read_b128 v[%d:%d], v%d offset:%d" % (vKF[buf], vKF[buf] + 3, vKa, off))

    def rdV(buf, off):
        if inloop[0] and ("nolds" in os.environ.get("X", "") or "nov" in os.environ.get("X", "")):
            return
        ne = "noexec" in os.environ.get("X", "")
        if not ne:
            a("s_mov_b64 exec, s[%d:%d]" % (sVm, sVm + 1))
        a("ds_read_b128 v[%d:%d], v%d offset:%d" % (vVF[buf], vVF[buf] + 3, vVa, off))
        a("ds_read_b128 v[%d:%d], v%d offset:%d" % (vVF[buf] + 4, vVF[buf] + 7, vVa, off + 512))
        if not ne:
            a("s_mov_b64 exec, -1")

    X = os.environ.get("X", "")

    def mS(sbuf, kbuf):
        if "czero" in X:
            a("%s v[%d:%d], v[%d:%d], v[%d:%d], 0" % (MFMA, vS[sbuf], vS[sbuf] + 15, vKF[kbuf], vKF[kbuf] + 3, vQ, vQ + 3))
            return
        a("%s v[%d:%d], v[%d:%d], v[%d:%d], v[%d:%d]" % (MFMA, vS[sbuf], vS[sbuf] + 15, vKF[kbuf], vKF[kbuf] + 3,
                                                        vQ, vQ + 3, vC, vC + 15))

    def mPV(vbuf, t):
        if "nopv" in X:
            return
        if "pv16" in X:
            a("v_mfma_f32_16x16x32_bf16 v[%d:%d], v[%d:%d], v[%d:%d], v[%d:%d]" % (vO + 4 * t, vO + 4 * t + 3, vKF[0], vKF[0] + 3,
                                                        vP + 4 * t, vP + 4 * t + 3, vO + 4 * t, vO + 4 * t + 3))
            return
        a("%s v[%d:%d], v[%d:%d], v[%d:%d], v[%d:%d]" % (MFMA, vO, vO + 15, vVF[vbuf] + 4 * t, vVF[vbuf] + 4 * t + 3,
                                                        vP + 4 * t, vP + 4 * t + 3, vO, vO + 15))

    def E(sb, r):
        a("v_exp_f32 v%d, v%d" % (vS[sb] + r, vS[sb] + r))

    def C(sb, j):
        a("v_cvt_pk_bf16_f32 v%d, v%d, v%d" % (vP + j, vS[sb] + 2 * j, vS[sb] + 2 * j + 1))

    rdK(0, 0)
    rdK(1, KVBLK)
    rdV(0, 0)
    a("s_waitcnt lgkmcnt(4)")
    a("v_mov_b32 v%d, 0" % vT3)
    for j in range(4):
        a("v_dot2_f32_bf16 v%d, v%d, v%d, v%d" % (vT3, vQ + j, vQ + j, vT3))
    a("s_mov_b32 s%d, 0x%08x" % (sT1, f32bits(900.0)))
    a("s_mov_b32 s%d, %d" % (sSkip, {4: 3, 8: 2, 16: 1}[NB]))
    a("s_mov_b32 s%d, 0" % sIt)
    a.nop(1)
    a("v_mov_b32 v%d, v%d" % (vT2, vT3))
    a.nop(2)
    a("v_permlane32_swap_b32 v%d, v%d" % (vT3, vT2))
    a.nop(1)
    a("v_add_f32 v%d, v%d, v%d" % (vT3, vT3, vT2))
    a("v_mul_f32 v%d, v%d, v%d" % (vT3, vT4, vT3))
    a("v_cmp_nge_f32 vcc, s%d, v%d" % (sT1, vT3))
    a("s_cmp_eq_u64 vcc, 0")
    a("s_cbranch_scc1 L_FAST")
    a("s_waitcnt vmcnt(0)")
    a("s_barrier")
    a("s_mov_b32 s%d, 99" % sSkip)
    a("v_mov_b32 v%d, 0xff800000" % vT0)
    a("v_mov_b32 v%d, v%d" % (vT1, vL16))
    a.label("L_MAXLOOP")
    a("ds_read_b128 v[%d:%d], v%d" % (vP, vP + 3, vT1))
    a("v_add_u32 v%d, %d, v%d" % (vT1, KVBLK, vT1))
    a("s_waitcnt lgkmcnt(0)")
    a("%s v[%d:%d], v[%d:%d], v[%d:%d], 0" % (MFMA, vS[0], vS[0] + 15, vP, vP + 3, vQ, vQ + 3))
    a.nop(16)
    for j in range(8):
        a("v_max3_f32 v%d, v%d, v%d, v%d" % (vT0, vS[0] + 2 * j, vS[0] + 2 * j + 1, vT0))
    a("s_add_u32 s%d, s%d, 1" % (sIt, sIt))
    a("s_cmp_lt_u32 s%d, 64" % sIt)
    a("s_cbranch_scc1 L_MAXLOOP")
    a("v_mov_b32 v%d, v%d" % (vT1, vT0))
    a("s_mov_b32 s%d, 0" % sIt)
    a.nop(1)
    a("v_permlane32_swap_b32 v%d, v%d" % (vT0, vT1))
    a.nop(2)
    a("v_max_f32 v%d, v%d, v%d" % (vT0, vT0, vT1))
    for r in range(16):
        a("v_sub_f32 v%d, 0, v%d" % (vC + r, vT0))
    a.label("L_FAST")
    a("s_setprio 1")
    a("s_cmp_lt_u32 s%d, 4" % sW)
    a("s_cbranch_scc0 L_NOPRIO")
    a("s_setprio 2")
    a.label("L_NOPRIO")
    for r in range(12, 16):
        a("v_mov_b32 v%d, 0" % (vS[1] + r))
    a("v_mov_b32 v%d, 0" % (vP + 4))
    a("v_mov_b32 v%d, 0" % (vP + 5))
    a("s_waitcnt lgkmcnt(0)")
    mS(0, 0)
    a.nop(12)
    a.label("L_LOOP")
    inloop[0] = True
    for bb in range(NB):
        p = bb & 1
        off = bb * KVBLK
        E(p, 0)
        E(p, 1)
        C(p ^ 1, 6)
        C(p ^ 1, 7)
        E(p, 2)
        E(p, 3)
        mPV(p ^ 1, 1)
        rdV(p ^ 1, off + KVBLK)
        E(p, 4)
        E(p, 5)
        C(p, 0)
        C(p, 1)
        a("s_waitcnt lgkmcnt(2)")
        mS(p ^ 1, p ^ 1)
        rdK(p, off + 2 * KVBLK)
        E(p, 6)
        E(p, 7)
        E(p, 8)
        E(p, 9)
        C(p, 2)
        C(p, 3)
        E(p, 10)
        E(p, 11)
        mPV(p, 0)
        E(p, 12)
        E(p, 13)
        C(p, 4)
        C(p, 5)
        E(p, 14)
        E(p, 15)
    a("v_add_u32 v%d, %d, v%d" % (vKa, NB * KVBLK, vKa))
    a("v_add_u32 v%d, %d, v%d" % (vVa, NB * KVBLK, vVa))
    a("s_add_u32 s%d, s%d, 1" % (sIt, sIt))
    a("s_cmp_lg_u32 s%d, s%d" % (sIt, sSkip))
    a("s_cbranch_scc1 L_NOBKV")
    a("s_waitcnt vmcnt(0)")
    a("s_barrier")
    stamp("bkv")
    a.label("L_NOBKV")
    a("s_cmp_lt_u32 s%d, %d" % (sIt, 64 // NB))
    a("s_cbranch_scc1 L_LOOP")
    if os.environ.get("REPEAT"):
        inloop[0] = False
        a("s_cmp_eq_u32 s%d, 98" % sSkip)
        a("s_cbranch_scc1 L_RPT_E")
        a("s_mov_b32 s%d, 98" % sSkip)
        a("s_mov_b32 s%d, 0" % sIt)
        a.nop(16)
        for r in range(16):
            a("v_mov_b32 v%d, 0" % (vO + r))
        a("v_subrev_u32 v%d, %d, v%d" % (vKa, 64 * KVBLK, vKa))
        a("v_subrev_u32 v%d, %d, v%d" % (vVa, 64 * KVBLK, vVa))
        a("s_waitcnt lgkmcnt(0)")
        rdK(0, 0)
        rdK(1, KVBLK)
        rdV(0, 0)
        a("s_branch L_FAST")
        a.label("L_RPT_E")
    C(1, 6)
    C(1, 7)
    a.nop(2)
    mPV(1, 1)
    stamp("attn")
    a.nop(13)
    a("v_rcp_f32 v%d, v%d" % (vT0, vO + 8))
    a("v_lshrrev_b32 v%d, 3, v0" % vT4)
    a("v_mul_f32 v%d, v%d, v%d" % (vT0, vT0, vGq))
    for r in range(8):
        a("v_mul_f32 v%d, v%d, v%d" % (vO + r, vO + r, vT0))
    for j in range(4):
        a("v_cvt_pk_bf16_f32 v%d, v%d, v%d" % (vO + 8 + j, vO + 2 * j, vO + 2 * j + 1))
    a("buffer_store_dwordx4 v[%d:%d], v%d, s[%d:%d], s%d offen sc1" % (vO + 8, vO + 11, vL16, SWS, SWS + 3, sOffC))
    a("s_waitcnt lgkmcnt(0)")
    a("s_barrier")
    stamp("b3")
    vR0, vR1, vOo = 8, 9, 10
    a("s_lshl_b32 s%d, s%d, 3" % (sT0, sW))
    a("v_add_u32 v%d, s%d, v%d" % (vT4, sT0, vT4))
    a("v_and_b32 v%d, 15, v%d" % (vT1, vT4))
    a("v_and_b32 v%d, 7, v0" % vT2)
    a("v_lshlrev_b32 v%d, 1, v%d" % (vT3, vT2))
    a("v_xor_b32 v%d, v%d, v%d" % (vT1, vT1, vT3))
    a("v_lshlrev_b32 v%d, 8, v%d" % (vT3, vT4))
    a("v_lshl_add_u32 v%d, v%d, 4, v%d" % (vR0, vT1, vT3))
    a("v_xor_b32 v%d, 16, v%d" % (vR1, vR0))
    a("v_lshlrev_b32 v%d, 10, v%d" % (vT4, vT4))
    a("v_lshl_add_u32 v%d, v%d, 4, v%d" % (vOo, vT2, vT4))
    a("s_lshl_b32 s%d, s%d, 16" % (sT0, sMB))
    a("s_lshl_b32 s%d, s%d, 7" % (sT1, sNB))
    a("s_add_u32 s%d, s%d, s%d" % (sT0, sT0, sT1))
    a("s_barrier")
    stamp("b4")
    FB = 32
    for k_ in range(4):
        a("ds_read_b128 v[%d:%d], v%d offset:%d" % (FB + 8 * k_, FB + 8 * k_ + 3, vR0, k_ * 16384))
        a("ds_read_b128 v[%d:%d], v%d offset:%d" % (FB + 8 * k_ + 4, FB + 8 * k_ + 7, vR1, k_ * 16384))
    for k_ in range(1, 4):
        a("s_waitcnt lgkmcnt(%d)" % (2 * (3 - k_)))
        for r in range(8):
            a("v_add_f32 v%d, v%d, v%d" % (FB + r, FB + r, FB + 8 * k_ + r))
    for j in range(4):
        a("v_cvt_pk_bf16_f32 v%d, v%d, v%d" % (FB + 8 + j, FB + 2 * j, FB + 2 * j + 1))
    a("buffer_store_dwordx4 v[%d:%d], v%d, s[%d:%d], s%d offen%s" % (FB + 8, FB + 11, vOo, SOUT, SOUT + 3, sT0, os.environ.get("OUTF", "")))
    prof_flush()
    a("s_endpgm")

    role[0] = "H"
    mark1 = len(a.lines)
    vXd0, vXd1 = 2, 3
    vWd = list(range(4, 12))
    vEv = 12
    vPl = 14
    vKX = 32
    vKA = 96
    vGX = 112
    vGW = 120
    a("s_setprio 3")
    a("s_sub_u32 s%d, s%d, 8" % (sH, sW))
    a("s_lshl_b32 s%d, s%d, 12" % (sM0x, sH))
    a("s_lshl_b32 s%d, s%d, 13" % (sM0w, sH))
    a("s_lshl_b32 s%d, s%d, 7" % (sT0, sMT))
    a("s_lshl_b32 s%d, s%d, 5" % (sT1, sH))
    a("s_add_u32 s%d, s%d, s%d" % (sT0, sT0, sT1))
    a("v_lshrrev_b32 v%d, 3, v0" % vT0)
    a("v_add_u32 v%d, s%d, v%d" % (vT0, sT0, vT0))
    a("v_lshlrev_b32 v%d, 10, v%d" % (vT0, vT0))
    a("v_and_b32 v%d, 7, v0" % vT1)
    a("v_lshrrev_b32 v%d, 4, v0" % vT2)
    a("v_xor_b32 v%d, v%d, v%d" % (vT1, vT1, vT2))
    a("v_lshl_add_u32 v%d, v%d, 4, v%d" % (vXd0, vT1, vT0))
    a("v_xor_b32 v%d, 64, v%d" % (vXd1, vXd0))
    a("v_add_u32 v%d, 0x2000, v%d" % (vXd1, vXd1))
    a("s_waitcnt lgkmcnt(0)")
    stamp("karg")
    srd(a, SX, P['x'], P['x'] + 1, 2097152)
    for S, lim, q in ((SA, 2, False), (SB, 2, True), (SC, 1, True)):
        a("s_cmp_lt_u32 s%d, %d" % (sH, lim))
        a("s_cselect_b32 s%d, s%d, s%d" % (S, P['wg'], P['wu']))
        a("s_cselect_b32 s%d, s%d, s%d" % (S + 1, P['wg'] + 1, P['wu'] + 1))
        a("s_mov_b32 s%d, 0x1c0000" % (S + 2))
        if q:
            a("s_cmp_eq_u32 s%d, 3" % sH)
            a("s_cselect_b32 s%d, s%d, s%d" % (S, P['wq'], S))
            a("s_cselect_b32 s%d, s%d, s%d" % (S + 1, P['wq'] + 1, S + 1))
            a("s_cselect_b32 s%d, 0x80000, s%d" % (S + 2, S + 2))
        a("s_mov_b32 s%d, 0x20000" % (S + 3))

    for i in range(4):
        a("s_add_u32 m0, s%d, %d" % (sM0x, PB[0] + OX + i * 1024))
        a("s_movk_i32 s%d, %d" % (sT0, (i >> 1) * 16384))
        a("buffer_load_dwordx4 v%d, s[%d:%d], s%d offen lds" % (vXd1 if i & 1 else vXd0, SX, SX + 3, sT0))

    def w0(j):
        S = SA if j < 4 else (SB if j < 6 else SC)
        a("s_add_u32 m0, s%d, %d" % (sM0w, PB[0] + OWG + j * 1024))
        a("s_nop 0")
        a("buffer_load_dwordx4 v%d, s[%d:%d], 0 offen lds" % (vWd[j], S, S + 3))
    a("s_mul_i32 s%d, s%d, 224" % (sT2, sNT))
    a("s_movk_i32 s%d, 4682" % sT3)
    for j in range(8):
        if j == 4:
            a("s_cmp_eq_u32 s%d, 3" % sH)
            a("s_cbranch_scc1 L_WD_Q")
        a("s_lshl_b32 s%d, s%d, 3" % (sT0, sH))
        a("s_add_u32 s%d, s%d, %d" % (sT0, sT0, j))
        a("s_sub_u32 s%d, s%d, 14" % (sT1, sT0))
        a("s_cmp_ge_u32 s%d, 14" % sT0)
        a("s_cselect_b32 s%d, s%d, s%d" % (sT0, sT1, sT0))
        a("s_cselect_b32 s%d, 6, 0" % sOffA)
        a("s_lshl_b32 s%d, s%d, 6" % (sT0, sT0))
        a("v_add_u32 v%d, s%d, v0" % (vT0, sT0))
        a("v_mul_u32_u24 v%d, s%d, v%d" % (vT1, sT3, vT0))
        a("v_lshrrev_b32 v%d, 16, v%d" % (vT1, vT1))
        a("v_mul_u32_u24 v%d, 14, v%d" % (vT2, vT1))
        a("v_sub_u32 v%d, v%d, v%d" % (vT0, vT0, vT2))
        a("v_add_u32 v%d, s%d, v%d" % (vT0, sOffA, vT0))
        a("v_subrev_u32 v%d, 14, v%d" % (vT2, vT0))
        a("v_min_u32 v%d, v%d, v%d" % (vT0, vT0, vT2))
        a("v_mul_u32_u24 v%d, 0xe00, v%d" % (vT1, vT1))
        a("v_lshl_add_u32 v%d, v%d, 4, v%d" % (vT0, vT0, vT1))
        a("v_add_u32 v%d, s%d, v%d" % (vWd[j], sT2, vT0))
        w0(j)
    a("s_mov_b32 s%d, %d" % (sStepB, 64 * 3584))
    a("s_branch L_WD_E")
    a.label("L_WD_Q")
    a("s_lshl_b32 s%d, s%d, 6" % (sT2, sNT))
    a("v_lshrrev_b32 v%d, 2, v0" % vT0)
    a("v_and_b32 v%d, 3, v0" % vT1)
    a("v_lshlrev_b32 v%d, 10, v%d" % (vT0, vT0))
    a("v_lshl_add_u32 v%d, v%d, 4, v%d" % (vT0, vT1, vT0))
    a("v_add_u32 v%d, s%d, v%d" % (vWd[4], sT2, vT0))
    for j in range(5, 8):
        a("v_add_u32 v%d, %d, v%d" % (vWd[j], (j - 4) * 16384, vWd[4]))
    for j in range(4, 8):
        w0(j)
    a("s_mov_b32 s%d, 65536" % sStepB)
    a.label("L_WD_E")
    def dma_stage(s):
        b = PB[s % 3]
        a("s_mov_b32 s%d, %d" % (sOffA, s * 64 * 3584))
        a("s_mul_i32 s%d, s%d, %d" % (sOffB, sStepB, s))
        for j in range(8):
            S = SA if j < 4 else (SB if j < 6 else SC)
            a("s_add_u32 m0, s%d, %d" % (sM0w, b + OWG + j * 1024))
            if j % 2 == 0:
                i = j // 2
                a("s_movk_i32 s%d, %d" % (sT0, s * 128 + (i >> 1) * 16384))
            else:
                a("s_nop 0")
            a("buffer_load_dwordx4 v%d, s[%d:%d], s%d offen lds" % (vWd[j], S, S + 3, sOffA if j < 4 else sOffB))
            if j % 2 == 0:
                a("s_add_u32 m0, s%d, %d" % (sM0x, b + OX + i * 1024))
                a("s_nop 0")
                a("buffer_load_dwordx4 v%d, s[%d:%d], s%d offen lds" % (vXd1 if i & 1 else vXd0, SX, SX + 3, sT0))

    def kv_dma(first, n):
        for j in range(n):
            off = (first + 4 * j) * 1024
            a("s_add_u32 m0, s%d, %d" % (sKoff, off))
            a("s_add_u32 s%d, s%d, %d" % (sOffA, sKoff, WS_KV + off))
            a("buffer_load_dwordx4 v%d, s[%d:%d], s%d offen sc1 lds" % (vL16, SWS, SWS + 3, sOffA))

    srd(a, SDBG, P['dbg'], P['dbg'] + 1, 256)
    a("s_cmp_lg_u32 s2, 0")
    a("s_cbranch_scc1 L_NOTAG")
    a("s_cmp_lg_u32 s%d, 3" % sH)
    a("s_cbranch_scc1 L_NOTAG")
    a("s_or_b32 s%d, s88, 1" % sT0)
    a("v_mov_b32 v%d, s%d" % (vT0, sT0))
    a("v_mov_b32 v%d, 0" % vT1)
    a("s_mov_b64 exec, 1")
    a("buffer_store_dword v%d, v%d, s[%d:%d], 0 offen sc1" % (vT0, vT1, SDBG, SDBG + 3))
    a("s_mov_b64 exec, -1")
    a.label("L_NOTAG")
    a("s_and_b32 s%d, s%d, 3" % (sRB, sNT))
    a("s_lshr_b32 s%d, s%d, 2" % (sT0, sNT))
    a("s_add_u32 s%d, s%d, 1" % (sKV, sT0))
    a("s_cmp_ge_u32 s%d, 8" % sNT)
    a("s_cselect_b32 s%d, 0, s%d" % (sKV, sKV))
    a("s_cmp_eq_u32 s%d, 1" % sKV)
    a("s_cselect_b32 s%d, s%d, s%d" % (SE, P['wk'], P['wv']))
    a("s_cselect_b32 s%d, s%d, s%d" % (SE + 1, P['wk'] + 1, P['wv'] + 1))
    a("s_mov_b32 s%d, 16384" % (SE + 2))
    a("s_mov_b32 s%d, 0x20000" % (SE + 3))
    a("v_lshrrev_b32 v%d, 4, v0" % vT0)
    a("v_and_b32 v%d, 15, v0" % vT1)
    a("v_xor_b32 v%d, v%d, v%d" % (vT1, vT1, vT0))
    a("v_lshlrev_b32 v%d, 10, v%d" % (vT0, vT0))
    a("v_lshl_add_u32 v18, v%d, 4, v%d" % (vT1, vT0))
    a("s_lshl_b32 s%d, s%d, 2" % (sT0, sMT))
    a("s_add_u32 s%d, s%d, s%d" % (sT0, sT0, sRB))
    a("s_lshl_b32 s%d, s%d, 15" % (sT0, sT0))
    a("s_lshl_b32 s%d, s%d, 8" % (sT1, sH))
    a("s_add_u32 s%d, s%d, s%d" % (sOffC, sT0, sT1))

    def dk():
        for p_ in range(8):
            a("s_add_u32 m0, s%d, %d" % (sM0w, PB[2] + OWG + p_ * 1024))
            a("v_xor_b32 v%d, %d, v18" % (vT0, (p_ & 3) * 64))
            a("s_add_u32 s%d, s%d, %d" % (sT0, sOffC, p_ * 4096))
            a("buffer_load_dwordx4 v%d, s[%d:%d], s%d offen lds" % (vT0, SX, SX + 3, sT0))
        a("s_add_u32 m0, s%d, %d" % (sM0x, PB[2] + OX))
        a("s_nop 0")
        for j in range(4):
            a("buffer_load_dwordx4 v%d, s[%d:%d], s%d offen offset:%d lds" % (vL16, SE, SE + 3, sM0x, j * 1024))
    if DKPOS == 0:
        a("s_cmp_eq_u32 s%d, 0" % sKV)
        a("s_cbranch_scc1 L_NODK")
        dk()
        a.label("L_NODK")
    stamp("d0")
    def dk_d1():
        a("s_cmp_eq_u32 s%d, 0" % sKV)
        a("s_cbranch_scc1 L_NODK1")
        dk()
        a.label("L_NODK1")
        dma_stage(1)
    if not D1LATE:
        dk_d1()
    stamp("d1")
    srd(a, SWS, P['ws'], P['ws'] + 1, WS_SIZE)
    a("s_lshl_b32 s%d, s%d, 10" % (sKoff, sH))
    a("s_lshl_b32 s%d, s%d, 4" % (sSlot, sMT))
    a("s_add_u32 s%d, s%d, s%d" % (sSlot, sSlot, sNT))
    a("s_lshl_b32 s%d, s%d, 7" % (sSlot, sSlot))
    a("s_cmp_eq_u32 s%d, 0" % sH)
    a("s_cselect_b32 s%d, s%d, 0" % (sSkip, sKV))
    a("s_waitcnt vmcnt(%d)" % (0 if D1LATE else 12))
    stamp("w0")
    a("s_barrier")
    if D1LATE:
        dk_d1()
        a("s_waitcnt vmcnt(12)")
    a("v_mov_b32 v%d, 0" % vT0)
    a("buffer_load_dword v%d, v%d, s[%d:%d], 0 offen sc1" % (vEv, vT0, SDBG, SDBG + 3))
    a("s_cmp_eq_u32 s%d, 0" % sKV)
    a("s_cbranch_scc1 L_I0_N")
    a("v_lshrrev_b32 v%d, 5, v0" % vT1)
    a("v_bfe_u32 v%d, v0, 2, 2" % vT2)
    a("v_lshl_add_u32 v%d, v%d, 3, v%d" % (vT3, vT1, vT2))
    a("v_and_b32 v%d, 3, v0" % vT2)
    a("v_lshlrev_b32 v%d, 5, v%d" % (vT3, vT3))
    a("v_lshl_add_u32 v%d, v%d, 3, v%d" % (vT3, vT2, vT3))
    a("s_add_u32 s%d, s%d, %d" % (sT0, sM0x, PB[2] + OX))
    a("v_add_u32 v19, s%d, v%d" % (sT0, vT3))
    a("v_and_b32 v%d, 31, v0" % vT2)
    a("v_and_b32 v%d, 15, v0" % vT3)
    a("v_xor_b32 v%d, v%d, v%d" % (vT1, vT1, vT3))
    a("v_lshlrev_b32 v%d, 8, v%d" % (vT2, vT2))
    a("v_lshl_add_u32 v%d, v%d, 4, v%d" % (vT2, vT1, vT2))
    a("s_add_u32 s%d, s%d, %d" % (sT0, sM0w, PB[2] + OWG))
    a("v_add_u32 v20, s%d, v%d" % (sT0, vT2))
    a("v_and_b32 v%d, 16, v0" % vT1)
    a("v_cmp_eq_u32 vcc, 0, v%d" % vT1)
    vKW = 128
    for ks in range(8):
        a("v_xor_b32 v%d, %d, v20" % (vT0, ks * 32))
        a("ds_read_b128 v[%d:%d], v%d" % (vKX + 4 * ks, vKX + 4 * ks + 3, vT0))
    for ks in range(8):
        if ks in (3, 6):
            a("s_waitcnt lgkmcnt(8)")
        for u in range(2):
            a("ds_read_b64_tr_b16 v[%d:%d], v19 offset:%d" % (vKW + 4 * ks + 2 * u, vKW + 4 * ks + 2 * u + 1, (16 * ks + 4 * u) * 32))
    a("s_waitcnt lgkmcnt(0)")
    dma_stage(2)
    a("s_cmp_eq_u32 s%d, 2" % sKV)
    a("s_cbranch_scc1 L_SJ_V")
    for ks in range(8):
        c = "0" if ks == 0 else "v[%d:%d]" % (vKA, vKA + 15)
        a("%s v[%d:%d], v[%d:%d], v[%d:%d], %s" % (MFMA, vKA, vKA + 15, vKW + 4 * ks, vKW + 4 * ks + 3,
                                                   vKX + 4 * ks, vKX + 4 * ks + 3, c))
    a("s_mov_b64 vcc, -1")
    a("s_branch L_SJ_W")
    a.label("L_SJ_V")
    for ks in range(8):
        c = "0" if ks == 0 else "v[%d:%d]" % (vKA, vKA + 15)
        a("%s v[%d:%d], v[%d:%d], v[%d:%d], %s" % (MFMA, vKA, vKA + 15, vKX + 4 * ks, vKX + 4 * ks + 3,
                                                   vKW + 4 * ks, vKW + 4 * ks + 3, c))
    a.label("L_SJ_W")
    a("s_waitcnt vmcnt(13)")
    a("s_barrier")
    a.nop(10)
    for r in range(8):
        a("v_cndmask_b32 v%d, v%d, v%d, vcc" % (vKA + r, vKA + 8 + r, vKA + r))
    a("s_lshr_b32 s%d, s%d, 1" % (sT0, sM0x))
    a("s_add_u32 s%d, s%d, %d" % (sT0, sT0, L_TOP))
    a("v_add_u32 v%d, s%d, v%d" % (vT1, sT0, vL16))
    a("ds_write_b128 v%d, v[%d:%d]" % (vT1, vKA, vKA + 3))
    a("ds_write_b128 v%d, v[%d:%d] offset:1024" % (vT1, vKA + 4, vKA + 7))
    a("s_branch L_I1")
    a.label("L_I0_N")
    dma_stage(2)
    a("s_waitcnt vmcnt(13)")
    a("s_barrier")
    a.label("L_I1")
    dma_stage(3)
    a("s_waitcnt vmcnt(12) lgkmcnt(0)")
    stamp("w2")
    a("s_barrier")
    a("s_mov_b32 s%d, 0" % sSpin)
    a.label("L_GE_L")
    a("v_readfirstlane_b32 s%d, v%d" % (sE, vEv))
    a("s_cmp_lg_u32 s%d, 0" % sE)
    a("s_cbranch_scc1 L_GE_E")
    spin_tail("L_GE_E")
    a("v_mov_b32 v%d, 0" % vT0)
    a("buffer_load_dword v%d, v%d, s[%d:%d], 0 offen sc1" % (vEv, vT0, SDBG, SDBG + 3))
    a("s_waitcnt vmcnt(0)")
    a("s_branch L_GE_L")
    a.label("L_GE_E")
    a("s_cmp_eq_u32 s%d, 0" % sSkip)
    a("s_cbranch_scc1 L_I2_N")
    a("v_add_u32 v%d, %d, v%d" % (vT2, L_TOP + 2048, vL16))
    for j in range(3):
        a("ds_read_b128 v[%d:%d], v%d offset:%d" % (vKX + 8 * j, vKX + 8 * j + 3, vT2, j * 2048))
        a("ds_read_b128 v[%d:%d], v%d offset:%d" % (vKX + 8 * j + 4, vKX + 8 * j + 7, vT2, j * 2048 + 1024))
    a("s_lshl_b32 s%d, s%d, 2" % (sT0, sMT))
    a("s_add_u32 s%d, s%d, s%d" % (sT0, sT0, sRB))
    a("s_lshl_b32 s%d, s%d, 11" % (sT1, sT0))
    a("s_waitcnt lgkmcnt(0)")
    for j in range(3):
        for r in range(8):
            a("v_add_f32 v%d, v%d, v%d" % (vKA + r, vKA + r, vKX + 8 * j + r))
    for j in range(4):
        a("v_cvt_pk_bf16_f32 v%d, v%d, v%d" % (vKA + 8 + j, vKA + 2 * j, vKA + 2 * j + 1))
    a("s_cmp_eq_u32 s%d, 2" % sKV)
    a("s_cbranch_scc1 L_KF_V")
    a("buffer_store_dwordx4 v[%d:%d], v%d, s[%d:%d], s%d offen offset:%d sc1" % (vKA + 8, vKA + 11, vL16, SWS, SWS + 3, sT1, WS_KV))
    a("v_mov_b32 v%d, 0" % vT1)
    for j in range(4):
        a("v_dot2_f32_bf16 v%d, v%d, v%d, v%d" % (vT1, vKA + 8 + j, vKA + 8 + j, vT1))
    a.nop(3)
    a("v_mov_b32 v%d, v%d" % (vT2, vT1))
    a.nop(2)
    a("v_permlane32_swap_b32 v%d, v%d" % (vT1, vT2))
    a.nop(2)
    a("v_add_f32 v%d, v%d, v%d" % (vPl, vT1, vT2))
    wave_reduce(a, "v_max_f32", vPl)
    a("s_branch L_I2_X")
    a.label("L_KF_V")
    a("v_bfe_u32 v%d, v0, 4, 1" % vT1)
    a("v_lshrrev_b32 v%d, 5, v0" % vT2)
    a("v_lshl_add_u32 v%d, v%d, 1, v%d" % (vT1, vT1, vT2))
    a("v_and_b32 v%d, 15, v0" % vT2)
    a("v_lshlrev_b32 v%d, 8, v%d" % (vT1, vT1))
    a("v_lshl_add_u32 v%d, v%d, 4, v%d" % (vT1, vT2, vT1))
    a("buffer_store_dwordx4 v[%d:%d], v%d, s[%d:%d], s%d offen offset:%d sc1" % (vKA + 8, vKA + 11, vT1, SWS, SWS + 3, sT1, WS_KV + 1024))
    a("v_max3_f32 v%d, |v%d|, |v%d|, |v%d|" % (vT4, vKA, vKA + 1, vKA + 2))
    a("v_max3_f32 v%d, |v%d|, |v%d|, v%d" % (vT4, vKA + 3, vKA + 4, vT4))
    a("v_max3_f32 v%d, |v%d|, |v%d|, v%d" % (vT4, vKA + 5, vKA + 6, vT4))
    a("v_max_f32 v%d, |v%d|, v%d" % (vT4, vKA + 7, vT4))
    a("s_mov_b32 s%d, 0x%08x" % (sT2, f32bits(2.0 ** 60)))
    a("v_cmp_lt_f32 vcc, s%d, v%d" % (sT2, vT4))
    a.nop(1)
    a("s_cmp_lg_u64 vcc, 0")
    a("s_cselect_b32 s%d, 0x7f800000, 0" % sT2)
    a("v_mov_b32 v%d, s%d" % (vPl, sT2))
    a.label("L_I2_X")
    a.label("L_I2_N")
    dma_stage(4)
    a("s_waitcnt vmcnt(12)")
    a("s_cmp_eq_u32 s%d, 0" % sSkip)
    a("s_cbranch_scc1 L_KG_E")
    a("s_lshl_b32 s%d, s%d, 2" % (sT0, sMT))
    a("s_add_u32 s%d, s%d, s%d" % (sT0, sT0, sRB))
    a("s_lshl_b32 s%d, s%d, 1" % (sT0, sT0))
    a("s_add_u32 s%d, s%d, s%d" % (sT0, sT0, sKV))
    a("s_lshl_b32 s%d, s%d, 7" % (sT0, sT0))
    a("s_add_u32 s%d, s%d, %d" % (sT0, sT0, WS_KFL - 128))
    a("v_mov_b32 v%d, s%d" % (vPl + 1, sE))
    a("v_mov_b32 v%d, 0" % vT2)
    a("s_mov_b32 exec_lo, 0")
    a("s_mov_b32 exec_hi, 0x80000000")
    a("buffer_store_dwordx2 v[%d:%d], v%d, s[%d:%d], s%d offen sc1" % (vPl, vPl + 1, vT2, SWS, SWS + 3, sT0))
    a("s_mov_b64 exec, -1")
    a.label("L_KG_E")
    stamp("w3")
    a("s_barrier")
    a("s_cmp_lg_u32 s%d, 1" % sH)
    a("s_cbranch_scc1 L_I3_N")
    a("v_and_b32 v%d, 7, v0" % vT1)
    a("v_lshlrev_b32 v%d, 2, v%d" % (vT1, vT1))
    a("v_add_u32 v%d, %d, v%d" % (vT1, L_G8, vT1))
    a("ds_read_b32 v%d, v%d" % (vPl, vT1))
    a("v_mov_b32 v%d, s%d" % (vPl + 1, sE))
    a("v_lshlrev_b32 v%d, 3, v0" % vT1)
    a("s_add_u32 s%d, s%d, %d" % (sT0, sSlot, WS_G))
    a("s_waitcnt lgkmcnt(0)")
    a("s_mov_b64 exec, 0xff")
    a("buffer_store_dwordx2 v[%d:%d], v%d, s[%d:%d], s%d offen sc1" % (vPl, vPl + 1, vT1, SWS, SWS + 3, sT0))
    a("s_mov_b64 exec, -1")
    a("s_mov_b32 s%d, 1" % sSkip)
    a.label("L_I3_N")
    dma_stage(5)
    a("s_waitcnt vmcnt(13)")
    a("s_cmp_lg_u32 s%d, 0" % sSkip)
    a("s_cbranch_scc1 L_I3_E")
    a("s_waitcnt vmcnt(12)")
    a.label("L_I3_E")
    stamp("w4")
    a("s_barrier")
    dma_stage(6)
    a("s_waitcnt vmcnt(12)")
    stamp("w5")
    a("s_barrier")
    kvpoll = ["buffer_load_dwordx2 v[%d:%d], v%d, s[%d:%d], s%d offen sc1" % (vPl, vPl + 1, vT4, SWS, SWS + 3, sOffC),
              "buffer_load_dwordx2 v[%d:%d], v%d, s[%d:%d], s%d offen offset:128 sc1" % (vPl + 2, vPl + 3, vT4, SWS, SWS + 3, sOffC)]
    dma_stage(7)
    a("s_waitcnt vmcnt(12)")
    stamp("w6")
    a("s_barrier")
    a("s_cmp_lg_u32 s%d, 2" % sH)
    a("s_cbranch_scc1 L_EC_X")
    a("v_lshlrev_b32 v%d, 8, v0" % vT4)
    a("s_mov_b32 s%d, %d" % (sOffC, WS_KFL))
    a("s_mov_b32 s%d, 0" % sSpin)
    a.label("L_EC_L")
    emit(kvpoll)
    a("s_waitcnt vmcnt(0)")
    a("v_cmp_ne_u32 vcc, s%d, v%d" % (sE, vPl + 1))
    a("v_cmp_ne_u32 s[%d:%d], s%d, v%d" % (sT0, sT1, sE, vPl + 3))
    a("s_or_b64 vcc, vcc, s[%d:%d]" % (sT0, sT1))
    a("s_cbranch_scc0 L_EC_E")
    spin_tail("L_EC_E", 2)
    a("s_branch L_EC_L")
    a.label("L_EC_E")
    a("v_max_f32 v%d, v%d, v%d" % (vT1, vPl, vPl + 2))
    wave_reduce(a, "v_max_f32", vT1)
    a("v_mov_b32 v%d, %d" % (vT2, L_KMAX))
    a("s_mov_b32 exec_lo, 0")
    a("s_mov_b32 exec_hi, 0x80000000")
    a("ds_write_b32 v%d, v%d" % (vT2, vT1))
    a("s_mov_b64 exec, -1")
    a("s_waitcnt lgkmcnt(0)")
    a.label("L_EC_X")
    a("s_cmp_lg_u32 s%d, 3" % sH)
    a("s_cbranch_scc1 L_GP_X")
    gl = ["buffer_load_dwordx2 v[%d:%d], v%d, s[%d:%d], s%d offen sc1" % (vPl, vPl + 1, vT3, SWS, SWS + 3, sOffD),
          "buffer_load_dwordx2 v[%d:%d], v%d, s[%d:%d], s%d offen offset:1024 sc1" % (vPl + 2, vPl + 3, vT3, SWS, SWS + 3, sOffD)]
    a("v_lshrrev_b32 v%d, 3, v0" % vT3)
    a("v_and_b32 v%d, 7, v0" % vT1)
    a("v_lshlrev_b32 v%d, 7, v%d" % (vT3, vT3))
    a("v_lshl_add_u32 v%d, v%d, 3, v%d" % (vT3, vT1, vT3))
    a("s_lshl_b32 s%d, s%d, 11" % (sT1, sMT))
    a("s_add_u32 s%d, s%d, %d" % (sOffD, sT1, WS_G))
    a("s_mov_b32 s%d, 0" % sSpin)
    a.label("L_GP_L")
    emit(gl)
    a("s_waitcnt vmcnt(0)")
    a("v_cmp_ne_u32 vcc, s%d, v%d" % (sE, vPl + 1))
    a("v_cmp_ne_u32 s[%d:%d], s%d, v%d" % (sT0, sT1, sE, vPl + 3))
    a("s_or_b64 vcc, vcc, s[%d:%d]" % (sT0, sT1))
    a("s_cbranch_scc0 L_GP_E")
    spin_tail("L_GP_E")
    a("s_branch L_GP_L")
    a.label("L_GP_E")
    a("v_lshlrev_b32 v%d, 2, v0" % vT1)
    a("v_add_u32 v%d, %d, v%d" % (vT1, L_GROW, vT1))
    a("ds_write_b32 v%d, v%d" % (vT1, vPl))
    a("ds_write_b32 v%d, v%d offset:256" % (vT1, vPl + 2))
    a.label("L_GP_X")
    a("s_waitcnt vmcnt(0) lgkmcnt(0)")
    stamp("w7")
    a("s_barrier")
    kv_dma(0, 12)
    vWs, vB0, vB1, vTr0, vTr1, vPa, vPoll = 2, 3, 4, 5, 6, 7, 8
    vFA = 24
    vFB = 32
    AC2 = 64
    vWo = 128
    for r in range(64):
        a("v_mov_b32 v%d, 0" % (AC2 + r))
    a("v_bfe_u32 v%d, v0, 4, 1" % vT1)
    a("v_and_b32 v%d, 7, v0" % vT2)
    a("v_lshlrev_b32 v%d, 2, v%d" % (vT1, vT1))
    a("v_xor_b32 v%d, v%d, v%d" % (vT1, vT1, vT2))
    a("v_lshrrev_b32 v%d, 3, v0" % vT2)
    a("v_lshlrev_b32 v%d, 10, v%d" % (vT2, vT2))
    a("v_lshl_add_u32 v%d, v%d, 4, v%d" % (vT1, vT1, vT2))
    a("s_lshl_b32 s%d, s%d, 14" % (sT0, sH))
    a("s_lshl_b32 s%d, s%d, 7" % (sT1, sNB))
    a("s_add_u32 s%d, s%d, s%d" % (sT0, sT0, sT1))
    a("v_add_u32 v%d, s%d, v%d" % (vWs, sT0, vT1))
    a("v_lshrrev_b32 v%d, 5, v0" % vT0)
    a("v_bfe_u32 v%d, v0, 2, 2" % vT1)
    a("v_lshl_add_u32 v%d, v%d, 2, v%d" % (vT2, vT0, vT1))
    a("v_lshlrev_b32 v%d, 7, v%d" % (vT2, vT2))
    a("v_bfe_u32 v%d, v0, 3, 1" % vT1)
    a("v_lshl_add_u32 v%d, v%d, 6, v%d" % (vT2, vT1, vT2))
    a("v_bfe_u32 v%d, v0, 4, 1" % vT1)
    a("v_lshl_add_u32 v%d, v%d, 5, v%d" % (vT2, vT1, vT2))
    a("v_and_b32 v%d, 3, v0" % vT1)
    a("v_lshl_add_u32 v%d, v%d, 3, v%d" % (vT2, vT1, vT2))
    a("s_add_u32 s%d, s%d, %d" % (sScr, sM0w, L_SCR))
    a("v_add_u32 v%d, s%d, v%d" % (vTr0, sScr, vT2))
    a("v_xor_b32 v%d, 64, v%d" % (vTr1, vTr0))
    a("s_mul_i32 s%d, s%d, 288" % (sT0, sMB))
    a("s_add_u32 s%d, s%d, s%d" % (sT0, sT0, sH))
    a("s_lshl_b32 s%d, s%d, 10" % (sT0, sT0))
    a("s_add_u32 s%d, s%d, %d" % (sT0, sT0, WS_AF))
    a("v_add_u32 v%d, s%d, v%d" % (vB0, sT0, vL16))
    a("v_add_u32 v%d, %d, v%d" % (vB1, 144 * 1024, vB0))
    a("v_and_b32 v%d, 15, v0" % vPa)
    a("v_lshlrev_b32 v%d, 7, v%d" % (vPa, vPa))
    srd(a, SA, P['wd'], P['wd'] + 1, 0x1c0000)
    srd(a, SB, P['wo'], P['wo'] + 1, 0x80000)
    a("s_waitcnt vmcnt(0)")
    stamp("w8")
    a("s_barrier")
    kv_dma(48, 20)
    if PREF:
        a("s_mul_i32 s%d, s2, 7168" % sT0)
        a("s_lshl_b32 s%d, s%d, 11" % (sT1, sH))
        a("s_add_u32 s%d, s%d, s%d" % (sT0, sT0, sT1))
        a("buffer_load_dwordx4 v[160:163], v%d, s[%d:%d], s%d offen" % (vL16, SA, SA + 3, sT0))
        a("buffer_load_dwordx4 v[160:163], v%d, s[%d:%d], s%d offen offset:1024" % (vL16, SA, SA + 3, sT0))
        a("s_lshl_b32 s%d, s2, 11" % sT0)
        a("s_lshl_b32 s%d, s%d, 9" % (sT1, sH))
        a("s_add_u32 s%d, s%d, s%d" % (sT0, sT0, sT1))
        a("s_mov_b64 exec, 0xffffffff")
        a("buffer_load_dwordx4 v[160:163], v%d, s[%d:%d], s%d offen" % (vL16, SB, SB + 3, sT0))
        a("s_mov_b64 exec, -1")
    a("s_waitcnt vmcnt(0)")
    stamp("w9")
    a("s_barrier")
    stamp("bkv")
    a("s_setprio %d" % HPRIO)
    a("s_cmp_lg_u32 s%d, 0" % sH)
    a("s_cbranch_scc1 L_NOHF")
    a("v_mov_b32 v%d, 0" % vT3)
    a("v_mov_b32 v%d, s%d" % (vT2, sE))
    a("s_add_u32 s%d, s%d, %d" % (sT0, sSlot, WS_HFL))
    a("s_mov_b64 exec, 1")
    a("buffer_store_dword v%d, v%d, s[%d:%d], s%d offen sc1" % (vT2, vT3, SWS, SWS + 3, sT0))
    a("s_mov_b64 exec, -1")
    a.label("L_NOHF")

    def w_dma(S, slot, soff, extra):
        for u in range(2):
            a("s_add_u32 m0, s%d, %d" % (sScr, slot * 2048 + u * 1024))
            if soff is None:
                a("s_mov_b32 s%d, %d" % (sT0, extra + u * 8192))
            else:
                a("s_add_u32 s%d, s%d, %d" % (sT0, soff, extra + u * 8192))
            a("buffer_load_dwordx4 v%d, s[%d:%d], s%d offen lds" % (vWs, S, S + 3, sT0))

    def b_loads(slot, soff, extra):
        a("s_add_u32 s%d, s%d, %d" % (sT0, soff, extra))
        a("buffer_load_dwordx4 v[%d:%d], v%d, s[%d:%d], s%d offen sc1" % (vFB + 8 * slot, vFB + 8 * slot + 3, vB0, SWS, SWS + 3, sT0))
        a("buffer_load_dwordx4 v[%d:%d], v%d, s[%d:%d], s%d offen sc1" % (vFB + 8 * slot + 4, vFB + 8 * slot + 7, vB1, SWS, SWS + 3, sT0))

    def tr_reads(dst, slot):
        for an, ad in enumerate((vTr0, vTr1)):
            for u in range(2):
                a("ds_read_b64_tr_b16 v[%d:%d], v%d offset:%d" % (dst + 4 * an + 2 * u, dst + 4 * an + 2 * u + 1, ad,
                                                                 slot * 2048 + u * 1024))

    def m1(fa, fb, an, i):
        acc = AC2 + (an * 2 + i) * 16
        a("%s v[%d:%d], v[%d:%d], v[%d:%d], v[%d:%d]" % (MFMA, acc, acc + 15, fa + 4 * an, fa + 4 * an + 3,
                                                        fb + 4 * i, fb + 4 * i + 3, acc, acc + 15))

    def mm(fa, fb):
        for an in (0, 1):
            for i in (0, 1):
                m1(fa, fb, an, i)

    a("s_lshl_b32 s%d, s%d, 14" % (sOffD, sH))
    for j in range(4):
        w_dma(SB, j, sOffD, j * 131072)
    a("s_waitcnt vmcnt(0)")
    for j in range(4):
        tr_reads(vWo + 8 * j, j)
        a("s_waitcnt lgkmcnt(4)")
    a("s_waitcnt lgkmcnt(0)")
    a("s_lshr_b32 s%d, s%d, 1" % (sT0, sMB))
    a("s_lshl_b32 s%d, s%d, 11" % (sT0, sT0))
    a("s_add_u32 s%d, s%d, %d" % (sOffA, sT0, WS_HFL))
    a("s_mov_b32 s%d, 0" % sSpin)
    a.label("L_HP_L")
    a("buffer_load_dword v%d, v%d, s[%d:%d], s%d offen sc1" % (vPoll, vPa, SWS, SWS + 3, sOffA))
    a("s_waitcnt vmcnt(0)")
    a("v_cmp_ne_u32 vcc, s%d, v%d" % (sE, vPoll))
    a("s_cmp_eq_u64 vcc, 0")
    a("s_cbranch_scc1 L_HP_E")
    spin_tail("L_HP_E", 4)
    a("s_branch L_HP_L")
    a.label("L_HP_E")
    stamp("hpoll")
    a("s_mov_b32 s%d, 0" % sOffB)
    a("s_mov_b32 s%d, %d" % (sOffC, 8 * 4096))
    for j in range(4):
        w_dma(SA, j, sOffB, j * 65536)
        b_loads(j, sOffC, j * 4096)
    a("s_mov_b32 s%d, 0" % sIt)
    a.label("L_FFN")
    for j in range(4):
        a("s_waitcnt vmcnt(12)")
        tr_reads(vFA, j)
        a("s_waitcnt lgkmcnt(0)")
        fb = vFB + 8 * j
        m1(vFA, fb, 0, 0)
        a("s_add_u32 m0, s%d, %d" % (sScr, j * 2048))
        a("s_add_u32 s%d, s%d, %d" % (sT0, sOffB, (4 + j) * 65536))
        a("buffer_load_dwordx4 v%d, s[%d:%d], s%d offen lds" % (vWs, SA, SA + 3, sT0))
        m1(vFA, fb, 1, 0)
        a("s_add_u32 m0, s%d, %d" % (sScr, j * 2048 + 1024))
        a("s_add_u32 s%d, s%d, %d" % (sT0, sOffB, (4 + j) * 65536 + 8192))
        a("buffer_load_dwordx4 v%d, s[%d:%d], s%d offen lds" % (vWs, SA, SA + 3, sT0))
        m1(vFA, fb, 0, 1)
        a("s_add_u32 s%d, s%d, %d" % (sT0, sOffC, (4 + j) * 4096))
        a("buffer_load_dwordx4 v[%d:%d], v%d, s[%d:%d], s%d offen sc1" % (fb, fb + 3, vB0, SWS, SWS + 3, sT0))
        m1(vFA, fb, 1, 1)
        a("buffer_load_dwordx4 v[%d:%d], v%d, s[%d:%d], s%d offen sc1" % (fb + 4, fb + 7, vB1, SWS, SWS + 3, sT0))
    a("s_add_u32 s%d, s%d, %d" % (sOffB, sOffB, 4 * 65536))
    a("s_add_u32 s%d, s%d, %d" % (sOffC, sOffC, 4 * 4096))
    a("s_add_u32 s%d, s%d, 1" % (sIt, sIt))
    a("s_cmp_lt_u32 s%d, %d" % (sIt, int(os.environ.get("NFFN", "7"))))
    a("s_cbranch_scc1 L_FFN")
    a("s_waitcnt vmcnt(0)")
    stamp("ffn")
    for j in range(4):
        w_dma(SB, j, sOffD, j * 131072 + 16384)
    a("v_and_b32 v%d, 31, v0" % vT0)
    a("v_lshrrev_b32 v%d, 5, v0" % vT1)
    a("v_and_b32 v%d, 15, v0" % vT3)
    a("v_xor_b32 v%d, v%d, v%d" % (vT1, vT1, vT3))
    a("v_lshlrev_b32 v%d, 8, v%d" % (vT0, vT0))
    a("v_lshl_add_u32 v%d, v%d, 4, v%d" % (vT0, vT1, vT0))
    a("s_lshl_b32 s%d, s%d, 14" % (sT1, sH))
    a("v_add_u32 v%d, s%d, v%d" % (vT0, sT1, vT0))
    for q in range(8):
        a("v_xor_b32 v%d, %d, v%d" % (9 + q, q * 32, vT0))
    a("s_lshl_b32 s%d, s%d, 10" % (sOffC, sH))
    for e in range(2):
        if e == 1:
            a("s_setprio 3")
            a("s_barrier")
            stamp("b3")
        a("s_mov_b32 s%d, 0" % sSpin)
        a.label("L_OP%d_L" % e)
        for j in range(4):
            b_loads(j, sOffC, j * 8192 + e * 1024)
        a("s_waitcnt vmcnt(0)")
        a("v_max3_u32 v%d, v%d, v%d, v%d" % (vT0, vFB, vFB + 1, vFB + 2))
        a("v_max3_u32 v%d, v%d, v%d, v%d" % (vT1, vFB + 3, vFB + 4, vFB + 5))
        for r in range(6, 30, 4):
            a("v_max3_u32 v%d, v%d, v%d, v%d" % (vT0, vFB + r, vFB + r + 1, vT0))
            a("v_max3_u32 v%d, v%d, v%d, v%d" % (vT1, vFB + r + 2, vFB + r + 3, vT1))
        a("v_max3_u32 v%d, v%d, v%d, v%d" % (vT0, vFB + 30, vFB + 31, vT0))
        a("v_max_u32 v%d, v%d, v%d" % (vT0, vT0, vT1))
        a("v_cmp_eq_u32 vcc, -1, v%d" % vT0)
        a("s_cmp_eq_u64 vcc, 0")
        a("s_cbranch_scc1 L_OP%d_E" % e)
        spin_tail("L_OP%d_E" % e, int(os.environ.get("ASLEEP", "32")) if e == 0 else OSLEEP)
        a("s_branch L_OP%d_L" % e)
        a.label("L_OP%d_E" % e)
        stamp("op%d" % (0 if e == 0 else 7))
        if e == 0:
            for j in range(4):
                mm(vWo + 8 * j, vFB + 8 * j)
            for j in range(4):
                tr_reads(vWo + 8 * j, j)
                a("s_waitcnt lgkmcnt(4)")
            a("s_waitcnt lgkmcnt(0)")
    tiles = [(0, 0), (0, 1), (1, 0), (1, 1)]

    def wr(an, i):
        for q in range(4):
            acc = AC2 + (an * 2 + i) * 16 + 4 * q
            a("ds_write_b128 v%d, v[%d:%d] offset:%d" % (9 + an * 4 + q, acc, acc + 3, i * 8192))
    for t, (an, i) in enumerate(tiles):
        for j in range(4):
            m1(vWo + 8 * j, vFB + 8 * j, an, i)
        if t > 0:
            a.nop(9)
            wr(*tiles[t - 1])
    a.nop(9)
    a("s_waitcnt lgkmcnt(8)")
    wr(*tiles[3])
    a("s_waitcnt lgkmcnt(0)")
    stamp("pw")
    a("s_barrier")
    prof_flush()
    a.label("L_END")
    a("s_endpgm")
    a.lines = a.lines[:mark0] + a.lines[mark1:] + a.lines[mark0:mark1]
    a.label("L_CODE_END")
    if PROF:
        open("stamps.txt", "w").write(" ".join(stamp_names["M"]) + "\n" + " ".join(stamp_names["H"]))
    kernel_desc(a, name, 168, 102)
    return "; @launch grid=(256,1,1) block=(768,1,1) lds=%d" % LDS_BYTES


def main():
    out = sys.argv[1] if len(sys.argv) > 1 else "cdna_kernels/%s.s" % NAME
    a = Asm()
    a.raw(".amdgcn_target \"amdgcn-amd-amdhsa--gfx950\"")
    launch = gen(a)
    hdr = ["; generated by work/gen5.py (hand-designed kernel, laid out by script)", launch]
    open(out, "w").write("\n".join(hdr) + "\n" + a.text())


if __name__ == "__main__":
    main()
```

```python
import sys, math, os
from gen import Asm, f32bits, kernel_begin, kernel_desc, srd, wave_reduce, MFMA, NAME, QSCALE

PROF = int(os.environ.get("PROF", "0"))
PRIO = int(os.environ.get("PRIO", "1"))
DIAG = int(os.environ.get("DIAG", "0"))
TOUCH = int(os.environ.get("TOUCH", "1"))
PREF = int(os.environ.get("PREF", "1"))
OSLEEP = int(os.environ.get("OSLEEP", "1"))
DKPOS = 1
D1LATE = int(os.environ.get("D1LATE", "0"))
PFSPLIT = int(os.environ.get("PFSPLIT", "0"))
GOEARLY = int(os.environ.get("GOEARLY", "1"))
TOUCH2 = int(os.environ.get("TOUCH2", "0"))
DIAG2 = os.environ.get("DIAG2", "")
PFLATE = int(os.environ.get("PFLATE", "1"))
CODEPF = int(os.environ.get("CODEPF", "1"))
HPRIO = int(os.environ.get("HPRIO", "0"))

WS_AF = 2 << 20
WS_KV = 0
WS_G = 0x40000
WS_KFL = 0x50000
WS_HFL = 0x60000
WS_PROF = 32 << 20
WS_SIZE = 268435456
KVBLK = 2048
SPIN_MAX = 1 << 14

BUFSZ = 49152
PB = {2: 0, 0: BUFSZ, 1: 2 * BUFSZ}
OX, OWG, OWU, OWQ = 0, 16384, 30720, 45056
L_TOP = 3 * BUFSZ
L_G8 = L_TOP
L_KMAX = L_TOP + 64
L_GROW = L_TOP + 1024
L_QX = L_TOP + 8192
L_SCR = 131072
LDS_BYTES = 163840
L_GO = L_SCR + 8192 * 4 - 4
NBKV = 3


def gen(a):
    name = NAME + "_kernel"
    kernel_begin(a, name)
    sW, sMT, sNT = 3, 4, 5
    sT0, sT1, sT2, sT3 = 6, 7, 8, 9
    sStepA, sKV, sRB, sE = 10, 11, 12, 13
    sMB, sNB = 14, 15
    P = dict(x=16, wq=18, wk=20, wv=22, wo=24, wg=28, wu=30, wd=32, gw=34, out=36, dbg=38, ws=40)
    SX, SA, SB, SWS, SE, SDBG, SC = 44, 48, 52, 56, 60, 64, 68
    SOUT = 44
    sH = 72
    sM0x, sM0w, sScr = 73, 74, 75
    sVm = 76
    sOffA, sOffB = 78, 79
    sStepB = 80
    sIt, sSkip = 82, 83
    sSpin, sKoff = 26, 27
    sSlot = 42
    sOffC, sOffD = 86, 87
    stamp_names = {"M": [], "H": []}
    role = ["M"]

    def stamp(label):
        if (DIAG or DIAG2) and role[0] == "M" and label in ("bar0", "Bq", "b3"):
            a("s_memrealtime s[84:85]")
            a("s_waitcnt lgkmcnt(0)")
            a("s_mov_b32 s%d, s84" % {"bar0": 90, "Bq": 91, "b3": 92}[label])
        if not PROF:
            return
        lst = stamp_names[role[0]]
        idx = len(lst)
        lst.append(str(label))
        a("s_memtime s[84:85]")
        if (label in ("bar0", "Bq", "b3", "attn") and role[0] == "M") or label == "op7":
            a("s_memrealtime s[98:99]")
        a("s_waitcnt lgkmcnt(0)")
        a("v_writelane_b32 v167, s84, %d" % idx)
        if (label in ("bar0", "Bq", "b3", "attn") and role[0] == "M") or label == "op7":
            a("v_writelane_b32 v167, s98, %d" % {"bar0": 59, "Bq": 60, "b3": 61, "attn": 58, "op7": 58}[label])

    def prof_flush():
        if DIAG2 and role[0] == "M":
            hi, lo, mul = {"total": (84, 88, 1), "bar0": (90, 88, 4), "g1": (91, 90, 2), "attn": (92, 91, 1), "tail": (84, 92, 4), "fix10": (84, 88, 0), "fix30": (84, 88, 0)}[DIAG2]
            a("s_waitcnt vmcnt(0)")
            a("s_memrealtime s[84:85]")
            a("s_waitcnt lgkmcnt(0)")
            a("s_sub_u32 s93, s%d, s%d" % (hi, lo))
            a("s_mul_i32 s93, s93, %d" % mul)
            a("s_min_u32 s93, s93, 20000")
            if DIAG2.startswith("fix"):
                a("s_mov_b32 s93, %d" % (int(DIAG2[3:]) * 100))
            a.label("L_DG")
            a("s_memrealtime s[94:95]")
            a("s_waitcnt lgkmcnt(0)")
            a("s_sub_u32 s94, s94, s84")
            a("s_cmp_lt_u32 s94, s93")
            a("s_cbranch_scc1 L_DG")
        if DIAG and role[0] == "M":
            a("s_waitcnt vmcnt(0)")
            a("s_memrealtime s[84:85]")
            srd(a, SDBG, P['dbg'], P['dbg'] + 1, 256)
            a("s_waitcnt lgkmcnt(0)")
            a("s_cmp_lg_u32 s%d, 7" % sW)
            a("s_cbranch_scc1 L_END")
            a("s_cmp_lt_u32 s2, 248")
            a("s_cbranch_scc1 L_END")
            a("s_and_b32 s93, s2, 7")
            a("s_lshl_b32 s93, s93, 2")
            a("v_mov_b32 v2, 0")
            a("s_mov_b64 exec, 1")
            a("s_sub_u32 s94, s84, s88")
            a("s_and_b32 s95, s88, 0xffff")
            a("s_lshl_b32 s94, s94, 16")
            a("s_or_b32 s94, s94, s95")
            a("v_mov_b32 v3, s94")
            a("buffer_store_dword v3, v2, s[%d:%d], s93 offen offset:32" % (SDBG, SDBG + 3))
            a("s_cmp_lg_u32 s2, 253")
            a("s_cbranch_scc1 L_END")
            for i, sreg in enumerate((90, 91, 92, 84)):
                a("s_sub_u32 s94, s%d, s88" % sreg)
                a("v_mov_b32 v3, s94")
                a("buffer_store_dword v3, v2, s[%d:%d], 0 offen offset:%d" % (SDBG, SDBG + 3, 4 + 4 * i))
                a("s_nop 1")
        if not PROF:
            return
        a("s_waitcnt vmcnt(0)")
        stamp("end")
        a("s_memrealtime s[98:99]")
        a("s_waitcnt lgkmcnt(0)")
        a("v_writelane_b32 v167, s98, 62")
        a("v_writelane_b32 v167, s88, 63")
        a("s_mul_i32 s82, s2, 12")
        a("s_add_u32 s82, s82, s%d" % sW)
        a("s_lshl_b32 s82, s82, 8")
        a("s_add_u32 s82, s82, %d" % WS_PROF)
        a("v_lshlrev_b32 v2, 2, v0")
        a("buffer_store_dword v167, v2, s[%d:%d], s82 offen" % (SWS, SWS + 3))

    def emit(lst):
        for ins in lst:
            a(ins)

    def spin_tail(lbl_end, sleep=1):
        a("s_add_u32 s%d, s%d, 1" % (sSpin, sSpin))
        a("s_cmp_ge_u32 s%d, %d" % (sSpin, SPIN_MAX))
        a("s_cbranch_scc1 %s" % lbl_end)
        a("s_sleep %d" % sleep)

    vL16 = 1
    vT0, vT1, vT2, vT3, vT4 = 21, 22, 23, 24, 25

    a("s_cmp_ge_u32 s2, 256")
    a("s_cbranch_scc1 L_END")
    a("s_load_dwordx16 s[16:31], s[0:1], 0")
    a("s_load_dwordx8 s[32:39], s[0:1], 64")
    a("s_load_dwordx2 s[40:41], s[0:1], 96")
    a("s_memrealtime s[88:89]")
    if PROF:
        a("s_memtime s[84:85]")
        a("s_waitcnt lgkmcnt(0)")
        a("v_writelane_b32 v167, s84, 0")
        stamp_names["M"].append("start")
        stamp_names["H"].append("start")
    a("v_lshrrev_b32 v1, 6, v0")
    a("v_and_b32 v0, 63, v0")
    a("v_readfirstlane_b32 s%d, v1" % sW)
    a("s_and_b32 s%d, s2, 7" % sT0)
    a("s_lshr_b32 s%d, s2, 3" % sT1)
    a("s_and_b32 s%d, s%d, 1" % (sMT, sT0))
    a("s_lshl_b32 s%d, s%d, 3" % (sMT, sMT))
    a("s_and_b32 s%d, s%d, 7" % (sT2, sT1))
    a("s_add_u32 s%d, s%d, s%d" % (sMT, sMT, sT2))
    a("s_lshr_b32 s%d, s%d, 1" % (sNT, sT0))
    a("s_lshl_b32 s%d, s%d, 2" % (sNT, sNT))
    a("s_lshr_b32 s%d, s%d, 3" % (sT2, sT1))
    a("s_add_u32 s%d, s%d, s%d" % (sNT, sNT, sT2))
    a("s_lshl_b32 s%d, s%d, 2" % (sMB, sT0))
    a("s_and_b32 s%d, s%d, 3" % (sT2, sT1))
    a("s_add_u32 s%d, s%d, s%d" % (sMB, sMB, sT2))
    a("s_lshr_b32 s%d, s%d, 2" % (sNB, sT1))
    a("v_lshlrev_b32 v%d, 4, v0" % vL16)
    a("s_cmp_ge_u32 s%d, 8" % sW)
    a("s_cbranch_scc1 L_HELPER")
    if TOUCH:
        a("s_cmp_ge_u32 s%d, 4" % sW)
        a("s_cbranch_scc1 L_NOTOUCH")
        a("s_waitcnt lgkmcnt(0)")
        a("s_mov_b32 s%d, s%d" % (SE, P['x']))
        a("s_mov_b32 s%d, s%d" % (SE + 1, P['x'] + 1))
        for k, pp in ((1, P['wg']), (2, P['wu']), (3, P['wq'])):
            a("s_cmp_eq_u32 s%d, %d" % (sW, k))
            a("s_cselect_b32 s%d, s%d, s%d" % (SE, pp, SE))
            a("s_cselect_b32 s%d, s%d, s%d" % (SE + 1, pp + 1, SE + 1))
        a("s_mov_b32 s%d, 1024" % (SE + 2))
        a("s_mov_b32 s%d, 0x20000" % (SE + 3))
        a("v_mov_b32 v2, 0")
        a("s_mov_b64 exec, 1")
        a("buffer_load_dword v160, v2, s[%d:%d], 0 offen" % (SE, SE + 3))
        a("s_mov_b64 exec, -1")
        a.label("L_NOTOUCH")
    if PREF:
        a("s_waitcnt lgkmcnt(0)")
        a("s_mov_b32 s%d, 0x20000" % (SE + 3))
        a("s_lshl_b32 s%d, s%d, 4" % (sT0, sMT))
        a("s_add_u32 s%d, s%d, s%d" % (sT0, sT0, sNT))
        a("s_lshl_b32 s%d, s%d, 3" % (sT0, sT0))
        a("s_add_u32 s%d, s%d, s%d" % (sT0, sT0, sW))
        a("s_lshl_b32 s%d, s%d, 10" % (sT0, sT0))
        a("s_mov_b32 s%d, s%d" % (SE, P['x']))
        a("s_mov_b32 s%d, s%d" % (SE + 1, P['x'] + 1))
        a("s_mov_b32 s%d, 0x200000" % (SE + 2))
        a("buffer_load_dwordx4 v[128:131], v%d, s[%d:%d], s%d offen" % (vL16, SE, SE + 3, sT0))
        a("s_cmp_eq_u32 s%d, 7" % sW)
        a("s_cbranch_scc1 L_PF7")
        def wpf():
            a("s_mul_i32 s%d, s2, 7" % sT0)
            a("s_add_u32 s%d, s%d, s%d" % (sT0, sT0, sW))
            a("s_lshl_b32 s%d, s%d, 10" % (sT0, sT0))
            a("s_mov_b32 s%d, 0x1c0000" % (SE + 2))
            a("s_mov_b32 s%d, 0x20000" % (SE + 3))
            for nm in ('wg', 'wu'):
                a("s_mov_b32 s%d, s%d" % (SE, P[nm]))
                a("s_mov_b32 s%d, s%d" % (SE + 1, P[nm] + 1))
                a("buffer_load_dwordx4 v[160:163], v%d, s[%d:%d], s%d offen" % (vL16, SE, SE + 3, sT0))
        if PFSPLIT:
            a("s_cmp_ge_u32 s2, %d" % PFSPLIT)
            a("s_cbranch_scc1 L_PFE")
        wpf()
        a("s_branch L_PFE")
        a.label("L_PF7")
        a("s_lshl_b32 s%d, s2, 11" % sT0)
        a("s_mov_b32 s%d, 0x80000" % (SE + 2))
        if CODEPF:
            a("s_getpc_b64 s[90:91]")
            a.label("L_PC")
            a("s_sub_u32 s90, s90, L_PC-%s" % name)
            a("s_subb_u32 s91, s91, 0")
            a("s_lshr_b32 s%d, s2, 3" % sT1)
            a("s_lshl_b32 s%d, s%d, 10" % (sT1, sT1))
            a("v_add_u32 v2, s%d, v%d" % (sT1, vL16))
            a("v_cmp_gt_u32 vcc, L_CODE_END-%s-16, v2" % name)
            a("s_and_saveexec_b64 s[92:93], vcc")
            a("s_cbranch_execz L_PCX")
            a("global_load_dwordx4 v[160:163], v2, s[90:91]")
            a.label("L_PCX")
            a("s_mov_b64 exec, -1")
        for nm in (('wq',) if PFLATE else ('wq', 'wo')):
            a("s_mov_b32 s%d, s%d" % (SE, P[nm]))
            a("s_mov_b32 s%d, s%d" % (SE + 1, P[nm] + 1))
            a("buffer_load_dwordx4 v[160:163], v%d, s[%d:%d], s%d offen" % (vL16, SE, SE + 3, sT0))
            a("buffer_load_dwordx4 v[160:163], v%d, s[%d:%d], s%d offen offset:1024" % (vL16, SE, SE + 3, sT0))
        a.label("L_PFE")
        a("s_mov_b32 s%d, s%d" % (SE, P['gw']))
        a("s_mov_b32 s%d, s%d" % (SE + 1, P['gw'] + 1))
        a("s_mov_b32 s%d, 1024" % (SE + 2))
        a("buffer_load_dwordx4 v[132:135], v%d, s[%d:%d], 0 offen" % (vL16, SE, SE + 3))
    if TOUCH2:
        a("s_mov_b32 s%d, 0x20000" % (SE + 3))
        a("s_mov_b32 s%d, 4" % (SE + 2))
        a("s_mov_b32 s%d, s%d" % (SE, P['ws']))
        a("s_mov_b32 s%d, s%d" % (SE + 1, P['ws'] + 1))
        a("s_mov_b32 s%d, 0" % sT0)
        for k, pp in enumerate((P['wk'], P['wv'], P['dbg'], P['out'], P['wd'])):
            a("s_cmp_eq_u32 s%d, %d" % (sW, k))
            a("s_cselect_b32 s%d, s%d, s%d" % (SE, pp, SE))
            a("s_cselect_b32 s%d, s%d, s%d" % (SE + 1, pp + 1, SE + 1))
        a("s_mul_i32 s%d, s%d, %d" % (sT1, sMT, 4 * 144 * 1024))
        a("s_add_u32 s%d, s%d, %d" % (sT1, sT1, WS_AF + 288 * 1024))
        a("s_cmp_eq_u32 s%d, 6" % sW)
        a("s_cselect_b32 s%d, s%d, s%d" % (sT0, sT1, sT0))
        a("s_mul_i32 s%d, s%d, %d" % (sT1, sMB, 2 * 144 * 1024))
        a("s_add_u32 s%d, s%d, %d" % (sT1, sT1, WS_AF + 144 * 1024))
        a("s_cmp_eq_u32 s%d, 7" % sW)
        a("s_cselect_b32 s%d, s%d, s%d" % (sT0, sT1, sT0))
        a("s_add_u32 s%d, s%d, s%d" % (SE, SE, sT0))
        a("s_addc_u32 s%d, s%d, 0" % (SE + 1, SE + 1))
        a("v_mov_b32 v2, 0")
        a("s_mov_b64 exec, 1")
        a("buffer_load_dword v160, v2, s[%d:%d], 0 offen sc1" % (SE, SE + 3))
        a("s_mov_b64 exec, -1")
    a("s_branch L_MAIN")
    a.label("L_HELPER")
    mark0 = len(a.lines)
    a.label("L_MAIN")

    vXr = [8, 9, 10, 11]
    vW0 = 12
    vW1 = list(range(13, 21))
    vGq = 26
    vGm = [28, 30]
    FR = [32, 48]
    ACC = 64
    vKa, vVa = 2, 3
    vQ = 4
    vKF = [8, 12]
    vS = [32, 48]
    vVF = [64, 72]
    vP = 80
    vO = 128
    vC = 144
    NB = int(os.environ.get("NB", "8"))
    b0 = PB[0]
    a("s_lshr_b32 s%d, s%d, 2" % (sT0, sW))
    a("s_lshl_b32 s%d, s%d, 13" % (sT0, sT0))
    a("s_add_u32 s%d, s%d, %d" % (sT0, sT0, b0 + OX))
    a("v_and_b32 v%d, 31, v0" % vT0)
    a("v_lshlrev_b32 v%d, 7, v%d" % (vT0, vT0))
    a("v_lshrrev_b32 v%d, 5, v0" % vT1)
    a("v_bfe_u32 v%d, v0, 1, 3" % vT3)
    a("v_xor_b32 v%d, v%d, v%d" % (vT3, vT3, vT1))
    a("v_lshl_add_u32 v%d, v%d, 4, v%d" % (vT0, vT3, vT0))
    for ks in range(4):
        a("v_xor_b32 v%d, %d, v%d" % (vT2, ks * 32, vT0))
        a("v_add_u32 v%d, s%d, v%d" % (vXr[ks], sT0, vT2))
    a("v_bfe_u32 v%d, v0, 2, 2" % vT2)
    a("v_lshl_add_u32 v%d, v%d, 3, v%d" % (vT3, vT1, vT2))
    a("v_and_b32 v%d, 3, v0" % vT2)
    a("v_bfe_u32 v%d, v0, 4, 1" % vT4)
    a("v_mul_u32_u24 v%d, 0xe0, v%d" % (vT0, vT3))
    a("v_lshl_add_u32 v%d, v%d, 3, v%d" % (vT0, vT2, vT0))
    a("s_and_b32 s%d, s%d, 3" % (sT1, sW))
    a("s_lshl_b32 s%d, s%d, 6" % (sT0, sT1))
    a("s_add_u32 s%d, s%d, %d" % (sT0, sT0, b0 + OWG))
    a("s_movk_i32 s%d, %d" % (sT2, OWU - OWG - 96))
    a("s_cmp_lt_u32 s%d, 2" % sT1)
    a("s_cselect_b32 s%d, %d, s%d" % (sT3, OWU - OWG + 128, sT2))
    a("v_mul_u32_u24 v%d, s%d, v%d" % (vT1, sT3, vT4))
    a("v_add3_u32 v%d, v%d, v%d, s%d" % (vW0, vT0, vT1, sT0))
    a("s_cmp_eq_u32 s%d, 3" % sT1)
    a("s_cbranch_scc1 L_W1_Q")
    a("s_cmp_lt_u32 s%d, 1" % sT1)
    a("s_cselect_b32 s%d, %d, s%d" % (sT3, OWU - OWG + 128, sT2))
    a("v_mul_u32_u24 v%d, s%d, v%d" % (vT1, sT3, vT4))
    a("v_add3_u32 v%d, v%d, v%d, s%d" % (vT0, vT0, vT1, sT0))
    for q in range(8):
        ks, u = q >> 1, q & 1
        a("v_add_u32 v%d, %d, v%d" % (vW1[q], 32 + (16 * ks + 4 * u) * 224, vT0))
    a("s_branch L_W1_E")
    a.label("L_W1_Q")
    a("v_lshlrev_b32 v%d, 6, v%d" % (vT0, vT3))
    a("v_lshl_add_u32 v%d, v%d, 3, v%d" % (vT0, vT2, vT0))
    a("v_lshl_add_u32 v%d, v%d, 5, v%d" % (vT0, vT4, vT0))
    for q in range(8):
        ks, u = q >> 1, q & 1
        a("v_add_u32 v%d, %d, v%d" % (vW1[q], b0 + OWQ + (16 * ks + 4 * u) * 64, vT0))
    a.label("L_W1_E")
    for r in list(range(vC, vC + 16)) + list(range(vO + 8, vO + 16)):
        a("v_mov_b32 v%d, 0" % r)
    a("v_mov_b32 v%d, v%d" % (vKa, vL16))
    a("v_lshrrev_b32 v%d, 5, v0" % vT0)
    a("v_and_b32 v%d, 15, v0" % vT1)
    a("v_lshlrev_b32 v%d, 8, v%d" % (vT2, vT0))
    a("v_lshl_add_u32 v%d, v%d, 4, v%d" % (vT2, vT1, vT2))
    a("v_add_u32 v%d, 1024, v%d" % (vVa, vT2))
    a("v_and_b32 v%d, 27, v0" % vT0)
    a("v_cmp_eq_u32 vcc, 16, v%d" % vT0)
    a("v_mov_b32 v%d, 0x3f803f80" % vT0)
    a("s_mov_b32 s%d, 0x0000ffff" % sVm)
    a("s_mov_b32 s%d, 0x0000ffff" % (sVm + 1))
    a("v_cndmask_b32 v27, 0, v%d, vcc" % vT0)
    a("v_and_b32 v%d, 31, v0" % vT0)
    a("s_lshr_b32 s%d, s%d, 2" % (sT0, sW))
    a("s_lshl_b32 s%d, s%d, 8" % (sT0, sT0))
    a("s_add_u32 s%d, s%d, %d" % (sT0, sT0, L_GROW))
    a("v_lshl_add_u32 v4, v%d, 2, s%d" % (vT0, sT0))
    a("s_and_b32 s%d, s%d, 3" % (sT0, sW))
    a("s_lshl_b32 s%d, s%d, 1" % (sT0, sT0))
    a("s_lshr_b32 s%d, s%d, 2" % (sT1, sW))
    a("s_add_u32 s%d, s%d, s%d" % (sT0, sT0, sT1))
    a("s_lshl_b32 s%d, s%d, 10" % (sT0, sT0))
    a("s_add_u32 s%d, s%d, %d" % (sT0, sT0, L_QX))
    a("v_add_u32 v5, s%d, v%d" % (sT0, vL16))
    a("v_mov_b32 v6, %d" % L_KMAX)
    a("s_lshr_b32 s%d, s%d, 2" % (sT0, sW))
    a("s_lshl_b32 s%d, s%d, 1" % (sT0, sT0))
    a("s_lshl_b32 s%d, s%d, 2" % (sT1, sMT))
    a("s_add_u32 s%d, s%d, s%d" % (sT0, sT0, sT1))
    a("s_mul_i32 s%d, s%d, 144" % (sT0, sT0))
    a("s_mul_i32 s%d, s%d, 7" % (sT1, sNT))
    a("s_add_u32 s%d, s%d, s%d" % (sT0, sT0, sT1))
    a("s_and_b32 s%d, s%d, 3" % (sT2, sW))
    a("s_lshl_b32 s%d, s%d, 1" % (sT1, sT2))
    a("s_add_u32 s%d, s%d, s%d" % (sT0, sT0, sT1))
    a("s_lshl_b32 s%d, s%d, 10" % (sT0, sT0))
    a("s_add_u32 s%d, s%d, %d" % (sOffA, sT0, WS_AF + 32 * 1024))
    a("s_add_u32 s%d, s%d, %d" % (sOffB, sOffA, 144 * 1024))
    a("s_and_b32 s%d, s%d, 3" % (sT0, sW))
    a("s_lshl_b32 s%d, s%d, 2" % (sT1, sMT))
    a("s_add_u32 s%d, s%d, s%d" % (sT0, sT0, sT1))
    a("s_mul_i32 s%d, s%d, 144" % (sT0, sT0))
    a("s_lshl_b32 s%d, s%d, 1" % (sT1, sNT))
    a("s_add_u32 s%d, s%d, s%d" % (sT0, sT0, sT1))
    a("s_lshr_b32 s%d, s%d, 2" % (sT1, sW))
    a("s_add_u32 s%d, s%d, s%d" % (sT0, sT0, sT1))
    a("s_lshl_b32 s%d, s%d, 10" % (sT0, sT0))
    a("s_add_u32 s%d, s%d, %d" % (sOffC, sT0, WS_AF))
    a("s_and_b32 s%d, s%d, 3" % (sT0, sW))
    a("s_lshl_b32 s%d, s%d, 7" % (sT0, sT0))
    a("s_add_u32 s%d, s%d, %d" % (sT0, sT0, L_GROW))
    a("v_lshl_add_u32 v7, v%d, 2, s%d" % (vT0, sT0))
    a("s_waitcnt lgkmcnt(0)")
    srd(a, SWS, P['ws'], P['ws'] + 1, WS_SIZE)
    srd(a, SOUT, P['out'], P['out'] + 1, 2097152)
    SXm = 48
    mGX, mGW = 128, 132
    srd(a, SXm, P['x'], P['x'] + 1, 2097152)
    srd(a, SE, P['gw'], P['gw'] + 1, 1024)
    a("s_lshl_b32 s%d, s%d, 4" % (sT0, sMT))
    a("s_add_u32 s%d, s%d, s%d" % (sT0, sT0, sNT))
    a("s_lshl_b32 s%d, s%d, 3" % (sT0, sT0))
    a("s_add_u32 s%d, s%d, s%d" % (sT0, sT0, sW))
    a("s_lshl_b32 s%d, s%d, 10" % (sT0, sT0))
    a("s_lshl_b32 s%d, s%d, 2" % (sT1, sW))
    a("s_add_u32 s%d, s%d, %d" % (sT1, sT1, L_G8))
    a("v_mov_b32 v%d, s%d" % (vGq, sT1))

    def g_loads():
        a("buffer_load_dwordx4 v[%d:%d], v%d, s[%d:%d], s%d offen" % (mGX, mGX + 3, vL16, SXm, SXm + 3, sT0))
        a("buffer_load_dwordx4 v[%d:%d], v%d, s[%d:%d], 0 offen" % (mGW, mGW + 3, vL16, SE, SE + 3))

    def g_job():
        a("s_waitcnt vmcnt(0)")
        a("v_mov_b32 v%d, 0" % vT0)
        for j in range(4):
            a("v_dot2_f32_bf16 v%d, v%d, v%d, v%d" % (vT0, mGX + j, mGW + j, vT0))
        for r in range(8):
            a("v_mov_b32 v%d, 0" % (vO + r))
        a("v_mov_b32 v%d, v%d" % (vT1, vT0))
        wave_reduce(a, "v_add_f32", vT1)
        a("v_mul_f32 v%d, 0x%08x, v%d" % (vT1, f32bits(-math.log2(math.e)), vT1))
        a("v_exp_f32 v%d, v%d" % (vT1, vT1))
        a.nop(1)
        a("v_add_f32 v%d, 1.0, v%d" % (vT1, vT1))
        a("v_rcp_f32 v%d, v%d" % (vT1, vT1))
        a("s_mov_b32 exec_lo, 0")
        a("s_mov_b32 exec_hi, 0x80000000")
        a("ds_write_b32 v%d, v%d" % (vGq, vT1))
        a("s_mov_b64 exec, -1")

    def rd_list(ks, fs):
        f = FR[fs]
        return [
            "ds_read_b128 v[%d:%d], v%d" % (f, f + 3, vXr[ks]),
            "ds_read_b64_tr_b16 v[%d:%d], v%d offset:%d" % (f + 8, f + 9, vW0, (16 * ks) * 224),
            "ds_read_b64_tr_b16 v[%d:%d], v%d offset:%d" % (f + 10, f + 11, vW0, (16 * ks + 4) * 224),
            "ds_read_b128 v[%d:%d], v%d offset:4096" % (f + 4, f + 7, vXr[ks]),
            "ds_read_b64_tr_b16 v[%d:%d], v%d" % (f + 12, f + 13, vW1[2 * ks]),
            "ds_read_b64_tr_b16 v[%d:%d], v%d" % (f + 14, f + 15, vW1[2 * ks + 1]),
        ]

    def mfmas(fs, first):
        f = FR[fs]
        out = []
        for an in (0, 1):
            for i in (0, 1):
                acc = ACC + (an * 2 + i) * 16
                c = "0" if first else "v[%d:%d]" % (acc, acc + 15)
                if os.environ.get("M16"):
                    o = acc + 8 * fs
                    out.append("v_mfma_f32_16x16x32_bf16 v[%d:%d], v[%d:%d], v[%d:%d], v[%d:%d]\n    v_mfma_f32_16x16x32_bf16 v[%d:%d], v[%d:%d], v[%d:%d], v[%d:%d]" % (
                        o, o + 3, f + 8 + an * 4, f + 11 + an * 4, f + i * 4, f + i * 4 + 3, o, o + 3,
                        o + 4, o + 7, f + 8 + an * 4, f + 11 + an * 4, f + (i ^ 1) * 4, f + (i ^ 1) * 4 + 3, o + 4, o + 7))
                    continue
                out.append("%s v[%d:%d], v[%d:%d], v[%d:%d], %s" % (MFMA, acc, acc + 15, f + 8 + an * 4, f + 11 + an * 4,
                                                                   f + i * 4, f + i * 4 + 3, c))
        return out

    def adv(s, regs):
        d = PB[(s + 1) % 3] - PB[s % 3]
        return ["v_add_u32 v%d, %d, v%d" % (r, d, r) if d >= 0 else "v_subrev_u32 v%d, %d, v%d" % (r, -d, r) for r in regs]

    if PFSPLIT:
        a("s_cmp_lt_u32 s2, %d" % PFSPLIT)
        a("s_cbranch_scc1 L_PF2E")
        a("s_cmp_eq_u32 s%d, 7" % sW)
        a("s_cbranch_scc1 L_PF2E")
        wpf()
        a.label("L_PF2E")
    if os.environ.get("M16"):
        for r in range(64):
            a("v_mov_b32 v%d, 0" % (ACC + r))
    stamp("pro")
    a("s_barrier")
    stamp("bar0")
    emit(rd_list(0, 0))
    fs = 0
    for s in range(8):
        for ks in range(4):
            ms = mfmas(fs, s == 0 and ks == 0)
            if ks < 3:
                nxt = rd_list(ks + 1, fs ^ 1)
                for q in range(4):
                    if q < 3:
                        a("s_waitcnt lgkmcnt(%d)" % (3 if q == 0 else 4))
                    a(ms[q])
                    emit(nxt[2 * q:2 * q + 2])
                    if s < 7 and q == 3:
                        regs = [vXr[ks], vW1[2 * ks], vW1[2 * ks + 1]]
                        if ks == 2:
                            regs += [vXr[3], vW1[6], vW1[7], vW0]
                        emit(adv(s, regs))
            else:
                if s < 7:
                    a("s_waitcnt lgkmcnt(3)")
                    a(ms[0])
                    a("s_waitcnt lgkmcnt(0)")
                    stamp("s%dv" % s)
                    a("s_barrier")
                    stamp("s%db" % s)
                    nxt = rd_list(0, fs ^ 1)
                    emit(nxt[0:3])
                    a(ms[1])
                    emit(nxt[3:6])
                    a(ms[2])
                    a(ms[3])
                    if s == 1:
                        g_job()
                else:
                    a("ds_read_b32 v%d, v4" % vGm[0])
                    a("ds_read_b32 v%d, v4 offset:128" % vGm[1])
                    a("ds_read_b32 v%d, v7" % vGq)
                    a("s_waitcnt lgkmcnt(6)")
                    a(ms[0])
                    a("s_waitcnt lgkmcnt(3)")
                    emit(ms[1:])
            fs ^= 1
    stamp("g1end")
    a("s_bitcmp1_b32 s%d, 1" % sW)
    a("s_cselect_b64 vcc, -1, 0")
    a("v_mov_b32 v8, -1")
    a("v_mov_b32 v9, -1")
    a("v_mov_b32 v10, -1")
    a("v_mov_b32 v11, -1")
    a("s_waitcnt lgkmcnt(0)")
    a("buffer_store_dwordx4 v[8:11], v%d, s[%d:%d], s%d offen sc1" % (vL16, SWS, SWS + 3, sOffC))
    a("v_sub_f32 v%d, 1.0, v%d" % (vGm[0], vGm[0]))
    a("v_sub_f32 v%d, 1.0, v%d" % (vGm[1], vGm[1]))
    a("v_mov_b32 v%d, v%d" % (vGm[0] + 1, vGm[0]))
    a("v_mov_b32 v%d, v%d" % (vGm[1] + 1, vGm[1]))

    def h_tile(an, i, d):
        t = ACC + (an * 2 + i) * 16
        for r in range(0, 8, 2):
            a("v_pk_mul_f32 v[%d:%d], v[%d:%d], v[%d:%d]" % (t + r, t + r + 1, t + r, t + r + 1, t + 8 + r, t + 9 + r))
        for r in range(0, 8, 2):
            a("v_pk_mul_f32 v[%d:%d], v[%d:%d], v[%d:%d]" % (t + r, t + r + 1, t + r, t + r + 1, vGm[i], vGm[i] + 1))
        for j in range(4):
            a("v_cvt_pk_bf16_f32 v%d, v%d, v%d" % (d + j, t + 2 * j, t + 2 * j + 1))
        a("buffer_store_dwordx4 v[%d:%d], v%d, s[%d:%d], s%d offen offset:%d sc1" % (d, d + 3, vL16, SWS, SWS + 3,
                                                                                    sOffA if i == 0 else sOffB, an * 1024))

    a("s_cmp_eq_u32 s%d, 3" % sT2)
    a("s_cbranch_scc1 L_EPI_Q")
    h_tile(1, 0, ACC + 40)
    h_tile(1, 1, ACC + 56)
    a("s_branch L_EPI_C")
    a.label("L_EPI_Q")
    a("v_mov_b32 v24, 0x%08x" % f32bits(QSCALE))
    a("v_mov_b32 v25, 0x%08x" % f32bits(QSCALE))
    a("s_lshr_b32 s%d, s%d, 2" % (sT2, sW))
    a("s_lshl_b32 s%d, s%d, 12" % (sT2, sT2))
    a("s_add_u32 s%d, s%d, %d" % (sT2, sT2, L_QX))
    a("v_add_u32 v%d, s%d, v%d" % (vT0, sT2, vL16))
    for i in (0, 1):
        t = ACC + (2 + i) * 16
        for r in range(0, 16, 2):
            a("v_pk_mul_f32 v[%d:%d], v[%d:%d], v[24:25]" % (t + r, t + r + 1, t + r, t + r + 1))
        d = FR[0] + 8 * i
        for j in range(8):
            a("v_cvt_pk_bf16_f32 v%d, v%d, v%d" % (d + j, t + 2 * j, t + 2 * j + 1))
        a("ds_write_b128 v%d, v[%d:%d] offset:%d" % (vT0, d, d + 3, i * 2048))
        a("ds_write_b128 v%d, v[%d:%d] offset:%d" % (vT0, d + 4, d + 7, i * 2048 + 1024))
    a.label("L_EPI_C")
    h_tile(0, 0, ACC + 44)
    h_tile(0, 1, ACC + 60)
    for r in range(16):
        a("v_mov_b32 v%d, v27" % (vVF[0] + r))
    a("v_mov_b32 v%d, v5" % vT0)
    a("v_mov_b32 v%d, v6" % vT1)
    a("s_waitcnt lgkmcnt(0)")
    a("s_barrier")
    stamp("Bq")
    a("ds_read_b128 v[%d:%d], v%d" % (vQ, vQ + 3, vT0))
    a("ds_read_b32 v%d, v%d" % (vT4, vT1))

    inloop = [False]

    def rdK(buf, off):
        if inloop[0] and "nolds" in os.environ.get("X", ""):
            return
        a("ds_read_b128 v[%d:%d], v%d offset:%d" % (vKF[buf], vKF[buf] + 3, vKa, off))

    def rdV(buf, off):
        if inloop[0] and ("nolds" in os.environ.get("X", "") or "nov" in os.environ.get("X", "")):
            return
        ne = "noexec" in os.environ.get("X", "")
        if not ne:
            a("s_mov_b64 exec, s[%d:%d]" % (sVm, sVm + 1))
        a("ds_read_b128 v[%d:%d], v%d offset:%d" % (vVF[buf], vVF[buf] + 3, vVa, off))
        a("ds_read_b128 v[%d:%d], v%d offset:%d" % (vVF[buf] + 4, vVF[buf] + 7, vVa, off + 512))
        if not ne:
            a("s_mov_b64 exec, -1")

    X = os.environ.get("X", "")

    def mS(sbuf, kbuf):
        if "czero" in X:
            a("%s v[%d:%d], v[%d:%d], v[%d:%d], 0" % (MFMA, vS[sbuf], vS[sbuf] + 15, vKF[kbuf], vKF[kbuf] + 3, vQ, vQ + 3))
            return
        a("%s v[%d:%d], v[%d:%d], v[%d:%d], v[%d:%d]" % (MFMA, vS[sbuf], vS[sbuf] + 15, vKF[kbuf], vKF[kbuf] + 3,
                                                        vQ, vQ + 3, vC, vC + 15))

    def mPV(vbuf, t):
        if "nopv" in X:
            return
        if "pv16" in X:
            a("v_mfma_f32_16x16x32_bf16 v[%d:%d], v[%d:%d], v[%d:%d], v[%d:%d]" % (vO + 4 * t, vO + 4 * t + 3, vKF[0], vKF[0] + 3,
                                                        vP + 4 * t, vP + 4 * t + 3, vO + 4 * t, vO + 4 * t + 3))
            return
        a("%s v[%d:%d], v[%d:%d], v[%d:%d], v[%d:%d]" % (MFMA, vO, vO + 15, vVF[vbuf] + 4 * t, vVF[vbuf] + 4 * t + 3,
                                                        vP + 4 * t, vP + 4 * t + 3, vO, vO + 15))

    def E(sb, r):
        a("v_exp_f32 v%d, v%d" % (vS[sb] + r, vS[sb] + r))

    def C(sb, j):
        a("v_cvt_pk_bf16_f32 v%d, v%d, v%d" % (vP + j, vS[sb] + 2 * j, vS[sb] + 2 * j + 1))

    rdK(0, 0)
    rdK(1, KVBLK)
    rdV(0, 0)
    a("s_waitcnt lgkmcnt(4)")
    a("v_mov_b32 v%d, 0" % vT3)
    for j in range(4):
        a("v_dot2_f32_bf16 v%d, v%d, v%d, v%d" % (vT3, vQ + j, vQ + j, vT3))
    a("s_mov_b32 s%d, 0x%08x" % (sT1, f32bits(900.0)))
    a("s_mov_b32 s%d, %d" % (sSkip, {4: 3, 8: 2, 16: 1}[NB]))
    a("s_mov_b32 s%d, 0" % sIt)
    a.nop(1)
    a("v_mov_b32 v%d, v%d" % (vT2, vT3))
    a.nop(2)
    a("v_permlane32_swap_b32 v%d, v%d" % (vT3, vT2))
    a.nop(1)
    a("v_add_f32 v%d, v%d, v%d" % (vT3, vT3, vT2))
    a("v_mul_f32 v%d, v%d, v%d" % (vT3, vT4, vT3))
    a("v_cmp_nge_f32 vcc, s%d, v%d" % (sT1, vT3))
    a("s_cmp_eq_u64 vcc, 0")
    a("s_cbranch_scc1 L_FAST")
    a("s_waitcnt vmcnt(0)")
    a("s_barrier")
    a("s_mov_b32 s%d, 99" % sSkip)
    a("v_mov_b32 v%d, 0xff800000" % vT0)
    a("v_mov_b32 v%d, v%d" % (vT1, vL16))
    a.label("L_MAXLOOP")
    a("ds_read_b128 v[%d:%d], v%d" % (vP, vP + 3, vT1))
    a("v_add_u32 v%d, %d, v%d" % (vT1, KVBLK, vT1))
    a("s_waitcnt lgkmcnt(0)")
    a("%s v[%d:%d], v[%d:%d], v[%d:%d], 0" % (MFMA, vS[0], vS[0] + 15, vP, vP + 3, vQ, vQ + 3))
    a.nop(16)
    for j in range(8):
        a("v_max3_f32 v%d, v%d, v%d, v%d" % (vT0, vS[0] + 2 * j, vS[0] + 2 * j + 1, vT0))
    a("s_add_u32 s%d, s%d, 1" % (sIt, sIt))
    a("s_cmp_lt_u32 s%d, 64" % sIt)
    a("s_cbranch_scc1 L_MAXLOOP")
    a("v_mov_b32 v%d, v%d" % (vT1, vT0))
    a("s_mov_b32 s%d, 0" % sIt)
    a.nop(1)
    a("v_permlane32_swap_b32 v%d, v%d" % (vT0, vT1))
    a.nop(2)
    a("v_max_f32 v%d, v%d, v%d" % (vT0, vT0, vT1))
    for r in range(16):
        a("v_sub_f32 v%d, 0, v%d" % (vC + r, vT0))
    a.label("L_FAST")
    a("s_setprio 1")
    a("s_cmp_lt_u32 s%d, 4" % sW)
    a("s_cbranch_scc0 L_NOPRIO")
    a("s_setprio 2")
    a.label("L_NOPRIO")
    for r in range(12, 16):
        a("v_mov_b32 v%d, 0" % (vS[1] + r))
    a("v_mov_b32 v%d, 0" % (vP + 4))
    a("v_mov_b32 v%d, 0" % (vP + 5))
    a("s_waitcnt lgkmcnt(0)")
    mS(0, 0)
    a.nop(12)
    a.label("L_LOOP")
    inloop[0] = True
    for bb in range(NB):
        p = bb & 1
        off = bb * KVBLK
        if os.environ.get("FLIP") and bb % 4 == 0:
            a("s_setprio 2")
        if os.environ.get("FLIP") and bb % 4 == 2:
            a("s_setprio 1")
        E(p, 0)
        E(p, 1)
        C(p ^ 1, 6)
        C(p ^ 1, 7)
        E(p, 2)
        E(p, 3)
        mPV(p ^ 1, 1)
        rdV(p ^ 1, off + KVBLK)
        E(p, 4)
        E(p, 5)
        C(p, 0)
        C(p, 1)
        a("s_waitcnt lgkmcnt(2)")
        mS(p ^ 1, p ^ 1)
        rdK(p, off + 2 * KVBLK)
        E(p, 6)
        E(p, 7)
        E(p, 8)
        E(p, 9)
        C(p, 2)
        C(p, 3)
        E(p, 10)
        E(p, 11)
        mPV(p, 0)
        E(p, 12)
        E(p, 13)
        C(p, 4)
        C(p, 5)
        E(p, 14)
        E(p, 15)
    a("v_add_u32 v%d, %d, v%d" % (vKa, NB * KVBLK, vKa))
    a("v_add_u32 v%d, %d, v%d" % (vVa, NB * KVBLK, vVa))
    a("s_add_u32 s%d, s%d, 1" % (sIt, sIt))
    a("s_cmp_lg_u32 s%d, s%d" % (sIt, sSkip))
    a("s_cbranch_scc1 L_NOBKV")
    a("s_waitcnt vmcnt(0)")
    a("s_barrier")
    stamp("bkv")
    a.label("L_NOBKV")
    a("s_cmp_lt_u32 s%d, %d" % (sIt, 64 // NB))
    a("s_cbranch_scc1 L_LOOP")
    if os.environ.get("REPEAT"):
        inloop[0] = False
        a("s_cmp_eq_u32 s%d, 98" % sSkip)
        a("s_cbranch_scc1 L_RPT_E")
        a("s_mov_b32 s%d, 98" % sSkip)
        a("s_mov_b32 s%d, 0" % sIt)
        a.nop(16)
        for r in range(16):
            a("v_mov_b32 v%d, 0" % (vO + r))
        a("v_subrev_u32 v%d, %d, v%d" % (vKa, 64 * KVBLK, vKa))
        a("v_subrev_u32 v%d, %d, v%d" % (vVa, 64 * KVBLK, vVa))
        a("s_waitcnt lgkmcnt(0)")
        rdK(0, 0)
        rdK(1, KVBLK)
        rdV(0, 0)
        a("s_branch L_FAST")
        a.label("L_RPT_E")
    C(1, 6)
    C(1, 7)
    a.nop(2)
    mPV(1, 1)
    stamp("attn")
    a.nop(13)
    a("v_rcp_f32 v%d, v%d" % (vT0, vO + 8))
    a("v_lshrrev_b32 v%d, 3, v0" % vT4)
    a("v_mul_f32 v%d, v%d, v%d" % (vT0, vT0, vGq))
    for r in range(8):
        a("v_mul_f32 v%d, v%d, v%d" % (vO + r, vO + r, vT0))
    for j in range(4):
        a("v_cvt_pk_bf16_f32 v%d, v%d, v%d" % (vO + 8 + j, vO + 2 * j, vO + 2 * j + 1))
    a("buffer_store_dwordx4 v[%d:%d], v%d, s[%d:%d], s%d offen sc1" % (vO + 8, vO + 11, vL16, SWS, SWS + 3, sOffC))
    a("s_waitcnt lgkmcnt(0)")
    a("s_barrier")
    stamp("b3")
    vR0, vR1, vOo = 8, 9, 10
    a("s_lshl_b32 s%d, s%d, 3" % (sT0, sW))
    a("v_add_u32 v%d, s%d, v%d" % (vT4, sT0, vT4))
    a("v_and_b32 v%d, 15, v%d" % (vT1, vT4))
    a("v_and_b32 v%d, 7, v0" % vT2)
    a("v_lshlrev_b32 v%d, 1, v%d" % (vT3, vT2))
    a("v_xor_b32 v%d, v%d, v%d" % (vT1, vT1, vT3))
    a("v_lshlrev_b32 v%d, 8, v%d" % (vT3, vT4))
    a("v_lshl_add_u32 v%d, v%d, 4, v%d" % (vR0, vT1, vT3))
    a("v_xor_b32 v%d, 16, v%d" % (vR1, vR0))
    a("v_lshlrev_b32 v%d, 10, v%d" % (vT4, vT4))
    a("v_lshl_add_u32 v%d, v%d, 4, v%d" % (vOo, vT2, vT4))
    a("s_lshl_b32 s%d, s%d, 16" % (sT0, sMB))
    a("s_lshl_b32 s%d, s%d, 7" % (sT1, sNB))
    a("s_add_u32 s%d, s%d, s%d" % (sT0, sT0, sT1))
    a("s_barrier")
    stamp("b4")
    FB = 32
    for k_ in range(4):
        a("ds_read_b128 v[%d:%d], v%d offset:%d" % (FB + 8 * k_, FB + 8 * k_ + 3, vR0, k_ * 16384))
        a("ds_read_b128 v[%d:%d], v%d offset:%d" % (FB + 8 * k_ + 4, FB + 8 * k_ + 7, vR1, k_ * 16384))
    for k_ in range(1, 4):
        a("s_waitcnt lgkmcnt(%d)" % (2 * (3 - k_)))
        for r in range(8):
            a("v_add_f32 v%d, v%d, v%d" % (FB + r, FB + r, FB + 8 * k_ + r))
    for j in range(4):
        a("v_cvt_pk_bf16_f32 v%d, v%d, v%d" % (FB + 8 + j, FB + 2 * j, FB + 2 * j + 1))
    a("buffer_store_dwordx4 v[%d:%d], v%d, s[%d:%d], s%d offen%s" % (FB + 8, FB + 11, vOo, SOUT, SOUT + 3, sT0, os.environ.get("OUTF", "")))
    prof_flush()
    a("s_endpgm")

    role[0] = "H"
    mark1 = len(a.lines)
    vXd0, vXd1 = 2, 3
    vWd = list(range(4, 12))
    vEv = 12
    vPl = 14
    vKX = 32
    vKA = 96
    vGX = 112
    vGW = 120
    a("s_setprio 3")
    a("s_sub_u32 s%d, s%d, 8" % (sH, sW))
    a("s_lshl_b32 s%d, s%d, 12" % (sM0x, sH))
    a("s_lshl_b32 s%d, s%d, 13" % (sM0w, sH))
    a("s_lshl_b32 s%d, s%d, 7" % (sT0, sMT))
    a("s_lshl_b32 s%d, s%d, 5" % (sT1, sH))
    a("s_add_u32 s%d, s%d, s%d" % (sT0, sT0, sT1))
    a("v_lshrrev_b32 v%d, 3, v0" % vT0)
    a("v_add_u32 v%d, s%d, v%d" % (vT0, sT0, vT0))
    a("v_lshlrev_b32 v%d, 10, v%d" % (vT0, vT0))
    a("v_and_b32 v%d, 7, v0" % vT1)
    a("v_lshrrev_b32 v%d, 4, v0" % vT2)
    a("v_xor_b32 v%d, v%d, v%d" % (vT1, vT1, vT2))
    a("v_lshl_add_u32 v%d, v%d, 4, v%d" % (vXd0, vT1, vT0))
    a("v_xor_b32 v%d, 64, v%d" % (vXd1, vXd0))
    a("v_add_u32 v%d, 0x2000, v%d" % (vXd1, vXd1))
    a("s_waitcnt lgkmcnt(0)")
    stamp("karg")
    srd(a, SX, P['x'], P['x'] + 1, 2097152)
    for S, lim, q in ((SA, 2, False), (SB, 2, True), (SC, 1, True)):
        a("s_cmp_lt_u32 s%d, %d" % (sH, lim))
        a("s_cselect_b32 s%d, s%d, s%d" % (S, P['wg'], P['wu']))
        a("s_cselect_b32 s%d, s%d, s%d" % (S + 1, P['wg'] + 1, P['wu'] + 1))
        a("s_mov_b32 s%d, 0x1c0000" % (S + 2))
        if q:
            a("s_cmp_eq_u32 s%d, 3" % sH)
            a("s_cselect_b32 s%d, s%d, s%d" % (S, P['wq'], S))
            a("s_cselect_b32 s%d, s%d, s%d" % (S + 1, P['wq'] + 1, S + 1))
            a("s_cselect_b32 s%d, 0x80000, s%d" % (S + 2, S + 2))
        a("s_mov_b32 s%d, 0x20000" % (S + 3))

    for i in range(4):
        a("s_add_u32 m0, s%d, %d" % (sM0x, PB[0] + OX + i * 1024))
        a("s_movk_i32 s%d, %d" % (sT0, (i >> 1) * 16384))
        a("buffer_load_dwordx4 v%d, s[%d:%d], s%d offen lds" % (vXd1 if i & 1 else vXd0, SX, SX + 3, sT0))

    def w0(j):
        S = SA if j < 4 else (SB if j < 6 else SC)
        a("s_add_u32 m0, s%d, %d" % (sM0w, PB[0] + OWG + j * 1024))
        a("s_nop 0")
        a("buffer_load_dwordx4 v%d, s[%d:%d], 0 offen lds" % (vWd[j], S, S + 3))
    a("s_mul_i32 s%d, s%d, 224" % (sT2, sNT))
    a("s_movk_i32 s%d, 4682" % sT3)
    for j in range(8):
        if j == 4:
            a("s_cmp_eq_u32 s%d, 3" % sH)
            a("s_cbranch_scc1 L_WD_Q")
        a("s_lshl_b32 s%d, s%d, 3" % (sT0, sH))
        a("s_add_u32 s%d, s%d, %d" % (sT0, sT0, j))
        a("s_sub_u32 s%d, s%d, 14" % (sT1, sT0))
        a("s_cmp_ge_u32 s%d, 14" % sT0)
        a("s_cselect_b32 s%d, s%d, s%d" % (sT0, sT1, sT0))
        a("s_cselect_b32 s%d, 6, 0" % sOffA)
        a("s_lshl_b32 s%d, s%d, 6" % (sT0, sT0))
        a("v_add_u32 v%d, s%d, v0" % (vT0, sT0))
        a("v_mul_u32_u24 v%d, s%d, v%d" % (vT1, sT3, vT0))
        a("v_lshrrev_b32 v%d, 16, v%d" % (vT1, vT1))
        a("v_mul_u32_u24 v%d, 14, v%d" % (vT2, vT1))
        a("v_sub_u32 v%d, v%d, v%d" % (vT0, vT0, vT2))
        a("v_add_u32 v%d, s%d, v%d" % (vT0, sOffA, vT0))
        a("v_subrev_u32 v%d, 14, v%d" % (vT2, vT0))
        a("v_min_u32 v%d, v%d, v%d" % (vT0, vT0, vT2))
        a("v_mul_u32_u24 v%d, 0xe00, v%d" % (vT1, vT1))
        a("v_lshl_add_u32 v%d, v%d, 4, v%d" % (vT0, vT0, vT1))
        a("v_add_u32 v%d, s%d, v%d" % (vWd[j], sT2, vT0))
        w0(j)
    a("s_mov_b32 s%d, %d" % (sStepB, 64 * 3584))
    a("s_branch L_WD_E")
    a.label("L_WD_Q")
    a("s_lshl_b32 s%d, s%d, 6" % (sT2, sNT))
    a("v_lshrrev_b32 v%d, 2, v0" % vT0)
    a("v_and_b32 v%d, 3, v0" % vT1)
    a("v_lshlrev_b32 v%d, 10, v%d" % (vT0, vT0))
    a("v_lshl_add_u32 v%d, v%d, 4, v%d" % (vT0, vT1, vT0))
    a("v_add_u32 v%d, s%d, v%d" % (vWd[4], sT2, vT0))
    for j in range(5, 8):
        a("v_add_u32 v%d, %d, v%d" % (vWd[j], (j - 4) * 16384, vWd[4]))
    for j in range(4, 8):
        w0(j)
    a("s_mov_b32 s%d, 65536" % sStepB)
    a.label("L_WD_E")
    def dma_stage(s):
        b = PB[s % 3]
        a("s_mov_b32 s%d, %d" % (sOffA, s * 64 * 3584))
        a("s_mul_i32 s%d, s%d, %d" % (sOffB, sStepB, s))
        for j in range(8):
            S = SA if j < 4 else (SB if j < 6 else SC)
            a("s_add_u32 m0, s%d, %d" % (sM0w, b + OWG + j * 1024))
            if j % 2 == 0:
                i = j // 2
                a("s_movk_i32 s%d, %d" % (sT0, s * 128 + (i >> 1) * 16384))
            else:
                a("s_nop 0")
            a("buffer_load_dwordx4 v%d, s[%d:%d], s%d offen lds" % (vWd[j], S, S + 3, sOffA if j < 4 else sOffB))
            if j % 2 == 0:
                a("s_add_u32 m0, s%d, %d" % (sM0x, b + OX + i * 1024))
                a("s_nop 0")
                a("buffer_load_dwordx4 v%d, s[%d:%d], s%d offen lds" % (vXd1 if i & 1 else vXd0, SX, SX + 3, sT0))

    def kv_dma(first, n):
        for j in range(n):
            off = (first + 4 * j) * 1024
            a("s_add_u32 m0, s%d, %d" % (sKoff, off))
            a("s_add_u32 s%d, s%d, %d" % (sOffA, sKoff, WS_KV + off))
            a("buffer_load_dwordx4 v%d, s[%d:%d], s%d offen sc1 lds" % (vL16, SWS, SWS + 3, sOffA))

    srd(a, SDBG, P['dbg'], P['dbg'] + 1, 256)
    a("s_cmp_lg_u32 s2, 0")
    a("s_cbranch_scc1 L_NOTAG")
    a("s_cmp_lg_u32 s%d, 3" % sH)
    a("s_cbranch_scc1 L_NOTAG")
    a("s_or_b32 s%d, s88, 1" % sT0)
    a("v_mov_b32 v%d, s%d" % (vT0, sT0))
    a("v_mov_b32 v%d, 0" % vT1)
    a("s_mov_b64 exec, 1")
    a("buffer_store_dword v%d, v%d, s[%d:%d], 0 offen sc1" % (vT0, vT1, SDBG, SDBG + 3))
    a("s_mov_b64 exec, -1")
    a.label("L_NOTAG")
    a("s_and_b32 s%d, s%d, 3" % (sRB, sNT))
    a("s_lshr_b32 s%d, s%d, 2" % (sT0, sNT))
    a("s_add_u32 s%d, s%d, 1" % (sKV, sT0))
    a("s_cmp_ge_u32 s%d, 8" % sNT)
    a("s_cselect_b32 s%d, 0, s%d" % (sKV, sKV))
    a("s_cmp_eq_u32 s%d, 1" % sKV)
    a("s_cselect_b32 s%d, s%d, s%d" % (SE, P['wk'], P['wv']))
    a("s_cselect_b32 s%d, s%d, s%d" % (SE + 1, P['wk'] + 1, P['wv'] + 1))
    a("s_mov_b32 s%d, 16384" % (SE + 2))
    a("s_mov_b32 s%d, 0x20000" % (SE + 3))
    a("v_lshrrev_b32 v%d, 4, v0" % vT0)
    a("v_and_b32 v%d, 15, v0" % vT1)
    a("v_xor_b32 v%d, v%d, v%d" % (vT1, vT1, vT0))
    a("v_lshlrev_b32 v%d, 10, v%d" % (vT0, vT0))
    a("v_lshl_add_u32 v18, v%d, 4, v%d" % (vT1, vT0))
    a("s_lshl_b32 s%d, s%d, 2" % (sT0, sMT))
    a("s_add_u32 s%d, s%d, s%d" % (sT0, sT0, sRB))
    a("s_lshl_b32 s%d, s%d, 15" % (sT0, sT0))
    a("s_lshl_b32 s%d, s%d, 8" % (sT1, sH))
    a("s_add_u32 s%d, s%d, s%d" % (sOffC, sT0, sT1))

    def dk():
        for p_ in range(8):
            a("s_add_u32 m0, s%d, %d" % (sM0w, PB[2] + OWG + p_ * 1024))
            a("v_xor_b32 v%d, %d, v18" % (vT0, (p_ & 3) * 64))
            a("s_add_u32 s%d, s%d, %d" % (sT0, sOffC, p_ * 4096))
            a("buffer_load_dwordx4 v%d, s[%d:%d], s%d offen lds" % (vT0, SX, SX + 3, sT0))
        a("s_add_u32 m0, s%d, %d" % (sM0x, PB[2] + OX))
        a("s_nop 0")
        for j in range(4):
            a("buffer_load_dwordx4 v%d, s[%d:%d], s%d offen offset:%d lds" % (vL16, SE, SE + 3, sM0x, j * 1024))
    if DKPOS == 0:
        a("s_cmp_eq_u32 s%d, 0" % sKV)
        a("s_cbranch_scc1 L_NODK")
        dk()
        a.label("L_NODK")
    stamp("d0")
    def dk_d1():
        a("s_cmp_eq_u32 s%d, 0" % sKV)
        a("s_cbranch_scc1 L_NODK1")
        dk()
        a.label("L_NODK1")
        dma_stage(1)
    if not D1LATE:
        dk_d1()
    stamp("d1")
    srd(a, SWS, P['ws'], P['ws'] + 1, WS_SIZE)
    a("s_lshl_b32 s%d, s%d, 10" % (sKoff, sH))
    a("s_lshl_b32 s%d, s%d, 4" % (sSlot, sMT))
    a("s_add_u32 s%d, s%d, s%d" % (sSlot, sSlot, sNT))
    a("s_lshl_b32 s%d, s%d, 7" % (sSlot, sSlot))
    a("s_cmp_eq_u32 s%d, 0" % sH)
    a("s_cselect_b32 s%d, s%d, 0" % (sSkip, sKV))
    a("s_waitcnt vmcnt(%d)" % (0 if D1LATE else 12))
    stamp("w0")
    a("s_barrier")
    if D1LATE:
        dk_d1()
        a("s_waitcnt vmcnt(12)")
    a("v_mov_b32 v%d, 0" % vT0)
    a("buffer_load_dword v%d, v%d, s[%d:%d], 0 offen sc1" % (vEv, vT0, SDBG, SDBG + 3))
    a("s_cmp_eq_u32 s%d, 0" % sKV)
    a("s_cbranch_scc1 L_I0_N")
    a("v_lshrrev_b32 v%d, 5, v0" % vT1)
    a("v_bfe_u32 v%d, v0, 2, 2" % vT2)
    a("v_lshl_add_u32 v%d, v%d, 3, v%d" % (vT3, vT1, vT2))
    a("v_and_b32 v%d, 3, v0" % vT2)
    a("v_lshlrev_b32 v%d, 5, v%d" % (vT3, vT3))
    a("v_lshl_add_u32 v%d, v%d, 3, v%d" % (vT3, vT2, vT3))
    a("s_add_u32 s%d, s%d, %d" % (sT0, sM0x, PB[2] + OX))
    a("v_add_u32 v19, s%d, v%d" % (sT0, vT3))
    a("v_and_b32 v%d, 31, v0" % vT2)
    a("v_and_b32 v%d, 15, v0" % vT3)
    a("v_xor_b32 v%d, v%d, v%d" % (vT1, vT1, vT3))
    a("v_lshlrev_b32 v%d, 8, v%d" % (vT2, vT2))
    a("v_lshl_add_u32 v%d, v%d, 4, v%d" % (vT2, vT1, vT2))
    a("s_add_u32 s%d, s%d, %d" % (sT0, sM0w, PB[2] + OWG))
    a("v_add_u32 v20, s%d, v%d" % (sT0, vT2))
    a("v_and_b32 v%d, 16, v0" % vT1)
    a("v_cmp_eq_u32 vcc, 0, v%d" % vT1)
    vKW = 128
    for ks in range(8):
        a("v_xor_b32 v%d, %d, v20" % (vT0, ks * 32))
        a("ds_read_b128 v[%d:%d], v%d" % (vKX + 4 * ks, vKX + 4 * ks + 3, vT0))
    for ks in range(8):
        if ks in (3, 6):
            a("s_waitcnt lgkmcnt(8)")
        for u in range(2):
            a("ds_read_b64_tr_b16 v[%d:%d], v19 offset:%d" % (vKW + 4 * ks + 2 * u, vKW + 4 * ks + 2 * u + 1, (16 * ks + 4 * u) * 32))
    a("s_waitcnt lgkmcnt(0)")
    dma_stage(2)
    a("s_cmp_eq_u32 s%d, 2" % sKV)
    a("s_cbranch_scc1 L_SJ_V")
    for ks in range(8):
        c = "0" if ks == 0 else "v[%d:%d]" % (vKA, vKA + 15)
        a("%s v[%d:%d], v[%d:%d], v[%d:%d], %s" % (MFMA, vKA, vKA + 15, vKW + 4 * ks, vKW + 4 * ks + 3,
                                                   vKX + 4 * ks, vKX + 4 * ks + 3, c))
    a("s_mov_b64 vcc, -1")
    a("s_branch L_SJ_W")
    a.label("L_SJ_V")
    for ks in range(8):
        c = "0" if ks == 0 else "v[%d:%d]" % (vKA, vKA + 15)
        a("%s v[%d:%d], v[%d:%d], v[%d:%d], %s" % (MFMA, vKA, vKA + 15, vKX + 4 * ks, vKX + 4 * ks + 3,
                                                   vKW + 4 * ks, vKW + 4 * ks + 3, c))
    a.label("L_SJ_W")
    a("s_waitcnt vmcnt(13)")
    a("s_barrier")
    a.nop(10)
    for r in range(8):
        a("v_cndmask_b32 v%d, v%d, v%d, vcc" % (vKA + r, vKA + 8 + r, vKA + r))
    a("s_lshr_b32 s%d, s%d, 1" % (sT0, sM0x))
    a("s_add_u32 s%d, s%d, %d" % (sT0, sT0, L_TOP))
    a("v_add_u32 v%d, s%d, v%d" % (vT1, sT0, vL16))
    a("ds_write_b128 v%d, v[%d:%d]" % (vT1, vKA, vKA + 3))
    a("ds_write_b128 v%d, v[%d:%d] offset:1024" % (vT1, vKA + 4, vKA + 7))
    a("s_branch L_I1")
    a.label("L_I0_N")
    dma_stage(2)
    a("s_waitcnt vmcnt(13)")
    a("s_barrier")
    a.label("L_I1")
    dma_stage(3)
    a("s_waitcnt vmcnt(12) lgkmcnt(0)")
    stamp("w2")
    a("s_barrier")
    a("s_mov_b32 s%d, 0" % sSpin)
    a.label("L_GE_L")
    a("v_readfirstlane_b32 s%d, v%d" % (sE, vEv))
    a("s_cmp_lg_u32 s%d, 0" % sE)
    a("s_cbranch_scc1 L_GE_E")
    spin_tail("L_GE_E")
    a("v_mov_b32 v%d, 0" % vT0)
    a("buffer_load_dword v%d, v%d, s[%d:%d], 0 offen sc1" % (vEv, vT0, SDBG, SDBG + 3))
    a("s_waitcnt vmcnt(0)")
    a("s_branch L_GE_L")
    a.label("L_GE_E")
    a("s_cmp_eq_u32 s%d, 0" % sSkip)
    a("s_cbranch_scc1 L_I2_N")
    a("v_add_u32 v%d, %d, v%d" % (vT2, L_TOP + 2048, vL16))
    for j in range(3):
        a("ds_read_b128 v[%d:%d], v%d offset:%d" % (vKX + 8 * j, vKX + 8 * j + 3, vT2, j * 2048))
        a("ds_read_b128 v[%d:%d], v%d offset:%d" % (vKX + 8 * j + 4, vKX + 8 * j + 7, vT2, j * 2048 + 1024))
    a("s_lshl_b32 s%d, s%d, 2" % (sT0, sMT))
    a("s_add_u32 s%d, s%d, s%d" % (sT0, sT0, sRB))
    a("s_lshl_b32 s%d, s%d, 11" % (sT1, sT0))
    a("s_waitcnt lgkmcnt(0)")
    for j in range(3):
        for r in range(8):
            a("v_add_f32 v%d, v%d, v%d" % (vKA + r, vKA + r, vKX + 8 * j + r))
    for j in range(4):
        a("v_cvt_pk_bf16_f32 v%d, v%d, v%d" % (vKA + 8 + j, vKA + 2 * j, vKA + 2 * j + 1))
    a("s_cmp_eq_u32 s%d, 2" % sKV)
    a("s_cbranch_scc1 L_KF_V")
    a("buffer_store_dwordx4 v[%d:%d], v%d, s[%d:%d], s%d offen offset:%d sc1" % (vKA + 8, vKA + 11, vL16, SWS, SWS + 3, sT1, WS_KV))
    a("v_mov_b32 v%d, 0" % vT1)
    for j in range(4):
        a("v_dot2_f32_bf16 v%d, v%d, v%d, v%d" % (vT1, vKA + 8 + j, vKA + 8 + j, vT1))
    a.nop(3)
    a("v_mov_b32 v%d, v%d" % (vT2, vT1))
    a.nop(2)
    a("v_permlane32_swap_b32 v%d, v%d" % (vT1, vT2))
    a.nop(2)
    a("v_add_f32 v%d, v%d, v%d" % (vPl, vT1, vT2))
    wave_reduce(a, "v_max_f32", vPl)
    a("s_branch L_I2_X")
    a.label("L_KF_V")
    a("v_bfe_u32 v%d, v0, 4, 1" % vT1)
    a("v_lshrrev_b32 v%d, 5, v0" % vT2)
    a("v_lshl_add_u32 v%d, v%d, 1, v%d" % (vT1, vT1, vT2))
    a("v_and_b32 v%d, 15, v0" % vT2)
    a("v_lshlrev_b32 v%d, 8, v%d" % (vT1, vT1))
    a("v_lshl_add_u32 v%d, v%d, 4, v%d" % (vT1, vT2, vT1))
    a("buffer_store_dwordx4 v[%d:%d], v%d, s[%d:%d], s%d offen offset:%d sc1" % (vKA + 8, vKA + 11, vT1, SWS, SWS + 3, sT1, WS_KV + 1024))
    a("v_max3_f32 v%d, |v%d|, |v%d|, |v%d|" % (vT4, vKA, vKA + 1, vKA + 2))
    a("v_max3_f32 v%d, |v%d|, |v%d|, v%d" % (vT4, vKA + 3, vKA + 4, vT4))
    a("v_max3_f32 v%d, |v%d|, |v%d|, v%d" % (vT4, vKA + 5, vKA + 6, vT4))
    a("v_max_f32 v%d, |v%d|, v%d" % (vT4, vKA + 7, vT4))
    a("s_mov_b32 s%d, 0x%08x" % (sT2, f32bits(2.0 ** 60)))
    a("v_cmp_lt_f32 vcc, s%d, v%d" % (sT2, vT4))
    a.nop(1)
    a("s_cmp_lg_u64 vcc, 0")
    a("s_cselect_b32 s%d, 0x7f800000, 0" % sT2)
    a("v_mov_b32 v%d, s%d" % (vPl, sT2))
    a.label("L_I2_X")
    a.label("L_I2_N")
    dma_stage(4)
    a("s_waitcnt vmcnt(12)")
    a("s_cmp_eq_u32 s%d, 0" % sSkip)
    a("s_cbranch_scc1 L_KG_E")
    a("s_lshl_b32 s%d, s%d, 2" % (sT0, sMT))
    a("s_add_u32 s%d, s%d, s%d" % (sT0, sT0, sRB))
    a("s_lshl_b32 s%d, s%d, 1" % (sT0, sT0))
    a("s_add_u32 s%d, s%d, s%d" % (sT0, sT0, sKV))
    a("s_lshl_b32 s%d, s%d, 7" % (sT0, sT0))
    a("s_add_u32 s%d, s%d, %d" % (sT0, sT0, WS_KFL - 128))
    a("v_mov_b32 v%d, s%d" % (vPl + 1, sE))
    a("v_mov_b32 v%d, 0" % vT2)
    a("s_mov_b32 exec_lo, 0")
    a("s_mov_b32 exec_hi, 0x80000000")
    a("buffer_store_dwordx2 v[%d:%d], v%d, s[%d:%d], s%d offen sc1" % (vPl, vPl + 1, vT2, SWS, SWS + 3, sT0))
    a("s_mov_b64 exec, -1")
    a.label("L_KG_E")
    stamp("w3")
    a("s_barrier")
    a("s_cmp_lg_u32 s%d, 1" % sH)
    a("s_cbranch_scc1 L_I3_N")
    a("v_and_b32 v%d, 7, v0" % vT1)
    a("v_lshlrev_b32 v%d, 2, v%d" % (vT1, vT1))
    a("v_add_u32 v%d, %d, v%d" % (vT1, L_G8, vT1))
    a("ds_read_b32 v%d, v%d" % (vPl, vT1))
    a("v_mov_b32 v%d, s%d" % (vPl + 1, sE))
    a("v_lshlrev_b32 v%d, 3, v0" % vT1)
    a("s_add_u32 s%d, s%d, %d" % (sT0, sSlot, WS_G))
    a("s_waitcnt lgkmcnt(0)")
    a("s_mov_b64 exec, 0xff")
    a("buffer_store_dwordx2 v[%d:%d], v%d, s[%d:%d], s%d offen sc1" % (vPl, vPl + 1, vT1, SWS, SWS + 3, sT0))
    a("s_mov_b64 exec, -1")
    a("s_mov_b32 s%d, 1" % sSkip)
    a.label("L_I3_N")
    dma_stage(5)
    a("s_waitcnt vmcnt(13)")
    a("s_cmp_lg_u32 s%d, 0" % sSkip)
    a("s_cbranch_scc1 L_I3_E")
    a("s_waitcnt vmcnt(12)")
    a.label("L_I3_E")
    stamp("w4")
    a("s_barrier")
    dma_stage(6)
    a("s_waitcnt vmcnt(12)")
    stamp("w5")
    a("s_barrier")
    kvpoll = ["buffer_load_dwordx2 v[%d:%d], v%d, s[%d:%d], s%d offen sc1" % (vPl, vPl + 1, vT4, SWS, SWS + 3, sOffC),
              "buffer_load_dwordx2 v[%d:%d], v%d, s[%d:%d], s%d offen offset:128 sc1" % (vPl + 2, vPl + 3, vT4, SWS, SWS + 3, sOffC)]
    dma_stage(7)
    a("s_waitcnt vmcnt(12)")
    stamp("w6")
    a("s_barrier")
    a("s_cmp_lg_u32 s%d, 2" % sH)
    a("s_cbranch_scc1 L_EC_X")
    a("v_lshlrev_b32 v%d, 8, v0" % vT4)
    a("s_mov_b32 s%d, %d" % (sOffC, WS_KFL))
    a("s_mov_b32 s%d, 0" % sSpin)
    a.label("L_EC_L")
    emit(kvpoll)
    a("s_waitcnt vmcnt(0)")
    a("v_cmp_ne_u32 vcc, s%d, v%d" % (sE, vPl + 1))
    a("v_cmp_ne_u32 s[%d:%d], s%d, v%d" % (sT0, sT1, sE, vPl + 3))
    a("s_or_b64 vcc, vcc, s[%d:%d]" % (sT0, sT1))
    a("s_cbranch_scc0 L_EC_E")
    spin_tail("L_EC_E", 2)
    a("s_branch L_EC_L")
    a.label("L_EC_E")
    a("v_max_f32 v%d, v%d, v%d" % (vT1, vPl, vPl + 2))
    wave_reduce(a, "v_max_f32", vT1)
    a("v_mov_b32 v%d, %d" % (vT2, L_KMAX))
    a("s_mov_b32 exec_lo, 0")
    a("s_mov_b32 exec_hi, 0x80000000")
    a("ds_write_b32 v%d, v%d" % (vT2, vT1))
    a("s_mov_b64 exec, -1")
    a("s_waitcnt lgkmcnt(0)")
    a.label("L_EC_X")
    a("s_cmp_lg_u32 s%d, 3" % sH)
    a("s_cbranch_scc1 L_GP_X")
    gl = ["buffer_load_dwordx2 v[%d:%d], v%d, s[%d:%d], s%d offen sc1" % (vPl, vPl + 1, vT3, SWS, SWS + 3, sOffD),
          "buffer_load_dwordx2 v[%d:%d], v%d, s[%d:%d], s%d offen offset:1024 sc1" % (vPl + 2, vPl + 3, vT3, SWS, SWS + 3, sOffD)]
    a("v_lshrrev_b32 v%d, 3, v0" % vT3)
    a("v_and_b32 v%d, 7, v0" % vT1)
    a("v_lshlrev_b32 v%d, 7, v%d" % (vT3, vT3))
    a("v_lshl_add_u32 v%d, v%d, 3, v%d" % (vT3, vT1, vT3))
    a("s_lshl_b32 s%d, s%d, 11" % (sT1, sMT))
    a("s_add_u32 s%d, s%d, %d" % (sOffD, sT1, WS_G))
    a("s_mov_b32 s%d, 0" % sSpin)
    a.label("L_GP_L")
    emit(gl)
    a("s_waitcnt vmcnt(0)")
    a("v_cmp_ne_u32 vcc, s%d, v%d" % (sE, vPl + 1))
    a("v_cmp_ne_u32 s[%d:%d], s%d, v%d" % (sT0, sT1, sE, vPl + 3))
    a("s_or_b64 vcc, vcc, s[%d:%d]" % (sT0, sT1))
    a("s_cbranch_scc0 L_GP_E")
    spin_tail("L_GP_E")
    a("s_branch L_GP_L")
    a.label("L_GP_E")
    a("v_lshlrev_b32 v%d, 2, v0" % vT1)
    a("v_add_u32 v%d, %d, v%d" % (vT1, L_GROW, vT1))
    a("ds_write_b32 v%d, v%d" % (vT1, vPl))
    a("ds_write_b32 v%d, v%d offset:256" % (vT1, vPl + 2))
    a.label("L_GP_X")
    a("s_waitcnt vmcnt(0) lgkmcnt(0)")
    stamp("w7")
    a("s_barrier")
    kv_dma(0, 12)
    vWs, vB0, vB1, vTr0, vTr1, vPa, vPoll = 2, 3, 4, 5, 6, 7, 8
    vFA = 24
    vFB = 32
    AC2 = 64
    vWo = 128
    for r in range(64):
        a("v_mov_b32 v%d, 0" % (AC2 + r))
    a("v_bfe_u32 v%d, v0, 4, 1" % vT1)
    a("v_and_b32 v%d, 7, v0" % vT2)
    a("v_lshlrev_b32 v%d, 2, v%d" % (vT1, vT1))
    a("v_xor_b32 v%d, v%d, v%d" % (vT1, vT1, vT2))
    a("v_lshrrev_b32 v%d, 3, v0" % vT2)
    a("v_lshlrev_b32 v%d, 10, v%d" % (vT2, vT2))
    a("v_lshl_add_u32 v%d, v%d, 4, v%d" % (vT1, vT1, vT2))
    a("s_lshl_b32 s%d, s%d, 14" % (sT0, sH))
    a("s_lshl_b32 s%d, s%d, 7" % (sT1, sNB))
    a("s_add_u32 s%d, s%d, s%d" % (sT0, sT0, sT1))
    a("v_add_u32 v%d, s%d, v%d" % (vWs, sT0, vT1))
    a("v_lshrrev_b32 v%d, 5, v0" % vT0)
    a("v_bfe_u32 v%d, v0, 2, 2" % vT1)
    a("v_lshl_add_u32 v%d, v%d, 2, v%d" % (vT2, vT0, vT1))
    a("v_lshlrev_b32 v%d, 7, v%d" % (vT2, vT2))
    a("v_bfe_u32 v%d, v0, 3, 1" % vT1)
    a("v_lshl_add_u32 v%d, v%d, 6, v%d" % (vT2, vT1, vT2))
    a("v_bfe_u32 v%d, v0, 4, 1" % vT1)
    a("v_lshl_add_u32 v%d, v%d, 5, v%d" % (vT2, vT1, vT2))
    a("v_and_b32 v%d, 3, v0" % vT1)
    a("v_lshl_add_u32 v%d, v%d, 3, v%d" % (vT2, vT1, vT2))
    a("s_add_u32 s%d, s%d, %d" % (sScr, sM0w, L_SCR))
    a("v_add_u32 v%d, s%d, v%d" % (vTr0, sScr, vT2))
    a("v_xor_b32 v%d, 64, v%d" % (vTr1, vTr0))
    a("s_mul_i32 s%d, s%d, 288" % (sT0, sMB))
    a("s_add_u32 s%d, s%d, s%d" % (sT0, sT0, sH))
    a("s_lshl_b32 s%d, s%d, 10" % (sT0, sT0))
    a("s_add_u32 s%d, s%d, %d" % (sT0, sT0, WS_AF))
    a("v_add_u32 v%d, s%d, v%d" % (vB0, sT0, vL16))
    a("v_add_u32 v%d, %d, v%d" % (vB1, 144 * 1024, vB0))
    a("v_and_b32 v%d, 15, v0" % vPa)
    a("v_lshlrev_b32 v%d, 7, v%d" % (vPa, vPa))
    srd(a, SA, P['wd'], P['wd'] + 1, 0x1c0000)
    srd(a, SB, P['wo'], P['wo'] + 1, 0x80000)
    a("s_waitcnt vmcnt(0)")
    stamp("w8")
    a("s_barrier")
    kv_dma(48, 20)
    if PREF:
        a("s_mul_i32 s%d, s2, 7168" % sT0)
        a("s_lshl_b32 s%d, s%d, 11" % (sT1, sH))
        a("s_add_u32 s%d, s%d, s%d" % (sT0, sT0, sT1))
        a("buffer_load_dwordx4 v[160:163], v%d, s[%d:%d], s%d offen" % (vL16, SA, SA + 3, sT0))
        a("buffer_load_dwordx4 v[160:163], v%d, s[%d:%d], s%d offen offset:1024" % (vL16, SA, SA + 3, sT0))
        a("s_lshl_b32 s%d, s2, 11" % sT0)
        a("s_lshl_b32 s%d, s%d, 9" % (sT1, sH))
        a("s_add_u32 s%d, s%d, s%d" % (sT0, sT0, sT1))
        a("s_mov_b64 exec, 0xffffffff")
        a("buffer_load_dwordx4 v[160:163], v%d, s[%d:%d], s%d offen" % (vL16, SB, SB + 3, sT0))
        a("s_mov_b64 exec, -1")
    a("s_waitcnt vmcnt(0)")
    stamp("w9")
    a("s_barrier")
    stamp("bkv")
    a("s_setprio %d" % HPRIO)
    a("s_cmp_lg_u32 s%d, 0" % sH)
    a("s_cbranch_scc1 L_NOHF")
    a("v_mov_b32 v%d, 0" % vT3)
    a("v_mov_b32 v%d, s%d" % (vT2, sE))
    a("s_add_u32 s%d, s%d, %d" % (sT0, sSlot, WS_HFL))
    a("s_mov_b64 exec, 1")
    a("buffer_store_dword v%d, v%d, s[%d:%d], s%d offen sc1" % (vT2, vT3, SWS, SWS + 3, sT0))
    a("s_mov_b64 exec, -1")
    a.label("L_NOHF")

    def w_dma(S, slot, soff, extra):
        for u in range(2):
            a("s_add_u32 m0, s%d, %d" % (sScr, slot * 2048 + u * 1024))
            if soff is None:
                a("s_mov_b32 s%d, %d" % (sT0, extra + u * 8192))
            else:
                a("s_add_u32 s%d, s%d, %d" % (sT0, soff, extra + u * 8192))
            a("buffer_load_dwordx4 v%d, s[%d:%d], s%d offen lds" % (vWs, S, S + 3, sT0))

    def b_loads(slot, soff, extra):
        a("s_add_u32 s%d, s%d, %d" % (sT0, soff, extra))
        a("buffer_load_dwordx4 v[%d:%d], v%d, s[%d:%d], s%d offen sc1" % (vFB + 8 * slot, vFB + 8 * slot + 3, vB0, SWS, SWS + 3, sT0))
        a("buffer_load_dwordx4 v[%d:%d], v%d, s[%d:%d], s%d offen sc1" % (vFB + 8 * slot + 4, vFB + 8 * slot + 7, vB1, SWS, SWS + 3, sT0))

    def tr_reads(dst, slot):
        for an, ad in enumerate((vTr0, vTr1)):
            for u in range(2):
                a("ds_read_b64_tr_b16 v[%d:%d], v%d offset:%d" % (dst + 4 * an + 2 * u, dst + 4 * an + 2 * u + 1, ad,
                                                                 slot * 2048 + u * 1024))

    def m1(fa, fb, an, i):
        acc = AC2 + (an * 2 + i) * 16
        a("%s v[%d:%d], v[%d:%d], v[%d:%d], v[%d:%d]" % (MFMA, acc, acc + 15, fa + 4 * an, fa + 4 * an + 3,
                                                        fb + 4 * i, fb + 4 * i + 3, acc, acc + 15))

    def mm(fa, fb):
        for an in (0, 1):
            for i in (0, 1):
                m1(fa, fb, an, i)

    a("s_lshl_b32 s%d, s%d, 14" % (sOffD, sH))
    for j in range(4):
        w_dma(SB, j, sOffD, j * 131072)
    a("s_waitcnt vmcnt(0)")
    for j in range(4):
        tr_reads(vWo + 8 * j, j)
        a("s_waitcnt lgkmcnt(4)")
    a("s_waitcnt lgkmcnt(0)")
    a("s_lshr_b32 s%d, s%d, 1" % (sT0, sMB))
    a("s_lshl_b32 s%d, s%d, 11" % (sT0, sT0))
    a("s_add_u32 s%d, s%d, %d" % (sOffA, sT0, WS_HFL))
    a("s_mov_b32 s%d, 0" % sSpin)
    a.label("L_HP_L")
    a("buffer_load_dword v%d, v%d, s[%d:%d], s%d offen sc1" % (vPoll, vPa, SWS, SWS + 3, sOffA))
    a("s_waitcnt vmcnt(0)")
    a("v_cmp_ne_u32 vcc, s%d, v%d" % (sE, vPoll))
    a("s_cmp_eq_u64 vcc, 0")
    a("s_cbranch_scc1 L_HP_E")
    spin_tail("L_HP_E", 4)
    a("s_branch L_HP_L")
    a.label("L_HP_E")
    stamp("hpoll")
    a("s_mov_b32 s%d, 0" % sOffB)
    a("s_mov_b32 s%d, %d" % (sOffC, 8 * 4096))
    for j in range(4):
        w_dma(SA, j, sOffB, j * 65536)
        b_loads(j, sOffC, j * 4096)
    a("s_mov_b32 s%d, 0" % sIt)
    a.label("L_FFN")
    for j in range(4):
        a("s_waitcnt vmcnt(12)")
        tr_reads(vFA, j)
        a("s_waitcnt lgkmcnt(0)")
        fb = vFB + 8 * j
        m1(vFA, fb, 0, 0)
        a("s_add_u32 m0, s%d, %d" % (sScr, j * 2048))
        a("s_add_u32 s%d, s%d, %d" % (sT0, sOffB, (4 + j) * 65536))
        a("buffer_load_dwordx4 v%d, s[%d:%d], s%d offen lds" % (vWs, SA, SA + 3, sT0))
        m1(vFA, fb, 1, 0)
        a("s_add_u32 m0, s%d, %d" % (sScr, j * 2048 + 1024))
        a("s_add_u32 s%d, s%d, %d" % (sT0, sOffB, (4 + j) * 65536 + 8192))
        a("buffer_load_dwordx4 v%d, s[%d:%d], s%d offen lds" % (vWs, SA, SA + 3, sT0))
        m1(vFA, fb, 0, 1)
        a("s_add_u32 s%d, s%d, %d" % (sT0, sOffC, (4 + j) * 4096))
        a("buffer_load_dwordx4 v[%d:%d], v%d, s[%d:%d], s%d offen sc1" % (fb, fb + 3, vB0, SWS, SWS + 3, sT0))
        m1(vFA, fb, 1, 1)
        a("buffer_load_dwordx4 v[%d:%d], v%d, s[%d:%d], s%d offen sc1" % (fb + 4, fb + 7, vB1, SWS, SWS + 3, sT0))
    a("s_add_u32 s%d, s%d, %d" % (sOffB, sOffB, 4 * 65536))
    a("s_add_u32 s%d, s%d, %d" % (sOffC, sOffC, 4 * 4096))
    a("s_add_u32 s%d, s%d, 1" % (sIt, sIt))
    a("s_cmp_lt_u32 s%d, %d" % (sIt, int(os.environ.get("NFFN", "7"))))
    a("s_cbranch_scc1 L_FFN")
    a("s_waitcnt vmcnt(0)")
    stamp("ffn")
    for j in range(4):
        w_dma(SB, j, sOffD, j * 131072 + 16384)
    a("v_and_b32 v%d, 31, v0" % vT0)
    a("v_lshrrev_b32 v%d, 5, v0" % vT1)
    a("v_and_b32 v%d, 15, v0" % vT3)
    a("v_xor_b32 v%d, v%d, v%d" % (vT1, vT1, vT3))
    a("v_lshlrev_b32 v%d, 8, v%d" % (vT0, vT0))
    a("v_lshl_add_u32 v%d, v%d, 4, v%d" % (vT0, vT1, vT0))
    a("s_lshl_b32 s%d, s%d, 14" % (sT1, sH))
    a("v_add_u32 v%d, s%d, v%d" % (vT0, sT1, vT0))
    for q in range(8):
        a("v_xor_b32 v%d, %d, v%d" % (9 + q, q * 32, vT0))
    a("s_lshl_b32 s%d, s%d, 10" % (sOffC, sH))
    for e in range(2):
        if e == 1:
            a("s_setprio 3")
            a("s_barrier")
            stamp("b3")
        a("s_mov_b32 s%d, 0" % sSpin)
        a.label("L_OP%d_L" % e)
        for j in range(4):
            b_loads(j, sOffC, j * 8192 + e * 1024)
        a("s_waitcnt vmcnt(0)")
        a("v_max3_u32 v%d, v%d, v%d, v%d" % (vT0, vFB, vFB + 1, vFB + 2))
        a("v_max3_u32 v%d, v%d, v%d, v%d" % (vT1, vFB + 3, vFB + 4, vFB + 5))
        for r in range(6, 30, 4):
            a("v_max3_u32 v%d, v%d, v%d, v%d" % (vT0, vFB + r, vFB + r + 1, vT0))
            a("v_max3_u32 v%d, v%d, v%d, v%d" % (vT1, vFB + r + 2, vFB + r + 3, vT1))
        a("v_max3_u32 v%d, v%d, v%d, v%d" % (vT0, vFB + 30, vFB + 31, vT0))
        a("v_max_u32 v%d, v%d, v%d" % (vT0, vT0, vT1))
        a("v_cmp_eq_u32 vcc, -1, v%d" % vT0)
        a("s_cmp_eq_u64 vcc, 0")
        a("s_cbranch_scc1 L_OP%d_E" % e)
        spin_tail("L_OP%d_E" % e, int(os.environ.get("ASLEEP", "32")) if e == 0 else OSLEEP)
        a("s_branch L_OP%d_L" % e)
        a.label("L_OP%d_E" % e)
        stamp("op%d" % (0 if e == 0 else 7))
        if e == 0:
            for j in range(4):
                mm(vWo + 8 * j, vFB + 8 * j)
            for j in range(4):
                tr_reads(vWo + 8 * j, j)
                a("s_waitcnt lgkmcnt(4)")
            a("s_waitcnt lgkmcnt(0)")
    tiles = [(0, 0), (0, 1), (1, 0), (1, 1)]

    def wr(an, i):
        for q in range(4):
            acc = AC2 + (an * 2 + i) * 16 + 4 * q
            a("ds_write_b128 v%d, v[%d:%d] offset:%d" % (9 + an * 4 + q, acc, acc + 3, i * 8192))
    for t, (an, i) in enumerate(tiles):
        for j in range(4):
            m1(vWo + 8 * j, vFB + 8 * j, an, i)
        if t > 0:
            a.nop(9)
            wr(*tiles[t - 1])
    a.nop(9)
    a("s_waitcnt lgkmcnt(8)")
    wr(*tiles[3])
    a("s_waitcnt lgkmcnt(0)")
    stamp("pw")
    a("s_barrier")
    prof_flush()
    a.label("L_END")
    a("s_endpgm")
    a.lines = a.lines[:mark0] + a.lines[mark1:] + a.lines[mark0:mark1]
    a.label("L_CODE_END")
    if PROF:
        open("stamps.txt", "w").write(" ".join(stamp_names["M"]) + "\n" + " ".join(stamp_names["H"]))
    kernel_desc(a, name, 168, 102)
    return "; @launch grid=(256,1,1) block=(768,1,1) lds=%d" % LDS_BYTES


def main():
    out = sys.argv[1] if len(sys.argv) > 1 else "cdna_kernels/%s.s" % NAME
    a = Asm()
    a.raw(".amdgcn_target \"amdgcn-amd-amdhsa--gfx950\"")
    launch = gen(a)
    hdr = ["; generated by work/gen5.py (hand-designed kernel, laid out by script)", launch]
    open(out, "w").write("\n".join(hdr) + "\n" + a.text())


if __name__ == "__main__":
    main()
```
